```python
import torch

def _softmax(x, axis=-1):
    return torch.softmax(x, dim=axis)

def _gelu(x):
    return torch.nn.functional.gelu(x, approximate='tanh')

def _silu(x):
    return torch.nn.functional.silu(x)

def _sigmoid(x):
    return torch.sigmoid(x)

def _layernorm(x, axis=-1, eps=1e-05):
    m = x.mean(dim=axis, keepdim=True)
    v = x.var(dim=axis, keepdim=True, unbiased=False)
    return (x - m) / torch.sqrt(v + eps)

def _scatter_add(tgt, idx, src, axis=0):
    return tgt.clone().index_add_(axis, idx, src)

def _segment_sum(src, seg, n):
    out = torch.zeros((n,) + src.shape[1:], dtype=src.dtype)
    return out.index_add_(0, seg, src)

def _pad(x, pw):
    flat = tuple((v for pair in reversed(pw) for v in pair))
    return torch.nn.functional.pad(x, flat)
kernel_name = 'adaLN_cond__gqa_block_cached__glu_gated_bilinear__decode'

def setup_inputs():

    _w = lambda a: (lambda t: t.to(torch.bfloat16) if t.is_floating_point() else t)(torch.as_tensor(a))

    def _A_setup():
        B, Sq, D = (4, 1, 640)
        Hq, Hkv, Sk, Dh = (32, 32, 4096, 192)
        assert Hq % Hkv == 0, (Hq, Hkv)
        return {'x': _w((lambda *s: torch.randn(*s, dtype=torch.bfloat16) * 0.1)(B, Sq, D)), 'k_cache': _w((lambda *s: torch.randn(*s, dtype=torch.bfloat16) * 0.8)(B, Hkv, Sk, Dh)), 'v_cache': _w((lambda *s: torch.randn(*s, dtype=torch.bfloat16) * 3.2)(B, Hkv, Sk, Dh)), 'wq': _w((lambda *s: torch.randn(*s, dtype=torch.bfloat16) * 0.8)(D, Hq * Dh) * D ** (-0.5)), 'wo': _w((lambda *s: torch.randn(*s, dtype=torch.bfloat16) * 3.2)(Hq * Dh, D) * (Hq * Dh) ** (-0.5))}
    _A_in = _A_setup()

    def _B_setup():
        B, S, D, F = (4, 1, 640, 1536)
        return {'x': _w((lambda *s: torch.randn(*s, dtype=torch.bfloat16) * 0.1)(B, S, D)), 'w_gate': _w((lambda *s: torch.randn(*s, dtype=torch.bfloat16) * 3.2)(D, F) * D ** (-0.5)), 'w_up': _w((lambda *s: torch.randn(*s, dtype=torch.bfloat16) * 3.2)(D, F) * D ** (-0.5)), 'w_down': _w((lambda *s: torch.randn(*s, dtype=torch.bfloat16) * 3.2)(F, D) * F ** (-0.5))}
    _B_in = _B_setup()
    return {'A_x': _A_in['x'], 'A_k_cache': _A_in['k_cache'], 'A_v_cache': _A_in['v_cache'], 'A_wq': _A_in['wq'], 'A_wo': _A_in['wo'], 'B_x': _B_in['x'], 'B_w_gate': _B_in['w_gate'], 'B_w_up': _B_in['w_up'], 'B_w_down': _B_in['w_down'], 'c': _w((lambda *s: torch.randn(*s, dtype=torch.bfloat16) * 0.4)(4, 640) * 8.0), 'w_mod': _w((lambda *s: torch.randn(*s, dtype=torch.bfloat16) * 0.4)(640, 6 * 640) * 640 ** (-0.5) * 8.0)}

def reference(A_x, A_k_cache, A_v_cache, A_wq, A_wo, B_x, B_w_gate, B_w_up, B_w_down, c, w_mod):

    def _A_ref(x, k_cache, v_cache, wq, wo):
        B, Sq, D = x.shape
        Hq, Dh = (32, 192)
        Hkv = k_cache.shape[1]
        rep = Hq // Hkv
        q = (lambda x, *d: x.permute(*d))((x @ wq).reshape(B, Sq, Hq, Dh), 0, 2, 1, 3)
        k = (lambda x, n, axis: torch.repeat_interleave(x, n, dim=axis))(k_cache, rep, axis=1)
        v = (lambda x, n, axis: torch.repeat_interleave(x, n, dim=axis))(v_cache, rep, axis=1)
        scores = torch.einsum('bhqd,bhkd->bhqk', q, k) * Dh ** (-0.5)
        p = _softmax(scores, axis=-1)
        o = torch.einsum('bhqk,bhkd->bhqd', p, v)
        return (lambda x, *d: x.permute(*d))(o, 0, 2, 1, 3).reshape(B, Sq, Hq * Dh) @ wo

    def _B_ref(x, w_gate, w_up, w_down):
        g = torch.einsum('bsd,df->bsf', x, w_gate)
        u = torch.einsum('bsd,df->bsf', x, w_up)
        h = g * u
        return torch.einsum('bsf,fd->bsd', h, w_down)
    x = A_x
    mod = (_silu(c) @ w_mod).reshape(c.shape[0], 6, 1, -1)
    sa, ca, ga, sb, cb, gb = (mod[:, 0].clone(), mod[:, 1].clone(), mod[:, 2].clone(), mod[:, 3].clone(), mod[:, 4].clone(), mod[:, 5].clone())
    h = _layernorm(x, axis=-1) * (1 + ca) + sa
    x = x + ga * _A_ref(h, A_k_cache, A_v_cache, A_wq, A_wo)
    h = _layernorm(x, axis=-1) * (1 + cb) + sb
    x = x + gb * _B_ref(h, B_w_gate, B_w_up, B_w_down)
    return x
```

```python
import sys, argparse

NAME = "adaLN_cond__gqa_block_cached__glu_gated_bilinear__decode"
KERNEL = NAME + "_kernel"

WS_EPOCH = 0
MODBUF = 0x1000
QBUF   = 0x10000
MLBUF  = 0x28000
X1BUF  = 0x2C000
HBUF   = 0x30000
ABUF   = 0x40000
OBUF   = 0x100000
STAMPS = 0x200000
WS_SIZE = 0x400000

RING_W = 36864
SC     = 147456
MISC   = 155648
AVEC   = MISC
QL     = MISC + 5120
ML     = MISC + 6656
FLAGS  = MISC + 6720
LDS_TOTAL = 163840
F_SYNCA, F_SYNCR, F_Q, F_KD, F_ML, F_VE = 0, 4, 8, 24, 40, 56
RED2   = 0
HST    = 16384

S_X, S_K, S_V, S_WQ, S_WO, S_BX, S_G, S_U, S_DN, S_C, S_WM, S_OUT, S_DBG, S_WS = range(4, 32, 2)
S_TAG, S_W, S_H, S_J = 32, 33, 34, 35
SRD_A, SRD_WS, SRD_B, SRD_C = 36, 40, 44, 48
S_SPIN, S_SELLO, S_SELHI = 96, 97, 98
S_STAMP0 = 72

SCALE = 0x3d93cd3a
LOG2E = 0x3fb8aa3b
EPS = 0x3727c5ac
INV640 = 0x3acccccd
NINF = 0xff800000
TAGINC = 0x9E3779B9


def v(i): return f"v{i}"
def vr(i, n): return f"v[{i}:{i+n-1}]"
def s(i): return f"s{i}"
def sr(i, n): return f"s[{i}:{i+n-1}]"


class Gen:
    def __init__(self, D=3, diag=False, spin=400000):
        self.L = []
        self.nl = 0
        self.D = D
        self.diag = diag
        self.spin = spin
        self.nstamp = 0

    def e(self, *lines):
        for l in lines:
            self.L.append("    " + l)

    def c(self, text):
        self.L.append("    ; " + text)

    def label(self, name):
        self.L.append(name + ":")

    def new(self, base):
        self.nl += 1
        return f"L{base}_{self.nl}"

    def srd(self, dst, ptr, size):
        self.e(f"s_mov_b32 {s(dst)}, {s(ptr)}",
               f"s_and_b32 {s(dst+1)}, {s(ptr+1)}, 0xffff",
               f"s_mov_b32 {s(dst+2)}, {size}",
               f"s_mov_b32 {s(dst+3)}, 0x20000")

    def stamp(self, k):
        if not self.diag:
            return
        assert k < 16
        self.e("s_memrealtime s[88:89]", "s_waitcnt lgkmcnt(0)", f"s_mov_b32 {s(S_STAMP0+k)}, s88")

    def stamps_store(self):
        if not self.diag:
            return
        self.e("s_mov_b64 exec, -1")
        self.e("v_mov_b32 v250, 0")
        for k in range(16):
            self.e(f"v_writelane_b32 v250, {s(S_STAMP0+k)}, {k}")
        self.e("v_mbcnt_lo_u32_b32 v251, -1, 0", "v_mbcnt_hi_u32_b32 v251, -1, v251",
               "v_lshlrev_b32 v251, 2, v251",
               "s_lshl_b32 s88, s99, 6", f"s_add_u32 s88, s88, {STAMPS}",
               "s_mov_b64 exec, 0xffff",
               f"buffer_store_dword v250, v251, {sr(SRD_WS,4)}, s88 offen",
               "s_waitcnt vmcnt(0)")

    def spin_check(self):
        self.e(f"s_sub_u32 {s(S_SPIN)}, {s(S_SPIN)}, 1", "s_cbranch_scc1 Labort")

    def allreduce(self, op, x, t):
        for r in (8, 4, 2, 1):
            self.e("s_nop 1", f"v_{op}_f32_dpp {v(x)}, {v(x)}, {v(x)} row_ror:{r} row_mask:0xf bank_mask:0xf")
        self.e(f"v_mov_b32 {v(t)}, {v(x)}", "s_nop 1", f"v_permlane16_swap_b32 {v(t)}, {v(x)}",
               f"v_{op}_f32 {v(x)}, {v(t)}, {v(x)}")
        self.e(f"v_mov_b32 {v(t)}, {v(x)}", "s_nop 1", f"v_permlane32_swap_b32 {v(t)}, {v(x)}",
               f"v_{op}_f32 {v(x)}, {v(t)}, {v(x)}")

    def unpack(self, lo, hi, src):
        self.e(f"v_lshlrev_b32 {v(lo)}, 16, {v(src)}", f"v_and_b32 {v(hi)}, 0xffff0000, {v(src)}")

    def round2(self, a, b, t):
        self.e(f"v_cvt_pk_bf16_f32 {v(t)}, {v(a)}, {v(b)}")
        self.unpack(a, b, t)

    def lds_flag_set(self, vfl, off, vone):
        self.e("s_mov_b64 exec, 1", f"ds_write_b32 {v(vfl)}, {v(vone)} offset:{off}", "s_mov_b64 exec, -1")

    def lds_wait(self, vfl, off, vt, target, sleep=1, body=None):
        l = self.new("w")
        d = self.new("wd")
        self.label(l)
        if body:
            body()
        self.e(f"ds_read_b32 {v(vt)}, {v(vfl)} offset:{off}", "s_waitcnt lgkmcnt(0)",
               f"v_readfirstlane_b32 s90, {v(vt)}", "s_nop 0",
               f"s_cmp_ge_u32 s90, {target}", f"s_cbranch_scc1 {d}")
        if sleep:
            self.e(f"s_sleep {sleep}")
        self.spin_check()
        self.e(f"s_branch {l}")
        self.label(d)

    def sync4(self, vfl, off, vone, vt):
        self.e("s_mov_b64 exec, 1", f"ds_add_u32 {v(vfl)}, {v(vone)} offset:{off}", "s_mov_b64 exec, -1")
        self.lds_wait(vfl, off, vt, 4, sleep=0)

    def tagcheck(self, regs, acc, tmp, retry):
        first = True
        i = 0
        while i < len(regs):
            if first:
                self.e(f"v_xor_b32 {v(acc)}, {s(S_TAG)}, {v(regs[i])}")
                first = False
                i += 1
            elif i + 1 < len(regs):
                self.e(f"v_xor_b32 {v(tmp)}, {s(S_TAG)}, {v(regs[i])}",
                       f"v_xor_b32 {v(tmp+1)}, {s(S_TAG)}, {v(regs[i+1])}",
                       f"v_or3_b32 {v(acc)}, {v(acc)}, {v(tmp)}, {v(tmp+1)}")
                i += 2
            else:
                self.e(f"v_xor_b32 {v(tmp)}, {s(S_TAG)}, {v(regs[i])}",
                       f"v_or_b32 {v(acc)}, {v(acc)}, {v(tmp)}")
                i += 1
        self.e(f"v_cmp_ne_u32 vcc, 0, {v(acc)}", "s_nop 1", f"s_cbranch_vccnz {retry}")

    def poll(self, loads, tags, acc, tmp, sleep=0):
        l = self.new("poll")
        r = self.new("pollr")
        d = self.new("polld")
        self.e(f"s_branch {l}")
        self.label(r)
        if sleep:
            self.e(f"s_sleep {sleep}")
        self.spin_check()
        self.label(l)
        loads()
        self.e("s_waitcnt vmcnt(0)")
        self.tagcheck(tags, acc, tmp, r)
        self.label(d)

    def build(self):
        e = self.e
        hdr = open("cdna_kernels/" + NAME + ".s.ref").read().split("\n")
        for l in hdr:
            if l.startswith("; Override"):
                break
            self.L.append(l)
        self.L.append(f"; @launch grid=(256,1,1) block=(512,1,1) lds={LDS_TOTAL}")
        self.L.append('.amdgcn_target "amdgcn-amd-amdhsa--gfx950"')
        self.L.append(".text")
        self.L.append(f".globl {KERNEL}")
        self.L.append(".p2align 8")
        self.L.append(f".type {KERNEL},@function")
        self.label(KERNEL)
        e("s_cmp_ge_u32 s2, 256", "s_cbranch_scc1 Lexit")
        e("s_load_dwordx16 s[4:19], s[0:1], 0", "s_load_dwordx8 s[20:27], s[0:1], 64", "s_load_dwordx4 s[28:31], s[0:1], 96")
        e("v_lshrrev_b32 v2, 6, v0", "v_and_b32 v1, 63, v0", "s_nop 0", f"v_readfirstlane_b32 {s(S_W)}, v2")
        e(f"s_lshr_b32 {s(S_H)}, s2, 3", f"s_and_b32 {s(S_J)}, s2, 7")
        e(f"s_mov_b32 {s(S_SPIN)}, {self.spin}", f"s_mov_b32 {s(S_SELLO)}, 0x05040100", f"s_mov_b32 {s(S_SELHI)}, 0x07060302")
        if self.diag:
            e("s_lshl_b32 s99, s2, 3", f"s_add_u32 s99, s99, {s(S_W)}")
            for k in range(16):
                e(f"s_mov_b32 {s(S_STAMP0+k)}, 0")
        e("s_waitcnt lgkmcnt(0)")
        e(f"s_load_dword {s(S_TAG)}, {sr(S_WS,2)}, {WS_EPOCH}")
        self.srd(SRD_WS, S_WS, WS_SIZE)
        self.stamp(0)
        e("s_waitcnt lgkmcnt(0)")
        e(f"s_add_u32 {s(S_TAG)}, {s(S_TAG)}, {hex(TAGINC)}")
        e(f"s_cmp_ge_u32 {s(S_W)}, 4", "s_cbranch_scc1 Lhelper")
        self.streamer()
        self.label("Lhelper")
        self.helper()
        self.label("Labort")
        self.c("spin budget exhausted: leave a mark in d_debug and stop")
        e("s_mov_b64 exec, 1", "v_mov_b32 v2, 0", "v_mov_b32 v3, 0xdead",
          f"global_store_dword v2, v3, {sr(S_DBG,2)}", "s_waitcnt vmcnt(0)")
        self.label("Lexit")
        e("s_endpgm")
        self.L.append('.section .rodata,"a"')
        self.L.append(".p2align 6")
        self.L.append(f".amdhsa_kernel {KERNEL}")
        self.L += ["  .amdhsa_next_free_vgpr 256", "  .amdhsa_next_free_sgpr 102", "  .amdhsa_accum_offset 256",
                   "  .amdhsa_group_segment_fixed_size 0", "  .amdhsa_kernarg_size 112",
                   "  .amdhsa_user_sgpr_count 2", "  .amdhsa_user_sgpr_kernarg_segment_ptr 1",
                   "  .amdhsa_system_sgpr_workgroup_id_x 1", "  .amdhsa_float_denorm_mode_32 3",
                   ".end_amdhsa_kernel"]
        return "\n".join(self.L) + "\n"

    def issue_unit(self):
        e = self.e
        D = self.D
        sI, sSrc, sPos, sBase, sEnd, sSl = 52, 53, 54, 55, 56, 61
        l1 = self.new("sw")
        e(f"s_waitcnt vmcnt({3*(D-1)})", f"s_mov_b32 m0, {s(sPos)}",
          f"s_add_u32 {s(sPos)}, {s(sPos)}, 3072",
          f"buffer_load_dwordx4 v2, {sr(SRD_A,4)}, {s(sSrc)} offen nt lds",
          f"buffer_load_dwordx4 v3, {sr(SRD_A,4)}, {s(sSrc)} offen offset:1024 nt lds",
          f"buffer_load_dwordx4 v4, {sr(SRD_A,4)}, {s(sSrc)} offen offset:2048 nt lds",
          f"s_cmp_eq_u32 {s(sPos)}, {s(sEnd)}", f"s_cselect_b32 {s(sPos)}, {s(sBase)}, {s(sPos)}",
          f"s_add_u32 {s(sSrc)}, {s(sSrc)}, 3072", f"s_add_u32 {s(sI)}, {s(sI)}, 1",
          f"s_cmp_eq_u32 {s(sI)}, 64", f"s_cbranch_scc0 {l1}",
          f"s_mov_b32 {s(SRD_A)}, {s(S_V)}", f"s_and_b32 {s(SRD_A+1)}, {s(S_V+1)}, 0xffff",
          f"s_mov_b32 {s(sSrc)}, {s(sSl)}")
        self.label(l1)

    def streamer(self):
        e = self.e
        D = self.D
        sI, sSrc, sPos, sBase, sEnd, sT, sTile, sTgt, sSl = 52, 53, 54, 55, 56, 57, 58, 59, 61
        QF, KF, D0, ACC, PF = 20, 44, 92, 100, 148
        X = 152
        self.c("================= streamer wave: batch = wave id =================")
        e(f"s_lshl_b32 s62, {s(S_W)}, 5", f"s_add_u32 s62, s62, {s(S_H)}", f"s_mul_i32 {s(sSl)}, s62, 1572864",
          f"s_mul_i32 s62, {s(S_J)}, 196608", f"s_add_u32 {s(sSl)}, {s(sSl)}, s62")
        self.srd(SRD_A, S_K, 201326592)
        e(f"s_mov_b32 {s(sSrc)}, {s(sSl)}", f"s_mov_b32 {s(sI)}, 0", f"s_mul_i32 {s(sBase)}, {s(S_W)}, {RING_W}",
          f"s_mov_b32 {s(sPos)}, {s(sBase)}", f"s_add_u32 {s(sEnd)}, {s(sBase)}, {RING_W}",
          f"s_mov_b32 {s(sTile)}, {s(sBase)}")
        self.c("DMA source offsets (xor swizzle of 16-byte chunks inside each row)")
        for i in range(3):
            e(f"v_add_u32 v13, {64*i}, v1", "v_mul_u32_u24 v14, 2731, v13", "v_lshrrev_b32 v14, 16, v14",
              "v_mul_u32_u24 v15, 24, v14", "v_sub_u32 v15, v13, v15", "v_and_b32 v16, 7, v14",
              "v_xor_b32 v15, v15, v16", "v_mul_u32_u24 v14, 384, v14", f"v_lshl_add_u32 {v(2+i)}, v15, 4, v14")
            if i:
                e(f"v_subrev_u32 {v(2+i)}, {1024*i}, {v(2+i)}")
        self.c("K fragment addresses")
        e("v_and_b32 v13, 15, v1", "v_lshrrev_b32 v14, 4, v1", "v_and_b32 v15, 7, v13", "v_mul_u32_u24 v13, 384, v13")
        for x in range(2):
            e(f"v_add_u32 v16, {4*x}, v14", "v_xor_b32 v16, v16, v15", f"v_lshl_add_u32 {v(5+x)}, v16, 4, v13")
        self.c("V fragment addresses")
        e("v_lshrrev_b32 v13, 2, v1", "v_and_b32 v15, 7, v13", "v_mul_u32_u24 v13, 384, v13",
          "v_and_b32 v16, 1, v1", "v_lshl_add_u32 v13, v16, 3, v13", "v_bfe_u32 v16, v1, 1, 1")
        for u in range(4):
            e(f"v_add_u32 v17, {2*u}, v16", "v_xor_b32 v17, v17, v15", f"v_lshl_add_u32 {v(7+u)}, v17, 4, v13")
        self.c("score / p addresses")
        e(f"s_lshl_b32 s62, {s(S_W)}, 11", f"s_add_u32 s62, s62, {SC}",
          "v_lshlrev_b32 v13, 5, v14", "v_add_u32 v11, s62, v13",
          "v_lshlrev_b32 v13, 4, v14", "v_add_u32 v12, s62, v13",
          f"s_lshl_b32 s63, {s(S_W)}, 2", f"s_add_u32 s63, s63, {FLAGS}",
          "v_mov_b32 v18, s63", "v_mov_b32 v19, 1")
        e("s_barrier")
        self.stamp(1)
        self.c("---- fill the ring while waiting for q")
        def body_q():
            l = self.new("nq")
            e(f"s_cmp_lt_u32 {s(sI)}, 12", f"s_cbranch_scc0 {l}")
            self.issue_unit()
            self.label(l)
        self.lds_wait(18, F_Q, 13, 1, sleep=1, body=body_q)
        self.stamp(2)
        e("v_lshlrev_b32 v13, 4, v14", f"s_mul_i32 s63, {s(S_W)}, 384", f"s_add_u32 s63, s63, {QL}", "v_add_u32 v13, s63, v13")
        for ks in range(6):
            e(f"ds_read_b128 {vr(QF+4*ks,4)}, v13 offset:{64*ks}")
        e(f"s_mov_b32 {s(sT)}, 0", f"s_mov_b32 {s(sTgt)}, {4+D}", "s_waitcnt lgkmcnt(0)")
        self.c("---- K phase")
        lk, lki, lkg = self.new("k"), self.new("ki"), self.new("kg")
        self.label(lk)
        self.label(lki)
        e(f"s_cmp_lt_u32 {s(sI)}, {s(sTgt)}", f"s_cbranch_scc0 {lkg}")
        self.issue_unit()
        e(f"s_branch {lki}")
        self.label(lkg)
        e(f"v_add_u32 v14, {s(sTile)}, v5", f"v_add_u32 v15, {s(sTile)}, v6")
        for ks in range(6):
            for blk in range(2):
                e(f"ds_read_b128 {vr(KF+8*ks+4*blk,4)}, {v(14+(ks&1))} offset:{blk*6144+(ks>>1)*128}")
        for ks in range(6):
            e(f"s_waitcnt lgkmcnt({10-2*ks})")
            for blk in range(2):
                c = "0" if ks == 0 else vr(D0+4*blk, 4)
                e(f"v_mfma_f32_16x16x32_bf16 {vr(D0+4*blk,4)}, {vr(KF+8*ks+4*blk,4)}, {vr(QF+4*ks,4)}, {c}")
        e(f"s_add_u32 {s(sTile)}, {s(sTile)}, 12288", f"s_cmp_eq_u32 {s(sTile)}, {s(sEnd)}",
          f"s_cselect_b32 {s(sTile)}, {s(sBase)}, {s(sTile)}",
          f"s_add_u32 {s(sTgt)}, {s(sTgt)}, 4", f"s_add_u32 {s(sT)}, {s(sT)}, 1",
          "s_mov_b32 exec_lo, 0x00010001", "s_mov_b32 exec_hi, 0x00010001", "s_nop 3",
          f"ds_write_b128 v11, {vr(D0,4)}", f"ds_write_b128 v11, {vr(D0+4,4)} offset:16",
          "s_mov_b64 exec, -1", "v_add_u32 v11, 128, v11",
          f"s_cmp_lt_u32 {s(sT)}, 16", f"s_cbranch_scc1 {lk}")
        self.stamp(3)
        self.c("---- softmax statistics of this wave's 512 keys")
        e(f"s_lshl_b32 s62, {s(S_W)}, 11", f"s_add_u32 s62, s62, {SC}",
          "v_lshlrev_b32 v13, 5, v1", "v_add_u32 v13, s62, v13",
          f"ds_read_b128 {vr(X,4)}, v13", f"ds_read_b128 {vr(X+4,4)}, v13 offset:16", "s_waitcnt lgkmcnt(0)")
        T = X + 8
        for i in range(0, 8, 2):
            self.round2(X+i, X+i+1, T)
            e(f"v_mul_f32 {v(X+i)}, {hex(SCALE)}, {v(X+i)}", f"v_mul_f32 {v(X+i+1)}, {hex(SCALE)}, {v(X+i+1)}")
            self.round2(X+i, X+i+1, T)
        M, Lr, E = X+10, X+11, X+12
        e(f"v_max3_f32 {v(M)}, {v(X)}, {v(X+1)}, {v(X+2)}", f"v_max3_f32 {v(M)}, {v(M)}, {v(X+3)}, {v(X+4)}",
          f"v_max3_f32 {v(M)}, {v(M)}, {v(X+5)}, {v(X+6)}", f"v_max_f32 {v(M)}, {v(M)}, {v(X+7)}")
        self.allreduce("max", M, T)
        for i in range(8):
            e(f"v_sub_f32 {v(E+i)}, {v(X+i)}, {v(M)}", f"v_mul_f32 {v(E+i)}, {hex(LOG2E)}, {v(E+i)}")
        for i in range(8):
            e(f"v_exp_f32 {v(E+i)}, {v(E+i)}")
        e("s_nop 0", f"v_add_f32 {v(Lr)}, {v(E)}, {v(E+1)}")
        for i in range(2, 8):
            e(f"v_add_f32 {v(Lr)}, {v(Lr)}, {v(E+i)}")
        self.allreduce("add", Lr, T)
        P4 = X + 20
        e(f"v_mov_b32 {v(P4)}, {v(M)}", f"v_mov_b32 {v(P4+1)}, {s(S_TAG)}", f"v_mov_b32 {v(P4+2)}, {v(Lr)}",
          f"v_mov_b32 {v(P4+3)}, {s(S_TAG)}",
          f"s_lshl_b32 s62, {s(S_H)}, 2", f"s_add_u32 s62, s62, {s(S_W)}", "s_lshl_b32 s62, s62, 3",
          f"s_add_u32 s62, s62, {s(S_J)}", "s_mov_b32 s66, s62", "s_lshl_b32 s62, s62, 4", f"s_add_u32 s62, s62, {MLBUF}",
          "v_mov_b32 v13, 0", "s_mov_b64 exec, 1",
          f"buffer_store_dwordx4 {vr(P4,4)}, v13, {sr(SRD_WS,4)}, s62 offen sc1",
          f"ds_write_b32 v18, v19 offset:{F_KD}", "s_mov_b64 exec, -1")
        self.stamp(4)
        for i in range(48):
            e(f"v_mov_b32 {v(ACC+i)}, 0")
        def body_ml():
            l = self.new("nm")
            e(f"s_cmp_lt_u32 {s(sI)}, 76", f"s_cbranch_scc0 {l}")
            self.issue_unit()
            self.label(l)
        self.lds_wait(18, F_ML, 13, 1, sleep=1, body=body_ml)
        self.stamp(5)
        e(f"s_lshl_b32 s63, {s(S_W)}, 3", f"s_add_u32 s63, s63, {ML}", "v_mov_b32 v13, s63",
          f"ds_read_b64 {vr(M,2)}, v13", "s_waitcnt lgkmcnt(0)")
        for i in range(8):
            e(f"v_sub_f32 {v(E+i)}, {v(X+i)}, {v(M)}", f"v_mul_f32 {v(E+i)}, {hex(LOG2E)}, {v(E+i)}")
        for i in range(8):
            e(f"v_exp_f32 {v(E+i)}, {v(E+i)}")
        e("s_nop 0")
        for i in range(8):
            e(f"v_mul_f32 {v(E+i)}, {v(E+i)}, {v(Lr)}")
        for i in range(4):
            e(f"v_cvt_pk_bf16_f32 {v(P4+i)}, {v(E+2*i)}, {v(E+2*i+1)}")
        e(f"s_lshl_b32 s62, {s(S_W)}, 11", f"s_add_u32 s62, s62, {SC}",
          "v_lshlrev_b32 v13, 4, v1", "v_add_u32 v13, s62, v13", f"ds_write_b128 v13, {vr(P4,4)}")
        e(f"s_mov_b32 {s(sT)}, 0", f"s_mov_b32 {s(sTgt)}, {64+4+D}")
        self.c("---- V phase")
        lv, lvi, lvg, lvn = self.new("v"), self.new("vi"), self.new("vg"), self.new("vn")
        self.label(lv)
        e(f"s_min_u32 s62, {s(sTgt)}, 128")
        self.label(lvi)
        e(f"s_cmp_lt_u32 {s(sI)}, s62", f"s_cbranch_scc0 {lvg}")
        self.issue_unit()
        e(f"s_branch {lvi}")
        self.label(lvg)
        e(f"s_cmp_gt_u32 {s(sTgt)}, 128", f"s_cbranch_scc0 {lvn}", "s_waitcnt vmcnt(0)")
        self.label(lvn)
        for u in range(4):
            e(f"v_add_u32 {v(14+u)}, {s(sTile)}, {v(7+u)}")
        e(f"ds_read_b128 {vr(PF,4)}, v12")
        def vread(t):
            a, u = t >> 2, t & 3
            e(f"ds_read_b64_tr_b16 {vr(KF+4*t,2)}, {v(14+u)} offset:{a*128}",
              f"ds_read_b64_tr_b16 {vr(KF+4*t+2,2)}, {v(14+u)} offset:{a*128+6144}")
        def vmf(t):
            e(f"v_mfma_f32_16x16x32_bf16 {vr(ACC+4*t,4)}, {vr(PF,4)}, {vr(KF+4*t,4)}, {vr(ACC+4*t,4)}")
        for t in range(6):
            vread(t)
        e("s_waitcnt lgkmcnt(6)")
        for t in range(3): vmf(t)
        for t in range(6, 9): vread(t)
        e("s_waitcnt lgkmcnt(6)")
        for t in range(3, 6): vmf(t)
        for t in range(9, 12): vread(t)
        e("s_waitcnt lgkmcnt(6)")
        for t in range(6, 9): vmf(t)
        e("s_waitcnt lgkmcnt(0)")
        for t in range(9, 12): vmf(t)
        e(f"s_add_u32 {s(sTile)}, {s(sTile)}, 12288", f"s_cmp_eq_u32 {s(sTile)}, {s(sEnd)}",
          f"s_cselect_b32 {s(sTile)}, {s(sBase)}, {s(sTile)}",
          f"s_add_u32 {s(sTgt)}, {s(sTgt)}, 4", f"s_add_u32 {s(sT)}, {s(sT)}, 1",
          "v_add_u32 v12, 64, v12",
          f"s_cmp_lt_u32 {s(sT)}, 16", f"s_cbranch_scc1 {lv}")
        self.stamp(6)
        self.c("---- publish the partial output (64 granules of 3 floats + tag)")
        e(f"s_lshl_b32 s62, {s(S_W)}, 11", f"s_add_u32 s62, s62, {SC}",
          "v_and_b32 v13, 15, v1", "v_lshlrev_b32 v13, 2, v13", "v_add_u32 v13, s62, v13",
          "v_mul_u32_u24 v14, 12, v1", "v_add_u32 v14, s62, v14",
          "s_lshl_b32 s63, s66, 10", f"s_add_u32 s63, s63, {OBUF}", "v_lshlrev_b32 v15, 4, v1",
          f"v_mov_b32 {v(P4+3)}, {s(S_TAG)}", "s_nop 3", "s_mov_b64 exec, 0xffff")
        for t in range(12):
            e(f"ds_write_b32 v13, {v(ACC+4*t)} offset:{64*t}")
        e("s_mov_b64 exec, -1")
        for k in range(3):
            e(f"ds_read_b32 {v(P4+k)}, v14 offset:{4*k}")
        e("s_waitcnt lgkmcnt(0)",
          f"buffer_store_dwordx4 {vr(P4,4)}, v15, {sr(SRD_WS,4)}, s63 offen sc1")
        self.lds_flag_set(18, F_VE, 19)
        self.stamp(7)
        self.stamps_store()
        e("s_endpgm")

    def gemv64_loads(self, W):
        e = self.e
        e("s_mov_b32 s61, 0")
        for ks in range(5):
            for ee in range(8):
                r = W + 16*(ks+1) + 2*ee
                e(f"buffer_load_dwordx2 {vr(r,2)}, v4, {sr(SRD_A,4)}, s61 offen nt")
                if not (ks == 4 and ee == 7):
                    if ee < 7:
                        e("s_add_u32 s61, s61, s60")
                    else:
                        e("s_mul_i32 s62, s60, 25", "s_add_u32 s61, s61, s62")

    def gemv64_perm(self, W):
        e = self.e
        for ks in range(5):
            raw, fr = W + 16*(ks+1), W + 16*ks
            for f in range(4):
                d, hi = f >> 1, f & 1
                for q in range(4):
                    e(f"v_perm_b32 {v(fr+4*f+q)}, {v(raw+2*(2*q+1)+d)}, {v(raw+2*(2*q)+d)}, {s(S_SELHI if hi else S_SELLO)}")

    def gemv64_finish(self, W, AF, DD, vfl, vone):
        e = self.e
        for ks in range(5):
            e(f"ds_read_b128 {vr(AF+4*ks,4)}, v5 offset:{64*ks}")
        for ks in range(5):
            e(f"s_waitcnt lgkmcnt({4-ks})")
            for f in range(4):
                c = "0" if ks == 0 else vr(DD+4*f, 4)
                e(f"v_mfma_f32_16x16x32_bf16 {vr(DD+4*f,4)}, {vr(AF+4*ks,4)}, {vr(W+16*ks+4*f,4)}, {c}")
        e("s_nop 7", "s_nop 1")
        for f in range(4):
            e(f"v_mov_b32 {v(AF+f)}, {v(DD+4*f)}")
        e(f"s_lshl_b32 s62, {s(S_W)}, 10", f"s_add_u32 s62, s62, {SC}", "v_lshlrev_b32 v6, 4, v1",
          "v_add_u32 v7, s62, v6", f"ds_write_b128 v7, {vr(AF,4)}")
        self.sync4(vfl, F_SYNCR, vone, 8)
        l = self.new("gf")
        e(f"s_cmp_eq_u32 {s(S_W)}, 0", f"s_cbranch_scc0 {l}")
        e(f"v_add_u32 v7, {SC}, v6")
        for ww in range(4):
            e(f"ds_read_b128 {vr(AF+4*ww,4)}, v7 offset:{1024*ww}")
        e("s_waitcnt lgkmcnt(0)")
        for f in range(4):
            e(f"v_add_f32 {v(AF+f)}, {v(AF+f)}, {v(AF+4+f)}", f"v_add_f32 {v(AF+8+f)}, {v(AF+8+f)}, {v(AF+12+f)}")
        for f in range(4):
            e(f"v_add_f32 {v(AF+f)}, {v(AF+f)}, {v(AF+8+f)}")
        e(f"v_cvt_pk_bf16_f32 {v(AF+4)}, {v(AF)}, {v(AF+1)}", f"v_cvt_pk_bf16_f32 {v(AF+6)}, {v(AF+2)}, {v(AF+3)}",
          f"v_mov_b32 {v(AF+5)}, {s(S_TAG)}", f"v_mov_b32 {v(AF+7)}, {s(S_TAG)}",
          "v_lshrrev_b32 v6, 4, v1", "v_mul_lo_u32 v6, v6, s65", "v_and_b32 v7, 15, v1", "v_lshl_add_u32 v6, v7, 4, v6",
          f"buffer_store_dwordx4 {vr(AF+4,4)}, v6, {sr(SRD_WS,4)}, s64 offen sc1")
        self.label(l)

    def ln_stats(self, PX, XF, T):
        e = self.e
        for i in range(5):
            self.unpack(XF+2*i, XF+2*i+1, PX+i)
        e(f"v_add_f32 {v(T)}, {v(XF)}, {v(XF+1)}")
        for i in range(2, 10):
            e(f"v_add_f32 {v(T)}, {v(T)}, {v(XF+i)}")
        self.allreduce("add", T, T+1)
        e(f"v_mul_f32 {v(T)}, {hex(INV640)}, {v(T)}")
        e(f"v_sub_f32 {v(T+2)}, {v(XF)}, {v(T)}", f"v_mul_f32 {v(T+3)}, {v(T+2)}, {v(T+2)}")
        for i in range(1, 10):
            e(f"v_sub_f32 {v(T+2)}, {v(XF+i)}, {v(T)}", f"v_fmac_f32 {v(T+3)}, {v(T+2)}, {v(T+2)}")
        self.allreduce("add", T+3, T+1)
        e(f"v_mul_f32 {v(T+3)}, {hex(INV640)}, {v(T+3)}")
        self.round2(T, T+3, T+1)
        e(f"v_add_f32 {v(T+3)}, {hex(EPS)}, {v(T+3)}")
        e(f"v_cvt_pk_bf16_f32 {v(T+1)}, {v(T+3)}, {v(T+3)}", f"v_lshlrev_b32 {v(T+3)}, 16, {v(T+1)}",
          f"v_sqrt_f32 {v(T+3)}, {v(T+3)}", "s_nop 0",
          f"v_cvt_pk_bf16_f32 {v(T+1)}, {v(T+3)}, {v(T+3)}", f"v_lshlrev_b32 {v(T+3)}, 16, {v(T+1)}",
          f"v_rcp_f32 {v(T+3)}, {v(T+3)}", "s_nop 0")
        for i in range(0, 10, 2):
            e(f"v_sub_f32 {v(XF+i)}, {v(XF+i)}, {v(T)}", f"v_sub_f32 {v(XF+i+1)}, {v(XF+i+1)}, {v(T)}")
            self.round2(XF+i, XF+i+1, T+1)
            e(f"v_mul_f32 {v(XF+i)}, {v(XF+i)}, {v(T+3)}", f"v_mul_f32 {v(XF+i+1)}, {v(XF+i+1)}, {v(T+3)}")
            self.round2(XF+i, XF+i+1, T+1)

    def modulate(self, XF, C1, SH, T, vaddr):
        e = self.e
        for i in range(5):
            a, b = XF+2*i, XF+2*i+1
            e(f"v_mul_f32 {v(a)}, {v(a)}, {v(C1+2*i)}", f"v_mul_f32 {v(b)}, {v(b)}, {v(C1+2*i+1)}")
            self.round2(a, b, T)
            e(f"v_add_f32 {v(a)}, {v(a)}, {v(SH+2*i)}", f"v_add_f32 {v(b)}, {v(b)}, {v(SH+2*i+1)}",
              f"v_cvt_pk_bf16_f32 {v(T)}, {v(a)}, {v(b)}", f"ds_write_b32 {v(vaddr)}, {v(T)} offset:{256*i}")

    def prep_mod_pair(self, G, C1, SH, T):
        e = self.e
        for i in range(5):
            self.unpack(SH+2*i, SH+2*i+1, G+2*i)
        for i in range(5):
            self.unpack(C1+2*i, C1+2*i+1, G+10+2*i)
            e(f"v_add_f32 {v(C1+2*i)}, 1.0, {v(C1+2*i)}", f"v_add_f32 {v(C1+2*i+1)}, 1.0, {v(C1+2*i+1)}")
            self.round2(C1+2*i, C1+2*i+1, T)

    def helper(self):
        e = self.e
        self.c("================= helper wave =================")
        e(f"s_sub_u32 {s(S_W)}, {s(S_W)}, 4")
        VFL, VONE = 2, 3
        W = 100
        PX, XF, T = 10, 16, 28
        G, C1, SH = 32, 56, 68
        AF, DD = 200, 220
        e(f"s_lshl_b32 s62, {s(S_W)}, 2", f"s_add_u32 s62, s62, {FLAGS}", f"v_mov_b32 {v(VFL)}, s62", f"v_mov_b32 {v(VONE)}, 1",
          f"v_mov_b32 v9, {FLAGS}")
        self.c("zero the LDS flags (helper 0)")
        l = self.new("zf")
        e(f"s_cmp_eq_u32 {s(S_W)}, 0", f"s_cbranch_scc0 {l}",
          "v_lshlrev_b32 v6, 2, v1", f"v_add_u32 v6, {FLAGS}, v6", "v_mov_b32 v7, 0", "s_mov_b32 exec_lo, -1", "s_mov_b32 exec_hi, 0",
          "ds_write_b32 v6, v7", "s_mov_b64 exec, -1", "s_waitcnt lgkmcnt(0)")
        self.label(l)
        self.c("prologue role: s67 = 0 none, 1 Q block, 2 MOD block")
        lq, lm, lr = self.new("rq"), self.new("rm"), self.new("rr")
        e("s_mov_b32 s67, 0", f"s_cmp_lt_u32 {s(S_J)}, 3", f"s_cbranch_scc1 {lq}",
          f"s_cmp_lt_u32 {s(S_J)}, 5", f"s_cbranch_scc0 {lr}",
          f"s_lshl_b32 s68, {s(S_H)}, 1", f"s_add_u32 s68, s68, {s(S_J)}", "s_sub_u32 s68, s68, 3",
          "s_cmp_lt_u32 s68, 60", f"s_cbranch_scc1 {lm}", f"s_branch {lr}")
        self.label(lq)
        e("s_mov_b32 s67, 1")
        self.srd(SRD_A, S_WQ, 7864320)
        self.srd(SRD_B, S_X, 5120)
        e("s_mov_b32 s60, 12288", f"s_mul_i32 s68, {s(S_H)}, 3", f"s_add_u32 s68, s68, {s(S_J)}",
          "s_lshl_b32 s64, s68, 8", f"s_add_u32 s64, s64, {QBUF}", f"s_mov_b32 s65, {3072*8}")
        lcommon = self.new("rc")
        e(f"s_branch {lcommon}")
        self.label(lm)
        e("s_mov_b32 s67, 2")
        self.srd(SRD_A, S_WM, 4915200)
        self.srd(SRD_B, S_C, 5120)
        e("s_mov_b32 s60, 7680", "s_lshl_b32 s64, s68, 8", f"s_add_u32 s64, s64, {MODBUF}", f"s_mov_b32 s65, {1920*8}")
        self.label(lcommon)
        self.c("issue vector + weight loads")
        e(f"s_mul_i32 s62, {s(S_W)}, 1280", "v_lshlrev_b32 v6, 2, v1")
        for i in range(5):
            e(f"buffer_load_dword {v(PX+i)}, v6, {sr(SRD_B,4)}, s62 offen offset:{256*i}")
        e(f"s_mul_i32 s62, {s(S_W)}, 160", "v_lshrrev_b32 v4, 4, v1", "v_lshlrev_b32 v4, 3, v4", "v_add_u32 v4, s62, v4",
          "v_mul_lo_u32 v4, v4, s60", "v_and_b32 v7, 15, v1", "v_lshl_add_u32 v4, v7, 3, v4",
          "s_lshl_b32 s62, s68, 7", "v_add_u32 v4, s62, v4")
        self.gemv64_loads(W)
        self.label(lr)
        e("s_barrier")
        self.stamp(1)
        self.c("A fragment address for the [4][640] vector: AVEC + b*1280 + w*320 + g*16")
        e("v_and_b32 v6, 15, v1", "v_lshrrev_b32 v6, 2, v6", "v_mul_u32_u24 v6, 1280, v6",
          "v_lshrrev_b32 v7, 4, v1", "v_lshl_add_u32 v6, v7, 4, v6",
          f"s_mul_i32 s62, {s(S_W)}, 320", f"s_add_u32 s62, s62, {AVEC}", "v_add_u32 v5, s62, v6")
        e(f"s_mul_i32 s62, {s(S_W)}, 1280", f"s_add_u32 s62, s62, {AVEC}", "v_lshlrev_b32 v6, 2, v1", "v_add_u32 v8, s62, v6",
          "v_mov_b32 v26, v8")
        lq2, lm2, lpq = self.new("q2"), self.new("m2"), self.new("pq")
        e("s_cmp_eq_u32 s67, 1", f"s_cbranch_scc1 {lq2}", "s_cmp_eq_u32 s67, 2", f"s_cbranch_scc1 {lm2}", f"s_branch {lpq}")
        self.label(lm2)
        e("s_waitcnt vmcnt(40)", "s_mov_b32 s91, 0x207")
        for i in range(5):
            a, b = XF, XF+1
            self.unpack(a, b, PX+i)
            for x in (a, b):
                e(f"v_mul_f32 {v(T)}, {hex(LOG2E ^ 0x80000000)}, {v(x)}", f"v_exp_f32 {v(T)}, {v(T)}", "s_nop 0",
                  f"v_add_f32 {v(T)}, 1.0, {v(T)}", f"v_rcp_f32 {v(T+1)}, {v(T)}", "s_nop 0",
                  f"v_mul_f32 {v(T+2)}, {v(x)}, {v(T+1)}",
                  f"v_fma_f32 {v(T+3)}, -{v(T+2)}, {v(T)}, {v(x)}",
                  f"v_cmp_class_f32 vcc, {v(T+3)}, s91",
                  f"v_fma_f32 {v(x)}, {v(T+3)}, {v(T+1)}, {v(T+2)}", "s_nop 0",
                  f"v_cndmask_b32 {v(x)}, {v(x)}, {v(T+2)}, vcc")
            e(f"v_cvt_pk_bf16_f32 {v(T)}, {v(a)}, {v(b)}", f"ds_write_b32 v26, {v(T)} offset:{256*i}")
        self.sync4(9, F_SYNCA, VONE, 8)
        e("s_waitcnt vmcnt(0)")
        self.stamp(2)
        self.gemv64_perm(W)
        self.gemv64_finish(W, AF, DD, 9, VONE)
        self.stamp(3)
        e(f"s_branch {lpq}")
        self.label(lq2)
        e("s_waitcnt vmcnt(40)")
        self.ln_stats(PX, XF, T)
        e("s_waitcnt vmcnt(0)")
        self.gemv64_perm(W)
        self.stamp(2)
        e(f"s_mul_i32 s62, {s(S_W)}, {1920*8}", f"s_add_u32 s62, s62, {MODBUF}", f"s_add_u32 s63, s62, {320*8}",
          "v_lshlrev_b32 v6, 3, v1")
        def ld_mod():
            for i in range(5):
                e(f"buffer_load_dwordx2 {vr(G+2*i,2)}, v6, {sr(SRD_WS,4)}, s62 offen offset:{512*i} sc1")
            for i in range(5):
                e(f"buffer_load_dwordx2 {vr(G+10+2*i,2)}, v6, {sr(SRD_WS,4)}, s63 offen offset:{512*i} sc1")
        self.poll(ld_mod, [G+2*i+1 for i in range(10)], T, T+1)
        self.stamp(3)
        self.prep_mod_pair(G, C1, SH, T)
        self.modulate(XF, C1, SH, T, 26)
        self.sync4(9, F_SYNCA, VONE, 8)
        self.gemv64_finish(W, AF, DD, 9, VONE)
        self.stamp(4)
        self.label(lpq)
        e(f"s_mul_i32 s62, {s(S_W)}, {3072*8}", f"s_mul_i32 s63, {s(S_H)}, {96*8}", "s_add_u32 s62, s62, s63",
          f"s_add_u32 s62, s62, {QBUF}", "v_lshlrev_b32 v6, 4, v1",
          "s_mov_b32 exec_lo, -1", "s_mov_b32 exec_hi, 0xffff")
        def ld_q():
            e(f"buffer_load_dwordx4 {vr(G,4)}, v6, {sr(SRD_WS,4)}, s62 offen sc1")
        self.poll(ld_q, [G+1, G+3], T, T+1, sleep=1)
        e(f"v_mov_b32 {v(G+1)}, {v(G+2)}", f"s_mul_i32 s62, {s(S_W)}, 384", f"s_add_u32 s62, s62, {QL}",
          "v_lshlrev_b32 v6, 3, v1", "v_add_u32 v6, s62, v6", f"ds_write_b64 v6, {vr(G,2)}", "s_mov_b64 exec, -1")
        self.lds_flag_set(VFL, F_Q, VONE)
        self.stamp(5)
        lhi, lmid = self.new("hi"), self.new("mid")
        WB, WD = 36, 100
        e(f"s_cmp_lt_u32 {s(S_J)}, 5", f"s_cbranch_scc0 {lhi}")
        self.c("stage B weights: wo rows 192h+48w+.., columns 128j..")
        self.srd(SRD_A, S_WO, 7864320)
        e(f"s_mul_i32 s62, {s(S_H)}, 192", f"s_mul_i32 s63, {s(S_W)}, 48", "s_add_u32 s62, s62, s63",
          "v_lshrrev_b32 v6, 4, v1", "v_mul_u32_u24 v6, 3, v6", "v_add_u32 v6, s62, v6", "v_mul_u32_u24 v6, 1280, v6",
          "v_and_b32 v7, 15, v1", "v_lshl_add_u32 v6, v7, 4, v6", f"s_lshl_b32 s62, {s(S_J)}, 8", "v_add_u32 v6, s62, v6")
        for vv in range(12):
            sg, ee = vv >> 2, vv & 3
            e(f"s_mov_b32 s62, {(12*(vv//3)+vv%3)*1280}",
              f"buffer_load_dwordx4 {vr(WB+16*(sg+1)+4*ee,4)}, v6, {sr(SRD_A,4)}, s62 offen nt")
        e("s_waitcnt vmcnt(0)")
        for sg in range(3):
            raw, fr = WB+16*(sg+1), WB+16*sg
            for cc in range(8):
                for q in range(2):
                    e(f"v_perm_b32 {v(fr+2*cc+q)}, {v(raw+4*(2*q+1)+(cc>>1))}, {v(raw+4*(2*q)+(cc>>1))}, {s(S_SELHI if cc&1 else S_SELLO)}")
        self.c("down-projection role: d = 4j + h for h < 4")
        e("s_mov_b32 s69, 0", f"s_cmp_lt_u32 {s(S_H)}, 4", f"s_cbranch_scc0 {lmid}",
          "s_mov_b32 s69, 1", f"s_lshl_b32 s68, {s(S_J)}, 2", f"s_add_u32 s68, s68, {s(S_H)}")
        self.srd(SRD_A, S_DN, 1966080)
        e(f"s_mul_i32 s62, {s(S_W)}, 384", "v_lshrrev_b32 v6, 4, v1", "v_lshlrev_b32 v6, 3, v6", "v_add_u32 v6, s62, v6",
          "v_mul_u32_u24 v6, 1280, v6", "v_and_b32 v7, 15, v1", "v_lshl_add_u32 v6, v7, 2, v6",
          "s_lshl_b32 s62, s68, 6", "v_add_u32 v6, s62, v6")
        for half in range(2):
            for ks in range(6*half, 6*half+6):
                for ee in range(8):
                    e(f"s_mov_b32 s62, {(32*ks+ee)*1280}",
                      f"buffer_load_dword {v(WD+8*(ks+1)+ee)}, v6, {sr(SRD_A,4)}, s62 offen nt")
            e("s_waitcnt vmcnt(0)")
            for ks in range(6*half, 6*half+6):
                raw, fr = WD+8*(ks+1), WD+8*ks
                for hi in range(2):
                    for q in range(4):
                        e(f"v_perm_b32 {v(fr+4*hi+q)}, {v(raw+2*q+1)}, {v(raw+2*q)}, {s(S_SELHI if hi else S_SELLO)}")
        self.c("gb pairs for (b = lane>>4, pair 16d + (lane&15))")
        GBR = 240
        e("v_lshrrev_b32 v6, 4, v1", f"v_mul_u32_u24 v6, {1920*8}, v6", "v_and_b32 v7, 15, v1", "v_lshl_add_u32 v6, v7, 3, v6",
          "s_lshl_b32 s62, s68, 7", f"s_add_u32 s62, s62, {MODBUF+5*320*8}")
        def ld_gb():
            e(f"buffer_load_dwordx2 {vr(GBR,2)}, v6, {sr(SRD_WS,4)}, s62 offen sc1")
        self.poll(ld_gb, [GBR+1], T, T+1, sleep=2)
        e(f"s_branch {lmid}")
        self.label(lhi)
        WG, WU = 36, 84
        CC1, CSH = 140, 150
        lnc = self.new("nc")
        e("s_mov_b32 s69, 0", f"s_cmp_lt_u32 {s(S_H)}, 16", f"s_cbranch_scc0 {lnc}",
          "s_mov_b32 s69, 1", f"s_sub_u32 s68, {s(S_J)}, 5", "s_lshl_b32 s68, s68, 4", f"s_add_u32 s68, s68, {s(S_H)}")
        self.srd(SRD_A, S_G, 1966080)
        self.srd(SRD_B, S_U, 1966080)
        e(f"s_mul_i32 s62, {s(S_W)}, 160", "v_lshrrev_b32 v6, 4, v1", "v_lshlrev_b32 v6, 3, v6", "v_add_u32 v6, s62, v6",
          "v_mul_u32_u24 v6, 3072, v6", "v_and_b32 v7, 15, v1", "v_lshl_add_u32 v6, v7, 2, v6",
          "s_lshl_b32 s62, s68, 6", "v_add_u32 v6, s62, v6")
        for (base, srd) in ((WG, SRD_A), (WU, SRD_B)):
            for ks in range(5):
                for ee in range(8):
                    e(f"s_mov_b32 s62, {(32*ks+ee)*3072}",
                      f"buffer_load_dword {v(base+8*(ks+1)+ee)}, v6, {sr(srd,4)}, s62 offen nt")
            e("s_waitcnt vmcnt(0)")
            for ks in range(5):
                raw, fr = base+8*(ks+1), base+8*ks
                for hi in range(2):
                    for q in range(4):
                        e(f"v_perm_b32 {v(fr+4*hi+q)}, {v(raw+2*q+1)}, {v(raw+2*q)}, {s(S_SELHI if hi else S_SELLO)}")
        self.c("sb (segment 3), cb (segment 4) for batch w")
        G2 = 160
        e(f"s_mul_i32 s62, {s(S_W)}, {1920*8}", f"s_add_u32 s62, s62, {MODBUF+3*320*8}", f"s_add_u32 s63, s62, {320*8}",
          "v_lshlrev_b32 v6, 3, v1")
        def ld_mod2():
            for i in range(5):
                e(f"buffer_load_dwordx2 {vr(G2+2*i,2)}, v6, {sr(SRD_WS,4)}, s62 offen offset:{512*i} sc1")
            for i in range(5):
                e(f"buffer_load_dwordx2 {vr(G2+10+2*i,2)}, v6, {sr(SRD_WS,4)}, s63 offen offset:{512*i} sc1")
        self.poll(ld_mod2, [G2+2*i+1 for i in range(10)], T, T+1, sleep=2)
        self.prep_mod_pair(G2, CC1, CSH, T)
        self.label(lnc)
        self.c("reducer role: r = 32(j-5)+h < 80, helper 0")
        RX, RG = 180, 182
        lnr = self.new("nr")
        e("s_mov_b32 s70, 0", f"s_sub_u32 s71, {s(S_J)}, 5", "s_lshl_b32 s71, s71, 5", f"s_add_u32 s71, s71, {s(S_H)}",
          "s_cmp_lt_u32 s71, 80", f"s_cbranch_scc0 {lnr}", f"s_cmp_eq_u32 {s(S_W)}, 0", f"s_cbranch_scc0 {lnr}",
          "s_mov_b32 s70, 1")
        self.srd(SRD_B, S_X, 5120)
        e("v_bfe_u32 v6, v1, 2, 2", "v_and_b32 v7, 3, v1",
          "v_mul_u32_u24 v8, 1280, v6", "v_lshl_add_u32 v8, v7, 2, v8", "s_lshl_b32 s62, s71, 4",
          f"buffer_load_dword {v(RX)}, v8, {sr(SRD_B,4)}, s62 offen",
          f"v_mul_u32_u24 v8, {1920*8}, v6", "v_lshl_add_u32 v8, v7, 3, v8",
          "s_lshl_b32 s62, s71, 5", f"s_add_u32 s62, s62, {MODBUF+2*320*8}")
        def ld_ga():
            e(f"buffer_load_dwordx2 {vr(RG,2)}, v8, {sr(SRD_WS,4)}, s62 offen sc1")
        self.poll(ld_ga, [RG+1], T, T+1, sleep=2)
        self.label(lnr)
        self.label(lmid)
        self.stamp(6)
        self.lds_wait(VFL, F_KD, 8, 1, sleep=4)
        e(f"s_lshl_b32 s62, {s(S_H)}, 2", f"s_add_u32 s62, s62, {s(S_W)}", "s_lshl_b32 s62, s62, 7", f"s_add_u32 s62, s62, {MLBUF}",
          "v_lshlrev_b32 v6, 4, v1", "s_mov_b64 exec, 0xff")
        MLR = 12
        def ld_ml():
            e(f"buffer_load_dwordx4 {vr(MLR,4)}, v6, {sr(SRD_WS,4)}, s62 offen sc1")
        self.poll(ld_ml, [MLR+1, MLR+3], T, T+1)
        e("s_mov_b64 exec, -1", f"v_cmp_gt_u32 vcc, 8, v1", f"v_mov_b32 v6, {hex(NINF)}", "v_mov_b32 v7, 0", "s_nop 0",
          f"v_cndmask_b32 {v(MLR)}, v6, {v(MLR)}, vcc", f"v_cndmask_b32 {v(MLR+2)}, v7, {v(MLR+2)}, vcc",
          f"v_mov_b32 v6, {v(MLR)}")
        for r in (8, 4, 2, 1):
            e("s_nop 1", f"v_max_f32_dpp v6, v6, v6 row_ror:{r} row_mask:0xf bank_mask:0xf")
        e(f"v_sub_f32 v7, {v(MLR)}, v6", f"v_mul_f32 v7, {hex(LOG2E)}, v7", "v_exp_f32 v7, v7", "s_nop 0",
          f"v_mul_f32 v7, v7, {v(MLR+2)}")
        for r in (8, 4, 2, 1):
            e("s_nop 1", f"v_add_f32_dpp v7, v7, v7 row_ror:{r} row_mask:0xf bank_mask:0xf")
        e("v_rcp_f32 v7, v7", f"s_lshl_b32 s62, {s(S_W)}, 3", f"s_add_u32 s62, s62, {ML}", "v_mov_b32 v8, s62",
          "s_mov_b64 exec, 1", "ds_write_b64 v8, v[6:7]", f"ds_write_b32 {v(VFL)}, {v(VONE)} offset:{F_ML}", "s_mov_b64 exec, -1")
        self.stamp(7)
        self.lds_wait(VFL, F_VE, 8, 1, sleep=4)
        self.stamp(8)
        lhi2 = self.new("hi2")
        e(f"s_cmp_lt_u32 {s(S_J)}, 5", f"s_cbranch_scc0 {lhi2}")
        self.c("---- stage B: sum the 8 partials per batch, o @ wo")
        GB_ = 204
        e("v_and_b32 v6, 15, v1", "v_lshrrev_b32 v7, 2, v6", "v_and_b32 v6, 3, v6",
          "v_lshl_add_u32 v6, v7, 3, v6", "v_lshlrev_b32 v6, 10, v6",
          "v_lshrrev_b32 v7, 4, v1", "v_lshl_add_u32 v6, v7, 4, v6",
          f"s_lshl_b32 s62, {s(S_H)}, 15", f"s_lshl_b32 s63, {s(S_W)}, 8", "s_add_u32 s62, s62, s63",
          f"s_add_u32 s62, s62, {OBUF}", "s_add_u32 s63, s62, 4096")
        def ld_o():
            for js in range(2):
                for ss in range(4):
                    e(f"buffer_load_dwordx4 {vr(GB_+16*js+4*ss,4)}, v6, {sr(SRD_WS,4)}, {'s63' if js else 's62'} offen offset:{64*ss} sc1")
        self.poll(ld_o, [GB_+4*k+3 for k in range(8)], T, T+1)
        self.stamp(9)
        OV = 16
        for ss in range(4):
            for p in range(3):
                e(f"v_add_f32 {v(OV+3*ss+p)}, {v(GB_+4*ss+p)}, {v(GB_+16+4*ss+p)}")
        for perm in ("[1,0,3,2]", "[2,3,0,1]"):
            e("s_nop 1")
            for k in range(12):
                e(f"v_add_f32_dpp {v(OV+k)}, {v(OV+k)}, {v(OV+k)} quad_perm:{perm} row_mask:0xf bank_mask:0xf")
        AB = 28
        for k in range(6):
            e(f"v_cvt_pk_bf16_f32 {v(AB+k)}, {v(OV+2*k)}, {v(OV+2*k+1)}")
        e("s_nop 1")
        DB = GB_
        for sg in range(3):
            for cc in range(8):
                c = "0" if sg == 0 else vr(DB+4*cc, 4)
                e(f"v_mfma_f32_16x16x16_bf16 {vr(DB+4*cc,4)}, {vr(AB+2*sg,2)}, {vr(WB+16*sg+2*cc,2)}, {c}")
        e(f"s_lshl_b32 s62, {s(S_W)}, 11", f"s_add_u32 s62, s62, {RED2}", "v_lshlrev_b32 v6, 5, v1", "v_add_u32 v6, s62, v6",
          "s_nop 5")
        for cc in range(8):
            e(f"v_mov_b32 {v(OV+cc)}, {v(DB+4*cc)}")
        e(f"ds_write_b128 v6, {vr(OV,4)}", f"ds_write_b128 v6, {vr(OV+4,4)} offset:16", "s_waitcnt lgkmcnt(0)", "s_barrier")
        e("v_lshrrev_b32 v6, 4, v1", f"s_lshl_b32 s62, {s(S_W)}, 2", "v_add_u32 v6, s62, v6",
          "v_bfe_u32 v7, v1, 2, 2", "v_and_b32 v8, 3, v1",
          "v_lshl_add_u32 v9, v7, 4, v6", "v_lshlrev_b32 v9, 5, v9", "v_lshl_add_u32 v9, v8, 3, v9")
        for ww in range(4):
            e(f"ds_read_b64 {vr(OV+2*ww,2)}, v9 offset:{RED2+2048*ww}")
        e(f"s_lshl_b32 s62, {s(S_J)}, 4", "v_add_u32 v6, s62, v6", "v_lshlrev_b32 v6, 13, v6",
          "v_lshl_add_u32 v7, v7, 2, v8", "v_lshl_add_u32 v6, v7, 4, v6",
          f"s_lshl_b32 s62, {s(S_H)}, 8", f"s_add_u32 s62, s62, {ABUF}", "s_waitcnt lgkmcnt(0)")
        e(f"v_add_f32 {v(OV)}, {v(OV)}, {v(OV+2)}", f"v_add_f32 {v(OV+1)}, {v(OV+1)}, {v(OV+3)}",
          f"v_add_f32 {v(OV+4)}, {v(OV+4)}, {v(OV+6)}", f"v_add_f32 {v(OV+5)}, {v(OV+5)}, {v(OV+7)}",
          f"v_add_f32 {v(OV+8)}, {v(OV)}, {v(OV+4)}", f"v_add_f32 {v(OV+10)}, {v(OV+1)}, {v(OV+5)}",
          f"v_mov_b32 {v(OV+9)}, {s(S_TAG)}", f"v_mov_b32 {v(OV+11)}, {s(S_TAG)}",
          f"buffer_store_dwordx4 {vr(OV+8,4)}, v6, {sr(SRD_WS,4)}, s62 offen sc1")
        self.stamp(10)
        ldone = self.new("done")
        e("s_cmp_eq_u32 s69, 1", f"s_cbranch_scc0 {ldone}")
        self.c("---- stage D: hh @ w_down, residual, output")
        X1R = 242
        e("v_lshrrev_b32 v6, 4, v1", f"v_mul_u32_u24 v6, {320*8}, v6", "v_and_b32 v7, 15, v1", "v_lshl_add_u32 v6, v7, 3, v6",
          "s_lshl_b32 s62, s68, 7", f"s_add_u32 s62, s62, {X1BUF}")
        def ld_x1d():
            e(f"buffer_load_dwordx2 {vr(X1R,2)}, v6, {sr(SRD_WS,4)}, s62 offen sc1")
        self.poll(ld_x1d, [X1R+1], T, T+1, sleep=2)
        self.stamp(11)
        HG = 216
        for i in range(6):
            e(f"v_add_u32 v6, {64*i}, v1", "v_mul_u32_u24 v7, 683, v6", "v_lshrrev_b32 v7, 16, v7",
              "v_mul_u32_u24 v8, 96, v7", "v_sub_u32 v8, v6, v8", f"v_mul_u32_u24 v7, {768*8}, v7",
              f"v_lshl_add_u32 {v(16+i)}, v8, 4, v7")
        e(f"s_mul_i32 s62, {s(S_W)}, {192*8}", f"s_add_u32 s62, s62, {HBUF}")
        def ld_h():
            for i in range(6):
                e(f"buffer_load_dwordx4 {vr(HG+4*i,4)}, {v(16+i)}, {sr(SRD_WS,4)}, s62 offen sc1")
        self.poll(ld_h, [HG+4*i+k for i in range(6) for k in (1, 3)], T, T+1)
        self.stamp(12)
        e(f"s_mul_i32 s62, {s(S_W)}, 3072", f"s_add_u32 s62, s62, {HST}", "v_lshlrev_b32 v6, 3, v1", "v_add_u32 v6, s62, v6")
        for i in range(6):
            e(f"v_mov_b32 {v(HG+4*i+1)}, {v(HG+4*i+2)}", f"ds_write_b64 v6, {vr(HG+4*i,2)} offset:{512*i}")
        e("v_and_b32 v7, 15, v1", "v_lshrrev_b32 v7, 2, v7", "v_mul_u32_u24 v7, 768, v7", "v_lshrrev_b32 v8, 4, v1",
          "v_lshl_add_u32 v7, v8, 4, v7", "v_add_u32 v7, s62, v7", "s_waitcnt lgkmcnt(0)")
        AD = 36
        for ks in range(12):
            e(f"ds_read_b128 {vr(AD+4*ks,4)}, v7 offset:{64*ks}")
            if ks == 5:
                pass
        DD2 = 16
        for ks in range(12):
            e(f"s_waitcnt lgkmcnt({11-ks})")
            for hi in range(2):
                c = "0" if ks == 0 else vr(DD2+4*hi, 4)
                e(f"v_mfma_f32_16x16x32_bf16 {vr(DD2+4*hi,4)}, {vr(AD+4*ks,4)}, {vr(WD+8*ks+4*hi,4)}, {c}")
        e(f"s_lshl_b32 s62, {s(S_W)}, 9", f"s_add_u32 s62, s62, {RED2+8192}", "v_lshlrev_b32 v6, 3, v1", "v_add_u32 v7, s62, v6",
          "s_nop 5", f"v_mov_b32 {v(DD2+1)}, {v(DD2+4)}", f"ds_write_b64 v7, {vr(DD2,2)}", "s_waitcnt lgkmcnt(0)", "s_barrier")
        e(f"s_cmp_eq_u32 {s(S_W)}, 0", f"s_cbranch_scc0 {ldone}")
        for ww in range(4):
            e(f"ds_read_b64 {vr(DD2+2*ww,2)}, v6 offset:{RED2+8192+512*ww}")
        e("s_waitcnt lgkmcnt(0)",
          f"v_add_f32 {v(DD2)}, {v(DD2)}, {v(DD2+2)}", f"v_add_f32 {v(DD2+1)}, {v(DD2+1)}, {v(DD2+3)}",
          f"v_add_f32 {v(DD2+4)}, {v(DD2+4)}, {v(DD2+6)}", f"v_add_f32 {v(DD2+5)}, {v(DD2+5)}, {v(DD2+7)}",
          f"v_add_f32 {v(DD2)}, {v(DD2)}, {v(DD2+4)}", f"v_add_f32 {v(DD2+1)}, {v(DD2+1)}, {v(DD2+5)}")
        self.round2(DD2, DD2+1, T)
        self.unpack(DD2+2, DD2+3, GBR)
        e(f"v_mul_f32 {v(DD2)}, {v(DD2)}, {v(DD2+2)}", f"v_mul_f32 {v(DD2+1)}, {v(DD2+1)}, {v(DD2+3)}")
        self.round2(DD2, DD2+1, T)
        self.unpack(DD2+2, DD2+3, X1R)
        e(f"v_add_f32 {v(DD2)}, {v(DD2)}, {v(DD2+2)}", f"v_add_f32 {v(DD2+1)}, {v(DD2+1)}, {v(DD2+3)}",
          f"v_cvt_pk_bf16_f32 {v(DD2)}, {v(DD2)}, {v(DD2+1)}")
        self.srd(SRD_B, S_OUT, 5120)
        e("v_lshrrev_b32 v6, 4, v1", "v_mul_u32_u24 v6, 1280, v6", "v_and_b32 v7, 15, v1", "v_lshl_add_u32 v6, v7, 2, v6",
          "s_lshl_b32 s62, s68, 6", f"buffer_store_dword {v(DD2)}, v6, {sr(SRD_B,4)}, s62 offen")
        self.c("the workgroup with d == 0 leaves this launch's tag for the next launch")
        e("s_cmp_eq_u32 s68, 0", f"s_cbranch_scc0 {ldone}",
          f"v_mov_b32 v6, {WS_EPOCH}", f"v_mov_b32 v7, {s(S_TAG)}", "s_mov_b64 exec, 1",
          f"buffer_store_dword v7, v6, {sr(SRD_WS,4)}, 0 offen sc1", "s_mov_b64 exec, -1")
        e(f"s_branch {ldone}")
        self.label(lhi2)
        lnr2 = self.new("nr2")
        e("s_cmp_eq_u32 s70, 1", f"s_cbranch_scc0 {lnr2}")
        self.c("---- reducer: sum 32 head partials, residual, publish x1")
        RGm = 184
        e("v_lshlrev_b32 v6, 4, v1", "s_lshl_b32 s62, s71, 13", f"s_add_u32 s62, s62, {ABUF}", "s_add_u32 s63, s62, 4096")
        def ld_a():
            for i in range(8):
                e(f"buffer_load_dwordx4 {vr(RGm+4*i,4)}, v6, {sr(SRD_WS,4)}, {'s63' if i>=4 else 's62'} offen offset:{1024*(i&3)} sc1")
        self.poll(ld_a, [RGm+4*i+k for i in range(8) for k in (1, 3)], T, T+1)
        self.stamp(9)
        a0, a1 = 16, 17
        e(f"v_add_f32 {v(a0)}, {v(RGm)}, {v(RGm+4)}", f"v_add_f32 {v(a1)}, {v(RGm+2)}, {v(RGm+6)}")
        for i in range(2, 8):
            e(f"v_add_f32 {v(a0)}, {v(a0)}, {v(RGm+4*i)}", f"v_add_f32 {v(a1)}, {v(a1)}, {v(RGm+4*i+2)}")
        for swp in ("v_permlane16_swap_b32", "v_permlane32_swap_b32"):
            e(f"v_mov_b32 v18, {v(a0)}", f"v_mov_b32 v19, {v(a1)}", "s_nop 1",
              f"{swp} v18, {v(a0)}", f"{swp} v19, {v(a1)}",
              f"v_add_f32 {v(a0)}, v18, {v(a0)}", f"v_add_f32 {v(a1)}, v19, {v(a1)}")
        self.round2(a0, a1, T)
        self.unpack(18, 19, RG)
        e(f"v_mul_f32 {v(a0)}, {v(a0)}, v18", f"v_mul_f32 {v(a1)}, {v(a1)}, v19")
        self.round2(a0, a1, T)
        self.unpack(18, 19, RX)
        e(f"v_add_f32 {v(a0)}, {v(a0)}, v18", f"v_add_f32 {v(a1)}, {v(a1)}, v19",
          f"v_cvt_pk_bf16_f32 v20, {v(a0)}, {v(a1)}", f"v_mov_b32 v21, {s(S_TAG)}",
          "v_bfe_u32 v6, v1, 2, 2", f"v_mul_u32_u24 v6, {320*8}, v6", "v_and_b32 v7, 3, v1", "v_lshl_add_u32 v6, v7, 3, v6",
          "s_lshl_b32 s62, s71, 5", f"s_add_u32 s62, s62, {X1BUF}", "s_mov_b64 exec, 0xffff",
          f"buffer_store_dwordx2 v[20:21], v6, {sr(SRD_WS,4)}, s62 offen sc1", "s_mov_b64 exec, -1")
        self.stamp(10)
        self.label(lnr2)
        e("s_cmp_eq_u32 s69, 1", f"s_cbranch_scc0 {ldone}")
        self.c("---- stage C: LN2, gate/up, hh")
        XG = 184
        e(f"s_mul_i32 s62, {s(S_W)}, {320*8}", f"s_add_u32 s62, s62, {X1BUF}", "v_lshlrev_b32 v6, 3, v1")
        def ld_x1():
            for i in range(5):
                e(f"buffer_load_dwordx2 {vr(XG+2*i,2)}, v6, {sr(SRD_WS,4)}, s62 offen offset:{512*i} sc1")
        self.poll(ld_x1, [XG+2*i+1 for i in range(5)], T, T+1)
        self.stamp(11)
        for i in range(5):
            e(f"v_mov_b32 {v(PX+i)}, {v(XG+2*i)}")
        self.ln_stats(PX, XF, T)
        self.modulate(XF, CC1, CSH, T, 26)
        e("s_waitcnt lgkmcnt(0)", "s_barrier")
        AC = 184
        for ks in range(5):
            e(f"ds_read_b128 {vr(AC+4*ks,4)}, v5 offset:{64*ks}")
        DC = 204
        for ks in range(5):
            e(f"s_waitcnt lgkmcnt({4-ks})")
            for mi, base in enumerate((WG, WU)):
                for hi in range(2):
                    d = DC+8*mi+4*hi
                    c = "0" if ks == 0 else vr(d, 4)
                    e(f"v_mfma_f32_16x16x32_bf16 {vr(d,4)}, {vr(AC+4*ks,4)}, {vr(base+8*ks+4*hi,4)}, {c}")
        e(f"s_lshl_b32 s62, {s(S_W)}, 10", f"s_add_u32 s62, s62, {RED2}", "v_lshlrev_b32 v6, 4, v1", "v_add_u32 v7, s62, v6",
          "s_nop 5")
        for k in range(4):
            e(f"v_mov_b32 {v(16+k)}, {v(DC+4*k)}")
        e("ds_write_b128 v7, v[16:19]", "s_waitcnt lgkmcnt(0)", "s_barrier")
        e(f"s_cmp_eq_u32 {s(S_W)}, 0", f"s_cbranch_scc0 {ldone}")
        for ww in range(4):
            e(f"ds_read_b128 {vr(AC+4*ww,4)}, v6 offset:{RED2+1024*ww}")
        e("s_waitcnt lgkmcnt(0)")
        for k in range(4):
            e(f"v_add_f32 {v(AC+k)}, {v(AC+k)}, {v(AC+4+k)}", f"v_add_f32 {v(AC+8+k)}, {v(AC+8+k)}, {v(AC+12+k)}")
        for k in range(4):
            e(f"v_add_f32 {v(AC+k)}, {v(AC+k)}, {v(AC+8+k)}")
        self.round2(AC, AC+1, T)
        self.round2(AC+2, AC+3, T)
        e(f"v_mul_f32 {v(AC)}, {v(AC)}, {v(AC+2)}", f"v_mul_f32 {v(AC+1)}, {v(AC+1)}, {v(AC+3)}",
          f"v_cvt_pk_bf16_f32 v20, {v(AC)}, {v(AC+1)}", f"v_mov_b32 v21, {s(S_TAG)}",
          "v_lshrrev_b32 v6, 4, v1", f"v_mul_u32_u24 v6, {768*8}, v6", "v_and_b32 v7, 15, v1", "v_lshl_add_u32 v6, v7, 3, v6",
          "s_lshl_b32 s62, s68, 7", f"s_add_u32 s62, s62, {HBUF}",
          f"buffer_store_dwordx2 v[20:21], v6, {sr(SRD_WS,4)}, s62 offen sc1")
        self.label(ldone)
        self.stamp(13)
        self.stamps_store()
        e("s_waitcnt vmcnt(0)", "s_endpgm")


def main():
    ap = argparse.ArgumentParser()
    ap.add_argument("-o", default="cdna_kernels/" + NAME + ".s")
    ap.add_argument("-D", type=int, default=3)
    ap.add_argument("--diag", action="store_true")
    ap.add_argument("--spin", type=int, default=400000)
    a = ap.parse_args()
    g = Gen(D=a.D, diag=a.diag, spin=a.spin)
    open(a.o, "w").write(g.build())
    print("wrote", a.o, len(g.L), "lines")


if __name__ == "__main__":
    main()
```

```python
import sys, argparse

NAME = "adaLN_cond__gqa_block_cached__glu_gated_bilinear__decode"
KERNEL = NAME + "_kernel"

WS_EPOCH = 0
MODBUF = 0x1000
QBUF   = 0x10000
MLBUF  = 0x28000
X1BUF  = 0x2C000
HBUF   = 0x30000
ABUF   = 0x40000
OBUF   = 0x100000
CNTBUF = 0x38000
SBUF   = 0x200000
STAMPS = 0x400000
WS_SIZE = 0x800000

RING_W = 36864
SC     = 147456
MISC   = 155648
AVEC   = MISC
QL     = MISC + 5120
ML     = MISC + 6656
FLAGS  = MISC + 6720
LDS_TOTAL = 163840
F_SYNCA, F_SYNCR, F_NV, F_KD, F_NP, F_VE = 0, 4, 8, 24, 40, 56
F_JD   = 72
F_RF   = 80
IDQ    = MISC + 6912
IDL    = MISC + 7168
PSLOT  = AVEC
RED2   = 0
HST    = 16384

S_X, S_K, S_V, S_WQ, S_WO, S_BX, S_G, S_U, S_DN, S_C, S_WM, S_OUT, S_DBG, S_WS = range(4, 32, 2)
S_TAG, S_W, S_H, S_J = 32, 33, 34, 35
SRD_A, SRD_WS, SRD_B, SRD_C = 36, 40, 44, 48
S_SPIN, S_SELLO, S_SELHI = 96, 97, 98
S_STAMP0 = 72

SCALE = 0x3d93cd3a
LOG2E = 0x3fb8aa3b
EPS = 0x3727c5ac
INV640 = 0x3acccccd
NINF = 0xff800000
TAGINC = 0x9E3779B9


def v(i): return f"v{i}"
def vr(i, n): return f"v[{i}:{i+n-1}]"
def s(i): return f"s{i}"
def sr(i, n): return f"s[{i}:{i+n-1}]"


class Gen:
    def __init__(self, D=3, diag=False, spin=400000, x=()):
        self.x = set(x)
        self.L = []
        self.nl = 0
        self.D = D
        self.diag = diag
        self.spin = spin
        self.nstamp = 0

    def e(self, *lines):
        for l in lines:
            self.L.append("    " + l)

    def c(self, text):
        self.L.append("    ; " + text)

    def label(self, name):
        self.L.append(name + ":")

    def new(self, base):
        self.nl += 1
        return f"L{base}_{self.nl}"

    def srd(self, dst, ptr, size):
        self.e(f"s_mov_b32 {s(dst)}, {s(ptr)}",
               f"s_and_b32 {s(dst+1)}, {s(ptr+1)}, 0xffff",
               f"s_mov_b32 {s(dst+2)}, {size}",
               f"s_mov_b32 {s(dst+3)}, 0x20000")

    def stamp(self, k):
        if not self.diag:
            return
        assert k < 16
        self.e("s_memrealtime s[88:89]", "s_waitcnt lgkmcnt(0)", f"s_mov_b32 {s(S_STAMP0+k)}, s88")

    def stamps_store(self):
        if not self.diag:
            return
        self.e("s_mov_b64 exec, -1")
        self.e("v_mov_b32 v250, 0")
        for k in range(16):
            self.e(f"v_writelane_b32 v250, {s(S_STAMP0+k)}, {k}")
        self.e("v_mbcnt_lo_u32_b32 v251, -1, 0", "v_mbcnt_hi_u32_b32 v251, -1, v251",
               "v_lshlrev_b32 v251, 2, v251",
               "s_lshl_b32 s88, s99, 6", f"s_add_u32 s88, s88, {STAMPS}",
               "s_mov_b64 exec, 0xffff",
               f"buffer_store_dword v250, v251, {sr(SRD_WS,4)}, s88 offen",
               "s_waitcnt vmcnt(0)")

    def tag_load(self):
        self.e(f"s_load_dword {s(S_TAG)}, {sr(S_WS,2)}, {WS_EPOCH}")
        if self.diag:
            self.e("s_memrealtime s[100:101]")

    def tag_ready(self):
        self.e("s_waitcnt lgkmcnt(0)", f"s_add_u32 {s(S_TAG)}, {s(S_TAG)}, {hex(TAGINC)}")
        if self.diag:
            self.e(f"s_mov_b32 {s(S_STAMP0)}, s100")

    def start_sync(self, streamer):
        self.e("s_barrier")

    def spin_check(self):
        self.e(f"s_sub_u32 {s(S_SPIN)}, {s(S_SPIN)}, 1", "s_cbranch_scc1 Labort")

    def allreduce(self, op, x, t):
        for r in (8, 4, 2, 1):
            self.e("s_nop 1", f"v_{op}_f32_dpp {v(x)}, {v(x)}, {v(x)} row_ror:{r} row_mask:0xf bank_mask:0xf")
        self.e(f"v_mov_b32 {v(t)}, {v(x)}", "s_nop 1", f"v_permlane16_swap_b32 {v(t)}, {v(x)}",
               f"v_{op}_f32 {v(x)}, {v(t)}, {v(x)}")
        self.e(f"v_mov_b32 {v(t)}, {v(x)}", "s_nop 1", f"v_permlane32_swap_b32 {v(t)}, {v(x)}",
               f"v_{op}_f32 {v(x)}, {v(t)}, {v(x)}")

    def unpack(self, lo, hi, src):
        self.e(f"v_lshlrev_b32 {v(lo)}, 16, {v(src)}", f"v_and_b32 {v(hi)}, 0xffff0000, {v(src)}")

    def round2(self, a, b, t):
        self.e(f"v_cvt_pk_bf16_f32 {v(t)}, {v(a)}, {v(b)}")
        self.unpack(a, b, t)

    def lds_flag_set(self, vfl, off, vone):
        self.e("s_mov_b64 exec, 1", f"ds_write_b32 {v(vfl)}, {v(vone)} offset:{off}", "s_mov_b64 exec, -1")

    def lds_wait(self, vfl, off, vt, target, sleep=1, body=None):
        l = self.new("w")
        d = self.new("wd")
        self.label(l)
        if body:
            body()
        self.e(f"ds_read_b32 {v(vt)}, {v(vfl)} offset:{off}", "s_waitcnt lgkmcnt(0)",
               f"v_readfirstlane_b32 s90, {v(vt)}", "s_nop 0",
               f"s_cmp_ge_u32 s90, {target}", f"s_cbranch_scc1 {d}")
        if sleep:
            self.e(f"s_sleep {sleep}")
        self.spin_check()
        self.e(f"s_branch {l}")
        self.label(d)

    def sync4(self, vfl, off, vone, vt):
        self.e("s_mov_b64 exec, 1", f"ds_add_u32 {v(vfl)}, {v(vone)} offset:{off}", "s_mov_b64 exec, -1")
        self.lds_wait(vfl, off, vt, 4, sleep=0)

    def tagcheck(self, regs, acc, tmp, retry):
        first = True
        i = 0
        while i < len(regs):
            if first:
                self.e(f"v_xor_b32 {v(acc)}, {s(S_TAG)}, {v(regs[i])}")
                first = False
                i += 1
            elif i + 1 < len(regs):
                self.e(f"v_xor_b32 {v(tmp)}, {s(S_TAG)}, {v(regs[i])}",
                       f"v_xor_b32 {v(tmp+1)}, {s(S_TAG)}, {v(regs[i+1])}",
                       f"v_or3_b32 {v(acc)}, {v(acc)}, {v(tmp)}, {v(tmp+1)}")
                i += 2
            else:
                self.e(f"v_xor_b32 {v(tmp)}, {s(S_TAG)}, {v(regs[i])}",
                       f"v_or_b32 {v(acc)}, {v(acc)}, {v(tmp)}")
                i += 1
        self.e(f"v_cmp_ne_u32 vcc, 0, {v(acc)}", "s_nop 1", f"s_cbranch_vccnz {retry}")

    def poll(self, loads, tags, acc, tmp, sleep=0):
        l = self.new("poll")
        r = self.new("pollr")
        d = self.new("polld")
        self.e(f"s_branch {l}")
        self.label(r)
        if sleep:
            self.e(f"s_sleep {sleep}")
        self.spin_check()
        self.label(l)
        loads()
        self.e("s_waitcnt vmcnt(0)")
        self.tagcheck(tags, acc, tmp, r)
        self.label(d)

    def build(self):
        e = self.e
        hdr = open("cdna_kernels/" + NAME + ".s.ref").read().split("\n")
        for l in hdr:
            if l.startswith("; Override"):
                break
            self.L.append(l)
        self.L.append(f"; @launch grid=(256,1,1) block=(512,1,1) lds={LDS_TOTAL}")
        self.L.append('.amdgcn_target "amdgcn-amd-amdhsa--gfx950"')
        self.L.append(".text")
        self.L.append(f".globl {KERNEL}")
        self.L.append(".p2align 8")
        self.L.append(f".type {KERNEL},@function")
        self.label(KERNEL)
        e("s_cmp_ge_u32 s2, 256", "s_cbranch_scc1 Lexit")
        e("s_load_dwordx16 s[4:19], s[0:1], 0", "s_load_dwordx8 s[20:27], s[0:1], 64", "s_load_dwordx4 s[28:31], s[0:1], 96")
        e("v_lshrrev_b32 v2, 6, v0", "v_and_b32 v1, 63, v0", "s_nop 0", f"v_readfirstlane_b32 {s(S_W)}, v2")
        e(f"s_lshr_b32 {s(S_H)}, s2, 3", f"s_and_b32 {s(S_J)}, s2, 7")
        e(f"s_mov_b32 {s(S_SPIN)}, {self.spin}", f"s_mov_b32 {s(S_SELLO)}, 0x05040100", f"s_mov_b32 {s(S_SELHI)}, 0x07060302")
        if self.diag:
            e("s_lshl_b32 s99, s2, 3", f"s_add_u32 s99, s99, {s(S_W)}")
            for k in range(16):
                e(f"s_mov_b32 {s(S_STAMP0+k)}, 0")
        e("s_waitcnt lgkmcnt(0)")
        self.srd(SRD_WS, S_WS, WS_SIZE)
        e(f"s_cmp_ge_u32 {s(S_W)}, 4", "s_cbranch_scc1 Lhelper")
        self.streamer()
        self.label("Lhelper")
        self.helper()
        self.label("Labort")
        self.c("spin budget exhausted: leave a mark in d_debug and stop")
        e("s_mov_b64 exec, 1", "v_mov_b32 v2, 0", "v_mov_b32 v3, 0xdead",
          f"global_store_dword v2, v3, {sr(S_DBG,2)}", "s_waitcnt vmcnt(0)")
        self.label("Lexit")
        e("s_endpgm")
        self.L.append('.section .rodata,"a"')
        self.L.append(".p2align 6")
        self.L.append(f".amdhsa_kernel {KERNEL}")
        self.L += ["  .amdhsa_next_free_vgpr 256", "  .amdhsa_next_free_sgpr 102", "  .amdhsa_accum_offset 256",
                   "  .amdhsa_group_segment_fixed_size 0", "  .amdhsa_kernarg_size 112",
                   "  .amdhsa_user_sgpr_count 2", "  .amdhsa_user_sgpr_kernarg_segment_ptr 1",
                   "  .amdhsa_system_sgpr_workgroup_id_x 1", "  .amdhsa_float_denorm_mode_32 3",
                   ".end_amdhsa_kernel"]
        return "\n".join(self.L) + "\n"

    def issue_unit(self):
        e = self.e
        D = self.D
        sI, sSrc, sPos, sBase, sEnd, sStop, sSl = 52, 53, 54, 55, 56, 60, 61
        sNext, sWs, sHB, sVM, sCur = 64, 65, 66, 68, 71
        vIds, vClaim, vOne, vZero = 176, 177, 19, 179
        lmid, lstop, ldone, lk, lst, lnr = (self.new(x) for x in ("im", "is", "id", "ik", "ia", "ir"))
        e(f"s_and_b32 s62, {s(sI)}, 3", f"s_cbranch_scc1 {lmid}")
        e("s_cmp_eq_u32 s50, 0", f"s_cbranch_scc1 {lnr}", "s_waitcnt lgkmcnt(0)", f"s_add_u32 {s(sNext)}, s51, 32", "s_mov_b32 s50, 0")
        self.label(lnr)
        e(f"s_cmp_ge_u32 {s(sNext)}, 256", f"s_cbranch_scc1 {lstop}")
        e(f"s_mov_b32 m0, {s(sWs)}", f"s_mov_b32 {s(sCur)}, {s(sNext)}", "s_nop 0", f"v_writelane_b32 {v(vIds)}, {s(sCur)}, m0",
          f"s_add_u32 {s(sWs)}, {s(sWs)}, 1", f"s_cmp_eq_u32 {s(sWs)}, 3", f"s_cselect_b32 {s(sWs)}, 0, {s(sWs)}",
          f"s_and_b32 s62, {s(sCur)}, 127", "s_mul_i32 s62, s62, 12288", f"s_add_u32 {s(sSrc)}, {s(sSl)}, s62",
          f"s_cmp_lt_u32 {s(sCur)}, 128",
          f"s_cselect_b32 {s(SRD_A)}, {s(S_K)}, {s(S_V)}", f"s_cselect_b32 {s(SRD_A+1)}, s92, s93",
          f"s_cbranch_scc1 {lk}")
        self.c("V tile: tell the helper which probabilities to prepare")
        e(f"s_and_b32 s62, {s(sVM)}, 3", "s_lshl_b32 s62, s62, 2", "s_add_u32 s62, s62, s94", "v_mov_b32 v13, s62",
          f"s_and_b32 s63, {s(sCur)}, 127", "v_mov_b32 v21, s63", f"s_add_u32 {s(sVM)}, {s(sVM)}, 1",
          f"v_mov_b32 v22, {s(sVM)}", "s_mov_b64 exec, 1", "ds_write_b32 v13, v21", f"ds_write_b32 v18, v22 offset:{F_NV}",
          "s_mov_b64 exec, -1")
        self.label(lk)
        e(f"s_lshr_b32 s62, {s(sI)}, 2", "s_cmp_lt_u32 s62, %d" % (1000 if "static" in self.x else 3), f"s_cbranch_scc0 {lst}",
          "s_add_u32 s62, s62, 1", "s_lshl_b32 s62, s62, 3", f"s_add_u32 {s(sNext)}, s62, {s(S_J)}", f"s_branch {lmid}")
        self.label(lst)
        e("s_mov_b32 s51, 1", "s_atomic_add s51, s[48:49], 0x0 glc", "s_mov_b32 s50, 1")
        self.label(lmid)
        e(f"s_waitcnt vmcnt({3*(D-1)})", f"s_mov_b32 m0, {s(sPos)}",
          f"s_add_u32 {s(sPos)}, {s(sPos)}, 3072",
          f"buffer_load_dwordx4 v2, {sr(SRD_A,4)}, {s(sSrc)} offen nt lds",
          f"buffer_load_dwordx4 v3, {sr(SRD_A,4)}, {s(sSrc)} offen offset:1024 nt lds",
          f"buffer_load_dwordx4 v4, {sr(SRD_A,4)}, {s(sSrc)} offen offset:2048 nt lds",
          f"s_cmp_eq_u32 {s(sPos)}, {s(sEnd)}", f"s_cselect_b32 {s(sPos)}, {s(sBase)}, {s(sPos)}",
          f"s_add_u32 {s(sSrc)}, {s(sSrc)}, 3072",
          )
        e(f"s_add_u32 {s(sI)}, {s(sI)}, 1", f"s_branch {ldone}")
        self.label(lstop)
        e(f"s_mov_b32 {s(sStop)}, 1",
          f"s_and_b32 s62, {s(sVM)}, 3", "s_lshl_b32 s62, s62, 2", "s_add_u32 s62, s62, s94", "v_mov_b32 v13, s62",
          "v_mov_b32 v21, 0xffff", f"s_add_u32 {s(sVM)}, {s(sVM)}, 1", f"v_mov_b32 v22, {s(sVM)}",
          "s_mov_b64 exec, 1", "ds_write_b32 v13, v21", f"ds_write_b32 v18, v22 offset:{F_NV}", "s_mov_b64 exec, -1")
        self.label(ldone)

    def streamer(self):
        e = self.e
        D = self.D
        sI, sSrc, sPos, sBase, sEnd, sN, sTile, sTgt, sStop, sSl = 52, 53, 54, 55, 56, 57, 58, 59, 60, 61
        sNext, sWs, sHB, sRs, sVM, sVN, sKd, sCur = 64, 65, 66, 67, 68, 69, 70, 71
        QF, KF, D0, ACC, PF = 24, 48, 96, 104, 152
        X = 156
        T = 164
        vIds, vClaim, vZero, vSo, vSr, vIl = 176, 177, 179, 180, 181, 182
        Q = 184
        M, Lr, E = 192, 193, 196
        self.c("================= streamer wave: batch = wave id =================")
        self.tag_load()
        e(f"s_lshl_b32 s62, {s(S_W)}, 5", f"s_add_u32 s62, s62, {s(S_H)}", f"s_mul_i32 {s(sSl)}, s62, 1572864",
          f"s_lshl_b32 {s(sHB)}, {s(S_H)}, 2", f"s_add_u32 {s(sHB)}, {s(sHB)}, {s(S_W)}",
          f"s_and_b32 s92, {s(S_K+1)}, 0xffff", f"s_and_b32 s93, {s(S_V+1)}, 0xffff",
          f"s_lshl_b32 s94, {s(S_W)}, 4", f"s_add_u32 s94, s94, {IDQ}",
          f"s_lshl_b32 s95, {s(sHB)}, 7", f"s_add_u32 s95, s95, {CNTBUF}",
          f"s_add_u32 s48, {s(S_WS)}, s95", f"s_addc_u32 s49, {s(S_WS+1)}, 0", "s_mov_b32 s50, 0", "s_mov_b32 s51, 0",
          "s_mov_b32 s91, 0")
        self.srd(SRD_A, S_K, 201326592)
        e(f"s_mov_b32 {s(sSrc)}, {s(sSl)}", f"s_mov_b32 {s(sI)}, 0", f"s_mul_i32 {s(sBase)}, {s(S_W)}, {RING_W}",
          f"s_mov_b32 {s(sPos)}, {s(sBase)}", f"s_add_u32 {s(sEnd)}, {s(sBase)}, {RING_W}",
          f"s_mov_b32 {s(sTile)}, {s(sBase)}", f"s_mov_b32 {s(sStop)}, 0", f"s_mov_b32 {s(sNext)}, {s(S_J)}",
          f"s_mov_b32 {s(sWs)}, 0", f"s_mov_b32 {s(sRs)}, 0", f"s_mov_b32 {s(sVM)}, 0", f"s_mov_b32 {s(sVN)}, 0",
          f"s_mov_b32 {s(sKd)}, 0", f"s_mov_b32 {s(sN)}, 0", f"v_mov_b32 {v(vIds)}, 0", f"v_mov_b32 {v(vZero)}, 0",
          f"v_mov_b32 {v(vClaim)}, 0")
        self.c("DMA source offsets (xor swizzle of 16-byte chunks inside each row)")
        for i in range(3):
            e(f"v_add_u32 v13, {64*i}, v1", "v_mul_u32_u24 v14, 2731, v13", "v_lshrrev_b32 v14, 16, v14",
              "v_mul_u32_u24 v15, 24, v14", "v_sub_u32 v15, v13, v15", "v_and_b32 v16, 7, v14",
              "v_xor_b32 v15, v15, v16", "v_mul_u32_u24 v14, 384, v14", f"v_lshl_add_u32 {v(2+i)}, v15, 4, v14")
            if i:
                e(f"v_subrev_u32 {v(2+i)}, {1024*i}, {v(2+i)}")
        self.c("K fragment addresses")
        e("v_and_b32 v13, 15, v1", "v_lshrrev_b32 v14, 4, v1", "v_and_b32 v15, 7, v13", "v_mul_u32_u24 v13, 384, v13")
        for x in range(2):
            e(f"v_add_u32 v16, {4*x}, v14", "v_xor_b32 v16, v16, v15", f"v_lshl_add_u32 {v(5+x)}, v16, 4, v13")
        self.c("V fragment addresses")
        e("v_lshrrev_b32 v13, 2, v1", "v_and_b32 v15, 7, v13", "v_mul_u32_u24 v13, 384, v13",
          "v_and_b32 v16, 1, v1", "v_lshl_add_u32 v13, v16, 3, v13", "v_bfe_u32 v16, v1, 1, 1")
        for u in range(4):
            e(f"v_add_u32 v17, {2*u}, v16", "v_xor_b32 v17, v17, v15", f"v_lshl_add_u32 {v(7+u)}, v17, 4, v13")
        self.c("p slot address, score publish offset, flags")
        e(f"s_lshl_b32 s62, {s(S_W)}, 8", f"s_add_u32 s62, s62, {PSLOT}",
          "v_lshlrev_b32 v13, 4, v14", "v_add_u32 v12, s62, v13",
          f"s_lshl_b32 s62, {s(S_W)}, 11", f"s_add_u32 s62, s62, {SC}",
          f"v_add_u32 {v(vSo)}, s62, v13",
          "v_and_b32 v15, 15, v1", "v_lshlrev_b32 v15, 2, v15", f"v_add_u32 {v(vSr)}, s62, v15",
          f"s_lshl_b32 s62, {s(S_W)}, 7", f"s_add_u32 s62, s62, {IDL}", f"v_mov_b32 {v(vIl)}, s62",
          f"s_lshl_b32 s63, {s(S_W)}, 2", f"s_add_u32 s63, s63, {FLAGS}",
          "v_mov_b32 v18, s63", "v_mov_b32 v19, 1", "v_mov_b32 v11, v14")
        e(f"v_mov_b32 {v(M)}, {hex(NINF)}", f"v_mov_b32 {v(Lr)}, 0")
        for i in range(48):
            e(f"v_mov_b32 {v(ACC+i)}, 0")
        self.start_sync(streamer=True)
        self.c("---- fill the ring, then fetch q")
        lf, lfd = self.new("f"), self.new("fd")
        self.label(lf)
        e(f"s_cmp_lt_u32 {s(sI)}, 12", f"s_cbranch_scc0 {lfd}")
        self.issue_unit()
        e(f"s_branch {lf}")
        self.label(lfd)
        self.tag_ready()
        self.stamp(1)
        self.lds_flag_set(18, F_RF, 19)
        e(f"s_mul_i32 s62, {s(S_W)}, {3072*8}", f"s_mul_i32 s63, {s(S_H)}, {96*8}", "s_add_u32 s62, s62, s63",
          f"s_add_u32 s62, s62, {QBUF}", "v_lshlrev_b32 v13, 4, v1",
          "s_mov_b32 exec_lo, -1", "s_mov_b32 exec_hi, 0xffff")
        def ld_q():
            e(f"buffer_load_dwordx4 {vr(X,4)}, v13, {sr(SRD_WS,4)}, s62 offen sc1")
        self.poll(ld_q, [X+1, X+3], T, T+1, sleep=4)
        e(f"v_mov_b32 {v(X+1)}, {v(X+2)}", f"s_mul_i32 s62, {s(S_W)}, 384", f"s_add_u32 s62, s62, {QL}",
          "v_lshlrev_b32 v13, 3, v1", "v_add_u32 v13, s62, v13", f"ds_write_b64 v13, {vr(X,2)}", "s_mov_b64 exec, -1",
          "v_lshlrev_b32 v13, 4, v11", "v_add_u32 v13, s62, v13")
        for ks in range(6):
            e(f"ds_read_b128 {vr(QF+4*ks,4)}, v13 offset:{64*ks}")
        e("s_waitcnt lgkmcnt(0)", f"v_mov_b32 v13, {FLAGS}")
        self.lds_wait(13, F_JD, 14, 1, sleep=1)
        self.stamp(2)

        def flush():
            self.c("publish the score tiles kept in LDS: 4 tiles per store, 16 x {pair, tag} each")
            lf_, lfe = self.new("fl"), self.new("fle")
            e("s_mov_b32 s63, 0", "s_cmp_eq_u32 s91, 0", f"s_cbranch_scc1 {lfe}",
              f"s_lshl_b32 s62, {s(sHB)}, 14", f"s_add_u32 s62, s62, {SBUF}", f"v_mov_b32 {v(T+1)}, {s(S_TAG)}")
            self.label(lf_)
            e("v_add_u32 v14, s63, v11",
              f"v_lshl_add_u32 v15, v14, 2, {v(vIl)}",
              f"v_lshl_add_u32 v16, v14, 6, {v(vSr)}",
              "ds_read_b32 v17, v15", f"ds_read_b32 {v(T)}, v16",
              "v_cmp_gt_u32 vcc, s91, v14", "v_and_b32 v15, 15, v1", "v_lshlrev_b32 v15, 3, v15", "s_waitcnt lgkmcnt(0)",
              "v_lshl_add_u32 v15, v17, 7, v15", "s_mov_b64 exec, vcc",
              f"buffer_store_dwordx2 {vr(T,2)}, v15, {sr(SRD_WS,4)}, s62 offen sc1", "s_mov_b64 exec, -1",
              "s_add_u32 s63, s63, 4", "s_cmp_lt_u32 s63, s91", f"s_cbranch_scc1 {lf_}")
            self.label(lfe)
            e("s_mov_b32 s91, 0")

        def finalize():
            self.c("this wave has no more K tiles: hand (max, sum, pending score tiles) to the helper")
            e(f"v_mov_b32 {v(T)}, {v(M)}")
            for swp in ("v_permlane16_swap_b32", "v_permlane32_swap_b32"):
                e(f"v_mov_b32 {v(T+1)}, {v(T)}", "s_nop 1", f"{swp} {v(T+1)}, {v(T)}", f"v_max_f32 {v(T)}, {v(T+1)}, {v(T)}")
            e(f"v_sub_f32 {v(T+1)}, {v(M)}, {v(T)}", f"v_mul_f32 {v(T+1)}, {hex(LOG2E)}, {v(T+1)}",
              f"v_exp_f32 {v(T+1)}, {v(T+1)}", "s_nop 0", f"v_mul_f32 {v(Lr)}, {v(Lr)}, {v(T+1)}")
            for swp in ("v_permlane16_swap_b32", "v_permlane32_swap_b32"):
                e(f"v_mov_b32 {v(T+1)}, {v(Lr)}", "s_nop 1", f"{swp} {v(T+1)}, {v(Lr)}", f"v_add_f32 {v(Lr)}, {v(T+1)}, {v(Lr)}")
            e(f"v_mov_b32 {v(E)}, {v(T)}", f"v_mov_b32 {v(E+1)}, {v(Lr)}", f"v_mov_b32 {v(E+2)}, s91",
              f"s_lshl_b32 s62, {s(S_W)}, 4", f"s_add_u32 s62, s62, {ML}", "v_mov_b32 v13, s62",
              "s_mov_b64 exec, 1", f"ds_write_b64 v13, {vr(E,2)}", f"ds_write_b32 v13, {v(E+2)} offset:8",
              f"ds_write_b32 v18, v19 offset:{F_KD}", "s_mov_b64 exec, -1", f"s_mov_b32 {s(sKd)}, 1")
            self.stamp(3)

        self.c("---- item loop")
        lloop, liss, lgo, lhave, lv, lnext, lfin = (self.new(x) for x in ("loop", "iss", "go", "have", "vit", "next", "fin"))
        self.label(lloop)
        e(f"s_lshl_b32 {s(sTgt)}, {s(sN)}, 2", f"s_add_u32 {s(sTgt)}, {s(sTgt)}, {4+D}")
        self.label(liss)
        e(f"s_cmp_lt_u32 {s(sI)}, {s(sTgt)}", f"s_cbranch_scc0 {lhave}",
          f"s_cmp_eq_u32 {s(sStop)}, 0", f"s_cbranch_scc0 {lgo}")
        self.issue_unit()
        e(f"s_branch {liss}")
        self.label(lgo)
        e(f"s_lshl_b32 s62, {s(sN)}, 2", f"s_cmp_eq_u32 s62, {s(sI)}", f"s_cbranch_scc1 {lfin}", "s_waitcnt vmcnt(0)")
        self.label(lhave)
        e(f"v_readlane_b32 {s(sCur)}, {v(vIds)}, {s(sRs)}", f"s_add_u32 {s(sRs)}, {s(sRs)}, 1",
          f"s_cmp_eq_u32 {s(sRs)}, 3", f"s_cselect_b32 {s(sRs)}, 0, {s(sRs)}",
          f"s_cmp_lt_u32 {s(sCur)}, 128", f"s_cbranch_scc0 {lv}")
        self.c("K tile: 32 scores")
        e(f"v_add_u32 v14, {s(sTile)}, v5", f"v_add_u32 v15, {s(sTile)}, v6")
        for ks in range(6):
            for blk in range(2):
                e(f"ds_read_b128 {vr(KF+8*ks+4*blk,4)}, {v(14+(ks&1))} offset:{blk*6144+(ks>>1)*128}")
        for ks in range(6):
            e(f"s_waitcnt lgkmcnt({10-2*ks})")
            for blk in range(2):
                c = "0" if ks == 0 else vr(D0+4*blk, 4)
                e(f"v_mfma_f32_16x16x32_bf16 {vr(D0+4*blk,4)}, {vr(KF+8*ks+4*blk,4)}, {vr(QF+4*ks,4)}, {c}")
        self.c("s91 = number of score tiles waiting in LDS")
        e("s_lshl_b32 s62, s91, 6", f"v_add_u32 v13, s62, {v(vSo)}", "s_lshl_b32 s63, s91, 2", f"v_add_u32 v21, s63, {v(vIl)}",
          f"v_mov_b32 v22, {s(sCur)}", "s_add_u32 s91, s91, 1", "s_nop 2")
        for i in range(0, 8, 2):
            e(f"v_cvt_pk_bf16_f32 {v(T)}, {v(D0+i)}, {v(D0+i+1)}")
            self.unpack(X+i, X+i+1, T)
            e(f"v_mul_f32 {v(X+i)}, {hex(SCALE)}, {v(X+i)}", f"v_mul_f32 {v(X+i+1)}, {hex(SCALE)}, {v(X+i+1)}",
              f"v_cvt_pk_bf16_f32 {v(Q+(i>>1))}, {v(X+i)}, {v(X+i+1)}")
            self.unpack(X+i, X+i+1, Q+(i>>1))
        e("s_mov_b32 exec_lo, 0x00010001", "s_mov_b32 exec_hi, 0x00010001",
          f"ds_write_b128 v13, {vr(Q,4)}", "s_mov_b64 exec, 1", "ds_write_b32 v21, v22", "s_mov_b64 exec, -1")
        e(f"v_max3_f32 {v(T)}, {v(X)}, {v(X+1)}, {v(X+2)}", f"v_max3_f32 {v(T)}, {v(T)}, {v(X+3)}, {v(X+4)}",
          f"v_max3_f32 {v(T)}, {v(T)}, {v(X+5)}, {v(X+6)}", f"v_max3_f32 {v(T)}, {v(T)}, {v(X+7)}, {v(M)}",
          f"v_sub_f32 {v(T+1)}, {v(M)}, {v(T)}", f"v_mul_f32 {v(T+1)}, {hex(LOG2E)}, {v(T+1)}", f"v_mov_b32 {v(M)}, {v(T)}")
        for i in range(8):
            e(f"v_sub_f32 {v(E+i)}, {v(X+i)}, {v(M)}", f"v_mul_f32 {v(E+i)}, {hex(LOG2E)}, {v(E+i)}")
        e(f"v_exp_f32 {v(T+1)}, {v(T+1)}")
        for i in range(8):
            e(f"v_exp_f32 {v(E+i)}, {v(E+i)}")
        e(f"v_mul_f32 {v(Lr)}, {v(Lr)}, {v(T+1)}")
        for i in range(0, 8, 2):
            e(f"v_add_f32 {v(E+i)}, {v(E+i)}, {v(E+i+1)}")
        e(f"v_add_f32 {v(E)}, {v(E)}, {v(E+2)}", f"v_add_f32 {v(E+4)}, {v(E+4)}, {v(E+6)}",
          f"v_add_f32 {v(E)}, {v(E)}, {v(E+4)}", f"v_add_f32 {v(Lr)}, {v(Lr)}, {v(E)}")
        e("s_cmp_lt_u32 s91, 32", f"s_cbranch_scc1 {lnext}")
        flush()
        e(f"s_branch {lnext}")
        self.label(lv)
        lkd = self.new("kd")
        e(f"s_cmp_eq_u32 {s(sKd)}, 0", f"s_cbranch_scc0 {lkd}")
        finalize()
        self.label(lkd)
        self.c("V tile: wait for its probabilities, keep the ring filling meanwhile")
        lw, lwd, lwn = self.new("pw"), self.new("pd"), self.new("pn")
        self.label(lw)
        e(f"ds_read_b32 v13, v18 offset:{F_NP}", "s_waitcnt lgkmcnt(0)", "v_readfirstlane_b32 s90, v13", "s_nop 0",
          f"s_cmp_gt_u32 s90, {s(sVN)}", f"s_cbranch_scc1 {lwd}")
        e(f"s_lshl_b32 s62, {s(sN)}, 2", "s_add_u32 s62, s62, 12", f"s_cmp_lt_u32 {s(sI)}, s62", f"s_cbranch_scc0 {lwn}",
          f"s_cmp_eq_u32 {s(sStop)}, 0", f"s_cbranch_scc0 {lwn}")
        self.issue_unit()
        self.label(lwn)
        e("s_sleep 1")
        self.spin_check()
        e(f"s_branch {lw}")
        self.label(lwd)
        if self.diag:
            ls = self.new("st")
            e(f"s_cmp_eq_u32 {s(sVN)}, 0", f"s_cbranch_scc0 {ls}")
            self.stamp(5)
            self.label(ls)
        for u in range(4):
            e(f"v_add_u32 {v(14+u)}, {s(sTile)}, {v(7+u)}")
        e(f"s_and_b32 s62, {s(sVN)}, 3", "s_lshl_b32 s62, s62, 6", "v_add_u32 v13, s62, v12",
          f"ds_read_b128 {vr(PF,4)}, v13", f"s_add_u32 {s(sVN)}, {s(sVN)}, 1")
        def vread(t):
            a, u = t >> 2, t & 3
            e(f"ds_read_b64_tr_b16 {vr(KF+4*t,2)}, {v(14+u)} offset:{a*128}",
              f"ds_read_b64_tr_b16 {vr(KF+4*t+2,2)}, {v(14+u)} offset:{a*128+6144}")
        def vmf(t):
            e(f"v_mfma_f32_16x16x32_bf16 {vr(ACC+4*t,4)}, {vr(PF,4)}, {vr(KF+4*t,4)}, {vr(ACC+4*t,4)}")
        for t in range(6):
            vread(t)
        e("s_waitcnt lgkmcnt(6)")
        for t in range(3): vmf(t)
        for t in range(6, 9): vread(t)
        e("s_waitcnt lgkmcnt(6)")
        for t in range(3, 6): vmf(t)
        for t in range(9, 12): vread(t)
        e("s_waitcnt lgkmcnt(6)")
        for t in range(6, 9): vmf(t)
        e("s_waitcnt lgkmcnt(0)")
        for t in range(9, 12): vmf(t)
        self.label(lnext)
        e(f"s_add_u32 {s(sTile)}, {s(sTile)}, 12288", f"s_cmp_eq_u32 {s(sTile)}, {s(sEnd)}",
          f"s_cselect_b32 {s(sTile)}, {s(sBase)}, {s(sTile)}",
          f"s_add_u32 {s(sN)}, {s(sN)}, 1", f"s_branch {lloop}")
        self.label(lfin)
        lkd2 = self.new("kd2")
        e(f"s_cmp_eq_u32 {s(sKd)}, 0", f"s_cbranch_scc0 {lkd2}")
        finalize()
        self.label(lkd2)
        self.stamp(6)
        if self.diag:
            e(f"s_mov_b32 {s(S_STAMP0+4)}, {s(sN)}", f"s_add_u32 {s(S_STAMP0+4)}, {s(S_STAMP0+4)}, 1000")
        self.c("---- publish the partial output (64 granules of 3 floats + tag)")
        e(f"s_mov_b32 s62, {s(sBase)}",
          "v_and_b32 v13, 15, v1", "v_lshlrev_b32 v13, 2, v13", "v_add_u32 v13, s62, v13",
          "v_mul_u32_u24 v14, 12, v1", "v_add_u32 v14, s62, v14",
          f"s_lshl_b32 s63, {s(sHB)}, 3", f"s_add_u32 s63, s63, {s(S_J)}",
          "s_lshl_b32 s63, s63, 10", f"s_add_u32 s63, s63, {OBUF}", "v_lshlrev_b32 v15, 4, v1",
          f"v_mov_b32 {v(E+3)}, {s(S_TAG)}", "s_nop 3", "s_mov_b64 exec, 0xffff")
        for t in range(12):
            e(f"ds_write_b32 v13, {v(ACC+4*t)} offset:{64*t}")
        e("s_mov_b64 exec, -1")
        for k in range(3):
            e(f"ds_read_b32 {v(E+k)}, v14 offset:{4*k}")
        e("s_waitcnt lgkmcnt(0)",
          f"buffer_store_dwordx4 {vr(E,4)}, v15, {sr(SRD_WS,4)}, s63 offen sc1")
        self.lds_flag_set(18, F_VE, 19)
        self.stamp(7)
        self.stamps_store()
        e("s_endpgm")

    def gemv64_loads(self, W):
        e = self.e
        e("s_mov_b32 s61, 0")
        for ks in range(5):
            for ee in range(8):
                r = W + 16*(ks+1) + 2*ee
                e(f"buffer_load_dwordx2 {vr(r,2)}, v4, {sr(SRD_A,4)}, s61 offen nt")
                if not (ks == 4 and ee == 7):
                    if ee < 7:
                        e("s_add_u32 s61, s61, s60")
                    else:
                        e("s_mul_i32 s62, s60, 25", "s_add_u32 s61, s61, s62")

    def gemv64_perm(self, W):
        e = self.e
        for ks in range(5):
            raw, fr = W + 16*(ks+1), W + 16*ks
            for f in range(4):
                d, hi = f >> 1, f & 1
                for q in range(4):
                    e(f"v_perm_b32 {v(fr+4*f+q)}, {v(raw+2*(2*q+1)+d)}, {v(raw+2*(2*q)+d)}, {s(S_SELHI if hi else S_SELLO)}")

    def gemv64_finish(self, W, AF, DD, vfl, vone):
        e = self.e
        for ks in range(5):
            e(f"ds_read_b128 {vr(AF+4*ks,4)}, v5 offset:{64*ks}")
        for ks in range(5):
            e(f"s_waitcnt lgkmcnt({4-ks})")
            for f in range(4):
                c = "0" if ks == 0 else vr(DD+4*f, 4)
                e(f"v_mfma_f32_16x16x32_bf16 {vr(DD+4*f,4)}, {vr(AF+4*ks,4)}, {vr(W+16*ks+4*f,4)}, {c}")
        e("s_nop 7", "s_nop 1")
        for f in range(4):
            e(f"v_mov_b32 {v(AF+f)}, {v(DD+4*f)}")
        e(f"s_lshl_b32 s62, {s(S_W)}, 10", f"s_add_u32 s62, s62, {SC}", "v_lshlrev_b32 v6, 4, v1",
          "v_add_u32 v7, s62, v6", f"ds_write_b128 v7, {vr(AF,4)}")
        self.sync4(vfl, F_SYNCR, vone, 8)
        l = self.new("gf")
        e(f"s_cmp_eq_u32 {s(S_W)}, 0", f"s_cbranch_scc0 {l}")
        e(f"v_add_u32 v7, {SC}, v6")
        for ww in range(4):
            e(f"ds_read_b128 {vr(AF+4*ww,4)}, v7 offset:{1024*ww}")
        e("s_waitcnt lgkmcnt(0)")
        for f in range(4):
            e(f"v_add_f32 {v(AF+f)}, {v(AF+f)}, {v(AF+4+f)}", f"v_add_f32 {v(AF+8+f)}, {v(AF+8+f)}, {v(AF+12+f)}")
        for f in range(4):
            e(f"v_add_f32 {v(AF+f)}, {v(AF+f)}, {v(AF+8+f)}")
        e(f"v_cvt_pk_bf16_f32 {v(AF+4)}, {v(AF)}, {v(AF+1)}", f"v_cvt_pk_bf16_f32 {v(AF+6)}, {v(AF+2)}, {v(AF+3)}",
          f"v_mov_b32 {v(AF+5)}, {s(S_TAG)}", f"v_mov_b32 {v(AF+7)}, {s(S_TAG)}",
          "v_lshrrev_b32 v6, 4, v1", "v_mul_lo_u32 v6, v6, s65", "v_and_b32 v7, 15, v1", "v_lshl_add_u32 v6, v7, 4, v6",
          f"buffer_store_dwordx4 {vr(AF+4,4)}, v6, {sr(SRD_WS,4)}, s64 offen sc1")
        self.label(l)

    def ln_stats(self, PX, XF, T):
        e = self.e
        for i in range(5):
            self.unpack(XF+2*i, XF+2*i+1, PX+i)
        e(f"v_add_f32 {v(T)}, {v(XF)}, {v(XF+1)}")
        for i in range(2, 10):
            e(f"v_add_f32 {v(T)}, {v(T)}, {v(XF+i)}")
        self.allreduce("add", T, T+1)
        e(f"v_mul_f32 {v(T)}, {hex(INV640)}, {v(T)}")
        e(f"v_sub_f32 {v(T+2)}, {v(XF)}, {v(T)}", f"v_mul_f32 {v(T+3)}, {v(T+2)}, {v(T+2)}")
        for i in range(1, 10):
            e(f"v_sub_f32 {v(T+2)}, {v(XF+i)}, {v(T)}", f"v_fmac_f32 {v(T+3)}, {v(T+2)}, {v(T+2)}")
        self.allreduce("add", T+3, T+1)
        e(f"v_mul_f32 {v(T+3)}, {hex(INV640)}, {v(T+3)}")
        self.round2(T, T+3, T+1)
        e(f"v_add_f32 {v(T+3)}, {hex(EPS)}, {v(T+3)}")
        e(f"v_cvt_pk_bf16_f32 {v(T+1)}, {v(T+3)}, {v(T+3)}", f"v_lshlrev_b32 {v(T+3)}, 16, {v(T+1)}",
          f"v_sqrt_f32 {v(T+3)}, {v(T+3)}", "s_nop 0",
          f"v_cvt_pk_bf16_f32 {v(T+1)}, {v(T+3)}, {v(T+3)}", f"v_lshlrev_b32 {v(T+3)}, 16, {v(T+1)}",
          f"v_rcp_f32 {v(T+3)}, {v(T+3)}", "s_nop 0")
        for i in range(0, 10, 2):
            e(f"v_sub_f32 {v(XF+i)}, {v(XF+i)}, {v(T)}", f"v_sub_f32 {v(XF+i+1)}, {v(XF+i+1)}, {v(T)}")
            self.round2(XF+i, XF+i+1, T+1)
            e(f"v_mul_f32 {v(XF+i)}, {v(XF+i)}, {v(T+3)}", f"v_mul_f32 {v(XF+i+1)}, {v(XF+i+1)}, {v(T+3)}")
            self.round2(XF+i, XF+i+1, T+1)

    def modulate(self, XF, C1, SH, T, vaddr):
        e = self.e
        for i in range(5):
            a, b = XF+2*i, XF+2*i+1
            e(f"v_mul_f32 {v(a)}, {v(a)}, {v(C1+2*i)}", f"v_mul_f32 {v(b)}, {v(b)}, {v(C1+2*i+1)}")
            self.round2(a, b, T)
            e(f"v_add_f32 {v(a)}, {v(a)}, {v(SH+2*i)}", f"v_add_f32 {v(b)}, {v(b)}, {v(SH+2*i+1)}",
              f"v_cvt_pk_bf16_f32 {v(T)}, {v(a)}, {v(b)}", f"ds_write_b32 {v(vaddr)}, {v(T)} offset:{256*i}")

    def prep_mod_pair(self, G, C1, SH, T):
        e = self.e
        for i in range(5):
            self.unpack(SH+2*i, SH+2*i+1, G+2*i)
        for i in range(5):
            self.unpack(C1+2*i, C1+2*i+1, G+10+2*i)
            e(f"v_add_f32 {v(C1+2*i)}, 1.0, {v(C1+2*i)}", f"v_add_f32 {v(C1+2*i+1)}, 1.0, {v(C1+2*i+1)}")
            self.round2(C1+2*i, C1+2*i+1, T)

    def helper(self):
        e = self.e
        self.c("================= helper wave =================")
        e(f"s_sub_u32 {s(S_W)}, {s(S_W)}, 4")
        VFL, VONE = 2, 3
        W = 100
        PX, XF, T = 10, 16, 28
        G, C1, SH = 32, 56, 68
        AF, DD = 200, 220
        e(f"s_lshl_b32 s62, {s(S_W)}, 2", f"s_add_u32 s62, s62, {FLAGS}", f"v_mov_b32 {v(VFL)}, s62", f"v_mov_b32 {v(VONE)}, 1",
          f"v_mov_b32 v9, {FLAGS}")
        self.c("zero the LDS flags (helper 0)")
        l = self.new("zf")
        e(f"s_cmp_eq_u32 {s(S_W)}, 0", f"s_cbranch_scc0 {l}",
          "v_lshlrev_b32 v6, 2, v1", f"v_add_u32 v6, {FLAGS}, v6", "v_mov_b32 v7, 0", "s_mov_b32 exec_lo, -1", "s_mov_b32 exec_hi, 0",
          "ds_write_b32 v6, v7", "s_mov_b64 exec, -1", "s_waitcnt lgkmcnt(0)")
        self.label(l)
        self.tag_load()
        self.c("work counters of this head: cleared by helper 0 of workgroup j == 0 (drained before q is published)")
        l = self.new("zc")
        e(f"s_cmp_eq_u32 {s(S_W)}, 0", f"s_cbranch_scc0 {l}", f"s_cmp_eq_u32 {s(S_J)}, 0", f"s_cbranch_scc0 {l}",
          f"s_lshl_b32 s62, {s(S_H)}, 9", f"s_add_u32 s62, s62, {CNTBUF}", "v_lshlrev_b32 v6, 7, v1", "v_mov_b32 v7, 0",
          "s_mov_b64 exec, 15", f"buffer_store_dword v7, v6, {sr(SRD_WS,4)}, s62 offen sc1", "s_mov_b64 exec, -1")
        self.label(l)
        self.c("prologue role: s67 = 0 none, 1 Q block, 2 MOD block")
        lq, lm, lr, lm7 = self.new("rq"), self.new("rm"), self.new("rr"), self.new("m7")
        e("s_mov_b32 s67, 0", f"s_cmp_lt_u32 {s(S_J)}, 3", f"s_cbranch_scc1 {lq}",
          f"s_cmp_lt_u32 {s(S_J)}, 5", f"s_cbranch_scc0 {lm7}",
          f"s_lshl_b32 s68, {s(S_H)}, 1", f"s_add_u32 s68, s68, {s(S_J)}", "s_sub_u32 s68, s68, 3",
          f"s_cmp_lt_u32 {s(S_H)}, 28", f"s_cbranch_scc1 {lm}", f"s_branch {lr}")
        self.label(lm7)
        e(f"s_add_u32 s68, {s(S_H)}, 56", f"s_cmp_eq_u32 {s(S_J)}, 7", f"s_cbranch_scc0 {lr}",
          f"s_cmp_lt_u32 {s(S_H)}, 4", f"s_cbranch_scc1 {lm}", f"s_branch {lr}")
        self.label(lq)
        e("s_mov_b32 s67, 1")
        if "qfirst" not in self.x:
            e("s_barrier")
        self.srd(SRD_A, S_WQ, 7864320)
        self.srd(SRD_B, S_X, 5120)
        e("s_mov_b32 s60, 12288", f"s_mul_i32 s68, {s(S_H)}, 3", f"s_add_u32 s68, s68, {s(S_J)}",
          "s_lshl_b32 s64, s68, 8", f"s_add_u32 s64, s64, {QBUF}", f"s_mov_b32 s65, {3072*8}")
        lcommon = self.new("rc")
        e(f"s_branch {lcommon}")
        self.label(lm)
        e("s_mov_b32 s67, 2")
        self.srd(SRD_A, S_WM, 4915200)
        self.srd(SRD_B, S_C, 5120)
        e("s_mov_b32 s60, 7680", "s_lshl_b32 s64, s68, 8", f"s_add_u32 s64, s64, {MODBUF}", f"s_mov_b32 s65, {1920*8}")
        self.label(lcommon)
        self.c("issue vector + weight loads")
        e(f"s_mul_i32 s62, {s(S_W)}, 1280", "v_lshlrev_b32 v6, 2, v1")
        for i in range(5):
            e(f"buffer_load_dword {v(PX+i)}, v6, {sr(SRD_B,4)}, s62 offen offset:{256*i}")
        e(f"s_mul_i32 s62, {s(S_W)}, 160", "v_lshrrev_b32 v4, 4, v1", "v_lshlrev_b32 v4, 3, v4", "v_add_u32 v4, s62, v4",
          "v_mul_lo_u32 v4, v4, s60", "v_and_b32 v7, 15, v1", "v_lshl_add_u32 v4, v7, 3, v4",
          "s_lshl_b32 s62, s68, 7", "v_add_u32 v4, s62, v4")
        self.gemv64_loads(W)
        lnb = self.new("nb")
        if "qfirst" not in self.x:
            e("s_cmp_eq_u32 s67, 1", f"s_cbranch_scc1 {lnb}")
        self.label(lr)
        e("s_barrier")
        self.label(lnb)
        self.tag_ready()
        self.stamp(1)
        self.c("A fragment address for the [4][640] vector: AVEC + b*1280 + w*320 + g*16")
        e("v_and_b32 v6, 15, v1", "v_lshrrev_b32 v6, 2, v6", "v_mul_u32_u24 v6, 1280, v6",
          "v_lshrrev_b32 v7, 4, v1", "v_lshl_add_u32 v6, v7, 4, v6",
          f"s_mul_i32 s62, {s(S_W)}, 320", f"s_add_u32 s62, s62, {AVEC}", "v_add_u32 v5, s62, v6")
        e(f"s_mul_i32 s62, {s(S_W)}, 1280", f"s_add_u32 s62, s62, {AVEC}", "v_lshlrev_b32 v6, 2, v1", "v_add_u32 v8, s62, v6",
          "v_mov_b32 v26, v8")
        lq2, lm2, lpq = self.new("q2"), self.new("m2"), self.new("pq")
        e("s_cmp_eq_u32 s67, 1", f"s_cbranch_scc1 {lq2}", "s_cmp_eq_u32 s67, 2", f"s_cbranch_scc1 {lm2}", f"s_branch {lpq}")
        self.label(lm2)
        e("s_waitcnt vmcnt(40)", "s_mov_b32 s91, 0x207")
        for i in range(5):
            a, b = XF, XF+1
            self.unpack(a, b, PX+i)
            for x in (a, b):
                e(f"v_mul_f32 {v(T)}, {hex(LOG2E ^ 0x80000000)}, {v(x)}", f"v_exp_f32 {v(T)}, {v(T)}", "s_nop 0",
                  f"v_add_f32 {v(T)}, 1.0, {v(T)}", f"v_rcp_f32 {v(T+1)}, {v(T)}", "s_nop 0",
                  f"v_mul_f32 {v(T+2)}, {v(x)}, {v(T+1)}",
                  f"v_fma_f32 {v(T+3)}, -{v(T+2)}, {v(T)}, {v(x)}",
                  f"v_cmp_class_f32 vcc, {v(T+3)}, s91",
                  f"v_fma_f32 {v(x)}, {v(T+3)}, {v(T+1)}, {v(T+2)}", "s_nop 0",
                  f"v_cndmask_b32 {v(x)}, {v(x)}, {v(T+2)}, vcc")
            e(f"v_cvt_pk_bf16_f32 {v(T)}, {v(a)}, {v(b)}", f"ds_write_b32 v26, {v(T)} offset:{256*i}")
        self.sync4(9, F_SYNCA, VONE, 8)
        e("s_waitcnt vmcnt(0)")
        self.stamp(2)
        self.gemv64_perm(W)
        self.gemv64_finish(W, AF, DD, 9, VONE)
        self.stamp(3)
        e(f"s_branch {lpq}")
        self.label(lq2)
        e("s_waitcnt vmcnt(40)")
        self.ln_stats(PX, XF, T)
        e("s_waitcnt vmcnt(0)")
        self.gemv64_perm(W)
        self.stamp(2)
        e(f"s_mul_i32 s62, {s(S_W)}, {1920*8}", f"s_add_u32 s62, s62, {MODBUF}", f"s_add_u32 s63, s62, {320*8}",
          "v_lshlrev_b32 v6, 3, v1")
        def ld_mod():
            for i in range(5):
                e(f"buffer_load_dwordx2 {vr(G+2*i,2)}, v6, {sr(SRD_WS,4)}, s62 offen offset:{512*i} sc1")
            for i in range(5):
                e(f"buffer_load_dwordx2 {vr(G+10+2*i,2)}, v6, {sr(SRD_WS,4)}, s63 offen offset:{512*i} sc1")
        self.poll(ld_mod, [G+2*i+1 for i in range(10)], T, T+1)
        self.stamp(3)
        self.prep_mod_pair(G, C1, SH, T)
        self.modulate(XF, C1, SH, T, 26)
        self.sync4(9, F_SYNCA, VONE, 8)
        self.gemv64_finish(W, AF, DD, 9, VONE)
        self.stamp(4)
        self.label(lpq)
        l = self.new("jd")
        e(f"s_cmp_eq_u32 {s(S_W)}, 0", f"s_cbranch_scc0 {l}", "s_waitcnt lgkmcnt(0)")
        self.lds_flag_set(9, F_JD, VONE)
        self.label(l)
        self.stamp(5)
        lhi, lmid = self.new("hi"), self.new("mid")
        WB, WD = 36, 100
        GBR = 240
        e("s_mov_b32 s69, 0", "s_mov_b32 s70, 0")
        e(f"s_cmp_lt_u32 {s(S_J)}, 5", f"s_cbranch_scc0 {lhi}")
        self.c("stage B weights: wo rows 192h+48w+.., columns 128j..")
        self.srd(SRD_A, S_WO, 7864320)
        e(f"s_mul_i32 s62, {s(S_H)}, 192", f"s_mul_i32 s63, {s(S_W)}, 48", "s_add_u32 s62, s62, s63",
          "v_lshrrev_b32 v6, 4, v1", "v_mul_u32_u24 v6, 3, v6", "v_add_u32 v6, s62, v6", "v_mul_u32_u24 v6, 1280, v6",
          "v_and_b32 v7, 15, v1", "v_lshl_add_u32 v6, v7, 4, v6", f"s_lshl_b32 s62, {s(S_J)}, 8", "v_add_u32 v6, s62, v6")
        for vv in range(12):
            sg, ee = vv >> 2, vv & 3
            e(f"s_mov_b32 s62, {(12*(vv//3)+vv%3)*1280}",
              f"buffer_load_dwordx4 {vr(WB+16*(sg+1)+4*ee,4)}, v6, {sr(SRD_A,4)}, s62 offen nt")
        e("s_waitcnt vmcnt(0)")
        for sg in range(3):
            raw, fr = WB+16*(sg+1), WB+16*sg
            for cc in range(8):
                for q in range(2):
                    e(f"v_perm_b32 {v(fr+2*cc+q)}, {v(raw+4*(2*q+1)+(cc>>1))}, {v(raw+4*(2*q)+(cc>>1))}, {s(S_SELHI if cc&1 else S_SELLO)}")
        e(f"s_branch {lmid}")
        self.label(lhi)
        if "heavyearly" not in self.x:
            self.c("the large weight slices wait until the paired streamer has filled its ring")
            self.lds_wait(VFL, F_RF, 8, 1, sleep=4)
        WG, WU = 36, 84
        CC1, CSH = 140, 150
        lc, ld, lnc, l6, l7 = self.new("c"), self.new("d"), self.new("nc"), self.new("j6"), self.new("j7")
        e(f"s_cmp_eq_u32 {s(S_J)}, 5", f"s_cbranch_scc0 {l6}", f"s_mov_b32 s68, {s(S_H)}", f"s_branch {lc}")
        self.label(l6)
        e(f"s_cmp_eq_u32 {s(S_J)}, 6", f"s_cbranch_scc0 {l7}",
          f"s_add_u32 s68, {s(S_H)}, 32", f"s_cmp_lt_u32 {s(S_H)}, 16", f"s_cbranch_scc1 {lc}",
          f"s_sub_u32 s68, {s(S_H)}, 16", f"s_branch {ld}")
        self.label(l7)
        e(f"s_sub_u32 s68, {s(S_H)}, 12", f"s_cmp_ge_u32 {s(S_H)}, 28", f"s_cbranch_scc1 {ld}", f"s_branch {lnc}")
        self.label(lc)
        e("s_mov_b32 s69, 1")
        self.srd(SRD_A, S_G, 1966080)
        self.srd(SRD_B, S_U, 1966080)
        e(f"s_mul_i32 s62, {s(S_W)}, 160", "v_lshrrev_b32 v6, 4, v1", "v_lshlrev_b32 v6, 3, v6", "v_add_u32 v6, s62, v6",
          "v_mul_u32_u24 v6, 3072, v6", "v_and_b32 v7, 15, v1", "v_lshl_add_u32 v6, v7, 2, v6",
          "s_lshl_b32 s62, s68, 6", "v_add_u32 v6, s62, v6")
        for (base, srd) in ((WG, SRD_A), (WU, SRD_B)):
            for ks in range(5):
                for ee in range(8):
                    e(f"s_mov_b32 s62, {(32*ks+ee)*3072}",
                      f"buffer_load_dword {v(base+8*(ks+1)+ee)}, v6, {sr(srd,4)}, s62 offen nt")
            e("s_waitcnt vmcnt(0)")
            for ks in range(5):
                raw, fr = base+8*(ks+1), base+8*ks
                for hi in range(2):
                    for q in range(4):
                        e(f"v_perm_b32 {v(fr+4*hi+q)}, {v(raw+2*q+1)}, {v(raw+2*q)}, {s(S_SELHI if hi else S_SELLO)}")
        self.c("sb (segment 3), cb (segment 4) for batch w")
        G2 = 160
        e(f"s_mul_i32 s62, {s(S_W)}, {1920*8}", f"s_add_u32 s62, s62, {MODBUF+3*320*8}", f"s_add_u32 s63, s62, {320*8}",
          "v_lshlrev_b32 v6, 3, v1")
        def ld_mod2():
            for i in range(5):
                e(f"buffer_load_dwordx2 {vr(G2+2*i,2)}, v6, {sr(SRD_WS,4)}, s62 offen offset:{512*i} sc1")
            for i in range(5):
                e(f"buffer_load_dwordx2 {vr(G2+10+2*i,2)}, v6, {sr(SRD_WS,4)}, s63 offen offset:{512*i} sc1")
        self.poll(ld_mod2, [G2+2*i+1 for i in range(10)], T, T+1, sleep=8)
        self.prep_mod_pair(G2, CC1, CSH, T)
        e(f"s_branch {lmid}")
        self.label(ld)
        e("s_mov_b32 s69, 2")
        self.srd(SRD_A, S_DN, 1966080)
        e(f"s_mul_i32 s62, {s(S_W)}, 384", "v_lshrrev_b32 v6, 4, v1", "v_lshlrev_b32 v6, 3, v6", "v_add_u32 v6, s62, v6",
          "v_mul_u32_u24 v6, 1280, v6", "v_and_b32 v7, 15, v1", "v_lshl_add_u32 v6, v7, 2, v6",
          "s_lshl_b32 s62, s68, 6", "v_add_u32 v6, s62, v6")
        for half in range(2):
            for ks in range(6*half, 6*half+6):
                for ee in range(8):
                    e(f"s_mov_b32 s62, {(32*ks+ee)*1280}",
                      f"buffer_load_dword {v(WD+8*(ks+1)+ee)}, v6, {sr(SRD_A,4)}, s62 offen nt")
            e("s_waitcnt vmcnt(0)")
            for ks in range(6*half, 6*half+6):
                raw, fr = WD+8*(ks+1), WD+8*ks
                for hi in range(2):
                    for q in range(4):
                        e(f"v_perm_b32 {v(fr+4*hi+q)}, {v(raw+2*q+1)}, {v(raw+2*q)}, {s(S_SELHI if hi else S_SELLO)}")
        self.c("gb pairs for (b = lane>>4, pair 16d + (lane&15))")
        e("v_lshrrev_b32 v6, 4, v1", f"v_mul_u32_u24 v6, {1920*8}, v6", "v_and_b32 v7, 15, v1", "v_lshl_add_u32 v6, v7, 3, v6",
          "s_lshl_b32 s62, s68, 7", f"s_add_u32 s62, s62, {MODBUF+5*320*8}")
        def ld_gb():
            e(f"buffer_load_dwordx2 {vr(GBR,2)}, v6, {sr(SRD_WS,4)}, s62 offen sc1")
        self.poll(ld_gb, [GBR+1], T, T+1, sleep=8)
        e(f"s_branch {lmid}")
        self.label(lnc)
        self.c("reducer role: j == 7, r = 3h + w < 80, w < 3")
        RX, RG = 180, 182
        e(f"s_mul_i32 s71, {s(S_H)}, 3", f"s_add_u32 s71, s71, {s(S_W)}",
          "s_cmp_lt_u32 s71, 80", f"s_cbranch_scc0 {lmid}", f"s_cmp_lt_u32 {s(S_W)}, 3", f"s_cbranch_scc0 {lmid}",
          "s_mov_b32 s70, 1")
        self.srd(SRD_B, S_X, 5120)
        e("v_bfe_u32 v6, v1, 2, 2", "v_and_b32 v7, 3, v1",
          "v_mul_u32_u24 v8, 1280, v6", "v_lshl_add_u32 v8, v7, 2, v8", "s_lshl_b32 s62, s71, 4",
          f"buffer_load_dword {v(RX)}, v8, {sr(SRD_B,4)}, s62 offen",
          f"v_mul_u32_u24 v8, {1920*8}, v6", "v_lshl_add_u32 v8, v7, 3, v8",
          "s_lshl_b32 s62, s71, 5", f"s_add_u32 s62, s62, {MODBUF+2*320*8}")
        def ld_ga():
            e(f"buffer_load_dwordx2 {vr(RG,2)}, v8, {sr(SRD_WS,4)}, s62 offen sc1")
        self.poll(ld_ga, [RG+1], T, T+1, sleep=8)
        self.label(lmid)
        self.stamp(6)
        self.lds_wait(VFL, F_KD, 8, 1, sleep=2)
        self.c("publish (max, sum) and the score tiles of the paired streamer")
        MLR = 12
        e(f"s_lshl_b32 s62, {s(S_W)}, 4", f"s_add_u32 s62, s62, {ML}", "v_mov_b32 v6, s62",
          f"ds_read_b64 {vr(MLR,2)}, v6", "ds_read_b32 v8, v6 offset:8",
          f"s_lshl_b32 s61, {s(S_H)}, 2", f"s_add_u32 s61, s61, {s(S_W)}",
          "s_lshl_b32 s62, s61, 3", f"s_add_u32 s62, s62, {s(S_J)}", "s_lshl_b32 s62, s62, 4", f"s_add_u32 s62, s62, {MLBUF}",
          "s_waitcnt lgkmcnt(0)", "v_readfirstlane_b32 s60, v8",
          f"v_mov_b32 {v(MLR+2)}, {v(MLR+1)}", f"v_mov_b32 {v(MLR+1)}, {s(S_TAG)}", f"v_mov_b32 {v(MLR+3)}, {s(S_TAG)}",
          "v_mov_b32 v6, 0", "s_mov_b64 exec, 1",
          f"buffer_store_dwordx4 {vr(MLR,4)}, v6, {sr(SRD_WS,4)}, s62 offen sc1", "s_mov_b64 exec, -1")
        lf_, lfe = self.new("hfl"), self.new("hfle")
        e("s_mov_b32 s63, 0", "s_cmp_eq_u32 s60, 0", f"s_cbranch_scc1 {lfe}",
          "s_lshl_b32 s62, s61, 14", f"s_add_u32 s62, s62, {SBUF}", f"v_mov_b32 v17, {s(S_TAG)}",
          f"s_lshl_b32 s94, {s(S_W)}, 7", f"s_add_u32 s94, s94, {IDL}",
          f"s_lshl_b32 s95, {s(S_W)}, 11", f"s_add_u32 s95, s95, {SC}",
          "v_and_b32 v18, 15, v1", "v_lshrrev_b32 v19, 4, v1")
        self.label(lf_)
        e("v_add_u32 v6, s63, v19", "v_lshlrev_b32 v7, 2, v6", "v_add_u32 v7, s94, v7",
          "v_lshlrev_b32 v8, 6, v6", "v_lshl_add_u32 v8, v18, 2, v8", "v_add_u32 v8, s95, v8",
          "ds_read_b32 v7, v7", "ds_read_b32 v16, v8", "v_cmp_gt_u32 vcc, s60, v6", "v_lshlrev_b32 v8, 3, v18",
          "s_waitcnt lgkmcnt(0)", "v_lshl_add_u32 v8, v7, 7, v8", "s_mov_b64 exec, vcc",
          f"buffer_store_dwordx2 v[16:17], v8, {sr(SRD_WS,4)}, s62 offen sc1", "s_mov_b64 exec, -1",
          "s_add_u32 s63, s63, 4", "s_cmp_lt_u32 s63, s60", f"s_cbranch_scc1 {lf_}")
        self.label(lfe)
        e("s_lshl_b32 s62, s61, 7", f"s_add_u32 s62, s62, {MLBUF}",
          "v_lshlrev_b32 v6, 4, v1", "s_mov_b64 exec, 0xff")
        def ld_ml():
            e(f"buffer_load_dwordx4 {vr(MLR,4)}, v6, {sr(SRD_WS,4)}, s62 offen sc1")
        self.poll(ld_ml, [MLR+1, MLR+3], T, T+1)
        e("s_mov_b64 exec, -1", f"v_cmp_gt_u32 vcc, 8, v1", f"v_mov_b32 v6, {hex(NINF)}", "v_mov_b32 v7, 0", "s_nop 0",
          f"v_cndmask_b32 {v(MLR)}, v6, {v(MLR)}, vcc", f"v_cndmask_b32 {v(MLR+2)}, v7, {v(MLR+2)}, vcc",
          f"v_mov_b32 v6, {v(MLR)}")
        for r in (8, 4, 2, 1):
            e("s_nop 1", f"v_max_f32_dpp v6, v6, v6 row_ror:{r} row_mask:0xf bank_mask:0xf")
        e(f"v_sub_f32 v7, {v(MLR)}, v6", f"v_mul_f32 v7, {hex(LOG2E)}, v7", "v_exp_f32 v7, v7", "s_nop 0",
          f"v_mul_f32 v7, v7, {v(MLR+2)}")
        for r in (8, 4, 2, 1):
            e("s_nop 1", f"v_add_f32_dpp v7, v7, v7 row_ror:{r} row_mask:0xf bank_mask:0xf")
        e("v_rcp_f32 v7, v7", "s_nop 1", "v_readfirstlane_b32 s92, v6", "v_readfirstlane_b32 s93, v7")
        self.stamp(7)
        self.c("---- probabilities of the V tiles the paired streamer has claimed")
        e("s_mov_b32 s60, 0",
          f"s_lshl_b32 s61, {s(S_H)}, 2", f"s_add_u32 s61, s61, {s(S_W)}", "s_lshl_b32 s61, s61, 14", f"s_add_u32 s61, s61, {SBUF}",
          f"s_lshl_b32 s94, {s(S_W)}, 4", f"s_add_u32 s94, s94, {IDQ}",
          f"s_lshl_b32 s95, {s(S_W)}, 8", f"s_add_u32 s95, s95, {PSLOT}")
        lp, lw, lwd, lpe = self.new("pp"), self.new("pw"), self.new("pwd"), self.new("pe")
        self.label(lp)
        self.label(lw)
        e("s_and_b32 s62, s60, 3", "s_lshl_b32 s62, s62, 2", "s_add_u32 s62, s62, s94", "v_mov_b32 v6, s62",
          f"ds_read_b32 v8, {v(VFL)} offset:{F_NV}", "ds_read_b32 v7, v6", "s_waitcnt lgkmcnt(0)",
          "v_readfirstlane_b32 s90, v8", "v_readfirstlane_b32 s63, v7", "s_nop 0",
          "s_cmp_gt_u32 s90, s60", f"s_cbranch_scc1 {lwd}", "s_sleep 1")
        self.spin_check()
        e(f"s_branch {lw}")
        self.label(lwd)
        self.c("the id was read together with the counter; read it again now that it is known to be written")
        e("ds_read_b32 v7, v6", "s_waitcnt lgkmcnt(0)", "v_readfirstlane_b32 s63, v7", "s_nop 0",
          "s_cmp_ge_u32 s63, 128", f"s_cbranch_scc1 {lpe}",
          "s_lshl_b32 s63, s63, 7", "s_add_u32 s63, s63, s61", "v_lshlrev_b32 v6, 3, v1", "s_mov_b64 exec, 0xffff")
        def ld_sc():
            e(f"buffer_load_dwordx2 v[12:13], v6, {sr(SRD_WS,4)}, s63 offen sc1")
        if "nostore" in self.x:
            ld_sc(); e("s_waitcnt vmcnt(0)")
        else:
            self.poll(ld_sc, [13], T, T+1)
        self.unpack(14, 15, 12)
        e("v_subrev_f32 v14, s92, v14", "v_subrev_f32 v15, s92, v15",
          f"v_mul_f32 v14, {hex(LOG2E)}, v14", f"v_mul_f32 v15, {hex(LOG2E)}, v15", "v_exp_f32 v14, v14", "v_exp_f32 v15, v15", "s_nop 0",
          "v_mul_f32 v14, s93, v14", "v_mul_f32 v15, s93, v15", "v_cvt_pk_bf16_f32 v12, v14, v15",
          "s_and_b32 s62, s60, 3", "s_lshl_b32 s62, s62, 6", "s_add_u32 s62, s62, s95",
          "v_lshlrev_b32 v6, 2, v1", "v_add_u32 v6, s62, v6", "s_add_u32 s60, s60, 1", "v_mov_b32 v7, s60",
          "ds_write_b32 v6, v12", "s_mov_b64 exec, 1", f"ds_write_b32 {v(VFL)}, v7 offset:{F_NP}", "s_mov_b64 exec, -1",
          f"s_branch {lp}")
        self.label(lpe)
        self.lds_wait(VFL, F_VE, 8, 1, sleep=4)
        self.stamp(8)
        lhi2 = self.new("hi2")
        e(f"s_cmp_lt_u32 {s(S_J)}, 5", f"s_cbranch_scc0 {lhi2}")
        self.c("---- stage B: sum the 8 partials per batch, o @ wo")
        GB_ = 204
        e("v_and_b32 v6, 15, v1", "v_lshrrev_b32 v7, 2, v6", "v_and_b32 v6, 3, v6",
          "v_lshl_add_u32 v6, v7, 3, v6", "v_lshlrev_b32 v6, 10, v6",
          "v_lshrrev_b32 v7, 4, v1", "v_lshl_add_u32 v6, v7, 4, v6",
          f"s_lshl_b32 s62, {s(S_H)}, 15", f"s_lshl_b32 s63, {s(S_W)}, 8", "s_add_u32 s62, s62, s63",
          f"s_add_u32 s62, s62, {OBUF}", "s_add_u32 s63, s62, 4096")
        def ld_o():
            for js in range(2):
                for ss in range(4):
                    e(f"buffer_load_dwordx4 {vr(GB_+16*js+4*ss,4)}, v6, {sr(SRD_WS,4)}, {'s63' if js else 's62'} offen offset:{64*ss} sc1")
        self.poll(ld_o, [GB_+4*k+3 for k in range(8)], T, T+1)
        self.stamp(9)
        OV = 16
        for ss in range(4):
            for p in range(3):
                e(f"v_add_f32 {v(OV+3*ss+p)}, {v(GB_+4*ss+p)}, {v(GB_+16+4*ss+p)}")
        for perm in ("[1,0,3,2]", "[2,3,0,1]"):
            e("s_nop 1")
            for k in range(12):
                e(f"v_add_f32_dpp {v(OV+k)}, {v(OV+k)}, {v(OV+k)} quad_perm:{perm} row_mask:0xf bank_mask:0xf")
        AB = 28
        for k in range(6):
            e(f"v_cvt_pk_bf16_f32 {v(AB+k)}, {v(OV+2*k)}, {v(OV+2*k+1)}")
        e("s_nop 1")
        DB = GB_
        for sg in range(3):
            for cc in range(8):
                c = "0" if sg == 0 else vr(DB+4*cc, 4)
                e(f"v_mfma_f32_16x16x16_bf16 {vr(DB+4*cc,4)}, {vr(AB+2*sg,2)}, {vr(WB+16*sg+2*cc,2)}, {c}")
        e(f"s_lshl_b32 s62, {s(S_W)}, 11", f"s_add_u32 s62, s62, {RED2}", "v_lshlrev_b32 v6, 5, v1", "v_add_u32 v6, s62, v6",
          "s_nop 5")
        for cc in range(8):
            e(f"v_mov_b32 {v(OV+cc)}, {v(DB+4*cc)}")
        e(f"ds_write_b128 v6, {vr(OV,4)}", f"ds_write_b128 v6, {vr(OV+4,4)} offset:16", "s_waitcnt lgkmcnt(0)", "s_barrier")
        e("v_lshrrev_b32 v6, 4, v1", f"s_lshl_b32 s62, {s(S_W)}, 2", "v_add_u32 v6, s62, v6",
          "v_bfe_u32 v7, v1, 2, 2", "v_and_b32 v8, 3, v1",
          "v_lshl_add_u32 v9, v7, 4, v6", "v_lshlrev_b32 v9, 5, v9", "v_lshl_add_u32 v9, v8, 3, v9")
        for ww in range(4):
            e(f"ds_read_b64 {vr(OV+2*ww,2)}, v9 offset:{RED2+2048*ww}")
        e(f"s_lshl_b32 s62, {s(S_J)}, 4", "v_add_u32 v6, s62, v6", "v_lshlrev_b32 v6, 13, v6",
          "v_lshl_add_u32 v7, v7, 2, v8", "v_lshl_add_u32 v6, v7, 4, v6",
          f"s_lshl_b32 s62, {s(S_H)}, 8", f"s_add_u32 s62, s62, {ABUF}", "s_waitcnt lgkmcnt(0)")
        e(f"v_add_f32 {v(OV)}, {v(OV)}, {v(OV+2)}", f"v_add_f32 {v(OV+1)}, {v(OV+1)}, {v(OV+3)}",
          f"v_add_f32 {v(OV+4)}, {v(OV+4)}, {v(OV+6)}", f"v_add_f32 {v(OV+5)}, {v(OV+5)}, {v(OV+7)}",
          f"v_add_f32 {v(OV+8)}, {v(OV)}, {v(OV+4)}", f"v_add_f32 {v(OV+10)}, {v(OV+1)}, {v(OV+5)}",
          f"v_mov_b32 {v(OV+9)}, {s(S_TAG)}", f"v_mov_b32 {v(OV+11)}, {s(S_TAG)}",
          f"buffer_store_dwordx4 {vr(OV+8,4)}, v6, {sr(SRD_WS,4)}, s62 offen sc1")
        self.stamp(10)
        ldone = self.new("done")
        e(f"s_branch {ldone}")
        self.label(lhi2)
        lnd = self.new("nd")
        e("s_cmp_eq_u32 s69, 2", f"s_cbranch_scc0 {lnd}")
        self.c("---- stage D: hh @ w_down, residual, output")
        X1R = 242
        e("v_lshrrev_b32 v6, 4, v1", f"v_mul_u32_u24 v6, {320*8}, v6", "v_and_b32 v7, 15, v1", "v_lshl_add_u32 v6, v7, 3, v6",
          "s_lshl_b32 s62, s68, 7", f"s_add_u32 s62, s62, {X1BUF}")
        def ld_x1d():
            e(f"buffer_load_dwordx2 {vr(X1R,2)}, v6, {sr(SRD_WS,4)}, s62 offen sc1")
        self.poll(ld_x1d, [X1R+1], T, T+1, sleep=2)
        self.stamp(11)
        HG = 216
        for i in range(6):
            e(f"v_add_u32 v6, {64*i}, v1", "v_mul_u32_u24 v7, 683, v6", "v_lshrrev_b32 v7, 16, v7",
              "v_mul_u32_u24 v8, 96, v7", "v_sub_u32 v8, v6, v8", f"v_mul_u32_u24 v7, {768*8}, v7",
              f"v_lshl_add_u32 {v(16+i)}, v8, 4, v7")
        e(f"s_mul_i32 s62, {s(S_W)}, {192*8}", f"s_add_u32 s62, s62, {HBUF}")
        def ld_h():
            for i in range(6):
                e(f"buffer_load_dwordx4 {vr(HG+4*i,4)}, {v(16+i)}, {sr(SRD_WS,4)}, s62 offen sc1")
        self.poll(ld_h, [HG+4*i+k for i in range(6) for k in (1, 3)], T, T+1)
        self.stamp(12)
        e(f"s_mul_i32 s62, {s(S_W)}, 3072", f"s_add_u32 s62, s62, {HST}", "v_lshlrev_b32 v6, 3, v1", "v_add_u32 v6, s62, v6")
        for i in range(6):
            e(f"v_mov_b32 {v(HG+4*i+1)}, {v(HG+4*i+2)}", f"ds_write_b64 v6, {vr(HG+4*i,2)} offset:{512*i}")
        e("v_and_b32 v7, 15, v1", "v_lshrrev_b32 v7, 2, v7", "v_mul_u32_u24 v7, 768, v7", "v_lshrrev_b32 v8, 4, v1",
          "v_lshl_add_u32 v7, v8, 4, v7", "v_add_u32 v7, s62, v7", "s_waitcnt lgkmcnt(0)")
        AD = 36
        for ks in range(12):
            e(f"ds_read_b128 {vr(AD+4*ks,4)}, v7 offset:{64*ks}")
            if ks == 5:
                pass
        DD2 = 16
        for ks in range(12):
            e(f"s_waitcnt lgkmcnt({11-ks})")
            for hi in range(2):
                c = "0" if ks == 0 else vr(DD2+4*hi, 4)
                e(f"v_mfma_f32_16x16x32_bf16 {vr(DD2+4*hi,4)}, {vr(AD+4*ks,4)}, {vr(WD+8*ks+4*hi,4)}, {c}")
        e(f"s_lshl_b32 s62, {s(S_W)}, 9", f"s_add_u32 s62, s62, {RED2+8192}", "v_lshlrev_b32 v6, 3, v1", "v_add_u32 v7, s62, v6",
          "s_nop 5", f"v_mov_b32 {v(DD2+1)}, {v(DD2+4)}", f"ds_write_b64 v7, {vr(DD2,2)}", "s_waitcnt lgkmcnt(0)", "s_barrier")
        e(f"s_cmp_eq_u32 {s(S_W)}, 0", f"s_cbranch_scc0 {ldone}")
        for ww in range(4):
            e(f"ds_read_b64 {vr(DD2+2*ww,2)}, v6 offset:{RED2+8192+512*ww}")
        e("s_waitcnt lgkmcnt(0)",
          f"v_add_f32 {v(DD2)}, {v(DD2)}, {v(DD2+2)}", f"v_add_f32 {v(DD2+1)}, {v(DD2+1)}, {v(DD2+3)}",
          f"v_add_f32 {v(DD2+4)}, {v(DD2+4)}, {v(DD2+6)}", f"v_add_f32 {v(DD2+5)}, {v(DD2+5)}, {v(DD2+7)}",
          f"v_add_f32 {v(DD2)}, {v(DD2)}, {v(DD2+4)}", f"v_add_f32 {v(DD2+1)}, {v(DD2+1)}, {v(DD2+5)}")
        self.round2(DD2, DD2+1, T)
        self.unpack(DD2+2, DD2+3, GBR)
        e(f"v_mul_f32 {v(DD2)}, {v(DD2)}, {v(DD2+2)}", f"v_mul_f32 {v(DD2+1)}, {v(DD2+1)}, {v(DD2+3)}")
        self.round2(DD2, DD2+1, T)
        self.unpack(DD2+2, DD2+3, X1R)
        e(f"v_add_f32 {v(DD2)}, {v(DD2)}, {v(DD2+2)}", f"v_add_f32 {v(DD2+1)}, {v(DD2+1)}, {v(DD2+3)}",
          f"v_cvt_pk_bf16_f32 {v(DD2)}, {v(DD2)}, {v(DD2+1)}")
        self.srd(SRD_B, S_OUT, 5120)
        e("v_lshrrev_b32 v6, 4, v1", "v_mul_u32_u24 v6, 1280, v6", "v_and_b32 v7, 15, v1", "v_lshl_add_u32 v6, v7, 2, v6",
          "s_lshl_b32 s62, s68, 6", f"buffer_store_dword {v(DD2)}, v6, {sr(SRD_B,4)}, s62 offen")
        self.c("the workgroup with d == 0 leaves this launch's tag for the next launch")
        e("s_cmp_eq_u32 s68, 0", f"s_cbranch_scc0 {ldone}",
          f"v_mov_b32 v6, {WS_EPOCH}", f"v_mov_b32 v7, {s(S_TAG)}", "s_mov_b64 exec, 1",
          f"buffer_store_dword v7, v6, {sr(SRD_WS,4)}, 0 offen sc1", "s_mov_b64 exec, -1")
        e(f"s_branch {ldone}")
        self.label(lnd)
        lnr2 = self.new("nr2")
        e("s_cmp_eq_u32 s70, 1", f"s_cbranch_scc0 {lnr2}")
        self.c("---- reducer: sum 32 head partials, residual, publish x1")
        RGm = 184
        e("v_lshlrev_b32 v6, 4, v1", "s_lshl_b32 s62, s71, 13", f"s_add_u32 s62, s62, {ABUF}", "s_add_u32 s63, s62, 4096")
        def ld_a():
            for i in range(8):
                e(f"buffer_load_dwordx4 {vr(RGm+4*i,4)}, v6, {sr(SRD_WS,4)}, {'s63' if i>=4 else 's62'} offen offset:{1024*(i&3)} sc1")
        self.poll(ld_a, [RGm+4*i+k for i in range(8) for k in (1, 3)], T, T+1)
        self.stamp(9)
        a0, a1 = 16, 17
        e(f"v_add_f32 {v(a0)}, {v(RGm)}, {v(RGm+4)}", f"v_add_f32 {v(a1)}, {v(RGm+2)}, {v(RGm+6)}")
        for i in range(2, 8):
            e(f"v_add_f32 {v(a0)}, {v(a0)}, {v(RGm+4*i)}", f"v_add_f32 {v(a1)}, {v(a1)}, {v(RGm+4*i+2)}")
        for swp in ("v_permlane16_swap_b32", "v_permlane32_swap_b32"):
            e(f"v_mov_b32 v18, {v(a0)}", f"v_mov_b32 v19, {v(a1)}", "s_nop 1",
              f"{swp} v18, {v(a0)}", f"{swp} v19, {v(a1)}",
              f"v_add_f32 {v(a0)}, v18, {v(a0)}", f"v_add_f32 {v(a1)}, v19, {v(a1)}")
        self.round2(a0, a1, T)
        self.unpack(18, 19, RG)
        e(f"v_mul_f32 {v(a0)}, {v(a0)}, v18", f"v_mul_f32 {v(a1)}, {v(a1)}, v19")
        self.round2(a0, a1, T)
        self.unpack(18, 19, RX)
        e(f"v_add_f32 {v(a0)}, {v(a0)}, v18", f"v_add_f32 {v(a1)}, {v(a1)}, v19",
          f"v_cvt_pk_bf16_f32 v20, {v(a0)}, {v(a1)}", f"v_mov_b32 v21, {s(S_TAG)}",
          "v_bfe_u32 v6, v1, 2, 2", f"v_mul_u32_u24 v6, {320*8}, v6", "v_and_b32 v7, 3, v1", "v_lshl_add_u32 v6, v7, 3, v6",
          "s_lshl_b32 s62, s71, 5", f"s_add_u32 s62, s62, {X1BUF}", "s_mov_b64 exec, 0xffff",
          f"buffer_store_dwordx2 v[20:21], v6, {sr(SRD_WS,4)}, s62 offen sc1", "s_mov_b64 exec, -1")
        self.stamp(10)
        self.label(lnr2)
        e("s_cmp_eq_u32 s69, 1", f"s_cbranch_scc0 {ldone}")
        self.c("---- stage C: LN2, gate/up, hh")
        XG = 184
        e(f"s_mul_i32 s62, {s(S_W)}, {320*8}", f"s_add_u32 s62, s62, {X1BUF}", "v_lshlrev_b32 v6, 3, v1")
        def ld_x1():
            for i in range(5):
                e(f"buffer_load_dwordx2 {vr(XG+2*i,2)}, v6, {sr(SRD_WS,4)}, s62 offen offset:{512*i} sc1")
        self.poll(ld_x1, [XG+2*i+1 for i in range(5)], T, T+1)
        self.stamp(11)
        for i in range(5):
            e(f"v_mov_b32 {v(PX+i)}, {v(XG+2*i)}")
        self.ln_stats(PX, XF, T)
        self.modulate(XF, CC1, CSH, T, 26)
        e("s_waitcnt lgkmcnt(0)", "s_barrier")
        AC = 184
        for ks in range(5):
            e(f"ds_read_b128 {vr(AC+4*ks,4)}, v5 offset:{64*ks}")
        DC = 204
        for ks in range(5):
            e(f"s_waitcnt lgkmcnt({4-ks})")
            for mi, base in enumerate((WG, WU)):
                for hi in range(2):
                    d = DC+8*mi+4*hi
                    c = "0" if ks == 0 else vr(d, 4)
                    e(f"v_mfma_f32_16x16x32_bf16 {vr(d,4)}, {vr(AC+4*ks,4)}, {vr(base+8*ks+4*hi,4)}, {c}")
        e(f"s_lshl_b32 s62, {s(S_W)}, 10", f"s_add_u32 s62, s62, {RED2}", "v_lshlrev_b32 v6, 4, v1", "v_add_u32 v7, s62, v6",
          "s_nop 5")
        for k in range(4):
            e(f"v_mov_b32 {v(16+k)}, {v(DC+4*k)}")
        e("ds_write_b128 v7, v[16:19]", "s_waitcnt lgkmcnt(0)", "s_barrier")
        e(f"s_cmp_eq_u32 {s(S_W)}, 0", f"s_cbranch_scc0 {ldone}")
        for ww in range(4):
            e(f"ds_read_b128 {vr(AC+4*ww,4)}, v6 offset:{RED2+1024*ww}")
        e("s_waitcnt lgkmcnt(0)")
        for k in range(4):
            e(f"v_add_f32 {v(AC+k)}, {v(AC+k)}, {v(AC+4+k)}", f"v_add_f32 {v(AC+8+k)}, {v(AC+8+k)}, {v(AC+12+k)}")
        for k in range(4):
            e(f"v_add_f32 {v(AC+k)}, {v(AC+k)}, {v(AC+8+k)}")
        self.round2(AC, AC+1, T)
        self.round2(AC+2, AC+3, T)
        e(f"v_mul_f32 {v(AC)}, {v(AC)}, {v(AC+2)}", f"v_mul_f32 {v(AC+1)}, {v(AC+1)}, {v(AC+3)}",
          f"v_cvt_pk_bf16_f32 v20, {v(AC)}, {v(AC+1)}", f"v_mov_b32 v21, {s(S_TAG)}",
          "v_lshrrev_b32 v6, 4, v1", f"v_mul_u32_u24 v6, {768*8}, v6", "v_and_b32 v7, 15, v1", "v_lshl_add_u32 v6, v7, 3, v6",
          "s_lshl_b32 s62, s68, 7", f"s_add_u32 s62, s62, {HBUF}",
          f"buffer_store_dwordx2 v[20:21], v6, {sr(SRD_WS,4)}, s62 offen sc1")
        self.label(ldone)
        self.stamp(13)
        self.stamps_store()
        e("s_waitcnt vmcnt(0)", "s_endpgm")


def main():
    ap = argparse.ArgumentParser()
    ap.add_argument("-o", default="cdna_kernels/" + NAME + ".s")
    ap.add_argument("-D", type=int, default=3)
    ap.add_argument("--diag", action="store_true")
    ap.add_argument("--spin", type=int, default=400000)
    ap.add_argument("-x", default="")
    a = ap.parse_args()
    g = Gen(D=a.D, diag=a.diag, spin=a.spin, x=[t for t in a.x.split(',') if t])
    open(a.o, "w").write(g.build())
    print("wrote", a.o, len(g.L), "lines")


if __name__ == "__main__":
    main()
```

```python
import sys, argparse

NAME = "adaLN_cond__gqa_block_cached__glu_gated_bilinear__decode"
KERNEL = NAME + "_kernel"

WS_EPOCH = 0
MODBUF = 0x1000
QBUF   = 0x10000
X1BUF  = 0x2C000
HBUF   = 0x30000
CNTBUF = 0x38000
ABUF   = 0x40000
MLBUF  = 0xE0000
OBUF   = 0x100000
SBUF   = 0x200000
STAMPS = 0x400000
WS_SIZE = 0x800000

RING_W = 36864
SC     = 147456
OSL    = SC + 4096
PSLOT  = SC + 7168
MISC   = 155648
AVEC   = MISC
QL     = MISC + 5120
MLH    = MISC + 6656
FLAGS  = MISC + 6784
IDQ    = MISC + 7040
CLQ    = MISC + 7104
LDS_TOTAL = 163840
F_SYNCA, F_SYNCR, F_JD, F_GT, F_QC, F_PA, F_OF = 0, 4, 8, 12, 16, 20, 24
F_KD, F_PB, F_OC, F_NV, F_NP, F_NC, F_VE = 32, 48, 64, 80, 96, 112, 128
RED2   = 0
HST    = 16384

S_X, S_K, S_V, S_WQ, S_WO, S_BX, S_G, S_U, S_DN, S_C, S_WM, S_OUT, S_DBG, S_WS = range(4, 32, 2)
S_TAG, S_W, S_H, S_J = 32, 33, 34, 35
SRD_A, SRD_WS, SRD_B, SRD_C = 36, 40, 44, 48
S_SPIN, S_SELLO, S_SELHI = 96, 97, 98
S_STAMP0 = 72

SCALE = 0x3d93cd3a
LOG2E = 0x3fb8aa3b
EPS = 0x3727c5ac
INV640 = 0x3acccccd
NINF = 0xff800000
TAGINC = 0x9E3779B9


def v(i): return f"v{i}"
def vr(i, n): return f"v[{i}:{i+n-1}]"
def s(i): return f"s{i}"
def sr(i, n): return f"s[{i}:{i+n-1}]"


class Gen:
    def __init__(self, D=3, diag=False, spin=400000, x=(), N=None, SV=16, SK=16, rot=0, stag=(0,0), SL=4):
        self.SL = SL
        self.rot = rot
        self.stag = stag
        self.SV = SV
        self.SK = SK
        self.x = set(x)
        self.N = 3*(D-1) if N is None else N
        if N is not None:
            D = (N + 3 + 2)//3
        self.L = []
        self.nl = 0
        self.D = D
        self.diag = diag
        self.spin = spin
        self.nstamp = 0

    def e(self, *lines):
        for l in lines:
            self.L.append("    " + l)

    def c(self, text):
        self.L.append("    ; " + text)

    def label(self, name):
        self.L.append(name + ":")

    def new(self, base):
        self.nl += 1
        return f"L{base}_{self.nl}"

    def srd(self, dst, ptr, size):
        self.e(f"s_mov_b32 {s(dst)}, {s(ptr)}",
               f"s_and_b32 {s(dst+1)}, {s(ptr+1)}, 0xffff",
               f"s_mov_b32 {s(dst+2)}, {size}",
               f"s_mov_b32 {s(dst+3)}, 0x20000")

    def stamp(self, k):
        if not self.diag:
            return
        assert k < 16
        self.e("s_memrealtime s[88:89]", "s_waitcnt lgkmcnt(0)", f"s_mov_b32 {s(S_STAMP0+k)}, s88")

    def stamps_store(self):
        if not self.diag:
            return
        self.e("s_mov_b64 exec, -1")
        self.e("v_mov_b32 v250, 0")
        for k in range(16):
            self.e(f"v_writelane_b32 v250, {s(S_STAMP0+k)}, {k}")
        self.e("v_mbcnt_lo_u32_b32 v251, -1, 0", "v_mbcnt_hi_u32_b32 v251, -1, v251",
               "v_lshlrev_b32 v251, 2, v251",
               "s_lshl_b32 s88, s99, 6", f"s_add_u32 s88, s88, {STAMPS}",
               "s_mov_b64 exec, 0xffff",
               f"buffer_store_dword v250, v251, {sr(SRD_WS,4)}, s88 offen",
               "s_waitcnt vmcnt(0)")

    def tag_load(self):
        self.e(f"s_load_dword {s(S_TAG)}, {sr(S_WS,2)}, {WS_EPOCH}")
        if self.diag:
            self.e("s_memrealtime s[100:101]")

    def tag_ready(self):
        self.e("s_waitcnt lgkmcnt(0)", f"s_add_u32 {s(S_TAG)}, {s(S_TAG)}, {hex(TAGINC)}")
        if self.diag:
            self.e(f"s_mov_b32 {s(S_STAMP0)}, s100")

    def start_sync(self, streamer):
        self.e("s_barrier")

    def spin_check(self):
        self.e(f"s_sub_u32 {s(S_SPIN)}, {s(S_SPIN)}, 1", "s_cbranch_scc1 Labort")

    def allreduce(self, op, x, t):
        for r in (8, 4, 2, 1):
            self.e("s_nop 1", f"v_{op}_f32_dpp {v(x)}, {v(x)}, {v(x)} row_ror:{r} row_mask:0xf bank_mask:0xf")
        self.e(f"v_mov_b32 {v(t)}, {v(x)}", "s_nop 1", f"v_permlane16_swap_b32 {v(t)}, {v(x)}",
               f"v_{op}_f32 {v(x)}, {v(t)}, {v(x)}")
        self.e(f"v_mov_b32 {v(t)}, {v(x)}", "s_nop 1", f"v_permlane32_swap_b32 {v(t)}, {v(x)}",
               f"v_{op}_f32 {v(x)}, {v(t)}, {v(x)}")

    def unpack(self, lo, hi, src):
        self.e(f"v_lshlrev_b32 {v(lo)}, 16, {v(src)}", f"v_and_b32 {v(hi)}, 0xffff0000, {v(src)}")

    def round2(self, a, b, t):
        self.e(f"v_cvt_pk_bf16_f32 {v(t)}, {v(a)}, {v(b)}")
        self.unpack(a, b, t)

    def lds_flag_set(self, vfl, off, vone):
        self.e("s_mov_b64 exec, 1", f"ds_write_b32 {v(vfl)}, {v(vone)} offset:{off}", "s_mov_b64 exec, -1")

    def lds_wait(self, vfl, off, vt, target, sleep=1, body=None):
        l = self.new("w")
        d = self.new("wd")
        self.label(l)
        if body:
            body()
        self.e(f"ds_read_b32 {v(vt)}, {v(vfl)} offset:{off}", "s_waitcnt lgkmcnt(0)",
               f"v_readfirstlane_b32 s90, {v(vt)}", "s_nop 0",
               f"s_cmp_ge_u32 s90, {target}", f"s_cbranch_scc1 {d}")
        if sleep:
            self.e(f"s_sleep {sleep}")
        self.spin_check()
        self.e(f"s_branch {l}")
        self.label(d)

    def lds_wait_gt(self, vfl, off, vt, sreg, sleep=1, body=None):
        l, d = self.new("w"), self.new("wd")
        self.label(l)
        self.e(f"ds_read_b32 {v(vt)}, {v(vfl)} offset:{off}", "s_waitcnt lgkmcnt(0)",
               f"v_readfirstlane_b32 s90, {v(vt)}", "s_nop 0",
               f"s_cmp_gt_u32 s90, {s(sreg)}", f"s_cbranch_scc1 {d}")
        if body:
            body()
        if sleep:
            self.e(f"s_sleep {sleep}")
        self.spin_check()
        self.e(f"s_branch {l}")
        self.label(d)

    def sync4(self, vfl, off, vone, vt):
        self.e("s_mov_b64 exec, 1", f"ds_add_u32 {v(vfl)}, {v(vone)} offset:{off}", "s_mov_b64 exec, -1")
        self.lds_wait(vfl, off, vt, 4, sleep=0)

    def tagcheck(self, regs, acc, tmp, retry):
        first = True
        i = 0
        while i < len(regs):
            if first:
                self.e(f"v_xor_b32 {v(acc)}, {s(S_TAG)}, {v(regs[i])}")
                first = False
                i += 1
            elif i + 1 < len(regs):
                self.e(f"v_xor_b32 {v(tmp)}, {s(S_TAG)}, {v(regs[i])}",
                       f"v_xor_b32 {v(tmp+1)}, {s(S_TAG)}, {v(regs[i+1])}",
                       f"v_or3_b32 {v(acc)}, {v(acc)}, {v(tmp)}, {v(tmp+1)}")
                i += 2
            else:
                self.e(f"v_xor_b32 {v(tmp)}, {s(S_TAG)}, {v(regs[i])}",
                       f"v_or_b32 {v(acc)}, {v(acc)}, {v(tmp)}")
                i += 1
        self.e(f"v_cmp_ne_u32 vcc, 0, {v(acc)}", "s_nop 1", f"s_cbranch_vccnz {retry}")

    def poll(self, loads, tags, acc, tmp, sleep=0):
        l = self.new("poll")
        r = self.new("pollr")
        d = self.new("polld")
        self.e(f"s_branch {l}")
        self.label(r)
        if sleep:
            self.e(f"s_sleep {sleep}")
        self.spin_check()
        self.label(l)
        loads()
        self.e("s_waitcnt vmcnt(0)")
        self.tagcheck(tags, acc, tmp, r)
        self.label(d)

    def build(self):
        e = self.e
        hdr = open("cdna_kernels/" + NAME + ".s.ref").read().split("\n")
        for l in hdr:
            if l.startswith("; Override"):
                break
            self.L.append(l)
        self.L.append(f"; @launch grid=(256,1,1) block=(512,1,1) lds={LDS_TOTAL}")
        self.L.append('.amdgcn_target "amdgcn-amd-amdhsa--gfx950"')
        self.L.append(".text")
        self.L.append(f".globl {KERNEL}")
        self.L.append(".p2align 8")
        self.L.append(f".type {KERNEL},@function")
        self.label(KERNEL)
        e("s_cmp_ge_u32 s2, 256", "s_cbranch_scc1 Lexit")
        e("s_load_dwordx16 s[4:19], s[0:1], 0", "s_load_dwordx8 s[20:27], s[0:1], 64", "s_load_dwordx4 s[28:31], s[0:1], 96")
        e("v_lshrrev_b32 v2, 6, v0", "v_and_b32 v1, 63, v0", "s_nop 0", f"v_readfirstlane_b32 {s(S_W)}, v2")
        e(f"s_lshr_b32 {s(S_H)}, s2, 3", f"s_and_b32 {s(S_J)}, s2, 7")
        if self.rot:
            self.c("the workgroups of one head sit at different dispatch slots of the eight dies")
            e(f"s_mul_i32 s3, {s(S_J)}, {self.rot}", f"s_add_u32 {s(S_H)}, {s(S_H)}, s3", f"s_and_b32 {s(S_H)}, {s(S_H)}, 31")
        e(f"s_mov_b32 {s(S_SPIN)}, {self.spin}", f"s_mov_b32 {s(S_SELLO)}, 0x05040100", f"s_mov_b32 {s(S_SELHI)}, 0x07060302")
        if self.diag:
            e("s_lshl_b32 s99, s2, 3", f"s_add_u32 s99, s99, {s(S_W)}")
            for k in range(16):
                e(f"s_mov_b32 {s(S_STAMP0+k)}, 0")
        e("s_waitcnt lgkmcnt(0)")
        self.srd(SRD_WS, S_WS, WS_SIZE)
        e(f"s_cmp_ge_u32 {s(S_W)}, 4", "s_cbranch_scc1 Lhelper")
        self.streamer()
        self.label("Lhelper")
        self.helper()
        self.label("Labort")
        self.c("spin budget exhausted: leave a mark in d_debug and stop")
        e("s_mov_b64 exec, 1", "v_mov_b32 v2, 0", "v_mov_b32 v3, 0xdead",
          f"global_store_dword v2, v3, {sr(S_DBG,2)}", "s_waitcnt vmcnt(0)")
        self.label("Lexit")
        e("s_endpgm")
        self.L.append('.section .rodata,"a"')
        self.L.append(".p2align 6")
        self.L.append(f".amdhsa_kernel {KERNEL}")
        self.L += ["  .amdhsa_next_free_vgpr 256", "  .amdhsa_next_free_sgpr 102", "  .amdhsa_accum_offset 256",
                   "  .amdhsa_group_segment_fixed_size 0", "  .amdhsa_kernarg_size 112",
                   "  .amdhsa_user_sgpr_count 2", "  .amdhsa_user_sgpr_kernarg_segment_ptr 1",
                   "  .amdhsa_system_sgpr_workgroup_id_x 1", "  .amdhsa_float_denorm_mode_32 3",
                   ".end_amdhsa_kernel"]
        return "\n".join(self.L) + "\n"

    def take_claim(self, dst):
        e = self.e
        e("s_and_b32 s63, s64, 3", "s_lshl_b32 s63, s63, 2", "s_add_u32 s63, s63, s50", "v_mov_b32 v21, s63")
        self.lds_wait_gt(18, F_NC, 22, 64)
        e("ds_read_b32 v13, v21", "s_waitcnt lgkmcnt(0)", f"v_readfirstlane_b32 {s(dst)}, v13", "s_add_u32 s64, s64, 1")

    def issue_unit(self):
        e = self.e
        SL = self.SL
        sI, sSrc, sPos, sBase, sEnd, sStop, sHb = 52, 53, 54, 55, 56, 60, 61
        sNV, sCur = 65, 71
        lmid, lstop, ldone, ldyn, lhave, lnn = (self.new(x) for x in ("im", "is", "id", "iy", "ih", "nn"))
        e(f"s_and_b32 s62, {s(sI)}, 3", f"s_cbranch_scc1 {lmid}")
        e(f"s_lshr_b32 s62, {s(sI)}, 2", f"s_cmp_lt_u32 s62, {28+SL}", f"s_cbranch_scc0 {ldyn}")
        self.c("static item: batch (m>>2)&3, tile 32*(m&3) + 4j + w")
        e("s_and_b32 s63, s62, 3", "s_lshl_b32 s63, s63, 5", f"s_add_u32 {s(sCur)}, s63, s48",
          "s_bfe_u32 s63, s62, 0x20002", "s_cmp_lt_u32 s62, 16",
          f"s_cselect_b32 {s(SRD_A)}, {s(S_K)}, {s(S_V)}", f"s_cselect_b32 {s(SRD_A+1)}, s92, s93", f"s_branch {lhave}")
        self.label(ldyn)
        if SL == 4:
            e(f"s_branch {lstop}")
        else:
            self.take_claim(sCur)
            e(f"s_cmp_ge_u32 {s(sCur)}, {32*(4-SL)}", f"s_cbranch_scc1 {lstop}", f"s_add_u32 {s(sCur)}, {s(sCur)}, {32*SL}",
              "s_mov_b32 s63, 3", f"s_lshr_b32 s62, {s(sI)}, 2")
        self.label(lhave)
        e("s_mul_i32 s63, s63, 50331648", f"s_add_u32 {s(sSrc)}, {s(sHb)}, s63",
          f"s_add_u32 s63, {s(sCur)}, s49", "s_and_b32 s63, s63, 127", "s_mul_i32 s63, s63, 12288", f"s_add_u32 {s(sSrc)}, {s(sSrc)}, s63")
        if SL < 4:
            self.c("from two items before the pool on, the helper follows the item starts")
            e(f"s_cmp_ge_u32 s62, {26+SL}", f"s_cbranch_scc0 {lmid}",
              f"s_and_b32 s62, {s(sNV)}, 3", "s_lshl_b32 s62, s62, 2", "s_add_u32 s62, s62, s94", "v_mov_b32 v13, s62",
              f"v_mov_b32 v21, {s(sCur)}", f"s_add_u32 {s(sNV)}, {s(sNV)}, 1", f"v_mov_b32 v22, {s(sNV)}",
              "s_mov_b64 exec, 1", "ds_write_b32 v13, v21", f"ds_write_b32 v18, v22 offset:{F_NV}", "s_mov_b64 exec, -1")
        self.label(lmid)
        e(f"s_waitcnt vmcnt({self.N})", f"s_mov_b32 m0, {s(sPos)}",
          f"s_add_u32 {s(sPos)}, {s(sPos)}, 3072",
          f"buffer_load_dwordx4 v2, {sr(SRD_A,4)}, {s(sSrc)} offen nt lds",
          f"buffer_load_dwordx4 v3, {sr(SRD_A,4)}, {s(sSrc)} offen offset:1024 nt lds",
          f"buffer_load_dwordx4 v4, {sr(SRD_A,4)}, {s(sSrc)} offen offset:2048 nt lds",
          f"s_cmp_eq_u32 {s(sPos)}, {s(sEnd)}", f"s_cselect_b32 {s(sPos)}, {s(sBase)}, {s(sPos)}",
          f"s_add_u32 {s(sSrc)}, {s(sSrc)}, 3072",
          f"s_add_u32 {s(sI)}, {s(sI)}, 1", f"s_branch {ldone}")
        self.label(lstop)
        e(f"s_mov_b32 {s(sStop)}, 1")
        if SL < 4:
            e(f"s_and_b32 s62, {s(sNV)}, 3", "s_lshl_b32 s62, s62, 2", "s_add_u32 s62, s62, s94", "v_mov_b32 v13, s62",
              "v_mov_b32 v21, 0xffff", f"s_add_u32 {s(sNV)}, {s(sNV)}, 1", f"v_mov_b32 v22, {s(sNV)}",
              "s_mov_b64 exec, 1", "ds_write_b32 v13, v21", f"ds_write_b32 v18, v22 offset:{F_NV}", "s_mov_b64 exec, -1")
        self.label(ldone)

    def streamer(self):
        e = self.e
        D, SL = self.D, self.SL
        sI, sSrc, sPos, sBase, sEnd, sN, sTile, sTgt, sStop, sHb = 52, 53, 54, 55, 56, 57, 58, 59, 60, 61
        sNV, sPN, sCur = 65, 69, 71
        QF, KF, D0, ACC, PF = 24, 48, 96, 104, 152
        X, T = 156, 164
        vSo, vQa, vOw, vOr, vFl = 180, 181, 182, 183, 178
        Q = 184
        M, Lr, E = 192, 193, 196
        self.c("================= streamer wave =================")
        self.tag_load()
        e(f"s_mul_i32 {s(sHb)}, {s(S_H)}, 1572864",
          f"s_and_b32 s92, {s(S_K+1)}, 0xffff", f"s_and_b32 s93, {s(S_V+1)}, 0xffff",
          f"s_lshl_b32 s94, {s(S_W)}, 4", f"s_add_u32 s50, s94, {CLQ}", f"s_add_u32 s94, s94, {IDQ}",
          f"s_lshl_b32 s48, {s(S_J)}, 2", f"s_add_u32 s48, s48, {s(S_W)}",
          f"s_mul_i32 s49, {s(S_H)}, {self.stag[1]}", "s_mov_b32 s64, 0")
        self.srd(SRD_A, S_K, 201326592)
        e(f"s_mov_b32 {s(sSrc)}, 0", f"s_mov_b32 {s(sI)}, 0", f"s_mul_i32 {s(sBase)}, {s(S_W)}, {RING_W}",
          f"s_mov_b32 {s(sPos)}, {s(sBase)}", f"s_add_u32 {s(sEnd)}, {s(sBase)}, {RING_W}",
          f"s_mov_b32 {s(sTile)}, {s(sBase)}", f"s_mov_b32 {s(sStop)}, 0",
          f"s_mov_b32 {s(sNV)}, 0", f"s_mov_b32 {s(sPN)}, 0", f"s_mov_b32 {s(sN)}, 0", f"s_mov_b32 {s(sCur)}, 0")
        self.c("DMA source offsets (xor swizzle of 16-byte chunks inside each row)")
        for i in range(3):
            e(f"v_add_u32 v13, {64*i}, v1", "v_mul_u32_u24 v14, 2731, v13", "v_lshrrev_b32 v14, 16, v14",
              "v_mul_u32_u24 v15, 24, v14", "v_sub_u32 v15, v13, v15", "v_and_b32 v16, 7, v14",
              "v_xor_b32 v15, v15, v16", "v_mul_u32_u24 v14, 384, v14", f"v_lshl_add_u32 {v(2+i)}, v15, 4, v14")
            if i:
                e(f"v_subrev_u32 {v(2+i)}, {1024*i}, {v(2+i)}")
        self.c("K fragment addresses")
        e("v_and_b32 v13, 15, v1", "v_lshrrev_b32 v14, 4, v1", "v_and_b32 v15, 7, v13", "v_mul_u32_u24 v13, 384, v13")
        for x in range(2):
            e(f"v_add_u32 v16, {4*x}, v14", "v_xor_b32 v16, v16, v15", f"v_lshl_add_u32 {v(5+x)}, v16, 4, v13")
        self.c("V fragment addresses")
        e("v_lshrrev_b32 v13, 2, v1", "v_and_b32 v15, 7, v13", "v_mul_u32_u24 v13, 384, v13",
          "v_and_b32 v16, 1, v1", "v_lshl_add_u32 v13, v16, 3, v13", "v_bfe_u32 v16, v1, 1, 1")
        for u in range(4):
            e(f"v_add_u32 v17, {2*u}, v16", "v_xor_b32 v17, v17, v15", f"v_lshl_add_u32 {v(7+u)}, v17, 4, v13")
        self.c("score / probability / q / partial output addresses, flags")
        e("v_lshlrev_b32 v13, 4, v14",
          f"s_lshl_b32 s62, {s(S_W)}, 8", f"s_add_u32 s62, s62, {PSLOT}", "v_add_u32 v12, s62, v13",
          f"s_lshl_b32 s62, {s(S_W)}, 10", f"s_add_u32 s62, s62, {SC}", f"v_add_u32 {v(vSo)}, s62, v13",
          f"v_add_u32 {v(vQa)}, {QL}, v13",
          f"s_mul_i32 s62, {s(S_W)}, 768", f"s_add_u32 s62, s62, {OSL}",
          "v_and_b32 v15, 15, v1", "v_lshlrev_b32 v15, 2, v15", f"v_add_u32 {v(vOw)}, s62, v15",
          "v_mul_u32_u24 v15, 12, v1", f"v_add_u32 {v(vOr)}, {OSL}, v15",
          f"s_lshl_b32 s63, {s(S_W)}, 2", f"s_add_u32 s63, s63, {FLAGS}",
          "v_mov_b32 v18, s63", "v_mov_b32 v19, 1", f"v_mov_b32 {v(vFl)}, {FLAGS}")
        for i in range(48):
            e(f"v_mov_b32 {v(ACC+i)}, 0")
        e("s_barrier")
        self.c("---- fill the ring while the helpers fetch q")
        l0, l0d = self.new("f0"), self.new("f0d")
        self.label(l0)
        e(f"s_cmp_lt_u32 {s(sI)}, {4+D}", f"s_cbranch_scc0 {l0d}")
        self.issue_unit()
        e(f"s_branch {l0}")
        self.label(l0d)
        lf, lfd, lfn = self.new("f"), self.new("fd"), self.new("fn")
        self.label(lf)
        e(f"ds_read_b64 v[14:15], {v(vFl)} offset:{F_QC}", f"ds_read_b32 v16, {v(vFl)} offset:{F_JD}", "s_waitcnt lgkmcnt(0)",
          "v_readfirstlane_b32 s90, v14", "v_readfirstlane_b32 s62, v15", "v_readfirstlane_b32 s63, v16", "s_nop 0",
          "s_lshl_b32 s63, s63, 2", "s_and_b32 s63, s63, s90")
        if "fullring" in self.x:
            e(f"s_cmp_eq_u32 {s(sI)}, 12", "s_cselect_b32 s63, s63, 0")
        e("s_cmp_eq_u32 s63, 4", f"s_cbranch_scc1 {lfd}",
          "s_cmp_eq_u32 s62, 0", f"s_cbranch_scc0 {lfn}",
          f"s_cmp_lt_u32 {s(sI)}, 12", f"s_cbranch_scc0 {lfn}")
        self.issue_unit()
        e(f"s_branch {lf}")
        self.label(lfn)
        e("s_sleep 1")
        self.spin_check()
        e(f"s_branch {lf}")
        self.label(lfd)
        self.tag_ready()
        self.stamp(2)

        def runahead():
            l = self.new("ra")
            e(f"s_lshl_b32 s62, {s(sN)}, 2", "s_add_u32 s62, s62, 12", f"s_cmp_lt_u32 {s(sI)}, s62", f"s_cbranch_scc0 {l}",
              f"s_cmp_eq_u32 {s(sStop)}, 0", f"s_cbranch_scc0 {l}")
            self.issue_unit()
            self.label(l)

        def finalize():
            self.c("last K tile of this batch: hand (max, sum) to the helper")
            e(f"v_mov_b32 {v(T)}, {v(M)}")
            for swp in ("v_permlane16_swap_b32", "v_permlane32_swap_b32"):
                e(f"v_mov_b32 {v(T+1)}, {v(T)}", "s_nop 1", f"{swp} {v(T+1)}, {v(T)}", f"v_max_f32 {v(T)}, {v(T+1)}, {v(T)}")
            e(f"v_sub_f32 {v(T+1)}, {v(M)}, {v(T)}", f"v_mul_f32 {v(T+1)}, {hex(LOG2E)}, {v(T+1)}",
              f"v_exp_f32 {v(T+1)}, {v(T+1)}", "s_nop 0", f"v_mul_f32 {v(Lr)}, {v(Lr)}, {v(T+1)}")
            for swp in ("v_permlane16_swap_b32", "v_permlane32_swap_b32"):
                e(f"v_mov_b32 {v(T+1)}, {v(Lr)}", "s_nop 1", f"{swp} {v(T+1)}, {v(Lr)}", f"v_add_f32 {v(Lr)}, {v(T+1)}, {v(Lr)}")
            e(f"v_mov_b32 {v(E)}, {v(T)}", f"v_mov_b32 {v(E+1)}, {v(Lr)}",
              f"s_lshr_b32 s63, {s(sN)}, 2", f"s_lshl_b32 s62, {s(S_W)}, 2", "s_add_u32 s62, s62, s63", "s_lshl_b32 s62, s62, 3",
              f"s_add_u32 s62, s62, {MLH}", "v_mov_b32 v13, s62", "s_add_u32 s63, s63, 1", "v_mov_b32 v14, s63",
              "s_mov_b64 exec, 1", f"ds_write_b64 v13, {vr(E,2)}", f"ds_write_b32 v18, v14 offset:{F_KD}", "s_mov_b64 exec, -1")

        def flush_acc():
            self.c("partial output of this batch -> LDS; the last of the four waves sums and publishes")
            e("s_sub_u32 s66, s70, 1")
            lsk = self.new("fs")
            e("s_cmp_eq_u32 s70, 0", f"s_cbranch_scc1 {lsk}")
            self.lds_wait_gt(vFl, F_OF, 13, 66, sleep=1)
            self.label(lsk)
            e("s_lshl_b32 s62, s70, 2", f"s_add_u32 s62, s62, {FLAGS+F_OC}", "v_mov_b32 v14, s62", "s_nop 4", "s_mov_b64 exec, 0xffff")
            for t in range(12):
                e(f"ds_write_b32 {v(vOw)}, {v(ACC+4*t)} offset:{64*t}")
            e("s_mov_b64 exec, 1", "ds_add_rtn_u32 v15, v14, v19", "s_mov_b64 exec, -1")
            for i in range(48):
                e(f"v_mov_b32 {v(ACC+i)}, 0")
            lno = self.new("fn")
            e("s_waitcnt lgkmcnt(0)", "v_readfirstlane_b32 s62, v15", "s_nop 0", "s_cmp_eq_u32 s62, 3", f"s_cbranch_scc0 {lno}")
            for ww in range(4):
                for k in range(3):
                    e(f"ds_read_b32 {v(KF+4*ww+k)}, {v(vOr)} offset:{768*ww+4*k}")
            e(f"s_lshl_b32 s63, {s(S_H)}, 2", "s_add_u32 s63, s63, s70", "s_lshl_b32 s63, s63, 3", f"s_add_u32 s63, s63, {s(S_J)}",
              "s_lshl_b32 s63, s63, 10", f"s_add_u32 s63, s63, {OBUF}", "v_lshlrev_b32 v15, 4, v1", f"v_mov_b32 {v(E+3)}, {s(S_TAG)}",
              "s_waitcnt lgkmcnt(6)")
            for k in range(3):
                e(f"v_add_f32 {v(E+k)}, {v(KF+k)}, {v(KF+4+k)}")
            e("s_waitcnt lgkmcnt(0)")
            for k in range(3):
                e(f"v_add_f32 {v(KF+8+k)}, {v(KF+8+k)}, {v(KF+12+k)}")
            for k in range(3):
                e(f"v_add_f32 {v(E+k)}, {v(E+k)}, {v(KF+8+k)}")
            e(f"buffer_store_dwordx4 {vr(E,4)}, v15, {sr(SRD_WS,4)}, s63 offen sc1",
              "s_mov_b64 exec, 1", f"ds_add_u32 {v(vFl)}, v19 offset:{F_OF}", "s_mov_b64 exec, -1")
            self.label(lno)

        self.c("---- item loop")
        lloop, liss, lgo, lhave, lv, lnext, lfin = (self.new(x) for x in ("loop", "iss", "go", "have", "vit", "next", "fin"))
        self.label(lloop)
        e(f"s_lshl_b32 {s(sTgt)}, {s(sN)}, 2", f"s_add_u32 {s(sTgt)}, {s(sTgt)}, {4+D}")
        self.label(liss)
        e(f"s_cmp_lt_u32 {s(sI)}, {s(sTgt)}", f"s_cbranch_scc0 {lhave}",
          f"s_cmp_eq_u32 {s(sStop)}, 0", f"s_cbranch_scc0 {lgo}")
        self.issue_unit()
        e(f"s_branch {liss}")
        self.label(lgo)
        e(f"s_lshl_b32 s62, {s(sN)}, 2", f"s_cmp_eq_u32 s62, {s(sI)}", f"s_cbranch_scc1 {lfin}", "s_waitcnt vmcnt(0)")
        self.label(lhave)
        if self.diag:
            for kk in range(8):
                ls = self.new("ps")
                e(f"s_cmp_eq_u32 {s(sN)}, {4*kk}", f"s_cbranch_scc0 {ls}")
                self.stamp(8+kk)
                self.label(ls)
        e(f"s_cmp_lt_u32 {s(sN)}, 16", f"s_cbranch_scc0 {lv}")
        self.c("K tile: 32 scores")
        lq = self.new("kq")
        e(f"v_add_u32 v14, {s(sTile)}, v5", f"v_add_u32 v15, {s(sTile)}, v6",
          f"s_and_b32 s62, {s(sN)}, 3", f"s_cbranch_scc1 {lq}")
        e(f"s_lshr_b32 s62, {s(sN)}, 2", "s_mul_i32 s62, s62, 384", f"v_add_u32 v13, s62, {v(vQa)}")
        for ks in range(6):
            e(f"ds_read_b128 {vr(QF+4*ks,4)}, v13 offset:{64*ks}")
        e(f"v_mov_b32 {v(M)}, {hex(NINF)}", f"v_mov_b32 {v(Lr)}, 0", "s_waitcnt lgkmcnt(0)")
        self.label(lq)
        for ks in range(6):
            for blk in range(2):
                e(f"ds_read_b128 {vr(KF+8*ks+4*blk,4)}, {v(14+(ks&1))} offset:{blk*6144+(ks>>1)*128}")
        for ks in range(6):
            e(f"s_waitcnt lgkmcnt({10-2*ks})")
            for blk in range(2):
                c = "0" if ks == 0 else vr(D0+4*blk, 4)
                e(f"v_mfma_f32_16x16x32_bf16 {vr(D0+4*blk,4)}, {vr(KF+8*ks+4*blk,4)}, {vr(QF+4*ks,4)}, {c}")
        e(f"s_lshl_b32 s62, {s(sN)}, 6", f"v_add_u32 v13, s62, {v(vSo)}", "s_nop 6")
        for i in range(0, 8, 2):
            e(f"v_cvt_pk_bf16_f32 {v(T)}, {v(D0+i)}, {v(D0+i+1)}")
            self.unpack(X+i, X+i+1, T)
            e(f"v_mul_f32 {v(X+i)}, {hex(SCALE)}, {v(X+i)}", f"v_mul_f32 {v(X+i+1)}, {hex(SCALE)}, {v(X+i+1)}",
              f"v_cvt_pk_bf16_f32 {v(Q+(i>>1))}, {v(X+i)}, {v(X+i+1)}")
            self.unpack(X+i, X+i+1, Q+(i>>1))
        e("s_mov_b32 exec_lo, 0x00010001", "s_mov_b32 exec_hi, 0x00010001",
          f"ds_write_b128 v13, {vr(Q,4)}", "s_mov_b64 exec, -1")
        e(f"v_max3_f32 {v(T)}, {v(X)}, {v(X+1)}, {v(X+2)}", f"v_max3_f32 {v(T)}, {v(T)}, {v(X+3)}, {v(X+4)}",
          f"v_max3_f32 {v(T)}, {v(T)}, {v(X+5)}, {v(X+6)}", f"v_max3_f32 {v(T)}, {v(T)}, {v(X+7)}, {v(M)}",
          f"v_sub_f32 {v(T+1)}, {v(M)}, {v(T)}", f"v_mul_f32 {v(T+1)}, {hex(LOG2E)}, {v(T+1)}", f"v_mov_b32 {v(M)}, {v(T)}")
        for i in range(8):
            e(f"v_sub_f32 {v(E+i)}, {v(X+i)}, {v(M)}", f"v_mul_f32 {v(E+i)}, {hex(LOG2E)}, {v(E+i)}")
        e(f"v_exp_f32 {v(T+1)}, {v(T+1)}")
        for i in range(8):
            e(f"v_exp_f32 {v(E+i)}, {v(E+i)}")
        e(f"v_mul_f32 {v(Lr)}, {v(Lr)}, {v(T+1)}")
        for i in range(0, 8, 2):
            e(f"v_add_f32 {v(E+i)}, {v(E+i)}, {v(E+i+1)}")
        e(f"v_add_f32 {v(E)}, {v(E)}, {v(E+2)}", f"v_add_f32 {v(E+4)}, {v(E+4)}, {v(E+6)}",
          f"v_add_f32 {v(E)}, {v(E)}, {v(E+4)}", f"v_add_f32 {v(Lr)}, {v(Lr)}, {v(E)}")
        e(f"s_and_b32 s62, {s(sN)}, 3", "s_cmp_eq_u32 s62, 3", f"s_cbranch_scc0 {lnext}")
        finalize()
        if self.diag:
            ls = self.new("st")
            e(f"s_cmp_eq_u32 {s(sN)}, 15", f"s_cbranch_scc0 {ls}")
            self.stamp(3)
            self.label(ls)
        e(f"s_branch {lnext}")
        self.label(lv)
        lpool, lp_ok, lst = self.new("vp"), self.new("vo"), self.new("vs")
        e(f"s_sub_u32 s66, {s(sN)}, 16", f"s_cmp_lt_u32 s66, {12+SL}", f"s_cbranch_scc0 {lpool}")
        e("s_and_b32 s62, s66, 3", f"s_cbranch_scc1 {lst}")
        e("s_lshr_b32 s67, s66, 2")
        self.c("first tile of a batch: its probabilities must be ready; keep the ring filling meanwhile")
        self.lds_wait_gt(18, F_PB, 13, 67, sleep=1, body=runahead)
        if self.diag:
            ls = self.new("st")
            e(f"s_cmp_eq_u32 {s(sN)}, 16", f"s_cbranch_scc0 {ls}")
            self.stamp(5)
            self.label(ls)
        self.label(lst)
        e(f"s_sub_u32 s62, {s(sN)}, 16", "s_lshl_b32 s62, s62, 6", f"v_add_u32 v13, s62, {v(vSo)}", f"s_branch {lp_ok}")
        self.label(lpool)
        self.lds_wait_gt(18, F_NP, 13, sPN, sleep=1, body=runahead)
        e(f"s_and_b32 s62, {s(sPN)}, 3", "s_lshl_b32 s62, s62, 6", "v_add_u32 v13, s62, v12", f"s_add_u32 {s(sPN)}, {s(sPN)}, 1")
        self.label(lp_ok)
        for u in range(4):
            e(f"v_add_u32 {v(14+u)}, {s(sTile)}, {v(7+u)}")
        e(f"ds_read_b128 {vr(PF,4)}, v13")
        def vread(t):
            a, u = t >> 2, t & 3
            e(f"ds_read_b64_tr_b16 {vr(KF+4*t,2)}, {v(14+u)} offset:{a*128}",
              f"ds_read_b64_tr_b16 {vr(KF+4*t+2,2)}, {v(14+u)} offset:{a*128+6144}")
        def vmf(t):
            e(f"v_mfma_f32_16x16x32_bf16 {vr(ACC+4*t,4)}, {vr(PF,4)}, {vr(KF+4*t,4)}, {vr(ACC+4*t,4)}")
        for t in range(6):
            vread(t)
        e("s_waitcnt lgkmcnt(6)")
        for t in range(3): vmf(t)
        for t in range(6, 9): vread(t)
        e("s_waitcnt lgkmcnt(6)")
        for t in range(3, 6): vmf(t)
        for t in range(9, 12): vread(t)
        e("s_waitcnt lgkmcnt(6)")
        for t in range(6, 9): vmf(t)
        e("s_waitcnt lgkmcnt(0)")
        for t in range(9, 12): vmf(t)
        self.c("end of batch 0..2: hand the partial output over")
        e(f"s_sub_u32 s62, {s(sN)}, 16", "s_cmp_lt_u32 s62, 12", f"s_cbranch_scc0 {lnext}",
          "s_and_b32 s63, s62, 3", "s_cmp_eq_u32 s63, 3", f"s_cbranch_scc0 {lnext}", "s_lshr_b32 s70, s62, 2")
        flush_acc()
        self.label(lnext)
        e(f"s_add_u32 {s(sTile)}, {s(sTile)}, 12288", f"s_cmp_eq_u32 {s(sTile)}, {s(sEnd)}",
          f"s_cselect_b32 {s(sTile)}, {s(sBase)}, {s(sTile)}",
          f"s_add_u32 {s(sN)}, {s(sN)}, 1", f"s_branch {lloop}")
        self.label(lfin)
        self.stamp(6)
        if self.diag:
            e(f"s_mov_b32 {s(S_STAMP0+4)}, {s(sN)}", f"s_add_u32 {s(S_STAMP0+4)}, {s(S_STAMP0+4)}, 1000")
        e("s_mov_b32 s70, 3")
        flush_acc()
        self.lds_flag_set(18, F_VE, 19)
        self.stamp(7)
        self.stamps_store()
        e("s_endpgm")

    def gemv64_loads(self, W):
        e = self.e
        e("s_mov_b32 s61, 0")
        for ks in range(5):
            for ee in range(8):
                r = W + 16*(ks+1) + 2*ee
                e(f"buffer_load_dwordx2 {vr(r,2)}, v4, {sr(SRD_A,4)}, s61 offen nt")
                if not (ks == 4 and ee == 7):
                    if ee < 7:
                        e("s_add_u32 s61, s61, s60")
                    else:
                        e("s_mul_i32 s62, s60, 25", "s_add_u32 s61, s61, s62")

    def gemv64_perm(self, W):
        e = self.e
        for ks in range(5):
            raw, fr = W + 16*(ks+1), W + 16*ks
            for f in range(4):
                d, hi = f >> 1, f & 1
                for q in range(4):
                    e(f"v_perm_b32 {v(fr+4*f+q)}, {v(raw+2*(2*q+1)+d)}, {v(raw+2*(2*q)+d)}, {s(S_SELHI if hi else S_SELLO)}")

    def gemv64_finish(self, W, AF, DD, vfl, vone):
        e = self.e
        for ks in range(5):
            e(f"ds_read_b128 {vr(AF+4*ks,4)}, v5 offset:{64*ks}")
        for ks in range(5):
            e(f"s_waitcnt lgkmcnt({4-ks})")
            for f in range(4):
                c = "0" if ks == 0 else vr(DD+4*f, 4)
                e(f"v_mfma_f32_16x16x32_bf16 {vr(DD+4*f,4)}, {vr(AF+4*ks,4)}, {vr(W+16*ks+4*f,4)}, {c}")
        e("s_nop 7", "s_nop 1")
        for f in range(4):
            e(f"v_mov_b32 {v(AF+f)}, {v(DD+4*f)}")
        e(f"s_lshl_b32 s62, {s(S_W)}, 10", f"s_add_u32 s62, s62, {SC}", "v_lshlrev_b32 v6, 4, v1",
          "v_add_u32 v7, s62, v6", f"ds_write_b128 v7, {vr(AF,4)}")
        self.sync4(vfl, F_SYNCR, vone, 8)
        l = self.new("gf")
        e(f"s_cmp_eq_u32 {s(S_W)}, 0", f"s_cbranch_scc0 {l}")
        e(f"v_add_u32 v7, {SC}, v6")
        for ww in range(4):
            e(f"ds_read_b128 {vr(AF+4*ww,4)}, v7 offset:{1024*ww}")
        e("s_waitcnt lgkmcnt(0)")
        for f in range(4):
            e(f"v_add_f32 {v(AF+f)}, {v(AF+f)}, {v(AF+4+f)}", f"v_add_f32 {v(AF+8+f)}, {v(AF+8+f)}, {v(AF+12+f)}")
        for f in range(4):
            e(f"v_add_f32 {v(AF+f)}, {v(AF+f)}, {v(AF+8+f)}")
        e(f"v_cvt_pk_bf16_f32 {v(AF+4)}, {v(AF)}, {v(AF+1)}", f"v_cvt_pk_bf16_f32 {v(AF+6)}, {v(AF+2)}, {v(AF+3)}",
          f"v_mov_b32 {v(AF+5)}, {s(S_TAG)}", f"v_mov_b32 {v(AF+7)}, {s(S_TAG)}",
          "v_lshrrev_b32 v6, 4, v1", "v_mul_lo_u32 v6, v6, s65", "v_and_b32 v7, 15, v1", "v_lshl_add_u32 v6, v7, 4, v6",
          f"buffer_store_dwordx4 {vr(AF+4,4)}, v6, {sr(SRD_WS,4)}, s64 offen sc1")
        self.label(l)

    def ln_stats(self, PX, XF, T):
        e = self.e
        for i in range(5):
            self.unpack(XF+2*i, XF+2*i+1, PX+i)
        e(f"v_add_f32 {v(T)}, {v(XF)}, {v(XF+1)}")
        for i in range(2, 10):
            e(f"v_add_f32 {v(T)}, {v(T)}, {v(XF+i)}")
        self.allreduce("add", T, T+1)
        e(f"v_mul_f32 {v(T)}, {hex(INV640)}, {v(T)}")
        e(f"v_sub_f32 {v(T+2)}, {v(XF)}, {v(T)}", f"v_mul_f32 {v(T+3)}, {v(T+2)}, {v(T+2)}")
        for i in range(1, 10):
            e(f"v_sub_f32 {v(T+2)}, {v(XF+i)}, {v(T)}", f"v_fmac_f32 {v(T+3)}, {v(T+2)}, {v(T+2)}")
        self.allreduce("add", T+3, T+1)
        e(f"v_mul_f32 {v(T+3)}, {hex(INV640)}, {v(T+3)}")
        self.round2(T, T+3, T+1)
        e(f"v_add_f32 {v(T+3)}, {hex(EPS)}, {v(T+3)}")
        e(f"v_cvt_pk_bf16_f32 {v(T+1)}, {v(T+3)}, {v(T+3)}", f"v_lshlrev_b32 {v(T+3)}, 16, {v(T+1)}",
          f"v_sqrt_f32 {v(T+3)}, {v(T+3)}", "s_nop 0",
          f"v_cvt_pk_bf16_f32 {v(T+1)}, {v(T+3)}, {v(T+3)}", f"v_lshlrev_b32 {v(T+3)}, 16, {v(T+1)}",
          f"v_rcp_f32 {v(T+3)}, {v(T+3)}", "s_nop 0")
        for i in range(0, 10, 2):
            e(f"v_sub_f32 {v(XF+i)}, {v(XF+i)}, {v(T)}", f"v_sub_f32 {v(XF+i+1)}, {v(XF+i+1)}, {v(T)}")
            self.round2(XF+i, XF+i+1, T+1)
            e(f"v_mul_f32 {v(XF+i)}, {v(XF+i)}, {v(T+3)}", f"v_mul_f32 {v(XF+i+1)}, {v(XF+i+1)}, {v(T+3)}")
            self.round2(XF+i, XF+i+1, T+1)

    def ln_fast(self, PX, XF, TD, T):
        e = self.e
        if PX is not None:
            for i in range(5):
                self.unpack(XF+2*i, XF+2*i+1, PX[i])
        e("s_nop 0", f"v_readfirstlane_b32 s90, {v(XF)}", "s_nop 0", "s_mov_b32 s91, s90")
        for i in range(5):
            e(f"v_pk_add_f32 {vr(TD+2*i,2)}, {vr(XF+2*i,2)}, s[90:91] neg_lo:[0,1] neg_hi:[0,1]")
        A, B = T, T+2
        e(f"v_pk_mul_f32 {vr(B,2)}, {vr(TD,2)}, {vr(TD,2)}", f"v_pk_add_f32 {vr(A,2)}, {vr(TD,2)}, {vr(TD+2,2)}",
          f"v_pk_fma_f32 {vr(B,2)}, {vr(TD+2,2)}, {vr(TD+2,2)}, {vr(B,2)}")
        for i in range(2, 5):
            e(f"v_pk_add_f32 {vr(A,2)}, {vr(A,2)}, {vr(TD+2*i,2)}",
              f"v_pk_fma_f32 {vr(B,2)}, {vr(TD+2*i,2)}, {vr(TD+2*i,2)}, {vr(B,2)}")
        e(f"v_add_f32 {v(A)}, {v(A)}, {v(A+1)}", f"v_add_f32 {v(B)}, {v(B)}, {v(B+1)}")
        for r in (8, 4, 2, 1):
            e("s_nop 0", f"v_add_f32_dpp {v(A)}, {v(A)}, {v(A)} row_ror:{r} row_mask:0xf bank_mask:0xf",
              f"v_add_f32_dpp {v(B)}, {v(B)}, {v(B)} row_ror:{r} row_mask:0xf bank_mask:0xf")
        for swp in ("v_permlane16_swap_b32", "v_permlane32_swap_b32"):
            e(f"v_mov_b32 {v(A+1)}, {v(A)}", f"v_mov_b32 {v(B+1)}, {v(B)}", "s_nop 1",
              f"{swp} {v(A+1)}, {v(A)}", f"{swp} {v(B+1)}, {v(B)}",
              f"v_add_f32 {v(A)}, {v(A+1)}, {v(A)}", f"v_add_f32 {v(B)}, {v(B+1)}, {v(B)}")
        e(f"v_mul_f32 {v(A)}, {hex(INV640)}, {v(A)}", f"v_mul_f32 {v(B)}, {hex(INV640)}, {v(B)}",
          f"v_fma_f32 {v(B)}, -{v(A)}, {v(A)}, {v(B)}", f"v_add_f32 {v(A)}, s90, {v(A)}", f"v_max_f32 {v(B)}, 0, {v(B)}",
          f"v_cvt_pk_bf16_f32 {v(A+1)}, {v(A)}, {v(B)}")
        self.unpack(A, B, A+1)
        e(f"v_add_f32 {v(B)}, {hex(EPS)}, {v(B)}",
          f"v_cvt_pk_bf16_f32 {v(B+1)}, {v(B)}, {v(B)}", f"v_lshlrev_b32 {v(B)}, 16, {v(B+1)}",
          f"v_sqrt_f32 {v(B)}, {v(B)}")
        for i in range(5):
            e(f"v_pk_add_f32 {vr(XF+2*i,2)}, {vr(XF+2*i,2)}, {vr(A,2)} op_sel_hi:[1,0] neg_lo:[0,1] neg_hi:[0,1]")
        e(f"v_cvt_pk_bf16_f32 {v(B+1)}, {v(B)}, {v(B)}", f"v_lshlrev_b32 {v(B)}, 16, {v(B+1)}", f"v_rcp_f32 {v(B)}, {v(B)}")
        for i in range(5):
            e(f"v_cvt_pk_bf16_f32 {v(TD+i)}, {v(XF+2*i)}, {v(XF+2*i+1)}")
        for i in range(5):
            self.unpack(XF+2*i, XF+2*i+1, TD+i)
        for i in range(5):
            e(f"v_pk_mul_f32 {vr(XF+2*i,2)}, {vr(XF+2*i,2)}, {vr(B,2)} op_sel_hi:[1,0]")
        for i in range(5):
            e(f"v_cvt_pk_bf16_f32 {v(TD+i)}, {v(XF+2*i)}, {v(XF+2*i+1)}")
        for i in range(5):
            self.unpack(XF+2*i, XF+2*i+1, TD+i)

    def modulate_fast(self, XF, C1, SH, TD, vaddr):
        e = self.e
        for i in range(5):
            e(f"v_pk_mul_f32 {vr(XF+2*i,2)}, {vr(XF+2*i,2)}, {vr(C1+2*i,2)}")
        for i in range(5):
            e(f"v_cvt_pk_bf16_f32 {v(TD+i)}, {v(XF+2*i)}, {v(XF+2*i+1)}")
        for i in range(5):
            self.unpack(XF+2*i, XF+2*i+1, TD+i)
        for i in range(5):
            e(f"v_pk_add_f32 {vr(XF+2*i,2)}, {vr(XF+2*i,2)}, {vr(SH+2*i,2)}")
        for i in range(5):
            e(f"v_cvt_pk_bf16_f32 {v(TD+i)}, {v(XF+2*i)}, {v(XF+2*i+1)}", f"ds_write_b32 {v(vaddr)}, {v(TD+i)} offset:{256*i}")

    def bad_lanes(self, tags, sdst, t):
        e = self.e
        assert len(tags) in (2, 4)
        for k, r in enumerate(tags):
            e(f"v_xor_b32 {v(t+k)}, {s(S_TAG)}, {v(r)}")
        if len(tags) == 4:
            e(f"v_or3_b32 {v(t)}, {v(t)}, {v(t+1)}, {v(t+2)}", f"v_or_b32 {v(t)}, {v(t)}, {v(t+3)}")
        else:
            e(f"v_or_b32 {v(t)}, {v(t)}, {v(t+1)}")
        e(f"v_cmp_ne_u32 {sr(sdst,2)}, 0, {v(t)}")

    def masked_gather(self, groups, t, init=None, care=None, sleep=0):
        e = self.e
        l, d = self.new("mg"), self.new("mgd")
        for (sp, _, _) in groups:
            if init is None:
                e(f"s_mov_b64 {sr(sp,2)}, -1")
            else:
                e(f"s_mov_b32 {s(sp)}, {hex(init[0])}", f"s_mov_b32 {s(sp+1)}, {hex(init[1])}")
        self.label(l)
        for (sp, loads, _) in groups:
            k = self.new("mk")
            e(f"s_mov_b64 exec, {sr(sp,2)}", f"s_cbranch_execz {k}")
            loads()
            self.label(k)
        e("s_mov_b64 exec, -1", "s_waitcnt vmcnt(0)")
        for (sp, _, tags) in groups:
            self.bad_lanes(tags, sp, t)
            if care is not None:
                e(f"s_and_b32 {s(sp)}, {s(sp)}, {hex(care[0])}", f"s_and_b32 {s(sp+1)}, {s(sp+1)}, {hex(care[1])}")
        e(f"s_mov_b64 s[90:91], {sr(groups[0][0],2)}")
        for (sp, _, _) in groups[1:]:
            e(f"s_or_b64 s[90:91], s[90:91], {sr(sp,2)}")
        e("s_cmp_eq_u64 s[90:91], 0", f"s_cbranch_scc1 {d}")
        if sleep:
            e(f"s_sleep {sleep}")
        self.spin_check()
        e(f"s_branch {l}")
        self.label(d)

    def poll2(self, loadsA, tagsA, useA, loadsB, tagsB, useB, nloads, t):
        e = self.e
        l, dA, dB, d = self.new("p2"), self.new("p2a"), self.new("p2b"), self.new("p2d")
        loadsA()
        loadsB()
        self.label(l)
        e(f"s_waitcnt vmcnt({nloads})")
        ra, rb = self.new("p2ra"), self.new("p2rb")
        self.tagcheck(tagsA, t, t+1, ra)
        e(f"s_branch {dA}")
        self.label(ra)
        loadsA()
        e(f"s_waitcnt vmcnt({nloads})")
        self.tagcheck(tagsB, t, t+1, rb)
        e(f"s_branch {dB}")
        self.label(rb)
        loadsB()
        self.spin_check()
        e(f"s_branch {l}")
        self.label(dA)
        useA()
        e(f"s_branch {d}")
        self.label(dB)
        useB()
        self.label(d)

    def modulate(self, XF, C1, SH, T, vaddr):
        e = self.e
        for i in range(5):
            a, b = XF+2*i, XF+2*i+1
            e(f"v_mul_f32 {v(a)}, {v(a)}, {v(C1+2*i)}", f"v_mul_f32 {v(b)}, {v(b)}, {v(C1+2*i+1)}")
            self.round2(a, b, T)
            e(f"v_add_f32 {v(a)}, {v(a)}, {v(SH+2*i)}", f"v_add_f32 {v(b)}, {v(b)}, {v(SH+2*i+1)}",
              f"v_cvt_pk_bf16_f32 {v(T)}, {v(a)}, {v(b)}", f"ds_write_b32 {v(vaddr)}, {v(T)} offset:{256*i}")

    def prep_mod_pair(self, G, C1, SH, T):
        e = self.e
        for i in range(5):
            self.unpack(SH+2*i, SH+2*i+1, G+2*i)
        for i in range(5):
            self.unpack(C1+2*i, C1+2*i+1, G+10+2*i)
            e(f"v_add_f32 {v(C1+2*i)}, 1.0, {v(C1+2*i)}", f"v_add_f32 {v(C1+2*i+1)}, 1.0, {v(C1+2*i+1)}")
            self.round2(C1+2*i, C1+2*i+1, T)

    def helper(self):
        e = self.e
        self.c("================= helper wave =================")
        e(f"s_sub_u32 {s(S_W)}, {s(S_W)}, 4")
        VFL, VONE = 2, 3
        W = 100
        PX, XF, T = 10, 16, 28
        G, C1, SH = 32, 56, 68
        AF, DD = 200, 220
        e(f"s_lshl_b32 s62, {s(S_W)}, 2", f"s_add_u32 s62, s62, {FLAGS}", f"v_mov_b32 {v(VFL)}, s62", f"v_mov_b32 {v(VONE)}, 1",
          f"v_mov_b32 v9, {FLAGS}")
        self.c("zero the LDS flags (helper 0)")
        l = self.new("zf")
        e(f"s_cmp_eq_u32 {s(S_W)}, 0", f"s_cbranch_scc0 {l}",
          "v_lshlrev_b32 v6, 2, v1", f"v_add_u32 v6, {FLAGS}, v6", "v_mov_b32 v7, 0",
          "ds_write_b32 v6, v7", "s_waitcnt lgkmcnt(0)")
        self.label(l)
        self.tag_load()
        self.c("work counters of this head: cleared by helper 0 of workgroup j == 0 (drained before q is published)")
        l = self.new("zc")
        e(f"s_cmp_eq_u32 {s(S_W)}, 0", f"s_cbranch_scc0 {l}", f"s_cmp_eq_u32 {s(S_J)}, 0", f"s_cbranch_scc0 {l}",
          f"s_lshl_b32 s62, {s(S_H)}, 7", f"s_add_u32 s62, s62, {CNTBUF}", "v_mov_b32 v6, 0", "v_mov_b32 v7, 0",
          "s_mov_b64 exec, 1", f"buffer_store_dword v7, v6, {sr(SRD_WS,4)}, s62 offen sc1", "s_mov_b64 exec, -1")
        self.label(l)
        self.c("prologue role: s67 = 0 none, 1 Q block, 2 MOD block")
        lq, lm, lr, lm7 = self.new("rq"), self.new("rm"), self.new("rr"), self.new("m7")
        e("s_mov_b32 s67, 0", f"s_cmp_lt_u32 {s(S_J)}, 3", f"s_cbranch_scc1 {lq}",
          f"s_cmp_lt_u32 {s(S_J)}, 5", f"s_cbranch_scc0 {lm7}",
          f"s_lshl_b32 s68, {s(S_H)}, 1", f"s_add_u32 s68, s68, {s(S_J)}", "s_sub_u32 s68, s68, 3",
          f"s_cmp_lt_u32 {s(S_H)}, 28", f"s_cbranch_scc1 {lm}", f"s_branch {lr}")
        self.label(lm7)
        e(f"s_add_u32 s68, {s(S_H)}, 56", f"s_cmp_eq_u32 {s(S_J)}, 7", f"s_cbranch_scc0 {lr}",
          f"s_cmp_lt_u32 {s(S_H)}, 4", f"s_cbranch_scc1 {lm}", f"s_branch {lr}")
        self.label(lq)
        e("s_mov_b32 s67, 1")
        if "qfirst" not in self.x:
            e("s_barrier")
        self.srd(SRD_A, S_WQ, 7864320)
        self.srd(SRD_B, S_X, 5120)
        e("s_mov_b32 s60, 12288", f"s_mul_i32 s68, {s(S_H)}, 3", f"s_add_u32 s68, s68, {s(S_J)}",
          "s_lshl_b32 s64, s68, 8", f"s_add_u32 s64, s64, {QBUF}", f"s_mov_b32 s65, {3072*8}")
        lcommon = self.new("rc")
        e(f"s_branch {lcommon}")
        self.label(lm)
        e("s_mov_b32 s67, 2")
        self.srd(SRD_A, S_WM, 4915200)
        self.srd(SRD_B, S_C, 5120)
        e("s_mov_b32 s60, 7680", "s_lshl_b32 s64, s68, 8", f"s_add_u32 s64, s64, {MODBUF}", f"s_mov_b32 s65, {1920*8}")
        self.label(lcommon)
        self.c("issue vector + weight loads")
        e(f"s_mul_i32 s62, {s(S_W)}, 1280", "v_lshlrev_b32 v6, 2, v1")
        for i in range(5):
            e(f"buffer_load_dword {v(PX+i)}, v6, {sr(SRD_B,4)}, s62 offen offset:{256*i}")
        e(f"s_mul_i32 s62, {s(S_W)}, 160", "v_lshrrev_b32 v4, 4, v1", "v_lshlrev_b32 v4, 3, v4", "v_add_u32 v4, s62, v4",
          "v_mul_lo_u32 v4, v4, s60", "v_and_b32 v7, 15, v1", "v_lshl_add_u32 v4, v7, 3, v4",
          "s_lshl_b32 s62, s68, 7", "v_add_u32 v4, s62, v4")
        self.gemv64_loads(W)
        lnb = self.new("nb")
        if "qfirst" not in self.x:
            e("s_cmp_eq_u32 s67, 1", f"s_cbranch_scc1 {lnb}")
        self.label(lr)
        e("s_barrier")
        self.label(lnb)
        self.tag_ready()
        self.stamp(1)
        self.c("A fragment address for the [4][640] vector: AVEC + b*1280 + w*320 + g*16")
        e("v_and_b32 v6, 15, v1", "v_lshrrev_b32 v6, 2, v6", "v_mul_u32_u24 v6, 1280, v6",
          "v_lshrrev_b32 v7, 4, v1", "v_lshl_add_u32 v6, v7, 4, v6",
          f"s_mul_i32 s62, {s(S_W)}, 320", f"s_add_u32 s62, s62, {AVEC}", "v_add_u32 v5, s62, v6")
        e(f"s_mul_i32 s62, {s(S_W)}, 1280", f"s_add_u32 s62, s62, {AVEC}", "v_lshlrev_b32 v6, 2, v1", "v_add_u32 v8, s62, v6",
          "v_mov_b32 v26, v8")
        lq2, lm2, lpq = self.new("q2"), self.new("m2"), self.new("pq")
        e("s_cmp_eq_u32 s67, 1", f"s_cbranch_scc1 {lq2}", "s_cmp_eq_u32 s67, 2", f"s_cbranch_scc1 {lm2}", f"s_branch {lpq}")
        self.label(lm2)
        e("s_waitcnt vmcnt(40)", "s_mov_b32 s91, 0x207")
        for i in range(5):
            a, b = XF, XF+1
            self.unpack(a, b, PX+i)
            for x in (a, b):
                e(f"v_mul_f32 {v(T)}, {hex(LOG2E ^ 0x80000000)}, {v(x)}", f"v_exp_f32 {v(T)}, {v(T)}", "s_nop 0",
                  f"v_add_f32 {v(T)}, 1.0, {v(T)}", f"v_rcp_f32 {v(T+1)}, {v(T)}", "s_nop 0",
                  f"v_mul_f32 {v(T+2)}, {v(x)}, {v(T+1)}",
                  f"v_fma_f32 {v(T+3)}, -{v(T+2)}, {v(T)}, {v(x)}",
                  f"v_cmp_class_f32 vcc, {v(T+3)}, s91",
                  f"v_fma_f32 {v(x)}, {v(T+3)}, {v(T+1)}, {v(T+2)}", "s_nop 0",
                  f"v_cndmask_b32 {v(x)}, {v(x)}, {v(T+2)}, vcc")
            e(f"v_cvt_pk_bf16_f32 {v(T)}, {v(a)}, {v(b)}", f"ds_write_b32 v26, {v(T)} offset:{256*i}")
        self.sync4(9, F_SYNCA, VONE, 8)
        e("s_waitcnt vmcnt(0)")
        self.stamp(2)
        self.gemv64_perm(W)
        self.gemv64_finish(W, AF, DD, 9, VONE)
        self.stamp(3)
        e(f"s_branch {lpq}")
        self.label(lq2)
        e("s_waitcnt vmcnt(40)")
        self.ln_fast([PX+i for i in range(5)], XF, 80, T)
        e("s_waitcnt vmcnt(0)")
        self.gemv64_perm(W)
        self.stamp(2)
        e(f"s_mul_i32 s62, {s(S_W)}, {1920*8}", f"s_add_u32 s62, s62, {MODBUF}", f"s_add_u32 s63, s62, {320*8}",
          "v_lshlrev_b32 v6, 3, v1")
        def ld_mod():
            for i in range(5):
                e(f"buffer_load_dwordx2 {vr(G+2*i,2)}, v6, {sr(SRD_WS,4)}, s62 offen offset:{512*i} sc1")
            for i in range(5):
                e(f"buffer_load_dwordx2 {vr(G+10+2*i,2)}, v6, {sr(SRD_WS,4)}, s63 offen offset:{512*i} sc1")
        if "pause" in self.x:
            self.lds_flag_set(9, F_PA, VONE)
        self.poll(ld_mod, [G+2*i+1 for i in range(10)], T, T+1)
        self.stamp(3)
        self.prep_mod_pair(G, C1, SH, T)
        self.modulate_fast(XF, C1, SH, 80, 26)
        self.sync4(9, F_SYNCA, VONE, 8)
        if "pause" in self.x:
            e("v_mov_b32 v8, 0")
            self.lds_flag_set(9, F_PA, 8)
        self.gemv64_finish(W, AF, DD, 9, VONE)
        self.stamp(4)
        self.label(lpq)
        l = self.new("jd")
        e(f"s_cmp_eq_u32 {s(S_W)}, 0", f"s_cbranch_scc0 {l}", "s_waitcnt lgkmcnt(0)")
        self.lds_flag_set(9, F_JD, VONE)
        self.label(l)
        WB = 36
        def load_wb():
            self.c("stage B weights: wo rows 192h+48w+.., columns 128j..")
            self.srd(SRD_A, S_WO, 7864320)
            e(f"s_mul_i32 s62, {s(S_H)}, 192", f"s_mul_i32 s63, {s(S_W)}, 48", "s_add_u32 s62, s62, s63",
              "v_lshrrev_b32 v6, 4, v1", "v_mul_u32_u24 v6, 3, v6", "v_add_u32 v6, s62, v6", "v_mul_u32_u24 v6, 1280, v6",
              "v_and_b32 v7, 15, v1", "v_lshl_add_u32 v6, v7, 4, v6", f"s_lshl_b32 s62, {s(S_J)}, 8", "v_add_u32 v6, s62, v6")
            for vv in range(12):
                sg, ee = vv >> 2, vv & 3
                e(f"s_mov_b32 s62, {(12*(vv//3)+vv%3)*1280}",
                  f"buffer_load_dwordx4 {vr(WB+16*(sg+1)+4*ee,4)}, v6, {sr(SRD_A,4)}, s62 offen nt")
            e("s_waitcnt vmcnt(0)")
            for sg in range(3):
                raw, fr = WB+16*(sg+1), WB+16*sg
                for cc in range(8):
                    for q in range(2):
                        e(f"v_perm_b32 {v(fr+2*cc+q)}, {v(raw+4*(2*q+1)+(cc>>1))}, {v(raw+4*(2*q)+(cc>>1))}, {s(S_SELHI if cc&1 else S_SELLO)}")
        WD, GBR = 100, 240
        WG, WU = 36, 84
        CC1, CSH = 140, 150
        RX, RG = 180, 182
        lc, ld, lnc, l6, l7, lrd = (self.new(x) for x in ("c", "d", "nc", "j6", "j7", "rd"))
        e("s_mov_b32 s69, 0", "s_mov_b32 s70, 0", f"s_cmp_lt_u32 {s(S_J)}, 5", f"s_cbranch_scc1 {lrd}")
        e(f"s_cmp_eq_u32 {s(S_J)}, 5", f"s_cbranch_scc0 {l6}", f"s_mov_b32 s68, {s(S_H)}", f"s_branch {lc}")
        self.label(l6)
        e(f"s_cmp_eq_u32 {s(S_J)}, 6", f"s_cbranch_scc0 {l7}",
          f"s_add_u32 s68, {s(S_H)}, 32", f"s_cmp_lt_u32 {s(S_H)}, 16", f"s_cbranch_scc1 {lc}",
          f"s_sub_u32 s68, {s(S_H)}, 16", f"s_branch {ld}")
        self.label(l7)
        e(f"s_sub_u32 s68, {s(S_H)}, 12", f"s_cmp_ge_u32 {s(S_H)}, 28", f"s_cbranch_scc1 {ld}", f"s_branch {lnc}")
        self.label(lc)
        e("s_mov_b32 s69, 1", f"s_branch {lrd}")
        self.label(ld)
        e("s_mov_b32 s69, 2", f"s_branch {lrd}")
        self.label(lnc)
        e(f"s_mul_i32 s71, {s(S_H)}, 3", f"s_add_u32 s71, s71, {s(S_W)}",
          "s_cmp_lt_u32 s71, 80", f"s_cbranch_scc0 {lrd}", f"s_cmp_lt_u32 {s(S_W)}, 3", f"s_cbranch_scc0 {lrd}",
          "s_mov_b32 s70, 1")
        self.label(lrd)

        def load_heavy():
            lnc2, lnd2 = self.new("hc"), self.new("hd")
            e("s_cmp_eq_u32 s69, 1", f"s_cbranch_scc0 {lnc2}")
            self.c("gate / up weights: rows 160w.., columns 32c..")
            self.srd(SRD_A, S_G, 1966080)
            self.srd(SRD_B, S_U, 1966080)
            e(f"s_mul_i32 s62, {s(S_W)}, 160", "v_lshrrev_b32 v6, 4, v1", "v_lshlrev_b32 v6, 3, v6", "v_add_u32 v6, s62, v6",
              "v_mul_u32_u24 v6, 3072, v6", "v_and_b32 v7, 15, v1", "v_lshl_add_u32 v6, v7, 2, v6",
              "s_lshl_b32 s62, s68, 6", "v_add_u32 v6, s62, v6")
            for (base, srd) in ((WG, SRD_A), (WU, SRD_B)):
                for ks in range(5):
                    for ee in range(8):
                        e(f"s_mov_b32 s62, {(32*ks+ee)*3072}",
                          f"buffer_load_dword {v(base+8*(ks+1)+ee)}, v6, {sr(srd,4)}, s62 offen nt")
                e("s_waitcnt vmcnt(0)")
                for ks in range(5):
                    raw, fr = base+8*(ks+1), base+8*ks
                    for hi in range(2):
                        for q in range(4):
                            e(f"v_perm_b32 {v(fr+4*hi+q)}, {v(raw+2*q+1)}, {v(raw+2*q)}, {s(S_SELHI if hi else S_SELLO)}")
            self.label(lnc2)
            e("s_cmp_eq_u32 s69, 2", f"s_cbranch_scc0 {lnd2}")
            self.c("down weights: rows 384w.., columns 32d..")
            self.srd(SRD_A, S_DN, 1966080)
            e(f"s_mul_i32 s62, {s(S_W)}, 384", "v_lshrrev_b32 v6, 4, v1", "v_lshlrev_b32 v6, 3, v6", "v_add_u32 v6, s62, v6",
              "v_mul_u32_u24 v6, 1280, v6", "v_and_b32 v7, 15, v1", "v_lshl_add_u32 v6, v7, 2, v6",
              "s_lshl_b32 s62, s68, 6", "v_add_u32 v6, s62, v6")
            for half in range(2):
                for ks in range(6*half, 6*half+6):
                    for ee in range(8):
                        e(f"s_mov_b32 s62, {(32*ks+ee)*1280}",
                          f"buffer_load_dword {v(WD+8*(ks+1)+ee)}, v6, {sr(SRD_A,4)}, s62 offen nt")
                e("s_waitcnt vmcnt(0)")
                for ks in range(6*half, 6*half+6):
                    raw, fr = WD+8*(ks+1), WD+8*ks
                    for hi in range(2):
                        for q in range(4):
                            e(f"v_perm_b32 {v(fr+4*hi+q)}, {v(raw+2*q+1)}, {v(raw+2*q)}, {s(S_SELHI if hi else S_SELLO)}")
            self.label(lnd2)

        self.c("slices that are not needed before the tail: loaded while q is still on its way where the helper is free")
        lnb2 = self.new("nb2")
        e(f"s_cmp_ge_u32 {s(S_J)}, 3", f"s_cbranch_scc0 {lnb2}", f"s_cmp_lt_u32 {s(S_J)}, 5", f"s_cbranch_scc0 {lnb2}")
        load_wb()
        self.label(lnb2)
        if "heavylate" not in self.x:
            load_heavy()
        self.c("q of batch w of this head -> LDS")
        e(f"s_mul_i32 s62, {s(S_W)}, {3072*8}", f"s_mul_i32 s63, {s(S_H)}, {96*8}", "s_add_u32 s62, s62, s63",
          f"s_add_u32 s62, s62, {QBUF}", "v_lshlrev_b32 v6, 4, v1",
          "s_mov_b32 exec_lo, -1", "s_mov_b32 exec_hi, 0xffff")
        def ld_q():
            e(f"buffer_load_dwordx4 {vr(G,4)}, v6, {sr(SRD_WS,4)}, s62 offen sc1")
        self.poll(ld_q, [G+1, G+3], T, T+1, sleep=2)
        e(f"v_mov_b32 {v(G+1)}, {v(G+2)}", f"s_mul_i32 s62, {s(S_W)}, 384", f"s_add_u32 s62, s62, {QL}",
          "v_lshlrev_b32 v6, 3, v1", "v_add_u32 v6, s62, v6", f"ds_write_b64 v6, {vr(G,2)}",
          "s_mov_b64 exec, 1", f"ds_add_u32 v9, {v(VONE)} offset:{F_QC}", "s_mov_b64 exec, -1")
        self.stamp(5)
        lbd = self.new("bd")
        e(f"s_cmp_lt_u32 {s(S_J)}, 3", f"s_cbranch_scc0 {lbd}")
        load_wb()
        self.label(lbd)
        if "heavylate" in self.x:
            load_heavy()
        lmid, lpc, lpd = self.new("mid"), self.new("pc"), self.new("pd")
        e("s_cmp_eq_u32 s69, 1", f"s_cbranch_scc0 {lpc}")
        self.c("sb (segment 3), cb (segment 4) for batch w")
        G2 = 160
        e(f"s_mul_i32 s62, {s(S_W)}, {1920*8}", f"s_add_u32 s62, s62, {MODBUF+3*320*8}", f"s_add_u32 s63, s62, {320*8}",
          "v_lshlrev_b32 v6, 3, v1")
        def ld_mod2():
            for i in range(5):
                e(f"buffer_load_dwordx2 {vr(G2+2*i,2)}, v6, {sr(SRD_WS,4)}, s62 offen offset:{512*i} sc1")
            for i in range(5):
                e(f"buffer_load_dwordx2 {vr(G2+10+2*i,2)}, v6, {sr(SRD_WS,4)}, s63 offen offset:{512*i} sc1")
        self.poll(ld_mod2, [G2+2*i+1 for i in range(10)], T, T+1, sleep=8)
        self.prep_mod_pair(G2, CC1, CSH, T)
        e(f"s_branch {lmid}")
        self.label(lpc)
        e("s_cmp_eq_u32 s69, 2", f"s_cbranch_scc0 {lpd}")
        self.c("gb pairs for (b = lane>>4, pair 16d + (lane&15))")
        e("v_lshrrev_b32 v6, 4, v1", f"v_mul_u32_u24 v6, {1920*8}, v6", "v_and_b32 v7, 15, v1", "v_lshl_add_u32 v6, v7, 3, v6",
          "s_lshl_b32 s62, s68, 7", f"s_add_u32 s62, s62, {MODBUF+5*320*8}")
        def ld_gb():
            e(f"buffer_load_dwordx2 {vr(GBR,2)}, v6, {sr(SRD_WS,4)}, s62 offen sc1")
        self.poll(ld_gb, [GBR+1], T, T+1, sleep=8)
        e(f"s_branch {lmid}")
        self.label(lpd)
        e("s_cmp_eq_u32 s70, 1", f"s_cbranch_scc0 {lmid}")
        self.srd(SRD_B, S_X, 5120)
        e("v_bfe_u32 v6, v1, 2, 2", "v_and_b32 v7, 3, v1",
          "v_mul_u32_u24 v8, 1280, v6", "v_lshl_add_u32 v8, v7, 2, v8", "s_lshl_b32 s62, s71, 4",
          f"buffer_load_dword {v(RX)}, v8, {sr(SRD_B,4)}, s62 offen",
          f"v_mul_u32_u24 v8, {1920*8}, v6", "v_lshl_add_u32 v8, v7, 3, v8",
          "s_lshl_b32 s62, s71, 5", f"s_add_u32 s62, s62, {MODBUF+2*320*8}")
        def ld_ga():
            e(f"buffer_load_dwordx2 {vr(RG,2)}, v8, {sr(SRD_WS,4)}, s62 offen sc1")
        self.poll(ld_ga, [RG+1], T, T+1, sleep=8)
        self.label(lmid)
        self.stamp(6)
        SL = self.SL
        MLR = 12
        e(f"s_lshl_b32 s61, {s(S_J)}, 2", f"s_add_u32 s61, s61, {s(S_W)}",
          f"s_lshl_b32 s95, {s(S_W)}, 10", f"s_add_u32 s95, s95, {SC}")

        def publish_ml(bi):
            e(f"s_mov_b32 s60, {bi}")
            self.lds_wait_gt(VFL, F_KD, 8, 60, sleep=4)
            e(f"s_lshl_b32 s62, {s(S_W)}, 5", f"s_add_u32 s62, s62, {MLH+8*bi}",
              "v_mov_b32 v6, s62", f"ds_read_b64 {vr(MLR,2)}, v6",
              f"s_lshl_b32 s63, {s(S_H)}, 2", f"s_add_u32 s63, s63, {bi}", "s_lshl_b32 s63, s63, 9", f"s_add_u32 s63, s63, {MLBUF}",
              "s_lshl_b32 s62, s61, 4", "s_add_u32 s62, s62, s63",
              "s_waitcnt lgkmcnt(0)",
              f"v_mov_b32 {v(MLR+2)}, {v(MLR+1)}", f"v_mov_b32 {v(MLR+1)}, {s(S_TAG)}", f"v_mov_b32 {v(MLR+3)}, {s(S_TAG)}",
              "v_mov_b32 v6, 0", "s_mov_b64 exec, 1",
              f"buffer_store_dwordx4 {vr(MLR,4)}, v6, {sr(SRD_WS,4)}, s62 offen sc1", "s_mov_b64 exec, -1")
            if bi == 3 and SL < 4:
                self.c("last batch: publish the scores of this wave's pool tiles")
                e(f"s_add_u32 s62, s95, {(12+SL)*64}", "v_lshlrev_b32 v6, 2, v1", "v_add_u32 v6, s62, v6",
                  "ds_read_b32 v16, v6", f"v_mov_b32 v17, {s(S_TAG)}",
                  "v_lshrrev_b32 v7, 4, v1", "v_lshlrev_b32 v7, 12, v7", "v_and_b32 v8, 15, v1", "v_lshl_add_u32 v7, v8, 3, v7",
                  f"s_lshl_b32 s62, {s(S_H)}, 7", f"s_add_u32 s62, s62, {32*SL}", "s_add_u32 s62, s62, s61", "s_lshl_b32 s62, s62, 7",
                  f"s_add_u32 s62, s62, {SBUF}", "s_waitcnt lgkmcnt(0)")
                n = 16*(4-SL)
                if n < 64:
                    lo = (1 << min(n, 32)) - 1
                    hi = (1 << max(n-32, 0)) - 1
                    e(f"s_mov_b32 exec_lo, {hex(lo)}", f"s_mov_b32 exec_hi, {hex(hi)}")
                e(f"buffer_store_dwordx2 v[16:17], v7, {sr(SRD_WS,4)}, s62 offen sc1", "s_mov_b64 exec, -1")

        def make_p(bi):
            e(f"s_lshl_b32 s63, {s(S_H)}, 2", f"s_add_u32 s63, s63, {bi}", "s_lshl_b32 s63, s63, 9", f"s_add_u32 s63, s63, {MLBUF}",
              "v_lshlrev_b32 v6, 4, v1", "s_mov_b32 exec_lo, -1", "s_mov_b32 exec_hi, 0")
            def ld_ml():
                e(f"buffer_load_dwordx4 {vr(MLR,4)}, v6, {sr(SRD_WS,4)}, s63 offen sc1")
            self.poll(ld_ml, [MLR+1, MLR+3], T, T+1, sleep=8)
            e("s_mov_b64 exec, -1", f"v_cmp_gt_u32 vcc, 32, v1", f"v_mov_b32 v6, {hex(NINF)}", "v_mov_b32 v7, 0", "s_nop 0",
              f"v_cndmask_b32 {v(MLR)}, v6, {v(MLR)}, vcc", f"v_cndmask_b32 {v(MLR+2)}, v7, {v(MLR+2)}, vcc",
              f"v_mov_b32 v6, {v(MLR)}")
            self.allreduce("max", 6, 8)
            e(f"v_sub_f32 v7, {v(MLR)}, v6", f"v_mul_f32 v7, {hex(LOG2E)}, v7", "v_exp_f32 v7, v7", "s_nop 0",
              f"v_mul_f32 v7, v7, {v(MLR+2)}")
            self.allreduce("add", 7, 8)
            e("v_rcp_f32 v7, v7", "s_nop 1", "v_readfirstlane_b32 s92, v6", "v_readfirstlane_b32 s93, v7")
            self.c("probabilities of the four static tiles of this batch, in place of their scores")
            e(f"s_add_u32 s62, s95, {256*bi}", "v_lshlrev_b32 v6, 2, v1", "v_add_u32 v6, s62, v6",
              "ds_read_b32 v12, v6", "s_waitcnt lgkmcnt(0)")
            self.unpack(14, 15, 12)
            e("v_subrev_f32 v14, s92, v14", "v_subrev_f32 v15, s92, v15",
              f"v_mul_f32 v14, {hex(LOG2E)}, v14", f"v_mul_f32 v15, {hex(LOG2E)}, v15", "v_exp_f32 v14, v14", "v_exp_f32 v15, v15", "s_nop 0",
              "v_mul_f32 v14, s93, v14", "v_mul_f32 v15, s93, v15", "v_cvt_pk_bf16_f32 v12, v14, v15",
              f"v_mov_b32 v7, {bi+1}", "ds_write_b32 v6, v12",
              "s_mov_b64 exec, 1", f"ds_write_b32 {v(VFL)}, v7 offset:{F_PB}", "s_mov_b64 exec, -1")

        for bi in range(4):
            publish_ml(bi)
            if bi >= 1:
                make_p(bi-1)
        self.c("the last batch's statistics: once this workgroup has finished the first V batch")
        self.lds_wait(9, F_OF, 8, 1, sleep=4)
        make_p(3)
        self.stamp(7)
        if SL < 4:
            self.c("---- pool: claim tiles for the paired streamer and prepare their probabilities")
            e("s_mov_b32 s60, 0", "s_mov_b32 s59, 0", f"s_lshl_b32 s57, {s(S_W)}, 4", f"s_add_u32 s94, s57, {IDQ}", f"s_add_u32 s57, s57, {CLQ}",
              f"s_lshl_b32 s56, {s(S_H)}, 7", f"s_add_u32 s56, s56, {CNTBUF}",
              f"s_lshl_b32 s61, {s(S_H)}, 14", f"s_add_u32 s61, s61, {SBUF}",
              f"s_lshl_b32 s95, {s(S_W)}, 8", f"s_add_u32 s95, s95, {PSLOT}",
              "s_mov_b32 s58, 0", "s_mov_b32 s55, 0", "s_mov_b32 s52, 0", "v_mov_b32 v20, 0")
            lp, lpe = self.new("pp"), self.new("pe")
            self.label(lp)
            e("s_and_b32 s62, s60, 3", "s_lshl_b32 s62, s62, 2", "s_add_u32 s62, s62, s94", "v_mov_b32 v6, s62")
            self.lds_wait_gt(VFL, F_NV, 8, 60, sleep=1)
            lna, lnd_, lw0, lwx, lnl = (self.new(x) for x in ("na", "ndl", "w0", "wx", "nl"))
            e("ds_read_b32 v7, v6", "s_waitcnt lgkmcnt(0)", "v_readfirstlane_b32 s63, v7", "s_nop 0",
              "s_cmp_ge_u32 s63, 128", f"s_cbranch_scc1 {lpe}",
              "s_lshl_b32 s63, s63, 7", "s_add_u32 s63, s63, s61", "v_lshlrev_b32 v6, 3, v1")
            def ld_sc():
                e(f"buffer_load_dwordx2 v[12:13], v6, {sr(SRD_WS,4)}, s63 offen sc1")
            e("s_cmp_ge_u32 s60, 2", f"s_cbranch_scc0 {lnl}", "s_mov_b64 exec, 0xffff")
            ld_sc()
            self.label(lnl)
            e("s_mov_b32 s54, s58", "s_mov_b32 s58, 0", "s_cmp_eq_u32 s55, 0", f"s_cbranch_scc0 {lw0}",
              "s_mov_b64 exec, 1", "s_and_b32 s62, s60, 1", f"s_cbranch_scc1 {lna}",
              "v_mov_b32 v22, 1", f"buffer_atomic_add v22, v20, {sr(SRD_WS,4)}, s56 offen sc0 sc1", f"s_branch {lnd_}")
            self.label(lna)
            e("v_mov_b32 v23, 1", f"buffer_atomic_add v23, v20, {sr(SRD_WS,4)}, s56 offen sc0 sc1")
            self.label(lnd_)
            e("s_mov_b32 s58, 1", "s_waitcnt vmcnt(1)", f"s_branch {lwx}")
            self.label(lw0)
            e("s_waitcnt vmcnt(0)")
            self.label(lwx)
            self.c("deliver the claim issued one item earlier")
            lnc_, lod, lodx, lretry, lchk, lnp = (self.new(x) for x in ("ncl", "od", "odx", "pr", "pc", "np"))
            e("s_mov_b64 exec, 1", "s_cmp_eq_u32 s54, 1", f"s_cbranch_scc0 {lnc_}",
              "s_and_b32 s62, s60, 1", f"s_cbranch_scc1 {lod}",
              "v_readfirstlane_b32 s53, v23", f"s_branch {lodx}")
            self.label(lod)
            e("v_readfirstlane_b32 s53, v22")
            self.label(lodx)
            e("s_and_b32 s62, s59, 3", "s_lshl_b32 s62, s62, 2", "s_add_u32 s62, s62, s57", "v_mov_b32 v7, s62", "v_mov_b32 v8, s53",
              "s_add_u32 s59, s59, 1", "v_mov_b32 v14, s59", "ds_write_b32 v7, v8",
              f"ds_write_b32 {v(VFL)}, v14 offset:{F_NC}",
              f"s_cmp_ge_u32 s53, {32*(4-SL)}", "s_cselect_b32 s55, 1, s55")
            self.label(lnc_)
            e("s_cmp_ge_u32 s60, 2", f"s_cbranch_scc0 {lnp}", "s_mov_b64 exec, 0xffff")
            self.tagcheck([13], T, T+1, lretry)
            e(f"s_branch {lchk}")
            self.label(lretry)
            self.poll(ld_sc, [13], T, T+1)
            self.label(lchk)
            self.unpack(14, 15, 12)
            e("v_subrev_f32 v14, s92, v14", "v_subrev_f32 v15, s92, v15",
              f"v_mul_f32 v14, {hex(LOG2E)}, v14", f"v_mul_f32 v15, {hex(LOG2E)}, v15", "v_exp_f32 v14, v14", "v_exp_f32 v15, v15", "s_nop 0",
              "v_mul_f32 v14, s93, v14", "v_mul_f32 v15, s93, v15", "v_cvt_pk_bf16_f32 v12, v14, v15",
              "s_and_b32 s62, s52, 3", "s_lshl_b32 s62, s62, 6", "s_add_u32 s62, s62, s95",
              "v_lshlrev_b32 v6, 2, v1", "v_add_u32 v6, s62, v6", "s_add_u32 s52, s52, 1", "v_mov_b32 v7, s52",
              "ds_write_b32 v6, v12", "s_mov_b64 exec, 1", f"ds_write_b32 {v(VFL)}, v7 offset:{F_NP}")
            self.label(lnp)
            e("s_mov_b64 exec, -1", "s_add_u32 s60, s60, 1", f"s_branch {lp}")
            self.label(lpe)
            e("s_mov_b64 exec, -1")
        lhi2, ldone = self.new("hi2"), self.new("done")
        e(f"s_cmp_lt_u32 {s(S_J)}, 5", f"s_cbranch_scc0 {lhi2}")
        self.c("---- stage B: sum the 8 partials per batch, o @ wo")
        GB_ = 204
        FQ = 236
        OV, AB = 16, 28
        e("v_and_b32 v6, 15, v1", "v_lshrrev_b32 v7, 2, v6", "v_and_b32 v6, 3, v6",
          "v_lshl_add_u32 v6, v7, 3, v6", "v_lshlrev_b32 v6, 10, v6",
          "v_lshrrev_b32 v7, 4, v1", "v_lshl_add_u32 v4, v7, 4, v6",
          f"s_lshl_b32 s62, {s(S_H)}, 15", f"s_lshl_b32 s63, {s(S_W)}, 8", "s_add_u32 s62, s62, s63",
          f"s_add_u32 s62, s62, {OBUF}", "s_add_u32 s63, s62, 4096")
        e(f"s_lshl_b32 s64, {s(S_W)}, 11", f"s_add_u32 s64, s64, {RED2}", "v_lshlrev_b32 v5, 5, v1", "v_add_u32 v5, s64, v5")
        e("v_lshrrev_b32 v6, 4, v1", f"s_lshl_b32 s64, {s(S_W)}, 2", "v_add_u32 v6, s64, v6",
          "v_bfe_u32 v7, v1, 2, 2", "v_and_b32 v8, 3, v1",
          "v_lshl_add_u32 v9, v7, 4, v6", "v_lshlrev_b32 v9, 5, v9", "v_lshl_add_u32 v9, v8, 3, v9",
          f"s_lshl_b32 s64, {s(S_J)}, 4", "v_add_u32 v6, s64, v6", "v_lshlrev_b32 v6, 13, v6",
          "v_lshl_add_u32 v7, v7, 2, v8", "v_lshl_add_u32 v10, v7, 4, v6",
          f"s_lshl_b32 s64, {s(S_H)}, 8", f"s_add_u32 s64, s64, {ABUF}",
          f"v_mov_b32 {v(FQ+1)}, {s(S_TAG)}", f"v_mov_b32 {v(FQ+3)}, {s(S_TAG)}")
        def ld_o(js):
            def f():
                for ss in range(4):
                    e(f"buffer_load_dwordx4 {vr(GB_+16*js+4*ss,4)}, v4, {sr(SRD_WS,4)}, {'s63' if js else 's62'} offen offset:{64*ss} sc1")
            return f
        grp = [(36, ld_o(0), [GB_+4*k+3 for k in range(4)]), (38, ld_o(1), [GB_+16+4*k+3 for k in range(4)])]
        if "e1pre" in self.x:
            self.c("the partial outputs of batches 0..2 were published long ago")
            self.masked_gather(grp, T, init=(0x0fff0fff, 0x0fff0fff), care=(0x0fff0fff, 0x0fff0fff), sleep=8)
        self.lds_wait(VFL, F_VE, 8, 1, sleep=2)
        self.stamp(8)
        if "e1pre" in self.x:
            self.masked_gather(grp, T, init=(0xf000f000, 0xf000f000), care=(0xf000f000, 0xf000f000))
        else:
            self.masked_gather(grp, T)
        self.stamp(9)
        for ss in range(4):
            for p in range(3):
                e(f"v_add_f32 {v(OV+3*ss+p)}, {v(GB_+4*ss+p)}, {v(GB_+16+4*ss+p)}")
        for perm in ("[1,0,3,2]", "[2,3,0,1]"):
            for k in range(12):
                e(f"v_add_f32_dpp {v(OV+k)}, {v(OV+k)}, {v(OV+k)} quad_perm:{perm} row_mask:0xf bank_mask:0xf")
        for k in range(6):
            e(f"v_cvt_pk_bf16_f32 {v(AB+k)}, {v(OV+2*k)}, {v(OV+2*k+1)}")
        e("s_nop 0")
        DB = GB_
        for sg in range(3):
            for cc in range(8):
                c = "0" if sg == 0 else vr(DB+4*cc, 4)
                e(f"v_mfma_f32_16x16x16_bf16 {vr(DB+4*cc,4)}, {vr(AB+2*sg,2)}, {vr(WB+16*sg+2*cc,2)}, {c}")
        e("s_nop 1")
        for cc in range(8):
            e(f"v_mov_b32 {v(OV+cc)}, {v(DB+4*cc)}")
            if cc < 7:
                pass
        e(f"ds_write_b128 v5, {vr(OV,4)}", f"ds_write_b128 v5, {vr(OV+4,4)} offset:16", "s_waitcnt lgkmcnt(0)", "s_barrier")
        for ww in range(4):
            e(f"ds_read_b64 {vr(OV+2*ww,2)}, v9 offset:{RED2+2048*ww}")
        e("s_waitcnt lgkmcnt(2)", f"v_pk_add_f32 {vr(OV,2)}, {vr(OV,2)}, {vr(OV+2,2)}",
          "s_waitcnt lgkmcnt(0)", f"v_pk_add_f32 {vr(OV+4,2)}, {vr(OV+4,2)}, {vr(OV+6,2)}",
          f"v_add_f32 {v(FQ)}, {v(OV)}, {v(OV+4)}", f"v_add_f32 {v(FQ+2)}, {v(OV+1)}, {v(OV+5)}",
          f"buffer_store_dwordx4 {vr(FQ,4)}, v10, {sr(SRD_WS,4)}, s64 offen sc1")
        self.stamp(10)
        e(f"s_branch {ldone}")
        self.label(lhi2)
        lnd = self.new("nd")
        e("s_cmp_eq_u32 s69, 2", f"s_cbranch_scc0 {lnd}")
        self.c("---- stage D: hh @ w_down, residual, output")
        X1R = 34
        HGA, HGB = 204, 228
        e(f"v_mov_b32 v32, {v(GBR)}")
        e("v_lshrrev_b32 v6, 4, v1", f"v_mul_u32_u24 v6, {320*8}, v6", "v_and_b32 v7, 15, v1", "v_lshl_add_u32 v4, v7, 3, v6",
          "s_lshl_b32 s64, s68, 7", f"s_add_u32 s64, s64, {X1BUF}")
        for i in range(6):
            e(f"v_add_u32 v6, {64*i}, v1", "v_mul_u32_u24 v7, 683, v6", "v_lshrrev_b32 v7, 16, v7",
              "v_mul_u32_u24 v8, 96, v7", "v_sub_u32 v8, v6, v8", f"v_mul_u32_u24 v7, {768*8}, v7",
              f"v_lshl_add_u32 {v(16+i)}, v8, 4, v7")
        e(f"s_mul_i32 s62, {s(S_W)}, {192*8}", f"s_add_u32 s62, s62, {HBUF}")
        e(f"s_mul_i32 s63, {s(S_W)}, 3072", f"s_add_u32 s63, s63, {HST}", "v_lshlrev_b32 v6, 3, v1", "v_add_u32 v5, s63, v6",
          "v_and_b32 v7, 15, v1", "v_lshrrev_b32 v7, 2, v7", "v_mul_u32_u24 v7, 768, v7", "v_lshrrev_b32 v8, 4, v1",
          "v_lshl_add_u32 v7, v8, 4, v7", "v_add_u32 v9, s63, v7",
          f"s_lshl_b32 s63, {s(S_W)}, 9", f"s_add_u32 s63, s63, {RED2+8192}", "v_add_u32 v10, s63, v6",
          "v_mov_b32 v11, v6",
          "v_lshrrev_b32 v6, 4, v1", "v_mul_u32_u24 v6, 1280, v6", "v_and_b32 v7, 15, v1", "v_lshl_add_u32 v12, v7, 2, v6",
          "s_lshl_b32 s65, s68, 6")
        self.srd(SRD_B, S_OUT, 5120)
        self.lds_wait(VFL, F_VE, 8, 1, sleep=2)
        self.stamp(8)
        def ld_x1d():
            e(f"buffer_load_dwordx2 {vr(X1R,2)}, v4, {sr(SRD_WS,4)}, s64 offen sc1")
        self.poll(ld_x1d, [X1R+1], T, T+1, sleep=3)
        self.stamp(11)
        def ld_h(base):
            def f():
                for i in range(6):
                    e(f"buffer_load_dwordx4 {vr(base+4*i,4)}, {v(16+i)}, {sr(SRD_WS,4)}, s62 offen sc1")
            return f
        def use_h(base):
            def f():
                for i in range(6):
                    e(f"v_mov_b32 {v(base+4*i+1)}, {v(base+4*i+2)}", f"ds_write_b64 v5, {vr(base+4*i,2)} offset:{512*i}")
            return f
        self.poll2(ld_h(HGA), [HGA+4*i+k for i in range(6) for k in (1, 3)], use_h(HGA),
                   ld_h(HGB), [HGB+4*i+k for i in range(6) for k in (1, 3)], use_h(HGB), 6, T)
        self.stamp(12)
        AD = 36
        for ks in range(9):
            e(f"ds_read_b128 {vr(AD+4*ks,4)}, v9 offset:{64*ks}")
        DD2 = 24
        for ks in range(12):
            e(f"s_waitcnt lgkmcnt({min(8, 11-ks)})")
            for hi in range(2):
                c = "0" if ks == 0 else vr(DD2+4*hi, 4)
                e(f"v_mfma_f32_16x16x32_bf16 {vr(DD2+4*hi,4)}, {vr(AD+4*ks,4)}, {vr(WD+8*ks+4*hi,4)}, {c}")
            if ks + 9 < 12:
                e(f"ds_read_b128 {vr(AD+4*(ks+9),4)}, v9 offset:{64*(ks+9)}")
        e("s_nop 7", f"v_mov_b32 {v(DD2+1)}, {v(DD2+4)}", f"ds_write_b64 v10, {vr(DD2,2)}", "s_waitcnt lgkmcnt(0)", "s_barrier")
        e(f"s_cmp_eq_u32 {s(S_W)}, 0", f"s_cbranch_scc0 {ldone}")
        R = 12+4
        for ww in range(4):
            e(f"ds_read_b64 {vr(R+2*ww,2)}, v11 offset:{RED2+8192+512*ww}")
        self.unpack(24, 25, 32)
        self.unpack(26, 27, X1R)
        e("s_waitcnt lgkmcnt(2)", f"v_pk_add_f32 {vr(R,2)}, {vr(R,2)}, {vr(R+2,2)}",
          "s_waitcnt lgkmcnt(0)", f"v_pk_add_f32 {vr(R+4,2)}, {vr(R+4,2)}, {vr(R+6,2)}",
          f"v_pk_add_f32 {vr(R,2)}, {vr(R,2)}, {vr(R+4,2)}")
        self.round2(R, R+1, T)
        e(f"v_pk_mul_f32 {vr(R,2)}, {vr(R,2)}, v[24:25]")
        self.round2(R, R+1, T)
        e(f"v_pk_add_f32 {vr(R,2)}, {vr(R,2)}, v[26:27]", f"v_cvt_pk_bf16_f32 {v(R)}, {v(R)}, {v(R+1)}",
          f"buffer_store_dword {v(R)}, v12, {sr(SRD_B,4)}, s65 offen")
        self.c("the workgroup with d == 0 leaves this launch's tag for the next launch")
        e("s_cmp_eq_u32 s68, 0", f"s_cbranch_scc0 {ldone}",
          f"v_mov_b32 v6, {WS_EPOCH}", f"v_mov_b32 v7, {s(S_TAG)}", "s_mov_b64 exec, 1",
          f"buffer_store_dword v7, v6, {sr(SRD_WS,4)}, 0 offen sc1", "s_mov_b64 exec, -1")
        e(f"s_branch {ldone}")
        self.label(lnd)
        lnr2 = self.new("nr2")
        e("s_cmp_eq_u32 s70, 1", f"s_cbranch_scc0 {lnr2}")
        self.c("---- reducer: sum 32 head partials, residual, publish x1")
        RGm = 184
        e("v_lshlrev_b32 v4, 4, v1", "s_lshl_b32 s62, s71, 13", f"s_add_u32 s62, s62, {ABUF}", "s_add_u32 s63, s62, 4096",
          "v_bfe_u32 v6, v1, 2, 2", f"v_mul_u32_u24 v6, {320*8}, v6", "v_and_b32 v7, 3, v1", "v_lshl_add_u32 v5, v7, 3, v6",
          "s_lshl_b32 s64, s71, 5", f"s_add_u32 s64, s64, {X1BUF}", f"v_mov_b32 v21, {s(S_TAG)}")
        self.unpack(24, 25, RG)
        self.unpack(26, 27, RX)
        self.lds_wait(VFL, F_VE, 8, 1, sleep=2)
        self.stamp(8)
        if "rgate" in self.x:
            self.c("gate: one of four heads has published its projection for these columns")
            lg, lgd = self.new("rg"), self.new("rgd")
            e("v_lshlrev_b32 v6, 3, v1", f"v_add_u32 v6, {s(S_H)}, v6", "v_and_b32 v6, 31, v6", "v_lshlrev_b32 v6, 8, v6", "s_mov_b64 exec, 15")
            self.label(lg)
            e(f"buffer_load_dwordx2 v[14:15], v6, {sr(SRD_WS,4)}, s62 offen sc1", "s_waitcnt vmcnt(0)",
              f"v_cmp_eq_u32 vcc, {s(S_TAG)}, v15", "s_nop 1", f"s_cbranch_vccnz {lgd}", "s_sleep 2")
            self.spin_check()
            e(f"s_branch {lg}")
            self.label(lgd)
            e("s_mov_b64 exec, -1")
        def ld_a(k):
            def f():
                for i in (2*k, 2*k+1):
                    e(f"buffer_load_dwordx4 {vr(RGm+4*i,4)}, v4, {sr(SRD_WS,4)}, {'s63' if i>=4 else 's62'} offen offset:{1024*(i&3)} sc1")
            return f
        self.masked_gather([(sp, ld_a(k), [RGm+8*k+1, RGm+8*k+3, RGm+8*k+5, RGm+8*k+7]) for k, sp in enumerate((36, 38, 44, 46))], T)
        self.stamp(9)
        a0, a1 = 16, 17
        e(f"v_add_f32 {v(a0)}, {v(RGm)}, {v(RGm+4)}", f"v_add_f32 {v(a1)}, {v(RGm+2)}, {v(RGm+6)}",
          f"v_add_f32 v18, {v(RGm+8)}, {v(RGm+12)}", f"v_add_f32 v19, {v(RGm+10)}, {v(RGm+14)}")
        for i in (4, 5):
            e(f"v_add_f32 {v(a0)}, {v(a0)}, {v(RGm+4*i)}", f"v_add_f32 {v(a1)}, {v(a1)}, {v(RGm+4*i+2)}",
              f"v_add_f32 v18, v18, {v(RGm+4*(i+2))}", f"v_add_f32 v19, v19, {v(RGm+4*(i+2)+2)}")
        e(f"v_pk_add_f32 {vr(a0,2)}, {vr(a0,2)}, v[18:19]")
        for swp in ("v_permlane16_swap_b32", "v_permlane32_swap_b32"):
            e(f"v_mov_b32 v18, {v(a0)}", f"v_mov_b32 v19, {v(a1)}", "s_nop 1",
              f"{swp} v18, {v(a0)}", f"{swp} v19, {v(a1)}",
              f"v_pk_add_f32 {vr(a0,2)}, v[18:19], {vr(a0,2)}")
        self.round2(a0, a1, T)
        e(f"v_pk_mul_f32 {vr(a0,2)}, {vr(a0,2)}, v[24:25]")
        self.round2(a0, a1, T)
        e(f"v_pk_add_f32 {vr(a0,2)}, {vr(a0,2)}, v[26:27]",
          f"v_cvt_pk_bf16_f32 v20, {v(a0)}, {v(a1)}", "s_mov_b64 exec, 0xffff",
          f"buffer_store_dwordx2 v[20:21], v5, {sr(SRD_WS,4)}, s64 offen sc1", "s_mov_b64 exec, -1")
        self.stamp(10)
        e(f"s_branch {ldone}")
        self.label(lnr2)
        e("s_cmp_eq_u32 s69, 1", f"s_cbranch_scc0 {ldone}")
        self.c("---- stage C: LN2, gate/up, hh")
        XGA, XGB = 184, 194
        TD = 204
        AC, DC = 184, 216
        e(f"s_mul_i32 s62, {s(S_W)}, {320*8}", f"s_add_u32 s62, s62, {X1BUF}", "v_lshlrev_b32 v4, 3, v1",
          f"s_lshl_b32 s63, {s(S_W)}, 10", f"s_add_u32 s63, s63, {RED2}", "v_lshlrev_b32 v10, 4, v1", "v_add_u32 v11, s63, v10",
          "v_lshrrev_b32 v6, 4, v1", f"v_mul_u32_u24 v6, {768*8}, v6", "v_and_b32 v7, 15, v1", "v_lshl_add_u32 v12, v7, 3, v6",
          "s_lshl_b32 s64, s68, 7", f"s_add_u32 s64, s64, {HBUF}", f"v_mov_b32 v33, {s(S_TAG)}")
        self.lds_wait(VFL, F_VE, 8, 1, sleep=2)
        self.stamp(8)
        self.c("gate: wave 0 watches the attention projection finish, then everybody polls x1")
        lg = self.new("gate")
        e(f"s_cmp_eq_u32 {s(S_W)}, 0", f"s_cbranch_scc0 {lg}",
          "s_lshl_b32 s63, s68, 13", f"s_add_u32 s63, s63, {ABUF}", "v_lshlrev_b32 v6, 8, v1",
          "s_mov_b32 exec_lo, -1", "s_mov_b32 exec_hi, 0")
        def ld_gate():
            e(f"buffer_load_dwordx2 v[14:15], v6, {sr(SRD_WS,4)}, s63 offen sc1")
        self.poll(ld_gate, [15], T, T+1, sleep=2)
        e("s_mov_b64 exec, -1")
        self.lds_flag_set(9, F_GT, VONE)
        self.label(lg)
        self.lds_wait(9, F_GT, 8, 1, sleep=1)
        def ld_x1(base):
            def f():
                for i in range(5):
                    e(f"buffer_load_dwordx2 {vr(base+2*i,2)}, v4, {sr(SRD_WS,4)}, s62 offen offset:{512*i} sc1")
            return f
        def use_x1(base):
            def f():
                for i in range(5):
                    self.unpack(XF+2*i, XF+2*i+1, base+2*i)
            return f
        self.poll2(ld_x1(XGA), [XGA+2*i+1 for i in range(5)], use_x1(XGA), ld_x1(XGB), [XGB+2*i+1 for i in range(5)], use_x1(XGB), 5, T)
        self.stamp(11)
        self.ln_fast(None, XF, TD, T)
        self.modulate_fast(XF, CC1, CSH, TD, 26)
        e("s_waitcnt lgkmcnt(0)", "s_barrier")
        self.stamp(12)
        e("s_waitcnt vmcnt(0)")
        for ks in range(5):
            e(f"ds_read_b128 {vr(AC+4*ks,4)}, v5 offset:{64*ks}")
        for ks in range(5):
            e(f"s_waitcnt lgkmcnt({4-ks})")
            for mi, base in enumerate((WG, WU)):
                for hi in range(2):
                    d = DC+8*mi+4*hi
                    c = "0" if ks == 0 else vr(d, 4)
                    e(f"v_mfma_f32_16x16x32_bf16 {vr(d,4)}, {vr(AC+4*ks,4)}, {vr(base+8*ks+4*hi,4)}, {c}")
        e("s_nop 5")
        for k in range(4):
            e(f"v_mov_b32 {v(16+k)}, {v(DC+4*k)}")
        e("ds_write_b128 v11, v[16:19]", "s_waitcnt lgkmcnt(0)", "s_barrier")
        e(f"s_cmp_eq_u32 {s(S_W)}, 0", f"s_cbranch_scc0 {ldone}")
        for ww in range(4):
            e(f"ds_read_b128 {vr(AC+4*ww,4)}, v10 offset:{RED2+1024*ww}")
        e("s_waitcnt lgkmcnt(2)", f"v_pk_add_f32 {vr(AC,2)}, {vr(AC,2)}, {vr(AC+4,2)}", f"v_pk_add_f32 {vr(AC+2,2)}, {vr(AC+2,2)}, {vr(AC+6,2)}",
          "s_waitcnt lgkmcnt(0)", f"v_pk_add_f32 {vr(AC+8,2)}, {vr(AC+8,2)}, {vr(AC+12,2)}", f"v_pk_add_f32 {vr(AC+10,2)}, {vr(AC+10,2)}, {vr(AC+14,2)}",
          f"v_pk_add_f32 {vr(AC,2)}, {vr(AC,2)}, {vr(AC+8,2)}", f"v_pk_add_f32 {vr(AC+2,2)}, {vr(AC+2,2)}, {vr(AC+10,2)}",
          f"v_cvt_pk_bf16_f32 {v(T)}, {v(AC)}, {v(AC+1)}", f"v_cvt_pk_bf16_f32 {v(T+1)}, {v(AC+2)}, {v(AC+3)}")
        self.unpack(AC, AC+1, T)
        self.unpack(AC+2, AC+3, T+1)
        e(f"v_pk_mul_f32 {vr(AC,2)}, {vr(AC,2)}, {vr(AC+2,2)}", f"v_cvt_pk_bf16_f32 v32, {v(AC)}, {v(AC+1)}",
          f"buffer_store_dwordx2 v[32:33], v12, {sr(SRD_WS,4)}, s64 offen sc1")
        self.label(ldone)
        self.stamp(13)
        self.stamps_store()
        e("s_waitcnt vmcnt(0)", "s_endpgm")


def main():
    ap = argparse.ArgumentParser()
    ap.add_argument("-o", default="cdna_kernels/" + NAME + ".s")
    ap.add_argument("-D", type=int, default=3)
    ap.add_argument("--diag", action="store_true")
    ap.add_argument("--spin", type=int, default=400000)
    ap.add_argument("-x", default="")
    ap.add_argument("-N", type=int, default=None)
    ap.add_argument("--sv", type=int, default=16)
    ap.add_argument("--sk", type=int, default=16)
    ap.add_argument("--rot", type=int, default=0)
    ap.add_argument("--stag", default="0,32")
    ap.add_argument("--sl", type=int, default=4)
    a = ap.parse_args()
    g = Gen(D=a.D, diag=a.diag, spin=a.spin, x=[t for t in a.x.split(',') if t], N=a.N, SV=a.sv, SK=a.sk, rot=a.rot, stag=tuple(int(t) for t in a.stag.split(',')), SL=a.sl)
    open(a.o, "w").write(g.build())
    print("wrote", a.o, len(g.L), "lines")


if __name__ == "__main__":
    main()
```

```python
import sys, argparse

NAME = "adaLN_cond__gqa_block_cached__glu_gated_bilinear__decode"
KERNEL = NAME + "_kernel"

WS_EPOCH = 0
MODBUF = 0x1000
QBUF   = 0x10000
X1BUF  = 0xF0000
HBUF   = 0x30000
HBUF2  = 0xFA000
MODR   = 0x300000
CNTBUF = 0x38000
ABUF   = 0x40000
MLBUF  = 0xE0000
OBUF   = 0x100000
SBUF   = 0x200000
STAMPS = 0x400000
WS_SIZE = 0x800000

RING_W = 36864
SC     = 147456
OSL    = SC + 4096
PSLOT  = SC + 7168
MISC   = 155648
AVEC   = MISC
QL     = MISC + 5120
MLH    = MISC + 6656
FLAGS  = MISC + 6784
IDQ    = MISC + 7040
CLQ    = MISC + 7104
LDS_TOTAL = 163840
F_SYNCA, F_SYNCR, F_JD, F_GT, F_QC, F_PA, F_OF, F_AL = 0, 4, 8, 12, 16, 20, 24, 28
F_KD, F_PB, F_OC, F_NV, F_NP, F_NC, F_VE = 32, 48, 64, 80, 96, 112, 128
RED2   = 0
HST    = 16384

S_X, S_K, S_V, S_WQ, S_WO, S_BX, S_G, S_U, S_DN, S_C, S_WM, S_OUT, S_DBG, S_WS = range(4, 32, 2)
S_TAG, S_W, S_H, S_J = 32, 33, 34, 35
SRD_A, SRD_WS, SRD_B, SRD_C = 36, 40, 44, 48
S_SPIN, S_SELLO, S_SELHI = 96, 97, 98
S_STAMP0 = 72

SCALE = 0x3d93cd3a
LOG2E = 0x3fb8aa3b
EPS = 0x3727c5ac
INV640 = 0x3acccccd
NINF = 0xff800000
TAGINC = 0x9E3779B9


def v(i): return f"v{i}"
def vr(i, n): return f"v[{i}:{i+n-1}]"
def s(i): return f"s{i}"
def sr(i, n): return f"s[{i}:{i+n-1}]"


class Gen:
    def __init__(self, D=3, diag=False, spin=400000, x=(), N=None, SV=16, SK=16, rot=0, stag=(0,0), SL=4, N2=None, RM=1, RH=1, align=0):
        self.align = align
        self.RM = RM
        self.RH = RH
        self.SL = SL
        self.N2 = N2
        self.rot = rot
        self.stag = stag
        self.SV = SV
        self.SK = SK
        self.x = set(x)
        self.N = 3*(D-1) if N is None else N
        if N is not None:
            D = (N + 3 + 2)//3
        self.L = []
        self.nl = 0
        self.D = D
        self.diag = diag
        self.spin = spin
        self.nstamp = 0

    def e(self, *lines):
        for l in lines:
            self.L.append("    " + l)

    def c(self, text):
        self.L.append("    ; " + text)

    def label(self, name):
        self.L.append(name + ":")

    def new(self, base):
        self.nl += 1
        return f"L{base}_{self.nl}"

    def srd(self, dst, ptr, size):
        self.e(f"s_mov_b32 {s(dst)}, {s(ptr)}",
               f"s_and_b32 {s(dst+1)}, {s(ptr+1)}, 0xffff",
               f"s_mov_b32 {s(dst+2)}, {size}",
               f"s_mov_b32 {s(dst+3)}, 0x20000")

    def stamp(self, k):
        if not self.diag:
            return
        assert k < 16
        self.e("s_memrealtime s[88:89]", "s_waitcnt lgkmcnt(0)", f"s_mov_b32 {s(S_STAMP0+k)}, s88")

    def stamps_store(self):
        if not self.diag:
            return
        self.e("s_mov_b64 exec, -1")
        self.e("v_mov_b32 v250, 0")
        for k in range(16):
            self.e(f"v_writelane_b32 v250, {s(S_STAMP0+k)}, {k}")
        self.e("v_mbcnt_lo_u32_b32 v251, -1, 0", "v_mbcnt_hi_u32_b32 v251, -1, v251",
               "v_lshlrev_b32 v251, 2, v251",
               "s_lshl_b32 s88, s99, 6", f"s_add_u32 s88, s88, {STAMPS}",
               "s_mov_b64 exec, 0xffff",
               f"buffer_store_dword v250, v251, {sr(SRD_WS,4)}, s88 offen",
               "s_waitcnt vmcnt(0)")

    def tag_load(self):
        self.e(f"s_load_dword {s(S_TAG)}, {sr(S_WS,2)}, {WS_EPOCH}")
        if self.diag:
            self.e("s_memrealtime s[100:101]")

    def tag_ready(self):
        self.e("s_waitcnt lgkmcnt(0)", f"s_add_u32 {s(S_TAG)}, {s(S_TAG)}, {hex(TAGINC)}")
        if self.diag:
            self.e(f"s_mov_b32 {s(S_STAMP0)}, s100")

    def start_sync(self, streamer):
        self.e("s_barrier")

    def spin_check(self):
        self.e(f"s_sub_u32 {s(S_SPIN)}, {s(S_SPIN)}, 1", "s_cbranch_scc1 Labort")

    def allreduce(self, op, x, t):
        for r in (8, 4, 2, 1):
            self.e("s_nop 1", f"v_{op}_f32_dpp {v(x)}, {v(x)}, {v(x)} row_ror:{r} row_mask:0xf bank_mask:0xf")
        self.e(f"v_mov_b32 {v(t)}, {v(x)}", "s_nop 1", f"v_permlane16_swap_b32 {v(t)}, {v(x)}",
               f"v_{op}_f32 {v(x)}, {v(t)}, {v(x)}")
        self.e(f"v_mov_b32 {v(t)}, {v(x)}", "s_nop 1", f"v_permlane32_swap_b32 {v(t)}, {v(x)}",
               f"v_{op}_f32 {v(x)}, {v(t)}, {v(x)}")

    def unpack(self, lo, hi, src):
        self.e(f"v_lshlrev_b32 {v(lo)}, 16, {v(src)}", f"v_and_b32 {v(hi)}, 0xffff0000, {v(src)}")

    def round2(self, a, b, t):
        self.e(f"v_cvt_pk_bf16_f32 {v(t)}, {v(a)}, {v(b)}")
        self.unpack(a, b, t)

    def lds_flag_set(self, vfl, off, vone):
        self.e("s_mov_b64 exec, 1", f"ds_write_b32 {v(vfl)}, {v(vone)} offset:{off}", "s_mov_b64 exec, -1")

    def lds_wait(self, vfl, off, vt, target, sleep=1, body=None):
        l = self.new("w")
        d = self.new("wd")
        self.label(l)
        if body:
            body()
        self.e(f"ds_read_b32 {v(vt)}, {v(vfl)} offset:{off}", "s_waitcnt lgkmcnt(0)",
               f"v_readfirstlane_b32 s90, {v(vt)}", "s_nop 0",
               f"s_cmp_ge_u32 s90, {target}", f"s_cbranch_scc1 {d}")
        if sleep:
            self.e(f"s_sleep {sleep}")
        self.spin_check()
        self.e(f"s_branch {l}")
        self.label(d)

    def lds_wait_gt(self, vfl, off, vt, sreg, sleep=1, body=None):
        l, d = self.new("w"), self.new("wd")
        self.label(l)
        self.e(f"ds_read_b32 {v(vt)}, {v(vfl)} offset:{off}", "s_waitcnt lgkmcnt(0)",
               f"v_readfirstlane_b32 s90, {v(vt)}", "s_nop 0",
               f"s_cmp_gt_u32 s90, {s(sreg)}", f"s_cbranch_scc1 {d}")
        if body:
            body()
        if sleep:
            self.e(f"s_sleep {sleep}")
        self.spin_check()
        self.e(f"s_branch {l}")
        self.label(d)

    def sync4(self, vfl, off, vone, vt):
        self.e("s_mov_b64 exec, 1", f"ds_add_u32 {v(vfl)}, {v(vone)} offset:{off}", "s_mov_b64 exec, -1")
        self.lds_wait(vfl, off, vt, 4, sleep=0)

    def tagcheck(self, regs, acc, tmp, retry):
        first = True
        i = 0
        while i < len(regs):
            if first:
                self.e(f"v_xor_b32 {v(acc)}, {s(S_TAG)}, {v(regs[i])}")
                first = False
                i += 1
            elif i + 1 < len(regs):
                self.e(f"v_xor_b32 {v(tmp)}, {s(S_TAG)}, {v(regs[i])}",
                       f"v_xor_b32 {v(tmp+1)}, {s(S_TAG)}, {v(regs[i+1])}",
                       f"v_or3_b32 {v(acc)}, {v(acc)}, {v(tmp)}, {v(tmp+1)}")
                i += 2
            else:
                self.e(f"v_xor_b32 {v(tmp)}, {s(S_TAG)}, {v(regs[i])}",
                       f"v_or_b32 {v(acc)}, {v(acc)}, {v(tmp)}")
                i += 1
        self.e(f"v_cmp_ne_u32 vcc, 0, {v(acc)}", "s_nop 1", f"s_cbranch_vccnz {retry}")

    def poll(self, loads, tags, acc, tmp, sleep=0):
        l = self.new("poll")
        r = self.new("pollr")
        d = self.new("polld")
        self.e(f"s_branch {l}")
        self.label(r)
        if sleep:
            self.e(f"s_sleep {sleep}")
        self.spin_check()
        self.label(l)
        loads()
        self.e("s_waitcnt vmcnt(0)")
        self.tagcheck(tags, acc, tmp, r)
        self.label(d)

    def build(self):
        e = self.e
        hdr = open("cdna_kernels/" + NAME + ".s.ref").read().split("\n")
        for l in hdr:
            if l.startswith("; Override"):
                break
            self.L.append(l)
        self.L.append(f"; @launch grid=(256,1,1) block=(512,1,1) lds={LDS_TOTAL}")
        self.L.append('.amdgcn_target "amdgcn-amd-amdhsa--gfx950"')
        self.L.append(".text")
        self.L.append(f".globl {KERNEL}")
        self.L.append(".p2align 8")
        self.L.append(f".type {KERNEL},@function")
        self.label(KERNEL)
        e("s_cmp_ge_u32 s2, 256", "s_cbranch_scc1 Lexit")
        e("s_load_dwordx16 s[4:19], s[0:1], 0", "s_load_dwordx8 s[20:27], s[0:1], 64", "s_load_dwordx4 s[28:31], s[0:1], 96")
        e("v_lshrrev_b32 v2, 6, v0", "v_and_b32 v1, 63, v0", "s_nop 0", f"v_readfirstlane_b32 {s(S_W)}, v2")
        e(f"s_lshr_b32 {s(S_H)}, s2, 3", f"s_and_b32 {s(S_J)}, s2, 7")
        if self.rot:
            self.c("the workgroups of one head sit at different dispatch slots of the eight dies")
            e(f"s_mul_i32 s3, {s(S_J)}, {self.rot}", f"s_add_u32 {s(S_H)}, {s(S_H)}, s3", f"s_and_b32 {s(S_H)}, {s(S_H)}, 31")
        e(f"s_mov_b32 {s(S_SPIN)}, {self.spin}", f"s_mov_b32 {s(S_SELLO)}, 0x05040100", f"s_mov_b32 {s(S_SELHI)}, 0x07060302")
        if self.diag:
            e("s_lshl_b32 s99, s2, 3", f"s_add_u32 s99, s99, {s(S_W)}")
            for k in range(16):
                e(f"s_mov_b32 {s(S_STAMP0+k)}, 0")
        e("s_waitcnt lgkmcnt(0)")
        self.srd(SRD_WS, S_WS, WS_SIZE)
        e(f"s_cmp_ge_u32 {s(S_W)}, 4", "s_cbranch_scc1 Lhelper")
        self.streamer()
        self.label("Lhelper")
        self.helper()
        self.label("Labort")
        self.c("spin budget exhausted: leave a mark in d_debug and stop")
        e("s_mov_b64 exec, 1", "v_mov_b32 v2, 0", "v_mov_b32 v3, 0xdead",
          f"global_store_dword v2, v3, {sr(S_DBG,2)}", "s_waitcnt vmcnt(0)")
        self.label("Lexit")
        e("s_endpgm")
        self.L.append('.section .rodata,"a"')
        self.L.append(".p2align 6")
        self.L.append(f".amdhsa_kernel {KERNEL}")
        self.L += ["  .amdhsa_next_free_vgpr 256", "  .amdhsa_next_free_sgpr 102", "  .amdhsa_accum_offset 256",
                   "  .amdhsa_group_segment_fixed_size 0", "  .amdhsa_kernarg_size 112",
                   "  .amdhsa_user_sgpr_count 2", "  .amdhsa_user_sgpr_kernarg_segment_ptr 1",
                   "  .amdhsa_system_sgpr_workgroup_id_x 1", "  .amdhsa_float_denorm_mode_32 3",
                   ".end_amdhsa_kernel"]
        return "\n".join(self.L) + "\n"

    def take_claim(self, dst):
        e = self.e
        e("s_and_b32 s63, s64, 3", "s_lshl_b32 s63, s63, 2", "s_add_u32 s63, s63, s50", "v_mov_b32 v21, s63")
        self.lds_wait_gt(18, F_NC, 22, 64)
        e("ds_read_b32 v13, v21", "s_waitcnt lgkmcnt(0)", f"v_readfirstlane_b32 {s(dst)}, v13", "s_add_u32 s64, s64, 1")

    def issue_unit(self):
        e = self.e
        SL = self.SL
        sI, sSrc, sPos, sBase, sEnd, sStop, sHb = 52, 53, 54, 55, 56, 60, 61
        sNV, sCur = 65, 71
        lmid, lstop, ldone, ldyn, lhave, lnn = (self.new(x) for x in ("im", "is", "id", "iy", "ih", "nn"))
        e(f"s_and_b32 s62, {s(sI)}, 3", f"s_cbranch_scc1 {lmid}")
        e(f"s_lshr_b32 s62, {s(sI)}, 2", f"s_cmp_lt_u32 s62, {28+SL}", f"s_cbranch_scc0 {ldyn}")
        if self.align:
            self.c("the four waves of the workgroup start every align-th item together (adjacent tiles stay close in time)")
            lal = self.new("al")
            e(f"s_and_b32 s63, s62, {self.align-1}", f"s_cbranch_scc1 {lal}", "s_cmp_eq_u32 s62, 0", f"s_cbranch_scc1 {lal}",
              "s_add_u32 s51, s51, 4", "s_sub_u32 s66, s51, 1", "s_mov_b64 exec, 1", f"ds_add_u32 v178, v19 offset:{F_AL}", "s_mov_b64 exec, -1")
            self.lds_wait_gt(178, F_AL, 13, 66, sleep=0)
            e(f"s_lshr_b32 s62, {s(sI)}, 2")
            self.label(lal)
        self.c("static item: batch (m>>2)&3, tile 32*(m&3) + 4j + w")
        e("s_and_b32 s63, s62, 3", "s_lshl_b32 s63, s63, 5", f"s_add_u32 {s(sCur)}, s63, s48",
          "s_bfe_u32 s63, s62, 0x20002", "s_cmp_lt_u32 s62, 16",
          f"s_cselect_b32 {s(SRD_A)}, {s(S_K)}, {s(S_V)}", f"s_cselect_b32 {s(SRD_A+1)}, s92, s93", f"s_branch {lhave}")
        self.label(ldyn)
        if SL == 4:
            e(f"s_branch {lstop}")
        else:
            self.take_claim(sCur)
            e(f"s_cmp_ge_u32 {s(sCur)}, {32*(4-SL)}", f"s_cbranch_scc1 {lstop}", f"s_add_u32 {s(sCur)}, {s(sCur)}, {32*SL}",
              "s_mov_b32 s63, 3", f"s_lshr_b32 s62, {s(sI)}, 2")
        self.label(lhave)
        e("s_mul_i32 s63, s63, 50331648", f"s_add_u32 {s(sSrc)}, {s(sHb)}, s63",
          f"s_add_u32 s63, {s(sCur)}, s49", "s_and_b32 s63, s63, 127", "s_mul_i32 s63, s63, 12288", f"s_add_u32 {s(sSrc)}, {s(sSrc)}, s63")
        if SL < 4:
            self.c("from two items before the pool on, the helper follows the item starts")
            e(f"s_cmp_ge_u32 s62, {26+SL}", f"s_cbranch_scc0 {lmid}",
              f"s_and_b32 s62, {s(sNV)}, 3", "s_lshl_b32 s62, s62, 2", "s_add_u32 s62, s62, s94", "v_mov_b32 v13, s62",
              f"v_mov_b32 v21, {s(sCur)}", f"s_add_u32 {s(sNV)}, {s(sNV)}, 1", f"v_mov_b32 v22, {s(sNV)}",
              "s_mov_b64 exec, 1", "ds_write_b32 v13, v21", f"ds_write_b32 v18, v22 offset:{F_NV}", "s_mov_b64 exec, -1")
        self.label(lmid)
        if self.N2 is not None:
            lw1, lw2 = self.new("n1"), self.new("n2")
            e(f"s_cmp_lt_u32 {s(sI)}, {4*(28+SL)}", f"s_cbranch_scc1 {lw1}", f"s_waitcnt vmcnt({self.N2})", f"s_branch {lw2}")
            self.label(lw1)
            e(f"s_waitcnt vmcnt({self.N})")
            self.label(lw2)
        else:
            e(f"s_waitcnt vmcnt({self.N})")
        e(f"s_mov_b32 m0, {s(sPos)}",
          f"s_add_u32 {s(sPos)}, {s(sPos)}, 3072",
          f"buffer_load_dwordx4 v2, {sr(SRD_A,4)}, {s(sSrc)} offen nt lds",
          f"buffer_load_dwordx4 v3, {sr(SRD_A,4)}, {s(sSrc)} offen offset:1024 nt lds",
          f"buffer_load_dwordx4 v4, {sr(SRD_A,4)}, {s(sSrc)} offen offset:2048 nt lds",
          f"s_cmp_eq_u32 {s(sPos)}, {s(sEnd)}", f"s_cselect_b32 {s(sPos)}, {s(sBase)}, {s(sPos)}",
          f"s_add_u32 {s(sSrc)}, {s(sSrc)}, 3072",
          f"s_add_u32 {s(sI)}, {s(sI)}, 1", f"s_branch {ldone}")
        self.label(lstop)
        e(f"s_mov_b32 {s(sStop)}, 1")
        if SL < 4:
            e(f"s_and_b32 s62, {s(sNV)}, 3", "s_lshl_b32 s62, s62, 2", "s_add_u32 s62, s62, s94", "v_mov_b32 v13, s62",
              "v_mov_b32 v21, 0xffff", f"s_add_u32 {s(sNV)}, {s(sNV)}, 1", f"v_mov_b32 v22, {s(sNV)}",
              "s_mov_b64 exec, 1", "ds_write_b32 v13, v21", f"ds_write_b32 v18, v22 offset:{F_NV}", "s_mov_b64 exec, -1")
        self.label(ldone)

    def streamer(self):
        e = self.e
        D, SL = self.D, self.SL
        sI, sSrc, sPos, sBase, sEnd, sN, sTile, sTgt, sStop, sHb = 52, 53, 54, 55, 56, 57, 58, 59, 60, 61
        sNV, sPN, sCur = 65, 69, 71
        QF, KF, D0, ACC, PF = 24, 48, 96, 104, 152
        X, T = 156, 164
        vSo, vQa, vOw, vOr, vFl = 180, 181, 182, 183, 178
        Q = 184
        M, Lr, E = 192, 193, 196
        self.c("================= streamer wave =================")
        self.tag_load()
        e(f"s_mul_i32 {s(sHb)}, {s(S_H)}, 1572864",
          f"s_and_b32 s92, {s(S_K+1)}, 0xffff", f"s_and_b32 s93, {s(S_V+1)}, 0xffff",
          f"s_lshl_b32 s94, {s(S_W)}, 4", f"s_add_u32 s50, s94, {CLQ}", f"s_add_u32 s94, s94, {IDQ}",
          f"s_lshl_b32 s48, {s(S_J)}, 2", f"s_add_u32 s48, s48, {s(S_W)}",
          f"s_mul_i32 s49, {s(S_H)}, {self.stag[1]}", "s_mov_b32 s64, 0", "s_mov_b32 s51, 0")
        self.srd(SRD_A, S_K, 201326592)
        e(f"s_mov_b32 {s(sSrc)}, 0", f"s_mov_b32 {s(sI)}, 0", f"s_mul_i32 {s(sBase)}, {s(S_W)}, {RING_W}",
          f"s_mov_b32 {s(sPos)}, {s(sBase)}", f"s_add_u32 {s(sEnd)}, {s(sBase)}, {RING_W}",
          f"s_mov_b32 {s(sTile)}, {s(sBase)}", f"s_mov_b32 {s(sStop)}, 0",
          f"s_mov_b32 {s(sNV)}, 0", f"s_mov_b32 {s(sPN)}, 0", f"s_mov_b32 {s(sN)}, 0", f"s_mov_b32 {s(sCur)}, 0")
        self.c("DMA source offsets (xor swizzle of 16-byte chunks inside each row)")
        for i in range(3):
            e(f"v_add_u32 v13, {64*i}, v1", "v_mul_u32_u24 v14, 2731, v13", "v_lshrrev_b32 v14, 16, v14",
              "v_mul_u32_u24 v15, 24, v14", "v_sub_u32 v15, v13, v15", "v_and_b32 v16, 7, v14",
              "v_xor_b32 v15, v15, v16", "v_mul_u32_u24 v14, 384, v14", f"v_lshl_add_u32 {v(2+i)}, v15, 4, v14")
            if i:
                e(f"v_subrev_u32 {v(2+i)}, {1024*i}, {v(2+i)}")
        self.c("K fragment addresses")
        e("v_and_b32 v13, 15, v1", "v_lshrrev_b32 v14, 4, v1", "v_and_b32 v15, 7, v13", "v_mul_u32_u24 v13, 384, v13")
        for x in range(2):
            e(f"v_add_u32 v16, {4*x}, v14", "v_xor_b32 v16, v16, v15", f"v_lshl_add_u32 {v(5+x)}, v16, 4, v13")
        self.c("V fragment addresses")
        e("v_lshrrev_b32 v13, 2, v1", "v_and_b32 v15, 7, v13", "v_mul_u32_u24 v13, 384, v13",
          "v_and_b32 v16, 1, v1", "v_lshl_add_u32 v13, v16, 3, v13", "v_bfe_u32 v16, v1, 1, 1")
        for u in range(4):
            e(f"v_add_u32 v17, {2*u}, v16", "v_xor_b32 v17, v17, v15", f"v_lshl_add_u32 {v(7+u)}, v17, 4, v13")
        self.c("score / probability / q / partial output addresses, flags")
        e("v_lshlrev_b32 v13, 4, v14",
          f"s_lshl_b32 s62, {s(S_W)}, 8", f"s_add_u32 s62, s62, {PSLOT}", "v_add_u32 v12, s62, v13",
          f"s_lshl_b32 s62, {s(S_W)}, 10", f"s_add_u32 s62, s62, {SC}", f"v_add_u32 {v(vSo)}, s62, v13",
          f"v_add_u32 {v(vQa)}, {QL}, v13",
          f"s_mul_i32 s62, {s(S_W)}, 768", f"s_add_u32 s62, s62, {OSL}",
          "v_and_b32 v15, 15, v1", "v_lshlrev_b32 v15, 2, v15", f"v_add_u32 {v(vOw)}, s62, v15",
          "v_mul_u32_u24 v15, 12, v1", f"v_add_u32 {v(vOr)}, {OSL}, v15",
          f"s_lshl_b32 s63, {s(S_W)}, 2", f"s_add_u32 s63, s63, {FLAGS}",
          "v_mov_b32 v18, s63", "v_mov_b32 v19, 1", f"v_mov_b32 {v(vFl)}, {FLAGS}")
        for i in range(48):
            e(f"v_mov_b32 {v(ACC+i)}, 0")
        e("s_barrier")
        self.c("---- fill the ring while the helpers fetch q")
        l0, l0d = self.new("f0"), self.new("f0d")
        self.label(l0)
        e(f"s_cmp_lt_u32 {s(sI)}, {4+D}", f"s_cbranch_scc0 {l0d}")
        self.issue_unit()
        e(f"s_branch {l0}")
        self.label(l0d)
        lf, lfd, lfn = self.new("f"), self.new("fd"), self.new("fn")
        self.label(lf)
        e(f"ds_read_b64 v[14:15], {v(vFl)} offset:{F_QC}", f"ds_read_b32 v16, {v(vFl)} offset:{F_JD}", "s_waitcnt lgkmcnt(0)",
          "v_readfirstlane_b32 s90, v14", "v_readfirstlane_b32 s62, v15", "v_readfirstlane_b32 s63, v16", "s_nop 0",
          "s_lshl_b32 s63, s63, 2", "s_and_b32 s63, s63, s90")
        if "fullring" in self.x:
            e(f"s_cmp_eq_u32 {s(sI)}, 12", "s_cselect_b32 s63, s63, 0")
        e("s_cmp_eq_u32 s63, 4", f"s_cbranch_scc1 {lfd}",
          "s_cmp_eq_u32 s62, 0", f"s_cbranch_scc0 {lfn}",
          f"s_cmp_lt_u32 {s(sI)}, 12", f"s_cbranch_scc0 {lfn}")
        self.issue_unit()
        e(f"s_branch {lf}")
        self.label(lfn)
        e("s_sleep 1")
        self.spin_check()
        e(f"s_branch {lf}")
        self.label(lfd)
        self.tag_ready()
        self.stamp(2)

        def runahead():
            l = self.new("ra")
            e(f"s_lshl_b32 s62, {s(sN)}, 2", "s_add_u32 s62, s62, 12", f"s_cmp_lt_u32 {s(sI)}, s62", f"s_cbranch_scc0 {l}",
              f"s_cmp_eq_u32 {s(sStop)}, 0", f"s_cbranch_scc0 {l}")
            self.issue_unit()
            self.label(l)

        def finalize():
            self.c("last K tile of this batch: hand (max, sum) to the helper")
            e(f"v_mov_b32 {v(T)}, {v(M)}")
            for swp in ("v_permlane16_swap_b32", "v_permlane32_swap_b32"):
                e(f"v_mov_b32 {v(T+1)}, {v(T)}", "s_nop 1", f"{swp} {v(T+1)}, {v(T)}", f"v_max_f32 {v(T)}, {v(T+1)}, {v(T)}")
            e(f"v_sub_f32 {v(T+1)}, {v(M)}, {v(T)}", f"v_mul_f32 {v(T+1)}, {hex(LOG2E)}, {v(T+1)}",
              f"v_exp_f32 {v(T+1)}, {v(T+1)}", "s_nop 0", f"v_mul_f32 {v(Lr)}, {v(Lr)}, {v(T+1)}")
            for swp in ("v_permlane16_swap_b32", "v_permlane32_swap_b32"):
                e(f"v_mov_b32 {v(T+1)}, {v(Lr)}", "s_nop 1", f"{swp} {v(T+1)}, {v(Lr)}", f"v_add_f32 {v(Lr)}, {v(T+1)}, {v(Lr)}")
            e(f"v_mov_b32 {v(E)}, {v(T)}", f"v_mov_b32 {v(E+1)}, {v(Lr)}",
              f"s_lshr_b32 s63, {s(sN)}, 2", f"s_lshl_b32 s62, {s(S_W)}, 2", "s_add_u32 s62, s62, s63", "s_lshl_b32 s62, s62, 3",
              f"s_add_u32 s62, s62, {MLH}", "v_mov_b32 v13, s62", "s_add_u32 s63, s63, 1", "v_mov_b32 v14, s63",
              "s_mov_b64 exec, 1", f"ds_write_b64 v13, {vr(E,2)}", f"ds_write_b32 v18, v14 offset:{F_KD}", "s_mov_b64 exec, -1")

        def flush_acc():
            self.c("partial output of this batch -> LDS; the last of the four waves sums and publishes")
            e("s_sub_u32 s66, s70, 1")
            lsk = self.new("fs")
            e("s_cmp_eq_u32 s70, 0", f"s_cbranch_scc1 {lsk}")
            self.lds_wait_gt(vFl, F_OF, 13, 66, sleep=1)
            self.label(lsk)
            e("s_lshl_b32 s62, s70, 2", f"s_add_u32 s62, s62, {FLAGS+F_OC}", "v_mov_b32 v14, s62", "s_nop 4", "s_mov_b64 exec, 0xffff")
            for t in range(12):
                e(f"ds_write_b32 {v(vOw)}, {v(ACC+4*t)} offset:{64*t}")
            e("s_mov_b64 exec, 1", "ds_add_rtn_u32 v15, v14, v19", "s_mov_b64 exec, -1")
            for i in range(48):
                e(f"v_mov_b32 {v(ACC+i)}, 0")
            lno = self.new("fn")
            e("s_waitcnt lgkmcnt(0)", "v_readfirstlane_b32 s62, v15", "s_nop 0", "s_cmp_eq_u32 s62, 3", f"s_cbranch_scc0 {lno}")
            for ww in range(4):
                for k in range(3):
                    e(f"ds_read_b32 {v(KF+4*ww+k)}, {v(vOr)} offset:{768*ww+4*k}")
            e(f"s_lshl_b32 s63, {s(S_H)}, 2", "s_add_u32 s63, s63, s70", "s_lshl_b32 s63, s63, 3", f"s_add_u32 s63, s63, {s(S_J)}",
              "s_lshl_b32 s63, s63, 10", f"s_add_u32 s63, s63, {OBUF}", "v_lshlrev_b32 v15, 4, v1", f"v_mov_b32 {v(E+3)}, {s(S_TAG)}",
              "s_waitcnt lgkmcnt(6)")
            for k in range(3):
                e(f"v_add_f32 {v(E+k)}, {v(KF+k)}, {v(KF+4+k)}")
            e("s_waitcnt lgkmcnt(0)")
            for k in range(3):
                e(f"v_add_f32 {v(KF+8+k)}, {v(KF+8+k)}, {v(KF+12+k)}")
            for k in range(3):
                e(f"v_add_f32 {v(E+k)}, {v(E+k)}, {v(KF+8+k)}")
            e(f"buffer_store_dwordx4 {vr(E,4)}, v15, {sr(SRD_WS,4)}, s63 offen sc1",
              "s_mov_b64 exec, 1", f"ds_add_u32 {v(vFl)}, v19 offset:{F_OF}", "s_mov_b64 exec, -1")
            self.label(lno)

        self.c("---- item loop")
        lloop, liss, lgo, lhave, lv, lnext, lfin = (self.new(x) for x in ("loop", "iss", "go", "have", "vit", "next", "fin"))
        self.label(lloop)
        e(f"s_lshl_b32 {s(sTgt)}, {s(sN)}, 2", f"s_add_u32 {s(sTgt)}, {s(sTgt)}, {4+D}")
        if self.N2 is not None:
            D2 = (self.N2 + 5)//3
            assert D2 <= 8
            e(f"s_cmp_ge_u32 {s(sN)}, {27+SL}", f"s_cselect_b32 s62, {D2-D}, 0", f"s_add_u32 {s(sTgt)}, {s(sTgt)}, s62")
        self.label(liss)
        e(f"s_cmp_lt_u32 {s(sI)}, {s(sTgt)}", f"s_cbranch_scc0 {lhave}",
          f"s_cmp_eq_u32 {s(sStop)}, 0", f"s_cbranch_scc0 {lgo}")
        self.issue_unit()
        e(f"s_branch {liss}")
        self.label(lgo)
        e(f"s_lshl_b32 s62, {s(sN)}, 2", f"s_cmp_eq_u32 s62, {s(sI)}", f"s_cbranch_scc1 {lfin}", "s_waitcnt vmcnt(0)")
        self.label(lhave)
        if self.diag:
            for kk in range(8):
                ls = self.new("ps")
                e(f"s_cmp_eq_u32 {s(sN)}, {4*kk}", f"s_cbranch_scc0 {ls}")
                self.stamp(8+kk)
                self.label(ls)
        e(f"s_cmp_lt_u32 {s(sN)}, 16", f"s_cbranch_scc0 {lv}")
        self.c("K tile: 32 scores")
        lq = self.new("kq")
        e(f"v_add_u32 v14, {s(sTile)}, v5", f"v_add_u32 v15, {s(sTile)}, v6",
          f"s_and_b32 s62, {s(sN)}, 3", f"s_cbranch_scc1 {lq}")
        e(f"s_lshr_b32 s62, {s(sN)}, 2", "s_mul_i32 s62, s62, 384", f"v_add_u32 v13, s62, {v(vQa)}")
        for ks in range(6):
            e(f"ds_read_b128 {vr(QF+4*ks,4)}, v13 offset:{64*ks}")
        e(f"v_mov_b32 {v(M)}, {hex(NINF)}", f"v_mov_b32 {v(Lr)}, 0", "s_waitcnt lgkmcnt(0)")
        self.label(lq)
        for ks in range(6):
            for blk in range(2):
                e(f"ds_read_b128 {vr(KF+8*ks+4*blk,4)}, {v(14+(ks&1))} offset:{blk*6144+(ks>>1)*128}")
        for ks in range(6):
            e(f"s_waitcnt lgkmcnt({10-2*ks})")
            for blk in range(2):
                c = "0" if ks == 0 else vr(D0+4*blk, 4)
                e(f"v_mfma_f32_16x16x32_bf16 {vr(D0+4*blk,4)}, {vr(KF+8*ks+4*blk,4)}, {vr(QF+4*ks,4)}, {c}")
        e(f"s_lshl_b32 s62, {s(sN)}, 6", f"v_add_u32 v13, s62, {v(vSo)}", "s_nop 6")
        for i in range(0, 8, 2):
            e(f"v_cvt_pk_bf16_f32 {v(T)}, {v(D0+i)}, {v(D0+i+1)}")
            self.unpack(X+i, X+i+1, T)
            e(f"v_mul_f32 {v(X+i)}, {hex(SCALE)}, {v(X+i)}", f"v_mul_f32 {v(X+i+1)}, {hex(SCALE)}, {v(X+i+1)}",
              f"v_cvt_pk_bf16_f32 {v(Q+(i>>1))}, {v(X+i)}, {v(X+i+1)}")
            self.unpack(X+i, X+i+1, Q+(i>>1))
        e("s_mov_b32 exec_lo, 0x00010001", "s_mov_b32 exec_hi, 0x00010001",
          f"ds_write_b128 v13, {vr(Q,4)}", "s_mov_b64 exec, -1")
        e(f"v_max3_f32 {v(T)}, {v(X)}, {v(X+1)}, {v(X+2)}", f"v_max3_f32 {v(T)}, {v(T)}, {v(X+3)}, {v(X+4)}",
          f"v_max3_f32 {v(T)}, {v(T)}, {v(X+5)}, {v(X+6)}", f"v_max3_f32 {v(T)}, {v(T)}, {v(X+7)}, {v(M)}",
          f"v_sub_f32 {v(T+1)}, {v(M)}, {v(T)}", f"v_mul_f32 {v(T+1)}, {hex(LOG2E)}, {v(T+1)}", f"v_mov_b32 {v(M)}, {v(T)}")
        for i in range(8):
            e(f"v_sub_f32 {v(E+i)}, {v(X+i)}, {v(M)}", f"v_mul_f32 {v(E+i)}, {hex(LOG2E)}, {v(E+i)}")
        e(f"v_exp_f32 {v(T+1)}, {v(T+1)}")
        for i in range(8):
            e(f"v_exp_f32 {v(E+i)}, {v(E+i)}")
        e(f"v_mul_f32 {v(Lr)}, {v(Lr)}, {v(T+1)}")
        for i in range(0, 8, 2):
            e(f"v_add_f32 {v(E+i)}, {v(E+i)}, {v(E+i+1)}")
        e(f"v_add_f32 {v(E)}, {v(E)}, {v(E+2)}", f"v_add_f32 {v(E+4)}, {v(E+4)}, {v(E+6)}",
          f"v_add_f32 {v(E)}, {v(E)}, {v(E+4)}", f"v_add_f32 {v(Lr)}, {v(Lr)}, {v(E)}")
        e(f"s_and_b32 s62, {s(sN)}, 3", "s_cmp_eq_u32 s62, 3", f"s_cbranch_scc0 {lnext}")
        finalize()
        if self.diag:
            ls = self.new("st")
            e(f"s_cmp_eq_u32 {s(sN)}, 15", f"s_cbranch_scc0 {ls}")
            self.stamp(3)
            self.label(ls)
        e(f"s_branch {lnext}")
        self.label(lv)
        lpool, lp_ok, lst = self.new("vp"), self.new("vo"), self.new("vs")
        e(f"s_sub_u32 s66, {s(sN)}, 16", f"s_cmp_lt_u32 s66, {12+SL}", f"s_cbranch_scc0 {lpool}")
        e("s_and_b32 s62, s66, 3", f"s_cbranch_scc1 {lst}")
        e("s_lshr_b32 s67, s66, 2")
        self.c("first tile of a batch: its probabilities must be ready; keep the ring filling meanwhile")
        self.lds_wait_gt(18, F_PB, 13, 67, sleep=1, body=runahead)
        if self.diag:
            ls = self.new("st")
            e(f"s_cmp_eq_u32 {s(sN)}, 16", f"s_cbranch_scc0 {ls}")
            self.stamp(5)
            self.label(ls)
        self.label(lst)
        e(f"s_sub_u32 s62, {s(sN)}, 16", "s_lshl_b32 s62, s62, 6", f"v_add_u32 v13, s62, {v(vSo)}", f"s_branch {lp_ok}")
        self.label(lpool)
        self.lds_wait_gt(18, F_NP, 13, sPN, sleep=1, body=runahead)
        e(f"s_and_b32 s62, {s(sPN)}, 3", "s_lshl_b32 s62, s62, 6", "v_add_u32 v13, s62, v12", f"s_add_u32 {s(sPN)}, {s(sPN)}, 1")
        self.label(lp_ok)
        for u in range(4):
            e(f"v_add_u32 {v(14+u)}, {s(sTile)}, {v(7+u)}")
        e(f"ds_read_b128 {vr(PF,4)}, v13")
        def vread(t):
            a, u = t >> 2, t & 3
            e(f"ds_read_b64_tr_b16 {vr(KF+4*t,2)}, {v(14+u)} offset:{a*128}",
              f"ds_read_b64_tr_b16 {vr(KF+4*t+2,2)}, {v(14+u)} offset:{a*128+6144}")
        def vmf(t):
            e(f"v_mfma_f32_16x16x32_bf16 {vr(ACC+4*t,4)}, {vr(PF,4)}, {vr(KF+4*t,4)}, {vr(ACC+4*t,4)}")
        for t in range(6):
            vread(t)
        e("s_waitcnt lgkmcnt(6)")
        for t in range(3): vmf(t)
        for t in range(6, 9): vread(t)
        e("s_waitcnt lgkmcnt(6)")
        for t in range(3, 6): vmf(t)
        for t in range(9, 12): vread(t)
        e("s_waitcnt lgkmcnt(6)")
        for t in range(6, 9): vmf(t)
        e("s_waitcnt lgkmcnt(0)")
        for t in range(9, 12): vmf(t)
        self.c("end of batch 0..2: hand the partial output over")
        e(f"s_sub_u32 s62, {s(sN)}, 16", "s_cmp_lt_u32 s62, 12", f"s_cbranch_scc0 {lnext}",
          "s_and_b32 s63, s62, 3", "s_cmp_eq_u32 s63, 3", f"s_cbranch_scc0 {lnext}", "s_lshr_b32 s70, s62, 2")
        flush_acc()
        self.label(lnext)
        e(f"s_add_u32 {s(sTile)}, {s(sTile)}, 12288", f"s_cmp_eq_u32 {s(sTile)}, {s(sEnd)}",
          f"s_cselect_b32 {s(sTile)}, {s(sBase)}, {s(sTile)}",
          f"s_add_u32 {s(sN)}, {s(sN)}, 1", f"s_branch {lloop}")
        self.label(lfin)
        self.stamp(6)
        if self.diag:
            e(f"s_mov_b32 {s(S_STAMP0+4)}, {s(sN)}", f"s_add_u32 {s(S_STAMP0+4)}, {s(S_STAMP0+4)}, 1000")
        e("s_mov_b32 s70, 3")
        flush_acc()
        self.lds_flag_set(18, F_VE, 19)
        self.stamp(7)
        self.stamps_store()
        e("s_endpgm")

    def gemv64_loads(self, W):
        e = self.e
        e("s_mov_b32 s61, 0")
        for ks in range(5):
            for ee in range(8):
                r = W + 16*(ks+1) + 2*ee
                e(f"buffer_load_dwordx2 {vr(r,2)}, v4, {sr(SRD_A,4)}, s61 offen nt")
                if not (ks == 4 and ee == 7):
                    if ee < 7:
                        e("s_add_u32 s61, s61, s60")
                    else:
                        e("s_mul_i32 s62, s60, 25", "s_add_u32 s61, s61, s62")

    def gemv64_perm(self, W):
        e = self.e
        for ks in range(5):
            raw, fr = W + 16*(ks+1), W + 16*ks
            for f in range(4):
                d, hi = f >> 1, f & 1
                for q in range(4):
                    e(f"v_perm_b32 {v(fr+4*f+q)}, {v(raw+2*(2*q+1)+d)}, {v(raw+2*(2*q)+d)}, {s(S_SELHI if hi else S_SELLO)}")

    def gemv64_finish(self, W, AF, DD, vfl, vone, replicas=False):
        e = self.e
        for ks in range(5):
            e(f"ds_read_b128 {vr(AF+4*ks,4)}, v5 offset:{64*ks}")
        for ks in range(5):
            e(f"s_waitcnt lgkmcnt({4-ks})")
            for f in range(4):
                c = "0" if ks == 0 else vr(DD+4*f, 4)
                e(f"v_mfma_f32_16x16x32_bf16 {vr(DD+4*f,4)}, {vr(AF+4*ks,4)}, {vr(W+16*ks+4*f,4)}, {c}")
        e("s_nop 7", "s_nop 1")
        for f in range(4):
            e(f"v_mov_b32 {v(AF+f)}, {v(DD+4*f)}")
        e(f"s_lshl_b32 s62, {s(S_W)}, 10", f"s_add_u32 s62, s62, {SC}", "v_lshlrev_b32 v6, 4, v1",
          "v_add_u32 v7, s62, v6", f"ds_write_b128 v7, {vr(AF,4)}")
        self.sync4(vfl, F_SYNCR, vone, 8)
        l = self.new("gf")
        e(f"s_cmp_eq_u32 {s(S_W)}, 0", f"s_cbranch_scc0 {l}")
        e(f"v_add_u32 v7, {SC}, v6")
        for ww in range(4):
            e(f"ds_read_b128 {vr(AF+4*ww,4)}, v7 offset:{1024*ww}")
        e("s_waitcnt lgkmcnt(0)")
        for f in range(4):
            e(f"v_add_f32 {v(AF+f)}, {v(AF+f)}, {v(AF+4+f)}", f"v_add_f32 {v(AF+8+f)}, {v(AF+8+f)}, {v(AF+12+f)}")
        for f in range(4):
            e(f"v_add_f32 {v(AF+f)}, {v(AF+f)}, {v(AF+8+f)}")
        e(f"v_cvt_pk_bf16_f32 {v(AF+4)}, {v(AF)}, {v(AF+1)}", f"v_cvt_pk_bf16_f32 {v(AF+6)}, {v(AF+2)}, {v(AF+3)}",
          f"v_mov_b32 {v(AF+5)}, {s(S_TAG)}", f"v_mov_b32 {v(AF+7)}, {s(S_TAG)}",
          "v_lshrrev_b32 v6, 4, v1", "v_mul_lo_u32 v6, v6, s65", "v_and_b32 v7, 15, v1", "v_lshl_add_u32 v6, v7, 4, v6",
          )
        if replicas and self.RM > 1:
            self.c("shift / scale of the first layer norm go to eight copies: many workgroups poll them")
            lr_ = self.new("rp")
            e("s_cmp_lt_u32 s68, 20", f"s_cbranch_scc0 {lr_}",
              "v_lshrrev_b32 v8, 4, v1", "v_mul_u32_u24 v8, 5120, v8", "v_lshl_add_u32 v8, v7, 4, v8",
              "s_lshl_b32 s62, s68, 8", f"s_add_u32 s62, s62, {MODR}")
            for rp in range(self.RM):
                e(f"buffer_store_dwordx4 {vr(AF+4,4)}, v8, {sr(SRD_WS,4)}, s62 offen sc1")
                if rp < self.RM-1:
                    e("s_add_u32 s62, s62, 20480")
            self.label(lr_)
        e(f"buffer_store_dwordx4 {vr(AF+4,4)}, v6, {sr(SRD_WS,4)}, s64 offen sc1")
        self.label(l)

    def ln_stats(self, PX, XF, T):
        e = self.e
        for i in range(5):
            self.unpack(XF+2*i, XF+2*i+1, PX+i)
        e(f"v_add_f32 {v(T)}, {v(XF)}, {v(XF+1)}")
        for i in range(2, 10):
            e(f"v_add_f32 {v(T)}, {v(T)}, {v(XF+i)}")
        self.allreduce("add", T, T+1)
        e(f"v_mul_f32 {v(T)}, {hex(INV640)}, {v(T)}")
        e(f"v_sub_f32 {v(T+2)}, {v(XF)}, {v(T)}", f"v_mul_f32 {v(T+3)}, {v(T+2)}, {v(T+2)}")
        for i in range(1, 10):
            e(f"v_sub_f32 {v(T+2)}, {v(XF+i)}, {v(T)}", f"v_fmac_f32 {v(T+3)}, {v(T+2)}, {v(T+2)}")
        self.allreduce("add", T+3, T+1)
        e(f"v_mul_f32 {v(T+3)}, {hex(INV640)}, {v(T+3)}")
        self.round2(T, T+3, T+1)
        e(f"v_add_f32 {v(T+3)}, {hex(EPS)}, {v(T+3)}")
        e(f"v_cvt_pk_bf16_f32 {v(T+1)}, {v(T+3)}, {v(T+3)}", f"v_lshlrev_b32 {v(T+3)}, 16, {v(T+1)}",
          f"v_sqrt_f32 {v(T+3)}, {v(T+3)}", "s_nop 0",
          f"v_cvt_pk_bf16_f32 {v(T+1)}, {v(T+3)}, {v(T+3)}", f"v_lshlrev_b32 {v(T+3)}, 16, {v(T+1)}",
          f"v_rcp_f32 {v(T+3)}, {v(T+3)}", "s_nop 0")
        for i in range(0, 10, 2):
            e(f"v_sub_f32 {v(XF+i)}, {v(XF+i)}, {v(T)}", f"v_sub_f32 {v(XF+i+1)}, {v(XF+i+1)}, {v(T)}")
            self.round2(XF+i, XF+i+1, T+1)
            e(f"v_mul_f32 {v(XF+i)}, {v(XF+i)}, {v(T+3)}", f"v_mul_f32 {v(XF+i+1)}, {v(XF+i+1)}, {v(T+3)}")
            self.round2(XF+i, XF+i+1, T+1)

    def ln_fast(self, PX, XF, TD, T):
        e = self.e
        if PX is not None:
            for i in range(5):
                self.unpack(XF+2*i, XF+2*i+1, PX[i])
        e("s_nop 0", f"v_readfirstlane_b32 s90, {v(XF)}", "s_nop 0", "s_mov_b32 s91, s90")
        for i in range(5):
            e(f"v_pk_add_f32 {vr(TD+2*i,2)}, {vr(XF+2*i,2)}, s[90:91] neg_lo:[0,1] neg_hi:[0,1]")
        A, B = T, T+2
        e(f"v_pk_mul_f32 {vr(B,2)}, {vr(TD,2)}, {vr(TD,2)}", f"v_pk_add_f32 {vr(A,2)}, {vr(TD,2)}, {vr(TD+2,2)}",
          f"v_pk_fma_f32 {vr(B,2)}, {vr(TD+2,2)}, {vr(TD+2,2)}, {vr(B,2)}")
        for i in range(2, 5):
            e(f"v_pk_add_f32 {vr(A,2)}, {vr(A,2)}, {vr(TD+2*i,2)}",
              f"v_pk_fma_f32 {vr(B,2)}, {vr(TD+2*i,2)}, {vr(TD+2*i,2)}, {vr(B,2)}")
        e(f"v_add_f32 {v(A)}, {v(A)}, {v(A+1)}", f"v_add_f32 {v(B)}, {v(B)}, {v(B+1)}")
        for r in (8, 4, 2, 1):
            e("s_nop 0", f"v_add_f32_dpp {v(A)}, {v(A)}, {v(A)} row_ror:{r} row_mask:0xf bank_mask:0xf",
              f"v_add_f32_dpp {v(B)}, {v(B)}, {v(B)} row_ror:{r} row_mask:0xf bank_mask:0xf")
        for swp in ("v_permlane16_swap_b32", "v_permlane32_swap_b32"):
            e(f"v_mov_b32 {v(A+1)}, {v(A)}", f"v_mov_b32 {v(B+1)}, {v(B)}", "s_nop 1",
              f"{swp} {v(A+1)}, {v(A)}", f"{swp} {v(B+1)}, {v(B)}",
              f"v_add_f32 {v(A)}, {v(A+1)}, {v(A)}", f"v_add_f32 {v(B)}, {v(B+1)}, {v(B)}")
        e(f"v_mul_f32 {v(A)}, {hex(INV640)}, {v(A)}", f"v_mul_f32 {v(B)}, {hex(INV640)}, {v(B)}",
          f"v_fma_f32 {v(B)}, -{v(A)}, {v(A)}, {v(B)}", f"v_add_f32 {v(A)}, s90, {v(A)}", f"v_max_f32 {v(B)}, 0, {v(B)}",
          f"v_cvt_pk_bf16_f32 {v(A+1)}, {v(A)}, {v(B)}")
        self.unpack(A, B, A+1)
        e(f"v_add_f32 {v(B)}, {hex(EPS)}, {v(B)}",
          f"v_cvt_pk_bf16_f32 {v(B+1)}, {v(B)}, {v(B)}", f"v_lshlrev_b32 {v(B)}, 16, {v(B+1)}",
          f"v_sqrt_f32 {v(B)}, {v(B)}")
        for i in range(5):
            e(f"v_pk_add_f32 {vr(XF+2*i,2)}, {vr(XF+2*i,2)}, {vr(A,2)} op_sel_hi:[1,0] neg_lo:[0,1] neg_hi:[0,1]")
        e(f"v_cvt_pk_bf16_f32 {v(B+1)}, {v(B)}, {v(B)}", f"v_lshlrev_b32 {v(B)}, 16, {v(B+1)}", f"v_rcp_f32 {v(B)}, {v(B)}")
        for i in range(5):
            e(f"v_cvt_pk_bf16_f32 {v(TD+i)}, {v(XF+2*i)}, {v(XF+2*i+1)}")
        for i in range(5):
            self.unpack(XF+2*i, XF+2*i+1, TD+i)
        for i in range(5):
            e(f"v_pk_mul_f32 {vr(XF+2*i,2)}, {vr(XF+2*i,2)}, {vr(B,2)} op_sel_hi:[1,0]")
        for i in range(5):
            e(f"v_cvt_pk_bf16_f32 {v(TD+i)}, {v(XF+2*i)}, {v(XF+2*i+1)}")
        for i in range(5):
            self.unpack(XF+2*i, XF+2*i+1, TD+i)

    def modulate_fast(self, XF, C1, SH, TD, vaddr):
        e = self.e
        for i in range(5):
            e(f"v_pk_mul_f32 {vr(XF+2*i,2)}, {vr(XF+2*i,2)}, {vr(C1+2*i,2)}")
        for i in range(5):
            e(f"v_cvt_pk_bf16_f32 {v(TD+i)}, {v(XF+2*i)}, {v(XF+2*i+1)}")
        for i in range(5):
            self.unpack(XF+2*i, XF+2*i+1, TD+i)
        for i in range(5):
            e(f"v_pk_add_f32 {vr(XF+2*i,2)}, {vr(XF+2*i,2)}, {vr(SH+2*i,2)}")
        for i in range(5):
            e(f"v_cvt_pk_bf16_f32 {v(TD+i)}, {v(XF+2*i)}, {v(XF+2*i+1)}", f"ds_write_b32 {v(vaddr)}, {v(TD+i)} offset:{256*i}")

    def bad_lanes(self, tags, sdst, t):
        e = self.e
        assert len(tags) in (2, 4)
        for k, r in enumerate(tags):
            e(f"v_xor_b32 {v(t+k)}, {s(S_TAG)}, {v(r)}")
        if len(tags) == 4:
            e(f"v_or3_b32 {v(t)}, {v(t)}, {v(t+1)}, {v(t+2)}", f"v_or_b32 {v(t)}, {v(t)}, {v(t+3)}")
        else:
            e(f"v_or_b32 {v(t)}, {v(t)}, {v(t+1)}")
        e(f"v_cmp_ne_u32 {sr(sdst,2)}, 0, {v(t)}")

    def masked_gather(self, groups, t, init=None, care=None, sleep=0):
        e = self.e
        l, d = self.new("mg"), self.new("mgd")
        for (sp, _, _) in groups:
            if init is None:
                e(f"s_mov_b64 {sr(sp,2)}, -1")
            else:
                e(f"s_mov_b32 {s(sp)}, {hex(init[0])}", f"s_mov_b32 {s(sp+1)}, {hex(init[1])}")
        self.label(l)
        for (sp, loads, _) in groups:
            k = self.new("mk")
            e(f"s_mov_b64 exec, {sr(sp,2)}", f"s_cbranch_execz {k}")
            loads()
            self.label(k)
        e("s_mov_b64 exec, -1", "s_waitcnt vmcnt(0)")
        for (sp, _, tags) in groups:
            self.bad_lanes(tags, sp, t)
            if care is not None:
                e(f"s_and_b32 {s(sp)}, {s(sp)}, {hex(care[0])}", f"s_and_b32 {s(sp+1)}, {s(sp+1)}, {hex(care[1])}")
        e(f"s_mov_b64 s[90:91], {sr(groups[0][0],2)}")
        for (sp, _, _) in groups[1:]:
            e(f"s_or_b64 s[90:91], s[90:91], {sr(sp,2)}")
        e("s_cmp_eq_u64 s[90:91], 0", f"s_cbranch_scc1 {d}")
        if sleep:
            e(f"s_sleep {sleep}")
        self.spin_check()
        e(f"s_branch {l}")
        self.label(d)

    def poll2(self, loadsA, tagsA, useA, loadsB, tagsB, useB, nloads, t):
        e = self.e
        l, dA, dB, d = self.new("p2"), self.new("p2a"), self.new("p2b"), self.new("p2d")
        loadsA()
        loadsB()
        self.label(l)
        e(f"s_waitcnt vmcnt({nloads})")
        ra, rb = self.new("p2ra"), self.new("p2rb")
        self.tagcheck(tagsA, t, t+1, ra)
        e(f"s_branch {dA}")
        self.label(ra)
        loadsA()
        e(f"s_waitcnt vmcnt({nloads})")
        self.tagcheck(tagsB, t, t+1, rb)
        e(f"s_branch {dB}")
        self.label(rb)
        loadsB()
        self.spin_check()
        e(f"s_branch {l}")
        self.label(dA)
        useA()
        e(f"s_branch {d}")
        self.label(dB)
        useB()
        self.label(d)

    def modulate(self, XF, C1, SH, T, vaddr):
        e = self.e
        for i in range(5):
            a, b = XF+2*i, XF+2*i+1
            e(f"v_mul_f32 {v(a)}, {v(a)}, {v(C1+2*i)}", f"v_mul_f32 {v(b)}, {v(b)}, {v(C1+2*i+1)}")
            self.round2(a, b, T)
            e(f"v_add_f32 {v(a)}, {v(a)}, {v(SH+2*i)}", f"v_add_f32 {v(b)}, {v(b)}, {v(SH+2*i+1)}",
              f"v_cvt_pk_bf16_f32 {v(T)}, {v(a)}, {v(b)}", f"ds_write_b32 {v(vaddr)}, {v(T)} offset:{256*i}")

    def prep_mod_pair(self, G, C1, SH, T):
        e = self.e
        for i in range(5):
            self.unpack(SH+2*i, SH+2*i+1, G+2*i)
        for i in range(5):
            self.unpack(C1+2*i, C1+2*i+1, G+10+2*i)
            e(f"v_add_f32 {v(C1+2*i)}, 1.0, {v(C1+2*i)}", f"v_add_f32 {v(C1+2*i+1)}, 1.0, {v(C1+2*i+1)}")
            self.round2(C1+2*i, C1+2*i+1, T)

    def helper(self):
        e = self.e
        self.c("================= helper wave =================")
        e(f"s_sub_u32 {s(S_W)}, {s(S_W)}, 4")
        VFL, VONE = 2, 3
        W = 100
        PX, XF, T = 10, 16, 28
        G, C1, SH = 32, 56, 68
        AF, DD = 200, 220
        e(f"s_lshl_b32 s62, {s(S_W)}, 2", f"s_add_u32 s62, s62, {FLAGS}", f"v_mov_b32 {v(VFL)}, s62", f"v_mov_b32 {v(VONE)}, 1",
          f"v_mov_b32 v9, {FLAGS}")
        self.c("zero the LDS flags (helper 0)")
        l = self.new("zf")
        e(f"s_cmp_eq_u32 {s(S_W)}, 0", f"s_cbranch_scc0 {l}",
          "v_lshlrev_b32 v6, 2, v1", f"v_add_u32 v6, {FLAGS}, v6", "v_mov_b32 v7, 0",
          "ds_write_b32 v6, v7", "s_waitcnt lgkmcnt(0)")
        self.label(l)
        self.tag_load()
        self.c("work counters of this head: cleared by helper 0 of workgroup j == 0 (drained before q is published)")
        l = self.new("zc")
        e(f"s_cmp_eq_u32 {s(S_W)}, 0", f"s_cbranch_scc0 {l}", f"s_cmp_eq_u32 {s(S_J)}, 0", f"s_cbranch_scc0 {l}",
          f"s_lshl_b32 s62, {s(S_H)}, 7", f"s_add_u32 s62, s62, {CNTBUF}", "v_mov_b32 v6, 0", "v_mov_b32 v7, 0",
          "s_mov_b64 exec, 1", f"buffer_store_dword v7, v6, {sr(SRD_WS,4)}, s62 offen sc1", "s_mov_b64 exec, -1")
        self.label(l)
        self.c("prologue role: s67 = 0 none, 1 Q block, 2 MOD block")
        lq, lm, lr, lm7 = self.new("rq"), self.new("rm"), self.new("rr"), self.new("m7")
        e("s_mov_b32 s67, 0", f"s_cmp_lt_u32 {s(S_J)}, 3", f"s_cbranch_scc1 {lq}",
          f"s_cmp_lt_u32 {s(S_J)}, 5", f"s_cbranch_scc0 {lm7}",
          f"s_lshl_b32 s68, {s(S_H)}, 1", f"s_add_u32 s68, s68, {s(S_J)}", "s_sub_u32 s68, s68, 3",
          f"s_cmp_lt_u32 {s(S_H)}, 28", f"s_cbranch_scc1 {lm}", f"s_branch {lr}")
        self.label(lm7)
        e(f"s_add_u32 s68, {s(S_H)}, 56", f"s_cmp_eq_u32 {s(S_J)}, 7", f"s_cbranch_scc0 {lr}",
          f"s_cmp_lt_u32 {s(S_H)}, 4", f"s_cbranch_scc1 {lm}", f"s_branch {lr}")
        self.label(lq)
        e("s_mov_b32 s67, 1")
        if "qfirst" not in self.x:
            e("s_barrier")
        self.srd(SRD_A, S_WQ, 7864320)
        self.srd(SRD_B, S_X, 5120)
        e("s_mov_b32 s60, 12288", f"s_mul_i32 s68, {s(S_H)}, 3", f"s_add_u32 s68, s68, {s(S_J)}",
          "s_lshl_b32 s64, s68, 8", f"s_add_u32 s64, s64, {QBUF}", f"s_mov_b32 s65, {3072*8}")
        lcommon = self.new("rc")
        e(f"s_branch {lcommon}")
        self.label(lm)
        e("s_mov_b32 s67, 2")
        self.srd(SRD_A, S_WM, 4915200)
        self.srd(SRD_B, S_C, 5120)
        e("s_mov_b32 s60, 7680", "s_lshl_b32 s64, s68, 8", f"s_add_u32 s64, s64, {MODBUF}", f"s_mov_b32 s65, {1920*8}")
        self.label(lcommon)
        self.c("issue vector + weight loads")
        e(f"s_mul_i32 s62, {s(S_W)}, 1280", "v_lshlrev_b32 v6, 2, v1")
        for i in range(5):
            e(f"buffer_load_dword {v(PX+i)}, v6, {sr(SRD_B,4)}, s62 offen offset:{256*i}")
        e(f"s_mul_i32 s62, {s(S_W)}, 160", "v_lshrrev_b32 v4, 4, v1", "v_lshlrev_b32 v4, 3, v4", "v_add_u32 v4, s62, v4",
          "v_mul_lo_u32 v4, v4, s60", "v_and_b32 v7, 15, v1", "v_lshl_add_u32 v4, v7, 3, v4",
          "s_lshl_b32 s62, s68, 7", "v_add_u32 v4, s62, v4")
        self.gemv64_loads(W)
        lnb = self.new("nb")
        if "qfirst" not in self.x:
            e("s_cmp_eq_u32 s67, 1", f"s_cbranch_scc1 {lnb}")
        self.label(lr)
        e("s_barrier")
        self.label(lnb)
        self.tag_ready()
        self.stamp(1)
        self.c("A fragment address for the [4][640] vector: AVEC + b*1280 + w*320 + g*16")
        e("v_and_b32 v6, 15, v1", "v_lshrrev_b32 v6, 2, v6", "v_mul_u32_u24 v6, 1280, v6",
          "v_lshrrev_b32 v7, 4, v1", "v_lshl_add_u32 v6, v7, 4, v6",
          f"s_mul_i32 s62, {s(S_W)}, 320", f"s_add_u32 s62, s62, {AVEC}", "v_add_u32 v5, s62, v6")
        e(f"s_mul_i32 s62, {s(S_W)}, 1280", f"s_add_u32 s62, s62, {AVEC}", "v_lshlrev_b32 v6, 2, v1", "v_add_u32 v8, s62, v6",
          "v_mov_b32 v26, v8")
        lq2, lm2, lpq = self.new("q2"), self.new("m2"), self.new("pq")
        e("s_cmp_eq_u32 s67, 1", f"s_cbranch_scc1 {lq2}", "s_cmp_eq_u32 s67, 2", f"s_cbranch_scc1 {lm2}", f"s_branch {lpq}")
        self.label(lm2)
        e("s_waitcnt vmcnt(40)", "s_mov_b32 s91, 0x207")
        for i in range(5):
            a, b = XF, XF+1
            self.unpack(a, b, PX+i)
            for x in (a, b):
                e(f"v_mul_f32 {v(T)}, {hex(LOG2E ^ 0x80000000)}, {v(x)}", f"v_exp_f32 {v(T)}, {v(T)}", "s_nop 0",
                  f"v_add_f32 {v(T)}, 1.0, {v(T)}", f"v_rcp_f32 {v(T+1)}, {v(T)}", "s_nop 0",
                  f"v_mul_f32 {v(T+2)}, {v(x)}, {v(T+1)}",
                  f"v_fma_f32 {v(T+3)}, -{v(T+2)}, {v(T)}, {v(x)}",
                  f"v_cmp_class_f32 vcc, {v(T+3)}, s91",
                  f"v_fma_f32 {v(x)}, {v(T+3)}, {v(T+1)}, {v(T+2)}", "s_nop 0",
                  f"v_cndmask_b32 {v(x)}, {v(x)}, {v(T+2)}, vcc")
            e(f"v_cvt_pk_bf16_f32 {v(T)}, {v(a)}, {v(b)}", f"ds_write_b32 v26, {v(T)} offset:{256*i}")
        self.sync4(9, F_SYNCA, VONE, 8)
        e("s_waitcnt vmcnt(0)")
        self.stamp(2)
        self.gemv64_perm(W)
        self.gemv64_finish(W, AF, DD, 9, VONE, replicas=True)
        self.stamp(3)
        e(f"s_branch {lpq}")
        self.label(lq2)
        e("s_waitcnt vmcnt(40)")
        self.ln_fast([PX+i for i in range(5)], XF, 80, T)
        e("s_waitcnt vmcnt(0)")
        self.gemv64_perm(W)
        self.stamp(2)
        if self.RM > 1:
            e(f"s_and_b32 s62, s68, {self.RM-1}", "s_mul_i32 s62, s62, 20480", f"s_mul_i32 s63, {s(S_W)}, 5120", "s_add_u32 s62, s62, s63",
              f"s_add_u32 s62, s62, {MODR}", f"s_add_u32 s63, s62, {320*8}", "v_lshlrev_b32 v6, 3, v1")
        else:
            e(f"s_mul_i32 s62, {s(S_W)}, {1920*8}", f"s_add_u32 s62, s62, {MODBUF}", f"s_add_u32 s63, s62, {320*8}",
              "v_lshlrev_b32 v6, 3, v1")
        def ld_mod():
            for i in range(5):
                e(f"buffer_load_dwordx2 {vr(G+2*i,2)}, v6, {sr(SRD_WS,4)}, s62 offen offset:{512*i} sc1")
            for i in range(5):
                e(f"buffer_load_dwordx2 {vr(G+10+2*i,2)}, v6, {sr(SRD_WS,4)}, s63 offen offset:{512*i} sc1")
        if "pause" in self.x:
            self.lds_flag_set(9, F_PA, VONE)
        self.poll(ld_mod, [G+2*i+1 for i in range(10)], T, T+1)
        self.stamp(3)
        self.prep_mod_pair(G, C1, SH, T)
        self.modulate_fast(XF, C1, SH, 80, 26)
        self.sync4(9, F_SYNCA, VONE, 8)
        if "pause" in self.x:
            e("v_mov_b32 v8, 0")
            self.lds_flag_set(9, F_PA, 8)
        self.gemv64_finish(W, AF, DD, 9, VONE)
        self.stamp(4)
        self.label(lpq)
        l = self.new("jd")
        e(f"s_cmp_eq_u32 {s(S_W)}, 0", f"s_cbranch_scc0 {l}", "s_waitcnt lgkmcnt(0)")
        self.lds_flag_set(9, F_JD, VONE)
        self.label(l)
        WB = 36
        def load_wb():
            self.c("stage B weights: wo rows 192h+48w+.., columns 128j..")
            self.srd(SRD_A, S_WO, 7864320)
            e(f"s_mul_i32 s62, {s(S_H)}, 192", f"s_mul_i32 s63, {s(S_W)}, 48", "s_add_u32 s62, s62, s63",
              "v_lshrrev_b32 v6, 4, v1", "v_mul_u32_u24 v6, 3, v6", "v_add_u32 v6, s62, v6", "v_mul_u32_u24 v6, 1280, v6",
              "v_and_b32 v7, 15, v1", "v_lshl_add_u32 v6, v7, 4, v6", f"s_lshl_b32 s62, {s(S_J)}, 8", "v_add_u32 v6, s62, v6")
            for vv in range(12):
                sg, ee = vv >> 2, vv & 3
                e(f"s_mov_b32 s62, {(12*(vv//3)+vv%3)*1280}",
                  f"buffer_load_dwordx4 {vr(WB+16*(sg+1)+4*ee,4)}, v6, {sr(SRD_A,4)}, s62 offen nt")
            e("s_waitcnt vmcnt(0)")
            for sg in range(3):
                raw, fr = WB+16*(sg+1), WB+16*sg
                for cc in range(8):
                    for q in range(2):
                        e(f"v_perm_b32 {v(fr+2*cc+q)}, {v(raw+4*(2*q+1)+(cc>>1))}, {v(raw+4*(2*q)+(cc>>1))}, {s(S_SELHI if cc&1 else S_SELLO)}")
        WD, GBR = 100, 240
        WG, WU = 36, 84
        CC1, CSH = 140, 150
        RX, RG = 180, 182
        lc, ld, lnc, l6, l7, lrd = (self.new(x) for x in ("c", "d", "nc", "j6", "j7", "rd"))
        e("s_mov_b32 s69, 0", "s_mov_b32 s70, 0", f"s_cmp_lt_u32 {s(S_J)}, 5", f"s_cbranch_scc1 {lrd}")
        e(f"s_cmp_eq_u32 {s(S_J)}, 5", f"s_cbranch_scc0 {l6}", f"s_mov_b32 s68, {s(S_H)}", f"s_branch {lc}")
        self.label(l6)
        e(f"s_cmp_eq_u32 {s(S_J)}, 6", f"s_cbranch_scc0 {l7}",
          f"s_add_u32 s68, {s(S_H)}, 32", f"s_cmp_lt_u32 {s(S_H)}, 16", f"s_cbranch_scc1 {lc}",
          f"s_sub_u32 s68, {s(S_H)}, 16", f"s_branch {ld}")
        self.label(l7)
        e(f"s_sub_u32 s68, {s(S_H)}, 12", f"s_cmp_ge_u32 {s(S_H)}, 28", f"s_cbranch_scc1 {ld}", f"s_branch {lnc}")
        self.label(lc)
        e("s_mov_b32 s69, 1", f"s_branch {lrd}")
        self.label(ld)
        e("s_mov_b32 s69, 2", f"s_branch {lrd}")
        self.label(lnc)
        e(f"s_mul_i32 s71, {s(S_H)}, 3", f"s_add_u32 s71, s71, {s(S_W)}",
          "s_cmp_lt_u32 s71, 80", f"s_cbranch_scc0 {lrd}", f"s_cmp_lt_u32 {s(S_W)}, 3", f"s_cbranch_scc0 {lrd}",
          "s_mov_b32 s70, 1")
        self.label(lrd)

        def load_heavy(part):
            lnc2, lnd2 = self.new("hc"), self.new("hd")
            e("s_cmp_eq_u32 s69, 1", f"s_cbranch_scc0 {lnc2}")
            self.c("gate / up weights: rows 160w.., columns 32c..")
            base = (WG, WU)[part]
            self.srd(SRD_A, (S_G, S_U)[part], 1966080)
            e(f"s_mul_i32 s62, {s(S_W)}, 160", "v_lshrrev_b32 v6, 4, v1", "v_lshlrev_b32 v6, 3, v6", "v_add_u32 v6, s62, v6",
              "v_mul_u32_u24 v6, 3072, v6", "v_and_b32 v7, 15, v1", "v_lshl_add_u32 v6, v7, 2, v6",
              "s_lshl_b32 s62, s68, 6", "v_add_u32 v6, s62, v6")
            for ks in range(5):
                for ee in range(8):
                    e(f"s_mov_b32 s62, {(32*ks+ee)*3072}",
                      f"buffer_load_dword {v(base+8*(ks+1)+ee)}, v6, {sr(SRD_A,4)}, s62 offen nt")
            e("s_waitcnt vmcnt(0)")
            for ks in range(5):
                raw, fr = base+8*(ks+1), base+8*ks
                for hi in range(2):
                    for q in range(4):
                        e(f"v_perm_b32 {v(fr+4*hi+q)}, {v(raw+2*q+1)}, {v(raw+2*q)}, {s(S_SELHI if hi else S_SELLO)}")
            self.label(lnc2)
            e("s_cmp_eq_u32 s69, 2", f"s_cbranch_scc0 {lnd2}")
            self.c("down weights: rows 384w.., columns 32d..")
            self.srd(SRD_A, S_DN, 1966080)
            e(f"s_mul_i32 s62, {s(S_W)}, 384", "v_lshrrev_b32 v6, 4, v1", "v_lshlrev_b32 v6, 3, v6", "v_add_u32 v6, s62, v6",
              "v_mul_u32_u24 v6, 1280, v6", "v_and_b32 v7, 15, v1", "v_lshl_add_u32 v6, v7, 2, v6",
              "s_lshl_b32 s62, s68, 6", "v_add_u32 v6, s62, v6")
            half = part
            for ks in range(6*half, 6*half+6):
                for ee in range(8):
                    e(f"s_mov_b32 s62, {(32*ks+ee)*1280}",
                      f"buffer_load_dword {v(WD+8*(ks+1)+ee)}, v6, {sr(SRD_A,4)}, s62 offen nt")
            e("s_waitcnt vmcnt(0)")
            for ks in range(6*half, 6*half+6):
                raw, fr = WD+8*(ks+1), WD+8*ks
                for hi in range(2):
                    for q in range(4):
                        e(f"v_perm_b32 {v(fr+4*hi+q)}, {v(raw+2*q+1)}, {v(raw+2*q)}, {s(S_SELHI if hi else S_SELLO)}")
            self.label(lnd2)

        self.c("slices that are not needed before the tail: loaded while q is still on its way where the helper is free")
        lnb2 = self.new("nb2")
        e(f"s_cmp_ge_u32 {s(S_J)}, 3", f"s_cbranch_scc0 {lnb2}", f"s_cmp_lt_u32 {s(S_J)}, 5", f"s_cbranch_scc0 {lnb2}")
        load_wb()
        self.label(lnb2)
        if "heavylate" not in self.x:
            load_heavy(0)
            if "heavyall" in self.x:
                load_heavy(1)
        self.c("q of batch w of this head -> LDS")
        e(f"s_mul_i32 s62, {s(S_W)}, {3072*8}", f"s_mul_i32 s63, {s(S_H)}, {96*8}", "s_add_u32 s62, s62, s63",
          f"s_add_u32 s62, s62, {QBUF}", "v_lshlrev_b32 v6, 4, v1",
          "s_mov_b32 exec_lo, -1", "s_mov_b32 exec_hi, 0xffff")
        def ld_q():
            e(f"buffer_load_dwordx4 {vr(G,4)}, v6, {sr(SRD_WS,4)}, s62 offen sc1")
        self.poll(ld_q, [G+1, G+3], T, T+1, sleep=2)
        e(f"v_mov_b32 {v(G+1)}, {v(G+2)}", f"s_mul_i32 s62, {s(S_W)}, 384", f"s_add_u32 s62, s62, {QL}",
          "v_lshlrev_b32 v6, 3, v1", "v_add_u32 v6, s62, v6", f"ds_write_b64 v6, {vr(G,2)}",
          "s_mov_b64 exec, 1", f"ds_add_u32 v9, {v(VONE)} offset:{F_QC}", "s_mov_b64 exec, -1")
        self.stamp(5)
        lbd = self.new("bd")
        e(f"s_cmp_lt_u32 {s(S_J)}, 3", f"s_cbranch_scc0 {lbd}")
        load_wb()
        self.label(lbd)
        if "heavylate" in self.x:
            load_heavy(0)
        if "heavyall" not in self.x or "heavylate" in self.x:
            load_heavy(1)
        lmid, lpc, lpd = self.new("mid"), self.new("pc"), self.new("pd")
        e("s_cmp_eq_u32 s69, 1", f"s_cbranch_scc0 {lpc}")
        self.c("sb (segment 3), cb (segment 4) for batch w")
        G2 = 160
        e(f"s_mul_i32 s62, {s(S_W)}, {1920*8}", f"s_add_u32 s62, s62, {MODBUF+3*320*8}", f"s_add_u32 s63, s62, {320*8}",
          "v_lshlrev_b32 v6, 3, v1")
        def ld_mod2():
            for i in range(5):
                e(f"buffer_load_dwordx2 {vr(G2+2*i,2)}, v6, {sr(SRD_WS,4)}, s62 offen offset:{512*i} sc1")
            for i in range(5):
                e(f"buffer_load_dwordx2 {vr(G2+10+2*i,2)}, v6, {sr(SRD_WS,4)}, s63 offen offset:{512*i} sc1")
        self.poll(ld_mod2, [G2+2*i+1 for i in range(10)], T, T+1, sleep=8)
        self.prep_mod_pair(G2, CC1, CSH, T)
        e(f"s_branch {lmid}")
        self.label(lpc)
        e("s_cmp_eq_u32 s69, 2", f"s_cbranch_scc0 {lpd}")
        self.c("gb pairs for (b = lane>>4, pair 16d + (lane&15))")
        e("v_lshrrev_b32 v6, 4, v1", f"v_mul_u32_u24 v6, {1920*8}, v6", "v_and_b32 v7, 15, v1", "v_lshl_add_u32 v6, v7, 3, v6",
          "s_lshl_b32 s62, s68, 7", f"s_add_u32 s62, s62, {MODBUF+5*320*8}")
        def ld_gb():
            e(f"buffer_load_dwordx2 {vr(GBR,2)}, v6, {sr(SRD_WS,4)}, s62 offen sc1")
        self.poll(ld_gb, [GBR+1], T, T+1, sleep=8)
        e(f"s_branch {lmid}")
        self.label(lpd)
        e("s_cmp_eq_u32 s70, 1", f"s_cbranch_scc0 {lmid}")
        self.srd(SRD_B, S_X, 5120)
        e("v_and_b32 v7, 15, v1", "s_and_b32 s63, s71, 3", "s_lshr_b32 s64, s71, 2",
          "s_mul_i32 s62, s63, 1280", "s_lshl_b32 s65, s64, 6", "s_add_u32 s62, s62, s65", "v_lshlrev_b32 v8, 2, v7",
          f"buffer_load_dword {v(RX)}, v8, {sr(SRD_B,4)}, s62 offen",
          "v_lshlrev_b32 v8, 3, v7", f"s_mul_i32 s62, s63, {1920*8}", "s_lshl_b32 s65, s64, 7", "s_add_u32 s62, s62, s65",
          f"s_add_u32 s62, s62, {MODBUF+2*320*8}")
        def ld_ga():
            e(f"buffer_load_dwordx2 {vr(RG,2)}, v8, {sr(SRD_WS,4)}, s62 offen sc1")
        self.poll(ld_ga, [RG+1], T, T+1, sleep=8)
        self.label(lmid)
        self.stamp(6)
        SL = self.SL
        MLR = 12
        e(f"s_lshl_b32 s61, {s(S_J)}, 2", f"s_add_u32 s61, s61, {s(S_W)}",
          f"s_lshl_b32 s95, {s(S_W)}, 10", f"s_add_u32 s95, s95, {SC}")

        def publish_ml(bi):
            e(f"s_mov_b32 s60, {bi}")
            self.lds_wait_gt(VFL, F_KD, 8, 60, sleep=4)
            e(f"s_lshl_b32 s62, {s(S_W)}, 5", f"s_add_u32 s62, s62, {MLH+8*bi}",
              "v_mov_b32 v6, s62", f"ds_read_b64 {vr(MLR,2)}, v6",
              f"s_lshl_b32 s63, {s(S_H)}, 2", f"s_add_u32 s63, s63, {bi}", "s_lshl_b32 s63, s63, 9", f"s_add_u32 s63, s63, {MLBUF}",
              "s_lshl_b32 s62, s61, 4", "s_add_u32 s62, s62, s63",
              "s_waitcnt lgkmcnt(0)",
              f"v_mov_b32 {v(MLR+2)}, {v(MLR+1)}", f"v_mov_b32 {v(MLR+1)}, {s(S_TAG)}", f"v_mov_b32 {v(MLR+3)}, {s(S_TAG)}",
              "v_mov_b32 v6, 0", "s_mov_b64 exec, 1",
              f"buffer_store_dwordx4 {vr(MLR,4)}, v6, {sr(SRD_WS,4)}, s62 offen sc1", "s_mov_b64 exec, -1")
            if bi == 3 and SL < 4:
                self.c("last batch: publish the scores of this wave's pool tiles")
                e(f"s_add_u32 s62, s95, {(12+SL)*64}", "v_lshlrev_b32 v6, 2, v1", "v_add_u32 v6, s62, v6",
                  "ds_read_b32 v16, v6", f"v_mov_b32 v17, {s(S_TAG)}",
                  "v_lshrrev_b32 v7, 4, v1", "v_lshlrev_b32 v7, 12, v7", "v_and_b32 v8, 15, v1", "v_lshl_add_u32 v7, v8, 3, v7",
                  f"s_lshl_b32 s62, {s(S_H)}, 7", f"s_add_u32 s62, s62, {32*SL}", "s_add_u32 s62, s62, s61", "s_lshl_b32 s62, s62, 7",
                  f"s_add_u32 s62, s62, {SBUF}", "s_waitcnt lgkmcnt(0)")
                n = 16*(4-SL)
                if n < 64:
                    lo = (1 << min(n, 32)) - 1
                    hi = (1 << max(n-32, 0)) - 1
                    e(f"s_mov_b32 exec_lo, {hex(lo)}", f"s_mov_b32 exec_hi, {hex(hi)}")
                e(f"buffer_store_dwordx2 v[16:17], v7, {sr(SRD_WS,4)}, s62 offen sc1", "s_mov_b64 exec, -1")

        def make_p(bi):
            e(f"s_lshl_b32 s63, {s(S_H)}, 2", f"s_add_u32 s63, s63, {bi}", "s_lshl_b32 s63, s63, 9", f"s_add_u32 s63, s63, {MLBUF}",
              "v_lshlrev_b32 v6, 4, v1", "s_mov_b32 exec_lo, -1", "s_mov_b32 exec_hi, 0")
            def ld_ml():
                e(f"buffer_load_dwordx4 {vr(MLR,4)}, v6, {sr(SRD_WS,4)}, s63 offen sc1")
            self.poll(ld_ml, [MLR+1, MLR+3], T, T+1, sleep=8)
            e("s_mov_b64 exec, -1", f"v_cmp_gt_u32 vcc, 32, v1", f"v_mov_b32 v6, {hex(NINF)}", "v_mov_b32 v7, 0", "s_nop 0",
              f"v_cndmask_b32 {v(MLR)}, v6, {v(MLR)}, vcc", f"v_cndmask_b32 {v(MLR+2)}, v7, {v(MLR+2)}, vcc",
              f"v_mov_b32 v6, {v(MLR)}")
            self.allreduce("max", 6, 8)
            e(f"v_sub_f32 v7, {v(MLR)}, v6", f"v_mul_f32 v7, {hex(LOG2E)}, v7", "v_exp_f32 v7, v7", "s_nop 0",
              f"v_mul_f32 v7, v7, {v(MLR+2)}")
            self.allreduce("add", 7, 8)
            e("v_rcp_f32 v7, v7", "s_nop 1", "v_readfirstlane_b32 s92, v6", "v_readfirstlane_b32 s93, v7")
            self.c("probabilities of the four static tiles of this batch, in place of their scores")
            e(f"s_add_u32 s62, s95, {256*bi}", "v_lshlrev_b32 v6, 2, v1", "v_add_u32 v6, s62, v6",
              "ds_read_b32 v12, v6", "s_waitcnt lgkmcnt(0)")
            self.unpack(14, 15, 12)
            e("v_subrev_f32 v14, s92, v14", "v_subrev_f32 v15, s92, v15",
              f"v_mul_f32 v14, {hex(LOG2E)}, v14", f"v_mul_f32 v15, {hex(LOG2E)}, v15", "v_exp_f32 v14, v14", "v_exp_f32 v15, v15", "s_nop 0",
              "v_mul_f32 v14, s93, v14", "v_mul_f32 v15, s93, v15", "v_cvt_pk_bf16_f32 v12, v14, v15",
              f"v_mov_b32 v7, {bi+1}", "ds_write_b32 v6, v12",
              "s_mov_b64 exec, 1", f"ds_write_b32 {v(VFL)}, v7 offset:{F_PB}", "s_mov_b64 exec, -1")

        for bi in range(4):
            publish_ml(bi)
            if bi >= 1:
                make_p(bi-1)
        self.c("the last batch's statistics: once this workgroup has finished the first V batch")
        self.lds_wait(9, F_OF, 8, 1, sleep=4)
        make_p(3)
        self.stamp(7)
        if SL < 4:
            self.c("---- pool: claim tiles for the paired streamer and prepare their probabilities")
            e("s_mov_b32 s60, 0", "s_mov_b32 s59, 0", f"s_lshl_b32 s57, {s(S_W)}, 4", f"s_add_u32 s94, s57, {IDQ}", f"s_add_u32 s57, s57, {CLQ}",
              f"s_lshl_b32 s56, {s(S_H)}, 7", f"s_add_u32 s56, s56, {CNTBUF}",
              f"s_lshl_b32 s61, {s(S_H)}, 14", f"s_add_u32 s61, s61, {SBUF}",
              f"s_lshl_b32 s95, {s(S_W)}, 8", f"s_add_u32 s95, s95, {PSLOT}",
              "s_mov_b32 s58, 0", "s_mov_b32 s55, 0", "s_mov_b32 s52, 0", "v_mov_b32 v20, 0")
            lp, lpe = self.new("pp"), self.new("pe")
            self.label(lp)
            e("s_and_b32 s62, s60, 3", "s_lshl_b32 s62, s62, 2", "s_add_u32 s62, s62, s94", "v_mov_b32 v6, s62")
            self.lds_wait_gt(VFL, F_NV, 8, 60, sleep=1)
            lna, lnd_, lw0, lwx, lnl = (self.new(x) for x in ("na", "ndl", "w0", "wx", "nl"))
            e("ds_read_b32 v7, v6", "s_waitcnt lgkmcnt(0)", "v_readfirstlane_b32 s63, v7", "s_nop 0",
              "s_cmp_ge_u32 s63, 128", f"s_cbranch_scc1 {lpe}",
              "s_lshl_b32 s63, s63, 7", "s_add_u32 s63, s63, s61", "v_lshlrev_b32 v6, 3, v1")
            def ld_sc():
                e(f"buffer_load_dwordx2 v[12:13], v6, {sr(SRD_WS,4)}, s63 offen sc1")
            e("s_cmp_ge_u32 s60, 2", f"s_cbranch_scc0 {lnl}", "s_mov_b64 exec, 0xffff")
            ld_sc()
            self.label(lnl)
            e("s_mov_b32 s54, s58", "s_mov_b32 s58, 0", "s_cmp_eq_u32 s55, 0", f"s_cbranch_scc0 {lw0}",
              "s_mov_b64 exec, 1", "s_and_b32 s62, s60, 1", f"s_cbranch_scc1 {lna}",
              "v_mov_b32 v22, 1", f"buffer_atomic_add v22, v20, {sr(SRD_WS,4)}, s56 offen sc0 sc1", f"s_branch {lnd_}")
            self.label(lna)
            e("v_mov_b32 v23, 1", f"buffer_atomic_add v23, v20, {sr(SRD_WS,4)}, s56 offen sc0 sc1")
            self.label(lnd_)
            e("s_mov_b32 s58, 1", "s_waitcnt vmcnt(1)", f"s_branch {lwx}")
            self.label(lw0)
            e("s_waitcnt vmcnt(0)")
            self.label(lwx)
            self.c("deliver the claim issued one item earlier")
            lnc_, lod, lodx, lretry, lchk, lnp = (self.new(x) for x in ("ncl", "od", "odx", "pr", "pc", "np"))
            e("s_mov_b64 exec, 1", "s_cmp_eq_u32 s54, 1", f"s_cbranch_scc0 {lnc_}",
              "s_and_b32 s62, s60, 1", f"s_cbranch_scc1 {lod}",
              "v_readfirstlane_b32 s53, v23", f"s_branch {lodx}")
            self.label(lod)
            e("v_readfirstlane_b32 s53, v22")
            self.label(lodx)
            e("s_and_b32 s62, s59, 3", "s_lshl_b32 s62, s62, 2", "s_add_u32 s62, s62, s57", "v_mov_b32 v7, s62", "v_mov_b32 v8, s53",
              "s_add_u32 s59, s59, 1", "v_mov_b32 v14, s59", "ds_write_b32 v7, v8",
              f"ds_write_b32 {v(VFL)}, v14 offset:{F_NC}",
              f"s_cmp_ge_u32 s53, {32*(4-SL)}", "s_cselect_b32 s55, 1, s55")
            self.label(lnc_)
            e("s_cmp_ge_u32 s60, 2", f"s_cbranch_scc0 {lnp}", "s_mov_b64 exec, 0xffff")
            self.tagcheck([13], T, T+1, lretry)
            e(f"s_branch {lchk}")
            self.label(lretry)
            self.poll(ld_sc, [13], T, T+1)
            self.label(lchk)
            self.unpack(14, 15, 12)
            e("v_subrev_f32 v14, s92, v14", "v_subrev_f32 v15, s92, v15",
              f"v_mul_f32 v14, {hex(LOG2E)}, v14", f"v_mul_f32 v15, {hex(LOG2E)}, v15", "v_exp_f32 v14, v14", "v_exp_f32 v15, v15", "s_nop 0",
              "v_mul_f32 v14, s93, v14", "v_mul_f32 v15, s93, v15", "v_cvt_pk_bf16_f32 v12, v14, v15",
              "s_and_b32 s62, s52, 3", "s_lshl_b32 s62, s62, 6", "s_add_u32 s62, s62, s95",
              "v_lshlrev_b32 v6, 2, v1", "v_add_u32 v6, s62, v6", "s_add_u32 s52, s52, 1", "v_mov_b32 v7, s52",
              "ds_write_b32 v6, v12", "s_mov_b64 exec, 1", f"ds_write_b32 {v(VFL)}, v7 offset:{F_NP}")
            self.label(lnp)
            e("s_mov_b64 exec, -1", "s_add_u32 s60, s60, 1", f"s_branch {lp}")
            self.label(lpe)
            e("s_mov_b64 exec, -1")
        lhi2, ldone = self.new("hi2"), self.new("done")
        e(f"s_cmp_lt_u32 {s(S_J)}, 5", f"s_cbranch_scc0 {lhi2}")
        self.c("---- stage B: sum the 8 partials per batch, o @ wo")
        GB_ = 204
        FQ = 236
        OV, AB = 16, 28
        e("v_and_b32 v6, 15, v1", "v_lshrrev_b32 v7, 2, v6", "v_and_b32 v6, 3, v6",
          "v_lshl_add_u32 v6, v7, 3, v6", "v_lshlrev_b32 v6, 10, v6",
          "v_lshrrev_b32 v7, 4, v1", "v_lshl_add_u32 v4, v7, 4, v6",
          f"s_lshl_b32 s62, {s(S_H)}, 15", f"s_lshl_b32 s63, {s(S_W)}, 8", "s_add_u32 s62, s62, s63",
          f"s_add_u32 s62, s62, {OBUF}", "s_add_u32 s63, s62, 4096")
        e(f"s_lshl_b32 s64, {s(S_W)}, 11", f"s_add_u32 s64, s64, {RED2}", "v_lshlrev_b32 v5, 5, v1", "v_add_u32 v5, s64, v5")
        e("v_lshrrev_b32 v6, 4, v1", f"s_lshl_b32 s64, {s(S_W)}, 2", "v_add_u32 v6, s64, v6",
          "v_bfe_u32 v7, v1, 2, 2", "v_and_b32 v8, 3, v1",
          "v_lshl_add_u32 v9, v7, 4, v6", "v_lshlrev_b32 v9, 5, v9", "v_lshl_add_u32 v9, v8, 3, v9",
          "v_lshlrev_b32 v6, 13, v7", "v_lshrrev_b32 v7, 4, v1", "v_lshl_add_u32 v7, v7, 2, v8",
          "v_lshl_add_u32 v10, v7, 4, v6",
          f"s_lshl_b32 s64, {s(S_J)}, 2", f"s_add_u32 s64, s64, {s(S_W)}", "s_lshl_b32 s64, s64, 15",
          f"s_lshl_b32 s65, {s(S_H)}, 8", "s_add_u32 s64, s64, s65", f"s_add_u32 s64, s64, {ABUF}",
          f"v_mov_b32 {v(FQ+1)}, {s(S_TAG)}", f"v_mov_b32 {v(FQ+3)}, {s(S_TAG)}")
        def ld_o(js):
            def f():
                for ss in range(4):
                    e(f"buffer_load_dwordx4 {vr(GB_+16*js+4*ss,4)}, v4, {sr(SRD_WS,4)}, {'s63' if js else 's62'} offen offset:{64*ss} sc1")
            return f
        grp = [(36, ld_o(0), [GB_+4*k+3 for k in range(4)]), (38, ld_o(1), [GB_+16+4*k+3 for k in range(4)])]
        if "e1pre" in self.x:
            self.c("the partial outputs of batches 0..2 were published long ago")
            self.masked_gather(grp, T, init=(0x0fff0fff, 0x0fff0fff), care=(0x0fff0fff, 0x0fff0fff), sleep=8)
        self.lds_wait(VFL, F_VE, 8, 1, sleep=2)
        self.stamp(8)
        if "e1pre" in self.x:
            self.masked_gather(grp, T, init=(0xf000f000, 0xf000f000), care=(0xf000f000, 0xf000f000))
        else:
            self.masked_gather(grp, T)
        self.stamp(9)
        for ss in range(4):
            for p in range(3):
                e(f"v_add_f32 {v(OV+3*ss+p)}, {v(GB_+4*ss+p)}, {v(GB_+16+4*ss+p)}")
        for perm in ("[1,0,3,2]", "[2,3,0,1]"):
            for k in range(12):
                e(f"v_add_f32_dpp {v(OV+k)}, {v(OV+k)}, {v(OV+k)} quad_perm:{perm} row_mask:0xf bank_mask:0xf")
        for k in range(6):
            e(f"v_cvt_pk_bf16_f32 {v(AB+k)}, {v(OV+2*k)}, {v(OV+2*k+1)}")
        e("s_nop 0")
        DB = GB_
        for sg in range(3):
            for cc in range(8):
                c = "0" if sg == 0 else vr(DB+4*cc, 4)
                e(f"v_mfma_f32_16x16x16_bf16 {vr(DB+4*cc,4)}, {vr(AB+2*sg,2)}, {vr(WB+16*sg+2*cc,2)}, {c}")
        e("s_nop 1")
        for cc in range(8):
            e(f"v_mov_b32 {v(OV+cc)}, {v(DB+4*cc)}")
            if cc < 7:
                pass
        e(f"ds_write_b128 v5, {vr(OV,4)}", f"ds_write_b128 v5, {vr(OV+4,4)} offset:16", "s_waitcnt lgkmcnt(0)", "s_barrier")
        for ww in range(4):
            e(f"ds_read_b64 {vr(OV+2*ww,2)}, v9 offset:{RED2+2048*ww}")
        e("s_waitcnt lgkmcnt(2)", f"v_pk_add_f32 {vr(OV,2)}, {vr(OV,2)}, {vr(OV+2,2)}",
          "s_waitcnt lgkmcnt(0)", f"v_pk_add_f32 {vr(OV+4,2)}, {vr(OV+4,2)}, {vr(OV+6,2)}",
          f"v_add_f32 {v(FQ)}, {v(OV)}, {v(OV+4)}", f"v_add_f32 {v(FQ+2)}, {v(OV+1)}, {v(OV+5)}",
          f"buffer_store_dwordx4 {vr(FQ,4)}, v10, {sr(SRD_WS,4)}, s64 offen sc1")
        self.stamp(10)
        e(f"s_branch {ldone}")
        self.label(lhi2)
        lnd = self.new("nd")
        e("s_cmp_eq_u32 s69, 2", f"s_cbranch_scc0 {lnd}")
        self.c("---- stage D: hh @ w_down, residual, output")
        X1R = 34
        HGA, HGB = 204, 228
        e(f"v_mov_b32 v32, {v(GBR)}")
        e("v_lshrrev_b32 v6, 4, v1", f"v_mul_u32_u24 v6, {320*8}, v6", "v_and_b32 v7, 15, v1", "v_lshl_add_u32 v4, v7, 3, v6",
          "s_lshl_b32 s64, s68, 7", "s_and_b32 s65, s68, 3", "s_mul_i32 s65, s65, 10240", "s_add_u32 s64, s64, s65",
          f"s_add_u32 s64, s64, {X1BUF}")
        for i in range(6):
            e(f"v_add_u32 v6, {64*i}, v1", "v_mul_u32_u24 v7, 683, v6", "v_lshrrev_b32 v7, 16, v7",
              "v_mul_u32_u24 v8, 96, v7", "v_sub_u32 v8, v6, v8", f"v_mul_u32_u24 v7, {768*8}, v7",
              f"v_lshl_add_u32 {v(16+i)}, v8, 4, v7")
        e(f"s_mul_i32 s62, {s(S_W)}, {192*8}", f"s_add_u32 s62, s62, {HBUF}")
        if self.RH > 1:
            e("s_and_b32 s63, s68, 1", f"s_mul_i32 s63, s63, {HBUF2-HBUF}", "s_add_u32 s62, s62, s63")
        e(f"s_mul_i32 s63, {s(S_W)}, 3072", f"s_add_u32 s63, s63, {HST}", "v_lshlrev_b32 v6, 3, v1", "v_add_u32 v5, s63, v6",
          "v_and_b32 v7, 15, v1", "v_lshrrev_b32 v7, 2, v7", "v_mul_u32_u24 v7, 768, v7", "v_lshrrev_b32 v8, 4, v1",
          "v_lshl_add_u32 v7, v8, 4, v7", "v_add_u32 v9, s63, v7",
          f"s_lshl_b32 s63, {s(S_W)}, 9", f"s_add_u32 s63, s63, {RED2+8192}", "v_add_u32 v10, s63, v6",
          "v_mov_b32 v11, v6",
          "v_lshrrev_b32 v6, 4, v1", "v_mul_u32_u24 v6, 1280, v6", "v_and_b32 v7, 15, v1", "v_lshl_add_u32 v12, v7, 2, v6",
          "s_lshl_b32 s65, s68, 6")
        self.srd(SRD_B, S_OUT, 5120)
        self.lds_wait(VFL, F_VE, 8, 1, sleep=2)
        self.stamp(8)
        def ld_x1d():
            e(f"buffer_load_dwordx2 {vr(X1R,2)}, v4, {sr(SRD_WS,4)}, s64 offen sc1")
        self.poll(ld_x1d, [X1R+1], T, T+1, sleep=3)
        self.stamp(11)
        def ld_h(base):
            def f():
                for i in range(6):
                    e(f"buffer_load_dwordx4 {vr(base+4*i,4)}, {v(16+i)}, {sr(SRD_WS,4)}, s62 offen sc1")
            return f
        def use_h(base):
            def f():
                for i in range(6):
                    e(f"v_mov_b32 {v(base+4*i+1)}, {v(base+4*i+2)}", f"ds_write_b64 v5, {vr(base+4*i,2)} offset:{512*i}")
            return f
        if "e4s" in self.x:
            self.poll(ld_h(HGA), [HGA+4*i+k for i in range(6) for k in (1, 3)], T, T+1)
            use_h(HGA)()
        elif "e4m" in self.x:
            def ld_h2(k):
                def f():
                    for i in (2*k, 2*k+1):
                        e(f"buffer_load_dwordx4 {vr(HGA+4*i,4)}, {v(16+i)}, {sr(SRD_WS,4)}, s62 offen sc1")
                return f
            self.masked_gather([(sp, ld_h2(k), [HGA+8*k+1, HGA+8*k+3, HGA+8*k+5, HGA+8*k+7]) for k, sp in enumerate((36, 38, 48))], T)
            use_h(HGA)()
        else:
            self.poll2(ld_h(HGA), [HGA+4*i+k for i in range(6) for k in (1, 3)], use_h(HGA),
                       ld_h(HGB), [HGB+4*i+k for i in range(6) for k in (1, 3)], use_h(HGB), 6, T)
        self.stamp(12)
        AD = 36
        for ks in range(9):
            e(f"ds_read_b128 {vr(AD+4*ks,4)}, v9 offset:{64*ks}")
        DD2 = 24
        for ks in range(12):
            e(f"s_waitcnt lgkmcnt({min(8, 11-ks)})")
            for hi in range(2):
                c = "0" if ks == 0 else vr(DD2+4*hi, 4)
                e(f"v_mfma_f32_16x16x32_bf16 {vr(DD2+4*hi,4)}, {vr(AD+4*ks,4)}, {vr(WD+8*ks+4*hi,4)}, {c}")
            if ks + 9 < 12:
                e(f"ds_read_b128 {vr(AD+4*(ks+9),4)}, v9 offset:{64*(ks+9)}")
        e("s_nop 7", f"v_mov_b32 {v(DD2+1)}, {v(DD2+4)}", f"ds_write_b64 v10, {vr(DD2,2)}", "s_waitcnt lgkmcnt(0)", "s_barrier")
        e(f"s_cmp_eq_u32 {s(S_W)}, 0", f"s_cbranch_scc0 {ldone}")
        R = 12+4
        for ww in range(4):
            e(f"ds_read_b64 {vr(R+2*ww,2)}, v11 offset:{RED2+8192+512*ww}")
        self.unpack(24, 25, 32)
        self.unpack(26, 27, X1R)
        e("s_waitcnt lgkmcnt(2)", f"v_pk_add_f32 {vr(R,2)}, {vr(R,2)}, {vr(R+2,2)}",
          "s_waitcnt lgkmcnt(0)", f"v_pk_add_f32 {vr(R+4,2)}, {vr(R+4,2)}, {vr(R+6,2)}",
          f"v_pk_add_f32 {vr(R,2)}, {vr(R,2)}, {vr(R+4,2)}")
        self.round2(R, R+1, T)
        e(f"v_pk_mul_f32 {vr(R,2)}, {vr(R,2)}, v[24:25]")
        self.round2(R, R+1, T)
        e(f"v_pk_add_f32 {vr(R,2)}, {vr(R,2)}, v[26:27]", f"v_cvt_pk_bf16_f32 {v(R)}, {v(R)}, {v(R+1)}",
          f"buffer_store_dword {v(R)}, v12, {sr(SRD_B,4)}, s65 offen")
        self.c("the workgroup with d == 0 leaves this launch's tag for the next launch")
        e("s_cmp_eq_u32 s68, 0", f"s_cbranch_scc0 {ldone}",
          f"v_mov_b32 v6, {WS_EPOCH}", f"v_mov_b32 v7, {s(S_TAG)}", "s_mov_b64 exec, 1",
          f"buffer_store_dword v7, v6, {sr(SRD_WS,4)}, 0 offen sc1", "s_mov_b64 exec, -1")
        e(f"s_branch {ldone}")
        self.label(lnd)
        lnr2 = self.new("nr2")
        e("s_cmp_eq_u32 s70, 1", f"s_cbranch_scc0 {lnr2}")
        self.c("---- reducer: sum 32 head partials, residual, publish x1")
        RGm = 184
        e("v_lshlrev_b32 v4, 4, v1", "s_lshl_b32 s62, s71, 13", f"s_add_u32 s62, s62, {ABUF}", "s_add_u32 s63, s62, 4096",
          "v_lshrrev_b32 v6, 4, v1", "v_mul_u32_u24 v6, 10240, v6", "v_and_b32 v7, 15, v1", "v_lshl_add_u32 v5, v7, 3, v6",
          "s_and_b32 s64, s71, 3", f"s_mul_i32 s64, s64, {320*8}", "s_lshr_b32 s65, s71, 2", "s_lshl_b32 s65, s65, 7",
          "s_add_u32 s64, s64, s65", f"s_add_u32 s64, s64, {X1BUF}", f"v_mov_b32 v21, {s(S_TAG)}")
        self.unpack(24, 25, RG)
        self.unpack(26, 27, RX)
        self.lds_wait(VFL, F_VE, 8, 1, sleep=2)
        self.stamp(8)
        if "rgate" in self.x:
            self.c("gate: one of four heads has published its projection for these columns")
            lg, lgd = self.new("rg"), self.new("rgd")
            e("v_lshlrev_b32 v6, 3, v1", f"v_add_u32 v6, {s(S_H)}, v6", "v_and_b32 v6, 31, v6", "v_lshlrev_b32 v6, 8, v6", "s_mov_b64 exec, 15")
            self.label(lg)
            e(f"buffer_load_dwordx2 v[14:15], v6, {sr(SRD_WS,4)}, s62 offen sc1", "s_waitcnt vmcnt(0)",
              f"v_cmp_eq_u32 vcc, {s(S_TAG)}, v15", "s_nop 1", f"s_cbranch_vccnz {lgd}", "s_sleep 2")
            self.spin_check()
            e(f"s_branch {lg}")
            self.label(lgd)
            e("s_mov_b64 exec, -1")
        def ld_a(k):
            def f():
                for i in (2*k, 2*k+1):
                    e(f"buffer_load_dwordx4 {vr(RGm+4*i,4)}, v4, {sr(SRD_WS,4)}, {'s63' if i>=4 else 's62'} offen offset:{1024*(i&3)} sc1")
            return f
        self.masked_gather([(sp, ld_a(k), [RGm+8*k+1, RGm+8*k+3, RGm+8*k+5, RGm+8*k+7]) for k, sp in enumerate((36, 38, 44, 46))], T)
        self.stamp(9)
        a0, a1 = 16, 17
        e(f"v_add_f32 {v(a0)}, {v(RGm)}, {v(RGm+4)}", f"v_add_f32 {v(a1)}, {v(RGm+2)}, {v(RGm+6)}",
          f"v_add_f32 v18, {v(RGm+8)}, {v(RGm+12)}", f"v_add_f32 v19, {v(RGm+10)}, {v(RGm+14)}")
        for i in (4, 5):
            e(f"v_add_f32 {v(a0)}, {v(a0)}, {v(RGm+4*i)}", f"v_add_f32 {v(a1)}, {v(a1)}, {v(RGm+4*i+2)}",
              f"v_add_f32 v18, v18, {v(RGm+4*(i+2))}", f"v_add_f32 v19, v19, {v(RGm+4*(i+2)+2)}")
        e(f"v_pk_add_f32 {vr(a0,2)}, {vr(a0,2)}, v[18:19]")
        for swp in ("v_permlane16_swap_b32", "v_permlane32_swap_b32"):
            e(f"v_mov_b32 v18, {v(a0)}", f"v_mov_b32 v19, {v(a1)}", "s_nop 1",
              f"{swp} v18, {v(a0)}", f"{swp} v19, {v(a1)}",
              f"v_pk_add_f32 {vr(a0,2)}, v[18:19], {vr(a0,2)}")
        self.round2(a0, a1, T)
        e(f"v_pk_mul_f32 {vr(a0,2)}, {vr(a0,2)}, v[24:25]")
        self.round2(a0, a1, T)
        e(f"v_pk_add_f32 {vr(a0,2)}, {vr(a0,2)}, v[26:27]",
          f"v_cvt_pk_bf16_f32 v20, {v(a0)}, {v(a1)}",
          f"buffer_store_dwordx2 v[20:21], v5, {sr(SRD_WS,4)}, s64 offen sc1")
        self.stamp(10)
        e(f"s_branch {ldone}")
        self.label(lnr2)
        e("s_cmp_eq_u32 s69, 1", f"s_cbranch_scc0 {ldone}")
        self.c("---- stage C: LN2, gate/up, hh")
        XGA, XGB = 184, 194
        TD = 204
        AC, DC = 184, 216
        e(f"s_mul_i32 s62, {s(S_W)}, {320*8}", "s_and_b32 s63, s68, 3", "s_mul_i32 s63, s63, 10240", "s_add_u32 s62, s62, s63",
          f"s_add_u32 s62, s62, {X1BUF}", "v_lshlrev_b32 v4, 3, v1",
          f"s_lshl_b32 s63, {s(S_W)}, 10", f"s_add_u32 s63, s63, {RED2}", "v_lshlrev_b32 v10, 4, v1", "v_add_u32 v11, s63, v10",
          "v_lshrrev_b32 v6, 4, v1", f"v_mul_u32_u24 v6, {768*8}, v6", "v_and_b32 v7, 15, v1", "v_lshl_add_u32 v12, v7, 3, v6",
          "s_lshl_b32 s64, s68, 7", f"s_add_u32 s64, s64, {HBUF}", f"v_mov_b32 v33, {s(S_TAG)}")
        self.lds_wait(VFL, F_VE, 8, 1, sleep=2)
        self.stamp(8)
        self.c("gate: wave 0 watches the attention projection finish, then everybody polls x1")
        lg = self.new("gate")
        e(f"s_cmp_eq_u32 {s(S_W)}, 0", f"s_cbranch_scc0 {lg}",
          "s_lshl_b32 s63, s68, 13", f"s_add_u32 s63, s63, {ABUF}", "v_lshlrev_b32 v6, 8, v1",
          "s_mov_b32 exec_lo, -1", "s_mov_b32 exec_hi, 0")
        def ld_gate():
            e(f"buffer_load_dwordx2 v[14:15], v6, {sr(SRD_WS,4)}, s63 offen sc1")
        self.poll(ld_gate, [15], T, T+1, sleep=2)
        e("s_mov_b64 exec, -1")
        self.lds_flag_set(9, F_GT, VONE)
        self.label(lg)
        self.lds_wait(9, F_GT, 8, 1, sleep=1)
        def ld_x1(base):
            def f():
                for i in range(5):
                    e(f"buffer_load_dwordx2 {vr(base+2*i,2)}, v4, {sr(SRD_WS,4)}, s62 offen offset:{512*i} sc1")
            return f
        def use_x1(base):
            def f():
                for i in range(5):
                    self.unpack(XF+2*i, XF+2*i+1, base+2*i)
            return f
        if "e3s" in self.x:
            self.poll(ld_x1(XGA), [XGA+2*i+1 for i in range(5)], T, T+1)
            use_x1(XGA)()
        else:
            self.poll2(ld_x1(XGA), [XGA+2*i+1 for i in range(5)], use_x1(XGA), ld_x1(XGB), [XGB+2*i+1 for i in range(5)], use_x1(XGB), 5, T)
        self.stamp(11)
        self.ln_fast(None, XF, TD, T)
        self.modulate_fast(XF, CC1, CSH, TD, 26)
        e("s_waitcnt lgkmcnt(0)", "s_barrier")
        self.stamp(12)
        e("s_waitcnt vmcnt(0)")
        for ks in range(5):
            e(f"ds_read_b128 {vr(AC+4*ks,4)}, v5 offset:{64*ks}")
        for ks in range(5):
            e(f"s_waitcnt lgkmcnt({4-ks})")
            for mi, base in enumerate((WG, WU)):
                for hi in range(2):
                    d = DC+8*mi+4*hi
                    c = "0" if ks == 0 else vr(d, 4)
                    e(f"v_mfma_f32_16x16x32_bf16 {vr(d,4)}, {vr(AC+4*ks,4)}, {vr(base+8*ks+4*hi,4)}, {c}")
        e("s_nop 5")
        for k in range(4):
            e(f"v_mov_b32 {v(16+k)}, {v(DC+4*k)}")
        e("ds_write_b128 v11, v[16:19]", "s_waitcnt lgkmcnt(0)", "s_barrier")
        e(f"s_cmp_eq_u32 {s(S_W)}, 0", f"s_cbranch_scc0 {ldone}")
        for ww in range(4):
            e(f"ds_read_b128 {vr(AC+4*ww,4)}, v10 offset:{RED2+1024*ww}")
        e("s_waitcnt lgkmcnt(2)", f"v_pk_add_f32 {vr(AC,2)}, {vr(AC,2)}, {vr(AC+4,2)}", f"v_pk_add_f32 {vr(AC+2,2)}, {vr(AC+2,2)}, {vr(AC+6,2)}",
          "s_waitcnt lgkmcnt(0)", f"v_pk_add_f32 {vr(AC+8,2)}, {vr(AC+8,2)}, {vr(AC+12,2)}", f"v_pk_add_f32 {vr(AC+10,2)}, {vr(AC+10,2)}, {vr(AC+14,2)}",
          f"v_pk_add_f32 {vr(AC,2)}, {vr(AC,2)}, {vr(AC+8,2)}", f"v_pk_add_f32 {vr(AC+2,2)}, {vr(AC+2,2)}, {vr(AC+10,2)}",
          f"v_cvt_pk_bf16_f32 {v(T)}, {v(AC)}, {v(AC+1)}", f"v_cvt_pk_bf16_f32 {v(T+1)}, {v(AC+2)}, {v(AC+3)}")
        self.unpack(AC, AC+1, T)
        self.unpack(AC+2, AC+3, T+1)
        e(f"v_pk_mul_f32 {vr(AC,2)}, {vr(AC,2)}, {vr(AC+2,2)}", f"v_cvt_pk_bf16_f32 v32, {v(AC)}, {v(AC+1)}",
          f"buffer_store_dwordx2 v[32:33], v12, {sr(SRD_WS,4)}, s64 offen sc1")
        if self.RH > 1:
            e(f"s_add_u32 s64, s64, {HBUF2-HBUF}", f"buffer_store_dwordx2 v[32:33], v12, {sr(SRD_WS,4)}, s64 offen sc1")
        self.label(ldone)
        self.stamp(13)
        self.stamps_store()
        e("s_waitcnt vmcnt(0)", "s_endpgm")


def main():
    ap = argparse.ArgumentParser()
    ap.add_argument("-o", default="cdna_kernels/" + NAME + ".s")
    ap.add_argument("-D", type=int, default=3)
    ap.add_argument("--diag", action="store_true")
    ap.add_argument("--spin", type=int, default=400000)
    ap.add_argument("-x", default="")
    ap.add_argument("-N", type=int, default=None)
    ap.add_argument("--sv", type=int, default=16)
    ap.add_argument("--sk", type=int, default=16)
    ap.add_argument("--rot", type=int, default=0)
    ap.add_argument("--stag", default="0,32")
    ap.add_argument("--sl", type=int, default=4)
    ap.add_argument("--n2", type=int, default=None)
    ap.add_argument("--rm", type=int, default=1)
    ap.add_argument("--align", type=int, default=0)
    ap.add_argument("--rh", type=int, default=1)
    a = ap.parse_args()
    g = Gen(D=a.D, diag=a.diag, spin=a.spin, x=[t for t in a.x.split(',') if t], N=a.N, SV=a.sv, SK=a.sk, rot=a.rot, stag=tuple(int(t) for t in a.stag.split(',')), SL=a.sl, N2=a.n2, RM=a.rm, RH=a.rh, align=a.align)
    open(a.o, "w").write(g.build())
    print("wrote", a.o, len(g.L), "lines")


if __name__ == "__main__":
    main()
```

```python
import sys, argparse

NAME = "adaLN_cond__gqa_block_cached__glu_gated_bilinear__decode"
KERNEL = NAME + "_kernel"

WS_EPOCH = 0
MODBUF = 0x1000
QBUF   = 0x10000
X1BUF  = 0xF0000
HBUF   = 0x30000
HBUF2  = 0xFA000
MODR   = 0x300000
CNTBUF = 0x38000
ABUF   = 0x40000
MLBUF  = 0xE0000
OBUF   = 0x100000
SBUF   = 0x200000
STAMPS = 0x400000
WS_SIZE = 0x800000

RING_W = 36864
SC     = 147456
OSL    = SC + 4096
PSLOT  = SC + 7168
MISC   = 155648
AVEC   = MISC
QL     = MISC + 5120
MLH    = MISC + 6656
FLAGS  = MISC + 6784
IDQ    = MISC + 7040
CLQ    = MISC + 7104
LDS_TOTAL = 163840
F_SYNCA, F_SYNCR, F_JD, F_GT, F_QC, F_PA, F_OF, F_AL = 0, 4, 8, 12, 16, 20, 24, 28
F_KD, F_PB, F_OC, F_NV, F_NP, F_NC, F_VE = 32, 48, 64, 80, 96, 112, 128
RED2   = 0
HST    = 16384

S_X, S_K, S_V, S_WQ, S_WO, S_BX, S_G, S_U, S_DN, S_C, S_WM, S_OUT, S_DBG, S_WS = range(4, 32, 2)
S_TAG, S_W, S_H, S_J = 32, 33, 34, 35
SRD_A, SRD_WS, SRD_B, SRD_C = 36, 40, 44, 48
S_SPIN, S_SELLO, S_SELHI = 96, 97, 98
S_STAMP0 = 72

SCALE = 0x3d93cd3a
LOG2E = 0x3fb8aa3b
EPS = 0x3727c5ac
INV640 = 0x3acccccd
NINF = 0xff800000
TAGINC = 0x9E3779B9


def v(i): return f"v{i}"
def vr(i, n): return f"v[{i}:{i+n-1}]"
def s(i): return f"s{i}"
def sr(i, n): return f"s[{i}:{i+n-1}]"


class Gen:
    def __init__(self, D=3, diag=False, spin=400000, x=(), N=None, SV=16, SK=16, rot=0, stag=(0,0), SL=4, N2=None, RM=1, RH=1, align=0, NT=None):
        self._NT = NT
        self.align = align
        self.RM = RM
        self.RH = RH
        self.SL = SL
        self.N2 = N2
        self.rot = rot
        self.stag = stag
        self.SV = SV
        self.SK = SK
        self.x = set(x)
        self.N = 3*(D-1) if N is None else N
        if N is not None:
            D = (N + 3 + 2)//3
        self.L = []
        self.nl = 0
        self.D = D
        self.NT = self.N if self._NT is None else self._NT
        self.diag = diag
        self.spin = spin
        self.nstamp = 0

    def e(self, *lines):
        for l in lines:
            self.L.append("    " + l)

    def c(self, text):
        self.L.append("    ; " + text)

    def label(self, name):
        self.L.append(name + ":")

    def new(self, base):
        self.nl += 1
        return f"L{base}_{self.nl}"

    def srd(self, dst, ptr, size):
        self.e(f"s_mov_b32 {s(dst)}, {s(ptr)}",
               f"s_and_b32 {s(dst+1)}, {s(ptr+1)}, 0xffff",
               f"s_mov_b32 {s(dst+2)}, {size}",
               f"s_mov_b32 {s(dst+3)}, 0x20000")

    def stamp(self, k):
        if not self.diag:
            return
        assert k < 16
        self.e("s_memrealtime s[88:89]", "s_waitcnt lgkmcnt(0)", f"s_mov_b32 {s(S_STAMP0+k)}, s88")

    def stamps_store(self):
        if not self.diag:
            return
        self.e("s_mov_b64 exec, -1")
        self.e("v_mov_b32 v250, 0")
        for k in range(16):
            self.e(f"v_writelane_b32 v250, {s(S_STAMP0+k)}, {k}")
        self.e("v_mbcnt_lo_u32_b32 v251, -1, 0", "v_mbcnt_hi_u32_b32 v251, -1, v251",
               "v_lshlrev_b32 v251, 2, v251",
               "s_lshl_b32 s88, s99, 6", f"s_add_u32 s88, s88, {STAMPS}",
               "s_mov_b64 exec, 0xffff",
               f"buffer_store_dword v250, v251, {sr(SRD_WS,4)}, s88 offen",
               "s_waitcnt vmcnt(0)")

    def tag_load(self):
        self.e(f"s_load_dword {s(S_TAG)}, {sr(S_WS,2)}, {WS_EPOCH}")
        if self.diag:
            self.e("s_memrealtime s[100:101]")

    def tag_ready(self):
        self.e("s_waitcnt lgkmcnt(0)", f"s_add_u32 {s(S_TAG)}, {s(S_TAG)}, {hex(TAGINC)}")
        if self.diag:
            self.e(f"s_mov_b32 {s(S_STAMP0)}, s100")

    def start_sync(self, streamer):
        self.e("s_barrier")

    def spin_check(self):
        self.e(f"s_sub_u32 {s(S_SPIN)}, {s(S_SPIN)}, 1", "s_cbranch_scc1 Labort")

    def allreduce(self, op, x, t):
        for r in (8, 4, 2, 1):
            self.e("s_nop 1", f"v_{op}_f32_dpp {v(x)}, {v(x)}, {v(x)} row_ror:{r} row_mask:0xf bank_mask:0xf")
        self.e(f"v_mov_b32 {v(t)}, {v(x)}", "s_nop 1", f"v_permlane16_swap_b32 {v(t)}, {v(x)}",
               f"v_{op}_f32 {v(x)}, {v(t)}, {v(x)}")
        self.e(f"v_mov_b32 {v(t)}, {v(x)}", "s_nop 1", f"v_permlane32_swap_b32 {v(t)}, {v(x)}",
               f"v_{op}_f32 {v(x)}, {v(t)}, {v(x)}")

    def unpack(self, lo, hi, src):
        self.e(f"v_lshlrev_b32 {v(lo)}, 16, {v(src)}", f"v_and_b32 {v(hi)}, 0xffff0000, {v(src)}")

    def round2(self, a, b, t):
        self.e(f"v_cvt_pk_bf16_f32 {v(t)}, {v(a)}, {v(b)}")
        self.unpack(a, b, t)

    def lds_flag_set(self, vfl, off, vone):
        self.e("s_mov_b64 exec, 1", f"ds_write_b32 {v(vfl)}, {v(vone)} offset:{off}", "s_mov_b64 exec, -1")

    def lds_wait(self, vfl, off, vt, target, sleep=1, body=None):
        l = self.new("w")
        d = self.new("wd")
        self.label(l)
        if body:
            body()
        self.e(f"ds_read_b32 {v(vt)}, {v(vfl)} offset:{off}", "s_waitcnt lgkmcnt(0)",
               f"v_readfirstlane_b32 s90, {v(vt)}", "s_nop 0",
               f"s_cmp_ge_u32 s90, {target}", f"s_cbranch_scc1 {d}")
        if sleep:
            self.e(f"s_sleep {sleep}")
        self.spin_check()
        self.e(f"s_branch {l}")
        self.label(d)

    def lds_wait_gt(self, vfl, off, vt, sreg, sleep=1, body=None):
        l, d = self.new("w"), self.new("wd")
        self.label(l)
        self.e(f"ds_read_b32 {v(vt)}, {v(vfl)} offset:{off}", "s_waitcnt lgkmcnt(0)",
               f"v_readfirstlane_b32 s90, {v(vt)}", "s_nop 0",
               f"s_cmp_gt_u32 s90, {s(sreg)}", f"s_cbranch_scc1 {d}")
        if body:
            body()
        if sleep:
            self.e(f"s_sleep {sleep}")
        self.spin_check()
        self.e(f"s_branch {l}")
        self.label(d)

    def sync4(self, vfl, off, vone, vt):
        self.e("s_mov_b64 exec, 1", f"ds_add_u32 {v(vfl)}, {v(vone)} offset:{off}", "s_mov_b64 exec, -1")
        self.lds_wait(vfl, off, vt, 4, sleep=0)

    def tagcheck(self, regs, acc, tmp, retry):
        first = True
        i = 0
        while i < len(regs):
            if first:
                self.e(f"v_xor_b32 {v(acc)}, {s(S_TAG)}, {v(regs[i])}")
                first = False
                i += 1
            elif i + 1 < len(regs):
                self.e(f"v_xor_b32 {v(tmp)}, {s(S_TAG)}, {v(regs[i])}",
                       f"v_xor_b32 {v(tmp+1)}, {s(S_TAG)}, {v(regs[i+1])}",
                       f"v_or3_b32 {v(acc)}, {v(acc)}, {v(tmp)}, {v(tmp+1)}")
                i += 2
            else:
                self.e(f"v_xor_b32 {v(tmp)}, {s(S_TAG)}, {v(regs[i])}",
                       f"v_or_b32 {v(acc)}, {v(acc)}, {v(tmp)}")
                i += 1
        self.e(f"v_cmp_ne_u32 vcc, 0, {v(acc)}", "s_nop 1", f"s_cbranch_vccnz {retry}")

    def poll(self, loads, tags, acc, tmp, sleep=0):
        l = self.new("poll")
        r = self.new("pollr")
        d = self.new("polld")
        self.e(f"s_branch {l}")
        self.label(r)
        if sleep:
            self.e(f"s_sleep {sleep}")
        self.spin_check()
        self.label(l)
        loads()
        self.e("s_waitcnt vmcnt(0)")
        self.tagcheck(tags, acc, tmp, r)
        self.label(d)

    def build(self):
        e = self.e
        hdr = open("cdna_kernels/" + NAME + ".s.ref").read().split("\n")
        for l in hdr:
            if l.startswith("; Override"):
                break
            self.L.append(l)
        self.L.append(f"; @launch grid=(256,1,1) block=(512,1,1) lds={LDS_TOTAL}")
        self.L.append('.amdgcn_target "amdgcn-amd-amdhsa--gfx950"')
        self.L.append(".text")
        self.L.append(f".globl {KERNEL}")
        self.L.append(".p2align 8")
        self.L.append(f".type {KERNEL},@function")
        self.label(KERNEL)
        e("s_cmp_ge_u32 s2, 256", "s_cbranch_scc1 Lexit")
        e("s_load_dwordx16 s[4:19], s[0:1], 0", "s_load_dwordx8 s[20:27], s[0:1], 64", "s_load_dwordx4 s[28:31], s[0:1], 96")
        e("v_lshrrev_b32 v2, 6, v0", "v_and_b32 v1, 63, v0", "s_nop 0", f"v_readfirstlane_b32 {s(S_W)}, v2")
        e(f"s_lshr_b32 {s(S_H)}, s2, 3", f"s_and_b32 {s(S_J)}, s2, 7")
        if self.rot:
            self.c("the workgroups of one head sit at different dispatch slots of the eight dies")
            e(f"s_mul_i32 s3, {s(S_J)}, {self.rot}", f"s_add_u32 {s(S_H)}, {s(S_H)}, s3", f"s_and_b32 {s(S_H)}, {s(S_H)}, 31")
        e(f"s_mov_b32 {s(S_SPIN)}, {self.spin}", f"s_mov_b32 {s(S_SELLO)}, 0x05040100", f"s_mov_b32 {s(S_SELHI)}, 0x07060302")
        if self.diag:
            e("s_lshl_b32 s99, s2, 3", f"s_add_u32 s99, s99, {s(S_W)}")
            for k in range(16):
                e(f"s_mov_b32 {s(S_STAMP0+k)}, 0")
        e("s_waitcnt lgkmcnt(0)")
        self.srd(SRD_WS, S_WS, WS_SIZE)
        e(f"s_cmp_ge_u32 {s(S_W)}, 4", "s_cbranch_scc1 Lhelper")
        self.streamer()
        self.label("Lhelper")
        self.helper()
        self.label("Labort")
        self.c("spin budget exhausted: leave a mark in d_debug and stop")
        e("s_mov_b64 exec, 1", "v_mov_b32 v2, 0", "v_mov_b32 v3, 0xdead",
          f"global_store_dword v2, v3, {sr(S_DBG,2)}", "s_waitcnt vmcnt(0)")
        self.label("Lexit")
        e("s_endpgm")
        self.L.append('.section .rodata,"a"')
        self.L.append(".p2align 6")
        self.L.append(f".amdhsa_kernel {KERNEL}")
        self.L += ["  .amdhsa_next_free_vgpr 256", "  .amdhsa_next_free_sgpr 102", "  .amdhsa_accum_offset 256",
                   "  .amdhsa_group_segment_fixed_size 0", "  .amdhsa_kernarg_size 112",
                   "  .amdhsa_user_sgpr_count 2", "  .amdhsa_user_sgpr_kernarg_segment_ptr 1",
                   "  .amdhsa_system_sgpr_workgroup_id_x 1", "  .amdhsa_float_denorm_mode_32 3",
                   ".end_amdhsa_kernel"]
        return "\n".join(self.L) + "\n"

    def take_claim(self, dst):
        e = self.e
        e("s_and_b32 s63, s64, 3", "s_lshl_b32 s63, s63, 2", "s_add_u32 s63, s63, s50", "v_mov_b32 v21, s63")
        self.lds_wait_gt(18, F_NC, 22, 64)
        e("ds_read_b32 v13, v21", "s_waitcnt lgkmcnt(0)", f"v_readfirstlane_b32 {s(dst)}, v13", "s_add_u32 s64, s64, 1")

    def issue_unit(self):
        e = self.e
        SL = self.SL
        sI, sSrc, sPos, sBase, sEnd, sStop, sHb = 52, 53, 54, 55, 56, 60, 61
        sNV, sCur = 65, 71
        lmid, lstop, ldone, ldyn, lhave, lnn = (self.new(x) for x in ("im", "is", "id", "iy", "ih", "nn"))
        e(f"s_and_b32 s62, {s(sI)}, 3", f"s_cbranch_scc1 {lmid}")
        e(f"s_lshr_b32 s62, {s(sI)}, 2", f"s_cmp_lt_u32 s62, {28+SL}", f"s_cbranch_scc0 {ldyn}")
        if self.align:
            self.c("the four waves of the workgroup start every align-th item together (adjacent tiles stay close in time)")
            lal = self.new("al")
            e(f"s_and_b32 s63, s62, {self.align-1}", f"s_cbranch_scc1 {lal}", "s_cmp_eq_u32 s62, 0", f"s_cbranch_scc1 {lal}",
              "s_add_u32 s51, s51, 4", "s_sub_u32 s66, s51, 1", "s_mov_b64 exec, 1", f"ds_add_u32 v178, v19 offset:{F_AL}", "s_mov_b64 exec, -1")
            self.lds_wait_gt(178, F_AL, 13, 66, sleep=0)
            e(f"s_lshr_b32 s62, {s(sI)}, 2")
            self.label(lal)
        self.c("static item: batch (m>>2)&3, tile 32*(m&3) + 4j + w")
        e("s_and_b32 s63, s62, 3", "s_lshl_b32 s63, s63, 5", f"s_add_u32 {s(sCur)}, s63, s48",
          "s_bfe_u32 s63, s62, 0x20002", "s_cmp_lt_u32 s62, 16",
          f"s_cselect_b32 {s(SRD_A)}, {s(S_K)}, {s(S_V)}", f"s_cselect_b32 {s(SRD_A+1)}, s92, s93", f"s_branch {lhave}")
        self.label(ldyn)
        if SL == 4:
            e(f"s_branch {lstop}")
        else:
            self.take_claim(sCur)
            e(f"s_cmp_ge_u32 {s(sCur)}, {32*(4-SL)}", f"s_cbranch_scc1 {lstop}", f"s_add_u32 {s(sCur)}, {s(sCur)}, {32*SL}",
              "s_mov_b32 s63, 3", f"s_lshr_b32 s62, {s(sI)}, 2")
        self.label(lhave)
        e("s_mul_i32 s63, s63, 50331648", f"s_add_u32 {s(sSrc)}, {s(sHb)}, s63",
          f"s_add_u32 s63, {s(sCur)}, s49", "s_and_b32 s63, s63, 127", "s_mul_i32 s63, s63, 12288", f"s_add_u32 {s(sSrc)}, {s(sSrc)}, s63")
        if SL < 4:
            self.c("from two items before the pool on, the helper follows the item starts")
            e(f"s_cmp_ge_u32 s62, {26+SL}", f"s_cbranch_scc0 {lmid}",
              f"s_and_b32 s62, {s(sNV)}, 3", "s_lshl_b32 s62, s62, 2", "s_add_u32 s62, s62, s94", "v_mov_b32 v13, s62",
              f"v_mov_b32 v21, {s(sCur)}", f"s_add_u32 {s(sNV)}, {s(sNV)}, 1", f"v_mov_b32 v22, {s(sNV)}",
              "s_mov_b64 exec, 1", "ds_write_b32 v13, v21", f"ds_write_b32 v18, v22 offset:{F_NV}", "s_mov_b64 exec, -1")
        self.label(lmid)
        if self.N2 is not None:
            lw1, lw2 = self.new("n1"), self.new("n2")
            e(f"s_cmp_lt_u32 {s(sI)}, {4*(28+SL)}", f"s_cbranch_scc1 {lw1}", f"s_waitcnt vmcnt({self.N2})", f"s_branch {lw2}")
            self.label(lw1)
            e(f"s_waitcnt vmcnt({self.N})")
            self.label(lw2)
        else:
            e(f"s_waitcnt vmcnt({self.N})")
        e(f"s_mov_b32 m0, {s(sPos)}",
          f"s_add_u32 {s(sPos)}, {s(sPos)}, 3072",
          f"buffer_load_dwordx4 v2, {sr(SRD_A,4)}, {s(sSrc)} offen nt lds",
          f"buffer_load_dwordx4 v3, {sr(SRD_A,4)}, {s(sSrc)} offen offset:1024 nt lds",
          f"buffer_load_dwordx4 v4, {sr(SRD_A,4)}, {s(sSrc)} offen offset:2048 nt lds",
          f"s_cmp_eq_u32 {s(sPos)}, {s(sEnd)}", f"s_cselect_b32 {s(sPos)}, {s(sBase)}, {s(sPos)}",
          f"s_add_u32 {s(sSrc)}, {s(sSrc)}, 3072",
          f"s_add_u32 {s(sI)}, {s(sI)}, 1", f"s_branch {ldone}")
        self.label(lstop)
        e(f"s_mov_b32 {s(sStop)}, 1")
        if SL < 4:
            e(f"s_and_b32 s62, {s(sNV)}, 3", "s_lshl_b32 s62, s62, 2", "s_add_u32 s62, s62, s94", "v_mov_b32 v13, s62",
              "v_mov_b32 v21, 0xffff", f"s_add_u32 {s(sNV)}, {s(sNV)}, 1", f"v_mov_b32 v22, {s(sNV)}",
              "s_mov_b64 exec, 1", "ds_write_b32 v13, v21", f"ds_write_b32 v18, v22 offset:{F_NV}", "s_mov_b64 exec, -1")
        self.label(ldone)

    def try_issue(self):
        if "try" not in self.x:
            return
        e = self.e
        sI, sSrc, sPos, sBase, sEnd = 52, 53, 54, 55, 56
        l = self.new("ti")
        e("s_getreg_b32 s63, hwreg(HW_REG_IB_STS, 0, 4)", f"s_cmp_le_u32 s63, {self.NT}", f"s_cbranch_scc0 {l}",
          f"s_and_b32 s63, {s(sI)}, 3", f"s_cbranch_scc0 {l}",
          f"s_waitcnt vmcnt({self.N})", f"s_mov_b32 m0, {s(sPos)}", f"s_add_u32 {s(sPos)}, {s(sPos)}, 3072",
          f"buffer_load_dwordx4 v2, {sr(SRD_A,4)}, {s(sSrc)} offen nt lds",
          f"buffer_load_dwordx4 v3, {sr(SRD_A,4)}, {s(sSrc)} offen offset:1024 nt lds",
          f"buffer_load_dwordx4 v4, {sr(SRD_A,4)}, {s(sSrc)} offen offset:2048 nt lds",
          f"s_cmp_eq_u32 {s(sPos)}, {s(sEnd)}", f"s_cselect_b32 {s(sPos)}, {s(sBase)}, {s(sPos)}",
          f"s_add_u32 {s(sSrc)}, {s(sSrc)}, 3072", f"s_add_u32 {s(sI)}, {s(sI)}, 1")
        self.label(l)

    def streamer(self):
        e = self.e
        D, SL = self.D, self.SL
        sI, sSrc, sPos, sBase, sEnd, sN, sTile, sTgt, sStop, sHb = 52, 53, 54, 55, 56, 57, 58, 59, 60, 61
        sNV, sPN, sCur = 65, 69, 71
        QF, KF, D0, ACC, PF = 24, 48, 96, 104, 152
        X, T = 156, 164
        vSo, vQa, vOw, vOr, vFl = 180, 181, 182, 183, 178
        Q = 184
        M, Lr, E = 192, 193, 196
        self.c("================= streamer wave =================")
        self.tag_load()
        e(f"s_mul_i32 {s(sHb)}, {s(S_H)}, 1572864",
          f"s_and_b32 s92, {s(S_K+1)}, 0xffff", f"s_and_b32 s93, {s(S_V+1)}, 0xffff",
          f"s_lshl_b32 s94, {s(S_W)}, 4", f"s_add_u32 s50, s94, {CLQ}", f"s_add_u32 s94, s94, {IDQ}",
          f"s_lshl_b32 s48, {s(S_J)}, 2", f"s_add_u32 s48, s48, {s(S_W)}",
          f"s_mul_i32 s49, {s(S_H)}, {self.stag[1]}", "s_mov_b32 s64, 0", "s_mov_b32 s51, 0")
        self.srd(SRD_A, S_K, 201326592)
        e(f"s_mov_b32 {s(sSrc)}, 0", f"s_mov_b32 {s(sI)}, 0", f"s_mul_i32 {s(sBase)}, {s(S_W)}, {RING_W}",
          f"s_mov_b32 {s(sPos)}, {s(sBase)}", f"s_add_u32 {s(sEnd)}, {s(sBase)}, {RING_W}",
          f"s_mov_b32 {s(sTile)}, {s(sBase)}", f"s_mov_b32 {s(sStop)}, 0",
          f"s_mov_b32 {s(sNV)}, 0", f"s_mov_b32 {s(sPN)}, 0", f"s_mov_b32 {s(sN)}, 0", f"s_mov_b32 {s(sCur)}, 0")
        self.c("DMA source offsets (xor swizzle of 16-byte chunks inside each row)")
        for i in range(3):
            e(f"v_add_u32 v13, {64*i}, v1", "v_mul_u32_u24 v14, 2731, v13", "v_lshrrev_b32 v14, 16, v14",
              "v_mul_u32_u24 v15, 24, v14", "v_sub_u32 v15, v13, v15", "v_and_b32 v16, 7, v14",
              "v_xor_b32 v15, v15, v16", "v_mul_u32_u24 v14, 384, v14", f"v_lshl_add_u32 {v(2+i)}, v15, 4, v14")
            if i:
                e(f"v_subrev_u32 {v(2+i)}, {1024*i}, {v(2+i)}")
        self.c("K fragment addresses")
        e("v_and_b32 v13, 15, v1", "v_lshrrev_b32 v14, 4, v1", "v_and_b32 v15, 7, v13", "v_mul_u32_u24 v13, 384, v13")
        for x in range(2):
            e(f"v_add_u32 v16, {4*x}, v14", "v_xor_b32 v16, v16, v15", f"v_lshl_add_u32 {v(5+x)}, v16, 4, v13")
        self.c("V fragment addresses")
        e("v_lshrrev_b32 v13, 2, v1", "v_and_b32 v15, 7, v13", "v_mul_u32_u24 v13, 384, v13",
          "v_and_b32 v16, 1, v1", "v_lshl_add_u32 v13, v16, 3, v13", "v_bfe_u32 v16, v1, 1, 1")
        for u in range(4):
            e(f"v_add_u32 v17, {2*u}, v16", "v_xor_b32 v17, v17, v15", f"v_lshl_add_u32 {v(7+u)}, v17, 4, v13")
        self.c("score / probability / q / partial output addresses, flags")
        e("v_lshlrev_b32 v13, 4, v14",
          f"s_lshl_b32 s62, {s(S_W)}, 8", f"s_add_u32 s62, s62, {PSLOT}", "v_add_u32 v12, s62, v13",
          f"s_lshl_b32 s62, {s(S_W)}, 10", f"s_add_u32 s62, s62, {SC}", f"v_add_u32 {v(vSo)}, s62, v13",
          f"v_add_u32 {v(vQa)}, {QL}, v13",
          f"s_mul_i32 s62, {s(S_W)}, 768", f"s_add_u32 s62, s62, {OSL}",
          "v_and_b32 v15, 15, v1", "v_lshlrev_b32 v15, 2, v15", f"v_add_u32 {v(vOw)}, s62, v15",
          "v_mul_u32_u24 v15, 12, v1", f"v_add_u32 {v(vOr)}, {OSL}, v15",
          f"s_lshl_b32 s63, {s(S_W)}, 2", f"s_add_u32 s63, s63, {FLAGS}",
          "v_mov_b32 v18, s63", "v_mov_b32 v19, 1", f"v_mov_b32 {v(vFl)}, {FLAGS}")
        for i in range(48):
            e(f"v_mov_b32 {v(ACC+i)}, 0")
        e("s_barrier")
        self.c("---- fill the ring while the helpers fetch q")
        l0, l0d = self.new("f0"), self.new("f0d")
        self.label(l0)
        e(f"s_cmp_lt_u32 {s(sI)}, {4+D}", f"s_cbranch_scc0 {l0d}")
        self.issue_unit()
        e(f"s_branch {l0}")
        self.label(l0d)
        lf, lfd, lfn = self.new("f"), self.new("fd"), self.new("fn")
        self.label(lf)
        e(f"ds_read_b64 v[14:15], {v(vFl)} offset:{F_QC}", f"ds_read_b32 v16, {v(vFl)} offset:{F_JD}", "s_waitcnt lgkmcnt(0)",
          "v_readfirstlane_b32 s90, v14", "v_readfirstlane_b32 s62, v15", "v_readfirstlane_b32 s63, v16", "s_nop 0",
          "s_lshl_b32 s63, s63, 2", "s_and_b32 s63, s63, s90")
        if "fullring" in self.x:
            e(f"s_cmp_eq_u32 {s(sI)}, 12", "s_cselect_b32 s63, s63, 0")
        e("s_cmp_eq_u32 s63, 4", f"s_cbranch_scc1 {lfd}",
          "s_cmp_eq_u32 s62, 0", f"s_cbranch_scc0 {lfn}",
          f"s_cmp_lt_u32 {s(sI)}, 12", f"s_cbranch_scc0 {lfn}")
        self.issue_unit()
        e(f"s_branch {lf}")
        self.label(lfn)
        e("s_sleep 1")
        self.spin_check()
        e(f"s_branch {lf}")
        self.label(lfd)
        self.tag_ready()
        self.stamp(2)

        def runahead():
            l = self.new("ra")
            e(f"s_lshl_b32 s62, {s(sN)}, 2", "s_add_u32 s62, s62, 12", f"s_cmp_lt_u32 {s(sI)}, s62", f"s_cbranch_scc0 {l}",
              f"s_cmp_eq_u32 {s(sStop)}, 0", f"s_cbranch_scc0 {l}")
            self.issue_unit()
            self.label(l)

        def finalize():
            self.c("last K tile of this batch: hand (max, sum) to the helper")
            e(f"v_mov_b32 {v(T)}, {v(M)}")
            for swp in ("v_permlane16_swap_b32", "v_permlane32_swap_b32"):
                e(f"v_mov_b32 {v(T+1)}, {v(T)}", "s_nop 1", f"{swp} {v(T+1)}, {v(T)}", f"v_max_f32 {v(T)}, {v(T+1)}, {v(T)}")
            e(f"v_sub_f32 {v(T+1)}, {v(M)}, {v(T)}", f"v_mul_f32 {v(T+1)}, {hex(LOG2E)}, {v(T+1)}",
              f"v_exp_f32 {v(T+1)}, {v(T+1)}", "s_nop 0", f"v_mul_f32 {v(Lr)}, {v(Lr)}, {v(T+1)}")
            for swp in ("v_permlane16_swap_b32", "v_permlane32_swap_b32"):
                e(f"v_mov_b32 {v(T+1)}, {v(Lr)}", "s_nop 1", f"{swp} {v(T+1)}, {v(Lr)}", f"v_add_f32 {v(Lr)}, {v(T+1)}, {v(Lr)}")
            e(f"v_mov_b32 {v(E)}, {v(T)}", f"v_mov_b32 {v(E+1)}, {v(Lr)}",
              f"s_lshr_b32 s63, {s(sN)}, 2", f"s_lshl_b32 s62, {s(S_W)}, 2", "s_add_u32 s62, s62, s63", "s_lshl_b32 s62, s62, 3",
              f"s_add_u32 s62, s62, {MLH}", "v_mov_b32 v13, s62", "s_add_u32 s63, s63, 1", "v_mov_b32 v14, s63",
              "s_mov_b64 exec, 1", f"ds_write_b64 v13, {vr(E,2)}", f"ds_write_b32 v18, v14 offset:{F_KD}", "s_mov_b64 exec, -1")

        def flush_acc():
            self.c("partial output of this batch -> LDS; the last of the four waves sums and publishes")
            e("s_sub_u32 s66, s70, 1")
            lsk = self.new("fs")
            e("s_cmp_eq_u32 s70, 0", f"s_cbranch_scc1 {lsk}")
            self.lds_wait_gt(vFl, F_OF, 13, 66, sleep=1)
            self.label(lsk)
            e("s_lshl_b32 s62, s70, 2", f"s_add_u32 s62, s62, {FLAGS+F_OC}", "v_mov_b32 v14, s62", "s_nop 4", "s_mov_b64 exec, 0xffff")
            for t in range(12):
                e(f"ds_write_b32 {v(vOw)}, {v(ACC+4*t)} offset:{64*t}")
            e("s_mov_b64 exec, 1", "ds_add_rtn_u32 v15, v14, v19", "s_mov_b64 exec, -1")
            self.try_issue()
            for i in range(48):
                e(f"v_mov_b32 {v(ACC+i)}, 0")
            lno = self.new("fn")
            e("s_waitcnt lgkmcnt(0)", "v_readfirstlane_b32 s62, v15", "s_nop 0", "s_cmp_eq_u32 s62, 3", f"s_cbranch_scc0 {lno}")
            for ww in range(4):
                for k in range(3):
                    e(f"ds_read_b32 {v(KF+4*ww+k)}, {v(vOr)} offset:{768*ww+4*k}")
            e(f"s_lshl_b32 s63, {s(S_H)}, 2", "s_add_u32 s63, s63, s70", "s_lshl_b32 s63, s63, 3", f"s_add_u32 s63, s63, {s(S_J)}",
              "s_lshl_b32 s63, s63, 10", f"s_add_u32 s63, s63, {OBUF}", "v_lshlrev_b32 v15, 4, v1", f"v_mov_b32 {v(E+3)}, {s(S_TAG)}",
              "s_waitcnt lgkmcnt(6)")
            for k in range(3):
                e(f"v_add_f32 {v(E+k)}, {v(KF+k)}, {v(KF+4+k)}")
            e("s_waitcnt lgkmcnt(0)")
            for k in range(3):
                e(f"v_add_f32 {v(KF+8+k)}, {v(KF+8+k)}, {v(KF+12+k)}")
            for k in range(3):
                e(f"v_add_f32 {v(E+k)}, {v(E+k)}, {v(KF+8+k)}")
            e(f"buffer_store_dwordx4 {vr(E,4)}, v15, {sr(SRD_WS,4)}, s63 offen sc1",
              "s_mov_b64 exec, 1", f"ds_add_u32 {v(vFl)}, v19 offset:{F_OF}", "s_mov_b64 exec, -1")
            self.label(lno)

        self.c("---- item loop")
        lloop, liss, lgo, lhave, lv, lnext, lfin = (self.new(x) for x in ("loop", "iss", "go", "have", "vit", "next", "fin"))
        self.label(lloop)
        e(f"s_lshl_b32 {s(sTgt)}, {s(sN)}, 2", f"s_add_u32 {s(sTgt)}, {s(sTgt)}, {4+D}")
        if self.N2 is not None:
            D2 = (self.N2 + 5)//3
            assert D2 <= 8
            e(f"s_cmp_ge_u32 {s(sN)}, {27+SL}", f"s_cselect_b32 s62, {D2-D}, 0", f"s_add_u32 {s(sTgt)}, {s(sTgt)}, s62")
        self.label(liss)
        e(f"s_cmp_lt_u32 {s(sI)}, {s(sTgt)}", f"s_cbranch_scc0 {lhave}",
          f"s_cmp_eq_u32 {s(sStop)}, 0", f"s_cbranch_scc0 {lgo}")
        self.issue_unit()
        e(f"s_branch {liss}")
        self.label(lgo)
        e(f"s_lshl_b32 s62, {s(sN)}, 2", f"s_cmp_eq_u32 s62, {s(sI)}", f"s_cbranch_scc1 {lfin}", "s_waitcnt vmcnt(0)")
        self.label(lhave)
        if self.diag:
            for kk in range(8):
                ls = self.new("ps")
                e(f"s_cmp_eq_u32 {s(sN)}, {4*kk}", f"s_cbranch_scc0 {ls}")
                self.stamp(8+kk)
                self.label(ls)
        e(f"s_cmp_lt_u32 {s(sN)}, 16", f"s_cbranch_scc0 {lv}")
        self.c("K tile: 32 scores")
        lq = self.new("kq")
        e(f"v_add_u32 v14, {s(sTile)}, v5", f"v_add_u32 v15, {s(sTile)}, v6",
          f"s_and_b32 s62, {s(sN)}, 3", f"s_cbranch_scc1 {lq}")
        e(f"s_lshr_b32 s62, {s(sN)}, 2", "s_mul_i32 s62, s62, 384", f"v_add_u32 v13, s62, {v(vQa)}")
        for ks in range(6):
            e(f"ds_read_b128 {vr(QF+4*ks,4)}, v13 offset:{64*ks}")
        e(f"v_mov_b32 {v(M)}, {hex(NINF)}", f"v_mov_b32 {v(Lr)}, 0", "s_waitcnt lgkmcnt(0)")
        self.label(lq)
        for ks in range(6):
            for blk in range(2):
                e(f"ds_read_b128 {vr(KF+8*ks+4*blk,4)}, {v(14+(ks&1))} offset:{blk*6144+(ks>>1)*128}")
        for ks in range(6):
            e(f"s_waitcnt lgkmcnt({10-2*ks})")
            for blk in range(2):
                c = "0" if ks == 0 else vr(D0+4*blk, 4)
                e(f"v_mfma_f32_16x16x32_bf16 {vr(D0+4*blk,4)}, {vr(KF+8*ks+4*blk,4)}, {vr(QF+4*ks,4)}, {c}")
        self.try_issue()
        e(f"s_lshl_b32 s62, {s(sN)}, 6", f"v_add_u32 v13, s62, {v(vSo)}", "s_nop 6")
        for i in range(0, 8, 2):
            e(f"v_cvt_pk_bf16_f32 {v(T)}, {v(D0+i)}, {v(D0+i+1)}")
            self.unpack(X+i, X+i+1, T)
            e(f"v_mul_f32 {v(X+i)}, {hex(SCALE)}, {v(X+i)}", f"v_mul_f32 {v(X+i+1)}, {hex(SCALE)}, {v(X+i+1)}",
              f"v_cvt_pk_bf16_f32 {v(Q+(i>>1))}, {v(X+i)}, {v(X+i+1)}")
            self.unpack(X+i, X+i+1, Q+(i>>1))
        e("s_mov_b32 exec_lo, 0x00010001", "s_mov_b32 exec_hi, 0x00010001",
          f"ds_write_b128 v13, {vr(Q,4)}", "s_mov_b64 exec, -1")
        self.try_issue()
        e(f"v_max3_f32 {v(T)}, {v(X)}, {v(X+1)}, {v(X+2)}", f"v_max3_f32 {v(T)}, {v(T)}, {v(X+3)}, {v(X+4)}",
          f"v_max3_f32 {v(T)}, {v(T)}, {v(X+5)}, {v(X+6)}", f"v_max3_f32 {v(T)}, {v(T)}, {v(X+7)}, {v(M)}",
          f"v_sub_f32 {v(T+1)}, {v(M)}, {v(T)}", f"v_mul_f32 {v(T+1)}, {hex(LOG2E)}, {v(T+1)}", f"v_mov_b32 {v(M)}, {v(T)}")
        for i in range(8):
            e(f"v_sub_f32 {v(E+i)}, {v(X+i)}, {v(M)}", f"v_mul_f32 {v(E+i)}, {hex(LOG2E)}, {v(E+i)}")
        e(f"v_exp_f32 {v(T+1)}, {v(T+1)}")
        for i in range(8):
            e(f"v_exp_f32 {v(E+i)}, {v(E+i)}")
        self.try_issue()
        e(f"v_mul_f32 {v(Lr)}, {v(Lr)}, {v(T+1)}")
        for i in range(0, 8, 2):
            e(f"v_add_f32 {v(E+i)}, {v(E+i)}, {v(E+i+1)}")
        e(f"v_add_f32 {v(E)}, {v(E)}, {v(E+2)}", f"v_add_f32 {v(E+4)}, {v(E+4)}, {v(E+6)}",
          f"v_add_f32 {v(E)}, {v(E)}, {v(E+4)}", f"v_add_f32 {v(Lr)}, {v(Lr)}, {v(E)}")
        e(f"s_and_b32 s62, {s(sN)}, 3", "s_cmp_eq_u32 s62, 3", f"s_cbranch_scc0 {lnext}")
        finalize()
        if self.diag:
            ls = self.new("st")
            e(f"s_cmp_eq_u32 {s(sN)}, 15", f"s_cbranch_scc0 {ls}")
            self.stamp(3)
            self.label(ls)
        e(f"s_branch {lnext}")
        self.label(lv)
        lpool, lp_ok, lst = self.new("vp"), self.new("vo"), self.new("vs")
        e(f"s_sub_u32 s66, {s(sN)}, 16", f"s_cmp_lt_u32 s66, {12+SL}", f"s_cbranch_scc0 {lpool}")
        e("s_and_b32 s62, s66, 3", f"s_cbranch_scc1 {lst}")
        e("s_lshr_b32 s67, s66, 2")
        self.c("first tile of a batch: its probabilities must be ready; keep the ring filling meanwhile")
        self.lds_wait_gt(18, F_PB, 13, 67, sleep=1, body=runahead)
        if self.diag:
            ls = self.new("st")
            e(f"s_cmp_eq_u32 {s(sN)}, 16", f"s_cbranch_scc0 {ls}")
            self.stamp(5)
            self.label(ls)
        self.label(lst)
        e(f"s_sub_u32 s62, {s(sN)}, 16", "s_lshl_b32 s62, s62, 6", f"v_add_u32 v13, s62, {v(vSo)}", f"s_branch {lp_ok}")
        self.label(lpool)
        self.lds_wait_gt(18, F_NP, 13, sPN, sleep=1, body=runahead)
        e(f"s_and_b32 s62, {s(sPN)}, 3", "s_lshl_b32 s62, s62, 6", "v_add_u32 v13, s62, v12", f"s_add_u32 {s(sPN)}, {s(sPN)}, 1")
        self.label(lp_ok)
        for u in range(4):
            e(f"v_add_u32 {v(14+u)}, {s(sTile)}, {v(7+u)}")
        e(f"ds_read_b128 {vr(PF,4)}, v13")
        def vread(t):
            a, u = t >> 2, t & 3
            e(f"ds_read_b64_tr_b16 {vr(KF+4*t,2)}, {v(14+u)} offset:{a*128}",
              f"ds_read_b64_tr_b16 {vr(KF+4*t+2,2)}, {v(14+u)} offset:{a*128+6144}")
        def vmf(t):
            e(f"v_mfma_f32_16x16x32_bf16 {vr(ACC+4*t,4)}, {vr(PF,4)}, {vr(KF+4*t,4)}, {vr(ACC+4*t,4)}")
        for t in range(6):
            vread(t)
        e("s_waitcnt lgkmcnt(6)")
        for t in range(3): vmf(t)
        self.try_issue()
        for t in range(6, 9): vread(t)
        e("s_waitcnt lgkmcnt(6)")
        for t in range(3, 6): vmf(t)
        for t in range(9, 12): vread(t)
        e("s_waitcnt lgkmcnt(6)")
        for t in range(6, 9): vmf(t)
        e("s_waitcnt lgkmcnt(0)")
        for t in range(9, 12): vmf(t)
        self.try_issue()
        self.c("end of batch 0..2: hand the partial output over")
        e(f"s_sub_u32 s62, {s(sN)}, 16", "s_cmp_lt_u32 s62, 12", f"s_cbranch_scc0 {lnext}",
          "s_and_b32 s63, s62, 3", "s_cmp_eq_u32 s63, 3", f"s_cbranch_scc0 {lnext}", "s_lshr_b32 s70, s62, 2")
        flush_acc()
        self.label(lnext)
        e(f"s_add_u32 {s(sTile)}, {s(sTile)}, 12288", f"s_cmp_eq_u32 {s(sTile)}, {s(sEnd)}",
          f"s_cselect_b32 {s(sTile)}, {s(sBase)}, {s(sTile)}",
          f"s_add_u32 {s(sN)}, {s(sN)}, 1", f"s_branch {lloop}")
        self.label(lfin)
        self.stamp(6)
        if self.diag:
            e(f"s_mov_b32 {s(S_STAMP0+4)}, {s(sN)}", f"s_add_u32 {s(S_STAMP0+4)}, {s(S_STAMP0+4)}, 1000")
        e("s_mov_b32 s70, 3")
        flush_acc()
        self.lds_flag_set(18, F_VE, 19)
        self.stamp(7)
        self.stamps_store()
        e("s_endpgm")

    def gemv64_loads(self, W):
        e = self.e
        e("s_mov_b32 s61, 0")
        for ks in range(5):
            for ee in range(8):
                r = W + 16*(ks+1) + 2*ee
                e(f"buffer_load_dwordx2 {vr(r,2)}, v4, {sr(SRD_A,4)}, s61 offen nt")
                if not (ks == 4 and ee == 7):
                    if ee < 7:
                        e("s_add_u32 s61, s61, s60")
                    else:
                        e("s_mul_i32 s62, s60, 25", "s_add_u32 s61, s61, s62")

    def gemv64_perm(self, W):
        e = self.e
        for ks in range(5):
            raw, fr = W + 16*(ks+1), W + 16*ks
            for f in range(4):
                d, hi = f >> 1, f & 1
                for q in range(4):
                    e(f"v_perm_b32 {v(fr+4*f+q)}, {v(raw+2*(2*q+1)+d)}, {v(raw+2*(2*q)+d)}, {s(S_SELHI if hi else S_SELLO)}")

    def gemv64_finish(self, W, AF, DD, vfl, vone, replicas=False):
        e = self.e
        for ks in range(5):
            e(f"ds_read_b128 {vr(AF+4*ks,4)}, v5 offset:{64*ks}")
        for ks in range(5):
            e(f"s_waitcnt lgkmcnt({4-ks})")
            for f in range(4):
                c = "0" if ks == 0 else vr(DD+4*f, 4)
                e(f"v_mfma_f32_16x16x32_bf16 {vr(DD+4*f,4)}, {vr(AF+4*ks,4)}, {vr(W+16*ks+4*f,4)}, {c}")
        e("s_nop 7", "s_nop 1")
        for f in range(4):
            e(f"v_mov_b32 {v(AF+f)}, {v(DD+4*f)}")
        e(f"s_lshl_b32 s62, {s(S_W)}, 10", f"s_add_u32 s62, s62, {SC}", "v_lshlrev_b32 v6, 4, v1",
          "v_add_u32 v7, s62, v6", f"ds_write_b128 v7, {vr(AF,4)}")
        self.sync4(vfl, F_SYNCR, vone, 8)
        l = self.new("gf")
        e(f"s_cmp_eq_u32 {s(S_W)}, 0", f"s_cbranch_scc0 {l}")
        e(f"v_add_u32 v7, {SC}, v6")
        for ww in range(4):
            e(f"ds_read_b128 {vr(AF+4*ww,4)}, v7 offset:{1024*ww}")
        e("s_waitcnt lgkmcnt(0)")
        for f in range(4):
            e(f"v_add_f32 {v(AF+f)}, {v(AF+f)}, {v(AF+4+f)}", f"v_add_f32 {v(AF+8+f)}, {v(AF+8+f)}, {v(AF+12+f)}")
        for f in range(4):
            e(f"v_add_f32 {v(AF+f)}, {v(AF+f)}, {v(AF+8+f)}")
        e(f"v_cvt_pk_bf16_f32 {v(AF+4)}, {v(AF)}, {v(AF+1)}", f"v_cvt_pk_bf16_f32 {v(AF+6)}, {v(AF+2)}, {v(AF+3)}",
          f"v_mov_b32 {v(AF+5)}, {s(S_TAG)}", f"v_mov_b32 {v(AF+7)}, {s(S_TAG)}",
          "v_lshrrev_b32 v6, 4, v1", "v_mul_lo_u32 v6, v6, s65", "v_and_b32 v7, 15, v1", "v_lshl_add_u32 v6, v7, 4, v6",
          )
        if replicas and self.RM > 1:
            self.c("shift / scale of the first layer norm go to eight copies: many workgroups poll them")
            lr_ = self.new("rp")
            e("s_cmp_lt_u32 s68, 20", f"s_cbranch_scc0 {lr_}",
              "v_lshrrev_b32 v8, 4, v1", "v_mul_u32_u24 v8, 5120, v8", "v_lshl_add_u32 v8, v7, 4, v8",
              "s_lshl_b32 s62, s68, 8", f"s_add_u32 s62, s62, {MODR}")
            for rp in range(self.RM):
                e(f"buffer_store_dwordx4 {vr(AF+4,4)}, v8, {sr(SRD_WS,4)}, s62 offen sc1")
                if rp < self.RM-1:
                    e("s_add_u32 s62, s62, 20480")
            self.label(lr_)
        e(f"buffer_store_dwordx4 {vr(AF+4,4)}, v6, {sr(SRD_WS,4)}, s64 offen sc1")
        self.label(l)

    def ln_stats(self, PX, XF, T):
        e = self.e
        for i in range(5):
            self.unpack(XF+2*i, XF+2*i+1, PX+i)
        e(f"v_add_f32 {v(T)}, {v(XF)}, {v(XF+1)}")
        for i in range(2, 10):
            e(f"v_add_f32 {v(T)}, {v(T)}, {v(XF+i)}")
        self.allreduce("add", T, T+1)
        e(f"v_mul_f32 {v(T)}, {hex(INV640)}, {v(T)}")
        e(f"v_sub_f32 {v(T+2)}, {v(XF)}, {v(T)}", f"v_mul_f32 {v(T+3)}, {v(T+2)}, {v(T+2)}")
        for i in range(1, 10):
            e(f"v_sub_f32 {v(T+2)}, {v(XF+i)}, {v(T)}", f"v_fmac_f32 {v(T+3)}, {v(T+2)}, {v(T+2)}")
        self.allreduce("add", T+3, T+1)
        e(f"v_mul_f32 {v(T+3)}, {hex(INV640)}, {v(T+3)}")
        self.round2(T, T+3, T+1)
        e(f"v_add_f32 {v(T+3)}, {hex(EPS)}, {v(T+3)}")
        e(f"v_cvt_pk_bf16_f32 {v(T+1)}, {v(T+3)}, {v(T+3)}", f"v_lshlrev_b32 {v(T+3)}, 16, {v(T+1)}",
          f"v_sqrt_f32 {v(T+3)}, {v(T+3)}", "s_nop 0",
          f"v_cvt_pk_bf16_f32 {v(T+1)}, {v(T+3)}, {v(T+3)}", f"v_lshlrev_b32 {v(T+3)}, 16, {v(T+1)}",
          f"v_rcp_f32 {v(T+3)}, {v(T+3)}", "s_nop 0")
        for i in range(0, 10, 2):
            e(f"v_sub_f32 {v(XF+i)}, {v(XF+i)}, {v(T)}", f"v_sub_f32 {v(XF+i+1)}, {v(XF+i+1)}, {v(T)}")
            self.round2(XF+i, XF+i+1, T+1)
            e(f"v_mul_f32 {v(XF+i)}, {v(XF+i)}, {v(T+3)}", f"v_mul_f32 {v(XF+i+1)}, {v(XF+i+1)}, {v(T+3)}")
            self.round2(XF+i, XF+i+1, T+1)

    def ln_fast(self, PX, XF, TD, T):
        e = self.e
        if PX is not None:
            for i in range(5):
                self.unpack(XF+2*i, XF+2*i+1, PX[i])
        e("s_nop 0", f"v_readfirstlane_b32 s90, {v(XF)}", "s_nop 0", "s_mov_b32 s91, s90")
        for i in range(5):
            e(f"v_pk_add_f32 {vr(TD+2*i,2)}, {vr(XF+2*i,2)}, s[90:91] neg_lo:[0,1] neg_hi:[0,1]")
        A, B = T, T+2
        e(f"v_pk_mul_f32 {vr(B,2)}, {vr(TD,2)}, {vr(TD,2)}", f"v_pk_add_f32 {vr(A,2)}, {vr(TD,2)}, {vr(TD+2,2)}",
          f"v_pk_fma_f32 {vr(B,2)}, {vr(TD+2,2)}, {vr(TD+2,2)}, {vr(B,2)}")
        for i in range(2, 5):
            e(f"v_pk_add_f32 {vr(A,2)}, {vr(A,2)}, {vr(TD+2*i,2)}",
              f"v_pk_fma_f32 {vr(B,2)}, {vr(TD+2*i,2)}, {vr(TD+2*i,2)}, {vr(B,2)}")
        e(f"v_add_f32 {v(A)}, {v(A)}, {v(A+1)}", f"v_add_f32 {v(B)}, {v(B)}, {v(B+1)}")
        for r in (8, 4, 2, 1):
            e("s_nop 0", f"v_add_f32_dpp {v(A)}, {v(A)}, {v(A)} row_ror:{r} row_mask:0xf bank_mask:0xf",
              f"v_add_f32_dpp {v(B)}, {v(B)}, {v(B)} row_ror:{r} row_mask:0xf bank_mask:0xf")
        for swp in ("v_permlane16_swap_b32", "v_permlane32_swap_b32"):
            e(f"v_mov_b32 {v(A+1)}, {v(A)}", f"v_mov_b32 {v(B+1)}, {v(B)}", "s_nop 1",
              f"{swp} {v(A+1)}, {v(A)}", f"{swp} {v(B+1)}, {v(B)}",
              f"v_add_f32 {v(A)}, {v(A+1)}, {v(A)}", f"v_add_f32 {v(B)}, {v(B+1)}, {v(B)}")
        e(f"v_mul_f32 {v(A)}, {hex(INV640)}, {v(A)}", f"v_mul_f32 {v(B)}, {hex(INV640)}, {v(B)}",
          f"v_fma_f32 {v(B)}, -{v(A)}, {v(A)}, {v(B)}", f"v_add_f32 {v(A)}, s90, {v(A)}", f"v_max_f32 {v(B)}, 0, {v(B)}",
          f"v_cvt_pk_bf16_f32 {v(A+1)}, {v(A)}, {v(B)}")
        self.unpack(A, B, A+1)
        e(f"v_add_f32 {v(B)}, {hex(EPS)}, {v(B)}",
          f"v_cvt_pk_bf16_f32 {v(B+1)}, {v(B)}, {v(B)}", f"v_lshlrev_b32 {v(B)}, 16, {v(B+1)}",
          f"v_sqrt_f32 {v(B)}, {v(B)}")
        for i in range(5):
            e(f"v_pk_add_f32 {vr(XF+2*i,2)}, {vr(XF+2*i,2)}, {vr(A,2)} op_sel_hi:[1,0] neg_lo:[0,1] neg_hi:[0,1]")
        e(f"v_cvt_pk_bf16_f32 {v(B+1)}, {v(B)}, {v(B)}", f"v_lshlrev_b32 {v(B)}, 16, {v(B+1)}", f"v_rcp_f32 {v(B)}, {v(B)}")
        for i in range(5):
            e(f"v_cvt_pk_bf16_f32 {v(TD+i)}, {v(XF+2*i)}, {v(XF+2*i+1)}")
        for i in range(5):
            self.unpack(XF+2*i, XF+2*i+1, TD+i)
        for i in range(5):
            e(f"v_pk_mul_f32 {vr(XF+2*i,2)}, {vr(XF+2*i,2)}, {vr(B,2)} op_sel_hi:[1,0]")
        for i in range(5):
            e(f"v_cvt_pk_bf16_f32 {v(TD+i)}, {v(XF+2*i)}, {v(XF+2*i+1)}")
        for i in range(5):
            self.unpack(XF+2*i, XF+2*i+1, TD+i)

    def modulate_fast(self, XF, C1, SH, TD, vaddr):
        e = self.e
        for i in range(5):
            e(f"v_pk_mul_f32 {vr(XF+2*i,2)}, {vr(XF+2*i,2)}, {vr(C1+2*i,2)}")
        for i in range(5):
            e(f"v_cvt_pk_bf16_f32 {v(TD+i)}, {v(XF+2*i)}, {v(XF+2*i+1)}")
        for i in range(5):
            self.unpack(XF+2*i, XF+2*i+1, TD+i)
        for i in range(5):
            e(f"v_pk_add_f32 {vr(XF+2*i,2)}, {vr(XF+2*i,2)}, {vr(SH+2*i,2)}")
        for i in range(5):
            e(f"v_cvt_pk_bf16_f32 {v(TD+i)}, {v(XF+2*i)}, {v(XF+2*i+1)}", f"ds_write_b32 {v(vaddr)}, {v(TD+i)} offset:{256*i}")

    def bad_lanes(self, tags, sdst, t):
        e = self.e
        assert len(tags) in (2, 4)
        for k, r in enumerate(tags):
            e(f"v_xor_b32 {v(t+k)}, {s(S_TAG)}, {v(r)}")
        if len(tags) == 4:
            e(f"v_or3_b32 {v(t)}, {v(t)}, {v(t+1)}, {v(t+2)}", f"v_or_b32 {v(t)}, {v(t)}, {v(t+3)}")
        else:
            e(f"v_or_b32 {v(t)}, {v(t)}, {v(t+1)}")
        e(f"v_cmp_ne_u32 {sr(sdst,2)}, 0, {v(t)}")

    def masked_gather(self, groups, t, init=None, care=None, sleep=0):
        e = self.e
        l, d = self.new("mg"), self.new("mgd")
        for (sp, _, _) in groups:
            if init is None:
                e(f"s_mov_b64 {sr(sp,2)}, -1")
            else:
                e(f"s_mov_b32 {s(sp)}, {hex(init[0])}", f"s_mov_b32 {s(sp+1)}, {hex(init[1])}")
        self.label(l)
        for (sp, loads, _) in groups:
            k = self.new("mk")
            e(f"s_mov_b64 exec, {sr(sp,2)}", f"s_cbranch_execz {k}")
            loads()
            self.label(k)
        e("s_mov_b64 exec, -1", "s_waitcnt vmcnt(0)")
        for (sp, _, tags) in groups:
            self.bad_lanes(tags, sp, t)
            if care is not None:
                e(f"s_and_b32 {s(sp)}, {s(sp)}, {hex(care[0])}", f"s_and_b32 {s(sp+1)}, {s(sp+1)}, {hex(care[1])}")
        e(f"s_mov_b64 s[90:91], {sr(groups[0][0],2)}")
        for (sp, _, _) in groups[1:]:
            e(f"s_or_b64 s[90:91], s[90:91], {sr(sp,2)}")
        e("s_cmp_eq_u64 s[90:91], 0", f"s_cbranch_scc1 {d}")
        if sleep:
            e(f"s_sleep {sleep}")
        self.spin_check()
        e(f"s_branch {l}")
        self.label(d)

    def poll2(self, loadsA, tagsA, useA, loadsB, tagsB, useB, nloads, t):
        e = self.e
        l, dA, dB, d = self.new("p2"), self.new("p2a"), self.new("p2b"), self.new("p2d")
        loadsA()
        loadsB()
        self.label(l)
        e(f"s_waitcnt vmcnt({nloads})")
        ra, rb = self.new("p2ra"), self.new("p2rb")
        self.tagcheck(tagsA, t, t+1, ra)
        e(f"s_branch {dA}")
        self.label(ra)
        loadsA()
        e(f"s_waitcnt vmcnt({nloads})")
        self.tagcheck(tagsB, t, t+1, rb)
        e(f"s_branch {dB}")
        self.label(rb)
        loadsB()
        self.spin_check()
        e(f"s_branch {l}")
        self.label(dA)
        useA()
        e(f"s_branch {d}")
        self.label(dB)
        useB()
        self.label(d)

    def modulate(self, XF, C1, SH, T, vaddr):
        e = self.e
        for i in range(5):
            a, b = XF+2*i, XF+2*i+1
            e(f"v_mul_f32 {v(a)}, {v(a)}, {v(C1+2*i)}", f"v_mul_f32 {v(b)}, {v(b)}, {v(C1+2*i+1)}")
            self.round2(a, b, T)
            e(f"v_add_f32 {v(a)}, {v(a)}, {v(SH+2*i)}", f"v_add_f32 {v(b)}, {v(b)}, {v(SH+2*i+1)}",
              f"v_cvt_pk_bf16_f32 {v(T)}, {v(a)}, {v(b)}", f"ds_write_b32 {v(vaddr)}, {v(T)} offset:{256*i}")

    def prep_mod_pair(self, G, C1, SH, T):
        e = self.e
        for i in range(5):
            self.unpack(SH+2*i, SH+2*i+1, G+2*i)
        for i in range(5):
            self.unpack(C1+2*i, C1+2*i+1, G+10+2*i)
            e(f"v_add_f32 {v(C1+2*i)}, 1.0, {v(C1+2*i)}", f"v_add_f32 {v(C1+2*i+1)}, 1.0, {v(C1+2*i+1)}")
            self.round2(C1+2*i, C1+2*i+1, T)

    def helper(self):
        e = self.e
        self.c("================= helper wave =================")
        e(f"s_sub_u32 {s(S_W)}, {s(S_W)}, 4")
        VFL, VONE = 2, 3
        W = 100
        PX, XF, T = 10, 16, 28
        G, C1, SH = 32, 56, 68
        AF, DD = 200, 220
        e(f"s_lshl_b32 s62, {s(S_W)}, 2", f"s_add_u32 s62, s62, {FLAGS}", f"v_mov_b32 {v(VFL)}, s62", f"v_mov_b32 {v(VONE)}, 1",
          f"v_mov_b32 v9, {FLAGS}")
        self.c("zero the LDS flags (helper 0)")
        l = self.new("zf")
        e(f"s_cmp_eq_u32 {s(S_W)}, 0", f"s_cbranch_scc0 {l}",
          "v_lshlrev_b32 v6, 2, v1", f"v_add_u32 v6, {FLAGS}, v6", "v_mov_b32 v7, 0",
          "ds_write_b32 v6, v7", "s_waitcnt lgkmcnt(0)")
        self.label(l)
        self.tag_load()
        self.c("work counters of this head: cleared by helper 0 of workgroup j == 0 (drained before q is published)")
        l = self.new("zc")
        e(f"s_cmp_eq_u32 {s(S_W)}, 0", f"s_cbranch_scc0 {l}", f"s_cmp_eq_u32 {s(S_J)}, 0", f"s_cbranch_scc0 {l}",
          f"s_lshl_b32 s62, {s(S_H)}, 7", f"s_add_u32 s62, s62, {CNTBUF}", "v_mov_b32 v6, 0", "v_mov_b32 v7, 0",
          "s_mov_b64 exec, 1", f"buffer_store_dword v7, v6, {sr(SRD_WS,4)}, s62 offen sc1", "s_mov_b64 exec, -1")
        self.label(l)
        self.c("prologue role: s67 = 0 none, 1 Q block, 2 MOD block")
        lq, lm, lr, lm7 = self.new("rq"), self.new("rm"), self.new("rr"), self.new("m7")
        e("s_mov_b32 s67, 0", f"s_cmp_lt_u32 {s(S_J)}, 3", f"s_cbranch_scc1 {lq}",
          f"s_cmp_lt_u32 {s(S_J)}, 5", f"s_cbranch_scc0 {lm7}",
          f"s_lshl_b32 s68, {s(S_H)}, 1", f"s_add_u32 s68, s68, {s(S_J)}", "s_sub_u32 s68, s68, 3",
          f"s_cmp_lt_u32 {s(S_H)}, 28", f"s_cbranch_scc1 {lm}", f"s_branch {lr}")
        self.label(lm7)
        e(f"s_add_u32 s68, {s(S_H)}, 56", f"s_cmp_eq_u32 {s(S_J)}, 7", f"s_cbranch_scc0 {lr}",
          f"s_cmp_lt_u32 {s(S_H)}, 4", f"s_cbranch_scc1 {lm}", f"s_branch {lr}")
        self.label(lq)
        e("s_mov_b32 s67, 1")
        if "qfirst" not in self.x:
            e("s_barrier")
        self.srd(SRD_A, S_WQ, 7864320)
        self.srd(SRD_B, S_X, 5120)
        e("s_mov_b32 s60, 12288", f"s_mul_i32 s68, {s(S_H)}, 3", f"s_add_u32 s68, s68, {s(S_J)}",
          "s_lshl_b32 s64, s68, 8", f"s_add_u32 s64, s64, {QBUF}", f"s_mov_b32 s65, {3072*8}")
        lcommon = self.new("rc")
        e(f"s_branch {lcommon}")
        self.label(lm)
        e("s_mov_b32 s67, 2")
        self.srd(SRD_A, S_WM, 4915200)
        self.srd(SRD_B, S_C, 5120)
        e("s_mov_b32 s60, 7680", "s_lshl_b32 s64, s68, 8", f"s_add_u32 s64, s64, {MODBUF}", f"s_mov_b32 s65, {1920*8}")
        self.label(lcommon)
        self.c("issue vector + weight loads")
        e(f"s_mul_i32 s62, {s(S_W)}, 1280", "v_lshlrev_b32 v6, 2, v1")
        for i in range(5):
            e(f"buffer_load_dword {v(PX+i)}, v6, {sr(SRD_B,4)}, s62 offen offset:{256*i}")
        e(f"s_mul_i32 s62, {s(S_W)}, 160", "v_lshrrev_b32 v4, 4, v1", "v_lshlrev_b32 v4, 3, v4", "v_add_u32 v4, s62, v4",
          "v_mul_lo_u32 v4, v4, s60", "v_and_b32 v7, 15, v1", "v_lshl_add_u32 v4, v7, 3, v4",
          "s_lshl_b32 s62, s68, 7", "v_add_u32 v4, s62, v4")
        self.gemv64_loads(W)
        lnb = self.new("nb")
        if "qfirst" not in self.x:
            e("s_cmp_eq_u32 s67, 1", f"s_cbranch_scc1 {lnb}")
        self.label(lr)
        e("s_barrier")
        self.label(lnb)
        self.tag_ready()
        self.stamp(1)
        self.c("A fragment address for the [4][640] vector: AVEC + b*1280 + w*320 + g*16")
        e("v_and_b32 v6, 15, v1", "v_lshrrev_b32 v6, 2, v6", "v_mul_u32_u24 v6, 1280, v6",
          "v_lshrrev_b32 v7, 4, v1", "v_lshl_add_u32 v6, v7, 4, v6",
          f"s_mul_i32 s62, {s(S_W)}, 320", f"s_add_u32 s62, s62, {AVEC}", "v_add_u32 v5, s62, v6")
        e(f"s_mul_i32 s62, {s(S_W)}, 1280", f"s_add_u32 s62, s62, {AVEC}", "v_lshlrev_b32 v6, 2, v1", "v_add_u32 v8, s62, v6",
          "v_mov_b32 v26, v8")
        lq2, lm2, lpq = self.new("q2"), self.new("m2"), self.new("pq")
        e("s_cmp_eq_u32 s67, 1", f"s_cbranch_scc1 {lq2}", "s_cmp_eq_u32 s67, 2", f"s_cbranch_scc1 {lm2}", f"s_branch {lpq}")
        self.label(lm2)
        e("s_waitcnt vmcnt(40)", "s_mov_b32 s91, 0x207")
        for i in range(5):
            a, b = XF, XF+1
            self.unpack(a, b, PX+i)
            for x in (a, b):
                e(f"v_mul_f32 {v(T)}, {hex(LOG2E ^ 0x80000000)}, {v(x)}", f"v_exp_f32 {v(T)}, {v(T)}", "s_nop 0",
                  f"v_add_f32 {v(T)}, 1.0, {v(T)}", f"v_rcp_f32 {v(T+1)}, {v(T)}", "s_nop 0",
                  f"v_mul_f32 {v(T+2)}, {v(x)}, {v(T+1)}",
                  f"v_fma_f32 {v(T+3)}, -{v(T+2)}, {v(T)}, {v(x)}",
                  f"v_cmp_class_f32 vcc, {v(T+3)}, s91",
                  f"v_fma_f32 {v(x)}, {v(T+3)}, {v(T+1)}, {v(T+2)}", "s_nop 0",
                  f"v_cndmask_b32 {v(x)}, {v(x)}, {v(T+2)}, vcc")
            e(f"v_cvt_pk_bf16_f32 {v(T)}, {v(a)}, {v(b)}", f"ds_write_b32 v26, {v(T)} offset:{256*i}")
        self.sync4(9, F_SYNCA, VONE, 8)
        e("s_waitcnt vmcnt(0)")
        self.stamp(2)
        self.gemv64_perm(W)
        self.gemv64_finish(W, AF, DD, 9, VONE, replicas=True)
        self.stamp(3)
        e(f"s_branch {lpq}")
        self.label(lq2)
        e("s_waitcnt vmcnt(40)")
        self.ln_fast([PX+i for i in range(5)], XF, 80, T)
        e("s_waitcnt vmcnt(0)")
        self.gemv64_perm(W)
        self.stamp(2)
        if self.RM > 1:
            e(f"s_and_b32 s62, s68, {self.RM-1}", "s_mul_i32 s62, s62, 20480", f"s_mul_i32 s63, {s(S_W)}, 5120", "s_add_u32 s62, s62, s63",
              f"s_add_u32 s62, s62, {MODR}", f"s_add_u32 s63, s62, {320*8}", "v_lshlrev_b32 v6, 3, v1")
        else:
            e(f"s_mul_i32 s62, {s(S_W)}, {1920*8}", f"s_add_u32 s62, s62, {MODBUF}", f"s_add_u32 s63, s62, {320*8}",
              "v_lshlrev_b32 v6, 3, v1")
        def ld_mod():
            for i in range(5):
                e(f"buffer_load_dwordx2 {vr(G+2*i,2)}, v6, {sr(SRD_WS,4)}, s62 offen offset:{512*i} sc1")
            for i in range(5):
                e(f"buffer_load_dwordx2 {vr(G+10+2*i,2)}, v6, {sr(SRD_WS,4)}, s63 offen offset:{512*i} sc1")
        if "pause" in self.x:
            self.lds_flag_set(9, F_PA, VONE)
        self.poll(ld_mod, [G+2*i+1 for i in range(10)], T, T+1)
        self.stamp(3)
        self.prep_mod_pair(G, C1, SH, T)
        self.modulate_fast(XF, C1, SH, 80, 26)
        self.sync4(9, F_SYNCA, VONE, 8)
        if "pause" in self.x:
            e("v_mov_b32 v8, 0")
            self.lds_flag_set(9, F_PA, 8)
        self.gemv64_finish(W, AF, DD, 9, VONE)
        self.stamp(4)
        self.label(lpq)
        l = self.new("jd")
        e(f"s_cmp_eq_u32 {s(S_W)}, 0", f"s_cbranch_scc0 {l}", "s_waitcnt lgkmcnt(0)")
        self.lds_flag_set(9, F_JD, VONE)
        self.label(l)
        WB = 36
        def load_wb():
            self.c("stage B weights: wo rows 192h+48w+.., columns 128j..")
            self.srd(SRD_A, S_WO, 7864320)
            e(f"s_mul_i32 s62, {s(S_H)}, 192", f"s_mul_i32 s63, {s(S_W)}, 48", "s_add_u32 s62, s62, s63",
              "v_lshrrev_b32 v6, 4, v1", "v_mul_u32_u24 v6, 3, v6", "v_add_u32 v6, s62, v6", "v_mul_u32_u24 v6, 1280, v6",
              "v_and_b32 v7, 15, v1", "v_lshl_add_u32 v6, v7, 4, v6", f"s_lshl_b32 s62, {s(S_J)}, 8", "v_add_u32 v6, s62, v6")
            for vv in range(12):
                sg, ee = vv >> 2, vv & 3
                e(f"s_mov_b32 s62, {(12*(vv//3)+vv%3)*1280}",
                  f"buffer_load_dwordx4 {vr(WB+16*(sg+1)+4*ee,4)}, v6, {sr(SRD_A,4)}, s62 offen nt")
            e("s_waitcnt vmcnt(0)")
            for sg in range(3):
                raw, fr = WB+16*(sg+1), WB+16*sg
                for cc in range(8):
                    for q in range(2):
                        e(f"v_perm_b32 {v(fr+2*cc+q)}, {v(raw+4*(2*q+1)+(cc>>1))}, {v(raw+4*(2*q)+(cc>>1))}, {s(S_SELHI if cc&1 else S_SELLO)}")
        WD, GBR = 100, 240
        WG, WU = 36, 84
        CC1, CSH = 140, 150
        RX, RG = 180, 182
        lc, ld, lnc, l6, l7, lrd = (self.new(x) for x in ("c", "d", "nc", "j6", "j7", "rd"))
        e("s_mov_b32 s69, 0", "s_mov_b32 s70, 0", f"s_cmp_lt_u32 {s(S_J)}, 5", f"s_cbranch_scc1 {lrd}")
        e(f"s_cmp_eq_u32 {s(S_J)}, 5", f"s_cbranch_scc0 {l6}", f"s_mov_b32 s68, {s(S_H)}", f"s_branch {lc}")
        self.label(l6)
        e(f"s_cmp_eq_u32 {s(S_J)}, 6", f"s_cbranch_scc0 {l7}",
          f"s_add_u32 s68, {s(S_H)}, 32", f"s_cmp_lt_u32 {s(S_H)}, 16", f"s_cbranch_scc1 {lc}",
          f"s_sub_u32 s68, {s(S_H)}, 16", f"s_branch {ld}")
        self.label(l7)
        e(f"s_sub_u32 s68, {s(S_H)}, 12", f"s_cmp_ge_u32 {s(S_H)}, 28", f"s_cbranch_scc1 {ld}", f"s_branch {lnc}")
        self.label(lc)
        e("s_mov_b32 s69, 1", f"s_branch {lrd}")
        self.label(ld)
        e("s_mov_b32 s69, 2", f"s_branch {lrd}")
        self.label(lnc)
        e(f"s_mul_i32 s71, {s(S_H)}, 3", f"s_add_u32 s71, s71, {s(S_W)}",
          "s_cmp_lt_u32 s71, 80", f"s_cbranch_scc0 {lrd}", f"s_cmp_lt_u32 {s(S_W)}, 3", f"s_cbranch_scc0 {lrd}",
          "s_mov_b32 s70, 1")
        self.label(lrd)

        def load_heavy(part):
            lnc2, lnd2 = self.new("hc"), self.new("hd")
            e("s_cmp_eq_u32 s69, 1", f"s_cbranch_scc0 {lnc2}")
            self.c("gate / up weights: rows 160w.., columns 32c..")
            base = (WG, WU)[part]
            self.srd(SRD_A, (S_G, S_U)[part], 1966080)
            e(f"s_mul_i32 s62, {s(S_W)}, 160", "v_lshrrev_b32 v6, 4, v1", "v_lshlrev_b32 v6, 3, v6", "v_add_u32 v6, s62, v6",
              "v_mul_u32_u24 v6, 3072, v6", "v_and_b32 v7, 15, v1", "v_lshl_add_u32 v6, v7, 2, v6",
              "s_lshl_b32 s62, s68, 6", "v_add_u32 v6, s62, v6")
            for ks in range(5):
                for ee in range(8):
                    e(f"s_mov_b32 s62, {(32*ks+ee)*3072}",
                      f"buffer_load_dword {v(base+8*(ks+1)+ee)}, v6, {sr(SRD_A,4)}, s62 offen nt")
            e("s_waitcnt vmcnt(0)")
            for ks in range(5):
                raw, fr = base+8*(ks+1), base+8*ks
                for hi in range(2):
                    for q in range(4):
                        e(f"v_perm_b32 {v(fr+4*hi+q)}, {v(raw+2*q+1)}, {v(raw+2*q)}, {s(S_SELHI if hi else S_SELLO)}")
            self.label(lnc2)
            e("s_cmp_eq_u32 s69, 2", f"s_cbranch_scc0 {lnd2}")
            self.c("down weights: rows 384w.., columns 32d..")
            self.srd(SRD_A, S_DN, 1966080)
            e(f"s_mul_i32 s62, {s(S_W)}, 384", "v_lshrrev_b32 v6, 4, v1", "v_lshlrev_b32 v6, 3, v6", "v_add_u32 v6, s62, v6",
              "v_mul_u32_u24 v6, 1280, v6", "v_and_b32 v7, 15, v1", "v_lshl_add_u32 v6, v7, 2, v6",
              "s_lshl_b32 s62, s68, 6", "v_add_u32 v6, s62, v6")
            half = part
            for ks in range(6*half, 6*half+6):
                for ee in range(8):
                    e(f"s_mov_b32 s62, {(32*ks+ee)*1280}",
                      f"buffer_load_dword {v(WD+8*(ks+1)+ee)}, v6, {sr(SRD_A,4)}, s62 offen nt")
            e("s_waitcnt vmcnt(0)")
            for ks in range(6*half, 6*half+6):
                raw, fr = WD+8*(ks+1), WD+8*ks
                for hi in range(2):
                    for q in range(4):
                        e(f"v_perm_b32 {v(fr+4*hi+q)}, {v(raw+2*q+1)}, {v(raw+2*q)}, {s(S_SELHI if hi else S_SELLO)}")
            self.label(lnd2)

        self.c("slices that are not needed before the tail: loaded while q is still on its way where the helper is free")
        lnb2 = self.new("nb2")
        e(f"s_cmp_ge_u32 {s(S_J)}, 3", f"s_cbranch_scc0 {lnb2}", f"s_cmp_lt_u32 {s(S_J)}, 5", f"s_cbranch_scc0 {lnb2}")
        load_wb()
        self.label(lnb2)
        if "heavylate" not in self.x:
            load_heavy(0)
            if "heavyall" in self.x:
                load_heavy(1)
        self.c("q of batch w of this head -> LDS")
        e(f"s_mul_i32 s62, {s(S_W)}, {3072*8}", f"s_mul_i32 s63, {s(S_H)}, {96*8}", "s_add_u32 s62, s62, s63",
          f"s_add_u32 s62, s62, {QBUF}", "v_lshlrev_b32 v6, 4, v1",
          "s_mov_b32 exec_lo, -1", "s_mov_b32 exec_hi, 0xffff")
        def ld_q():
            e(f"buffer_load_dwordx4 {vr(G,4)}, v6, {sr(SRD_WS,4)}, s62 offen sc1")
        self.poll(ld_q, [G+1, G+3], T, T+1, sleep=2)
        e(f"v_mov_b32 {v(G+1)}, {v(G+2)}", f"s_mul_i32 s62, {s(S_W)}, 384", f"s_add_u32 s62, s62, {QL}",
          "v_lshlrev_b32 v6, 3, v1", "v_add_u32 v6, s62, v6", f"ds_write_b64 v6, {vr(G,2)}",
          "s_mov_b64 exec, 1", f"ds_add_u32 v9, {v(VONE)} offset:{F_QC}", "s_mov_b64 exec, -1")
        self.stamp(5)
        lbd = self.new("bd")
        e(f"s_cmp_lt_u32 {s(S_J)}, 3", f"s_cbranch_scc0 {lbd}")
        load_wb()
        self.label(lbd)
        if "heavylate" in self.x:
            load_heavy(0)
        if "heavyall" not in self.x or "heavylate" in self.x:
            load_heavy(1)
        lmid, lpc, lpd = self.new("mid"), self.new("pc"), self.new("pd")
        e("s_cmp_eq_u32 s69, 1", f"s_cbranch_scc0 {lpc}")
        self.c("sb (segment 3), cb (segment 4) for batch w")
        G2 = 160
        e(f"s_mul_i32 s62, {s(S_W)}, {1920*8}", f"s_add_u32 s62, s62, {MODBUF+3*320*8}", f"s_add_u32 s63, s62, {320*8}",
          "v_lshlrev_b32 v6, 3, v1")
        def ld_mod2():
            for i in range(5):
                e(f"buffer_load_dwordx2 {vr(G2+2*i,2)}, v6, {sr(SRD_WS,4)}, s62 offen offset:{512*i} sc1")
            for i in range(5):
                e(f"buffer_load_dwordx2 {vr(G2+10+2*i,2)}, v6, {sr(SRD_WS,4)}, s63 offen offset:{512*i} sc1")
        self.poll(ld_mod2, [G2+2*i+1 for i in range(10)], T, T+1, sleep=8)
        self.prep_mod_pair(G2, CC1, CSH, T)
        e(f"s_branch {lmid}")
        self.label(lpc)
        e("s_cmp_eq_u32 s69, 2", f"s_cbranch_scc0 {lpd}")
        self.c("gb pairs for (b = lane>>4, pair 16d + (lane&15))")
        e("v_lshrrev_b32 v6, 4, v1", f"v_mul_u32_u24 v6, {1920*8}, v6", "v_and_b32 v7, 15, v1", "v_lshl_add_u32 v6, v7, 3, v6",
          "s_lshl_b32 s62, s68, 7", f"s_add_u32 s62, s62, {MODBUF+5*320*8}")
        def ld_gb():
            e(f"buffer_load_dwordx2 {vr(GBR,2)}, v6, {sr(SRD_WS,4)}, s62 offen sc1")
        self.poll(ld_gb, [GBR+1], T, T+1, sleep=8)
        e(f"s_branch {lmid}")
        self.label(lpd)
        e("s_cmp_eq_u32 s70, 1", f"s_cbranch_scc0 {lmid}")
        self.srd(SRD_B, S_X, 5120)
        e("v_and_b32 v7, 15, v1", "s_and_b32 s63, s71, 3", "s_lshr_b32 s64, s71, 2",
          "s_mul_i32 s62, s63, 1280", "s_lshl_b32 s65, s64, 6", "s_add_u32 s62, s62, s65", "v_lshlrev_b32 v8, 2, v7",
          f"buffer_load_dword {v(RX)}, v8, {sr(SRD_B,4)}, s62 offen",
          "v_lshlrev_b32 v8, 3, v7", f"s_mul_i32 s62, s63, {1920*8}", "s_lshl_b32 s65, s64, 7", "s_add_u32 s62, s62, s65",
          f"s_add_u32 s62, s62, {MODBUF+2*320*8}")
        def ld_ga():
            e(f"buffer_load_dwordx2 {vr(RG,2)}, v8, {sr(SRD_WS,4)}, s62 offen sc1")
        self.poll(ld_ga, [RG+1], T, T+1, sleep=8)
        self.label(lmid)
        self.stamp(6)
        SL = self.SL
        MLR = 12
        e(f"s_lshl_b32 s61, {s(S_J)}, 2", f"s_add_u32 s61, s61, {s(S_W)}",
          f"s_lshl_b32 s95, {s(S_W)}, 10", f"s_add_u32 s95, s95, {SC}")

        def publish_ml(bi):
            e(f"s_mov_b32 s60, {bi}")
            self.lds_wait_gt(VFL, F_KD, 8, 60, sleep=4)
            e(f"s_lshl_b32 s62, {s(S_W)}, 5", f"s_add_u32 s62, s62, {MLH+8*bi}",
              "v_mov_b32 v6, s62", f"ds_read_b64 {vr(MLR,2)}, v6",
              f"s_lshl_b32 s63, {s(S_H)}, 2", f"s_add_u32 s63, s63, {bi}", "s_lshl_b32 s63, s63, 9", f"s_add_u32 s63, s63, {MLBUF}",
              "s_lshl_b32 s62, s61, 4", "s_add_u32 s62, s62, s63",
              "s_waitcnt lgkmcnt(0)",
              f"v_mov_b32 {v(MLR+2)}, {v(MLR+1)}", f"v_mov_b32 {v(MLR+1)}, {s(S_TAG)}", f"v_mov_b32 {v(MLR+3)}, {s(S_TAG)}",
              "v_mov_b32 v6, 0", "s_mov_b64 exec, 1",
              f"buffer_store_dwordx4 {vr(MLR,4)}, v6, {sr(SRD_WS,4)}, s62 offen sc1", "s_mov_b64 exec, -1")
            if bi == 3 and SL < 4:
                self.c("last batch: publish the scores of this wave's pool tiles")
                e(f"s_add_u32 s62, s95, {(12+SL)*64}", "v_lshlrev_b32 v6, 2, v1", "v_add_u32 v6, s62, v6",
                  "ds_read_b32 v16, v6", f"v_mov_b32 v17, {s(S_TAG)}",
                  "v_lshrrev_b32 v7, 4, v1", "v_lshlrev_b32 v7, 12, v7", "v_and_b32 v8, 15, v1", "v_lshl_add_u32 v7, v8, 3, v7",
                  f"s_lshl_b32 s62, {s(S_H)}, 7", f"s_add_u32 s62, s62, {32*SL}", "s_add_u32 s62, s62, s61", "s_lshl_b32 s62, s62, 7",
                  f"s_add_u32 s62, s62, {SBUF}", "s_waitcnt lgkmcnt(0)")
                n = 16*(4-SL)
                if n < 64:
                    lo = (1 << min(n, 32)) - 1
                    hi = (1 << max(n-32, 0)) - 1
                    e(f"s_mov_b32 exec_lo, {hex(lo)}", f"s_mov_b32 exec_hi, {hex(hi)}")
                e(f"buffer_store_dwordx2 v[16:17], v7, {sr(SRD_WS,4)}, s62 offen sc1", "s_mov_b64 exec, -1")

        def make_p(bi):
            e(f"s_lshl_b32 s63, {s(S_H)}, 2", f"s_add_u32 s63, s63, {bi}", "s_lshl_b32 s63, s63, 9", f"s_add_u32 s63, s63, {MLBUF}",
              "v_lshlrev_b32 v6, 4, v1", "s_mov_b32 exec_lo, -1", "s_mov_b32 exec_hi, 0")
            def ld_ml():
                e(f"buffer_load_dwordx4 {vr(MLR,4)}, v6, {sr(SRD_WS,4)}, s63 offen sc1")
            self.poll(ld_ml, [MLR+1, MLR+3], T, T+1, sleep=8)
            e("s_mov_b64 exec, -1", f"v_cmp_gt_u32 vcc, 32, v1", f"v_mov_b32 v6, {hex(NINF)}", "v_mov_b32 v7, 0", "s_nop 0",
              f"v_cndmask_b32 {v(MLR)}, v6, {v(MLR)}, vcc", f"v_cndmask_b32 {v(MLR+2)}, v7, {v(MLR+2)}, vcc",
              f"v_mov_b32 v6, {v(MLR)}")
            self.allreduce("max", 6, 8)
            e(f"v_sub_f32 v7, {v(MLR)}, v6", f"v_mul_f32 v7, {hex(LOG2E)}, v7", "v_exp_f32 v7, v7", "s_nop 0",
              f"v_mul_f32 v7, v7, {v(MLR+2)}")
            self.allreduce("add", 7, 8)
            e("v_rcp_f32 v7, v7", "s_nop 1", "v_readfirstlane_b32 s92, v6", "v_readfirstlane_b32 s93, v7")
            self.c("probabilities of the four static tiles of this batch, in place of their scores")
            e(f"s_add_u32 s62, s95, {256*bi}", "v_lshlrev_b32 v6, 2, v1", "v_add_u32 v6, s62, v6",
              "ds_read_b32 v12, v6", "s_waitcnt lgkmcnt(0)")
            self.unpack(14, 15, 12)
            e("v_subrev_f32 v14, s92, v14", "v_subrev_f32 v15, s92, v15",
              f"v_mul_f32 v14, {hex(LOG2E)}, v14", f"v_mul_f32 v15, {hex(LOG2E)}, v15", "v_exp_f32 v14, v14", "v_exp_f32 v15, v15", "s_nop 0",
              "v_mul_f32 v14, s93, v14", "v_mul_f32 v15, s93, v15", "v_cvt_pk_bf16_f32 v12, v14, v15",
              f"v_mov_b32 v7, {bi+1}", "ds_write_b32 v6, v12",
              "s_mov_b64 exec, 1", f"ds_write_b32 {v(VFL)}, v7 offset:{F_PB}", "s_mov_b64 exec, -1")

        for bi in range(4):
            publish_ml(bi)
            if bi >= 1:
                make_p(bi-1)
        self.c("the last batch's statistics: once this workgroup has finished the first V batch")
        self.lds_wait(9, F_OF, 8, 1, sleep=4)
        make_p(3)
        self.stamp(7)
        if SL < 4:
            self.c("---- pool: claim tiles for the paired streamer and prepare their probabilities")
            e("s_mov_b32 s60, 0", "s_mov_b32 s59, 0", f"s_lshl_b32 s57, {s(S_W)}, 4", f"s_add_u32 s94, s57, {IDQ}", f"s_add_u32 s57, s57, {CLQ}",
              f"s_lshl_b32 s56, {s(S_H)}, 7", f"s_add_u32 s56, s56, {CNTBUF}",
              f"s_lshl_b32 s61, {s(S_H)}, 14", f"s_add_u32 s61, s61, {SBUF}",
              f"s_lshl_b32 s95, {s(S_W)}, 8", f"s_add_u32 s95, s95, {PSLOT}",
              "s_mov_b32 s58, 0", "s_mov_b32 s55, 0", "s_mov_b32 s52, 0", "v_mov_b32 v20, 0")
            lp, lpe = self.new("pp"), self.new("pe")
            self.label(lp)
            e("s_and_b32 s62, s60, 3", "s_lshl_b32 s62, s62, 2", "s_add_u32 s62, s62, s94", "v_mov_b32 v6, s62")
            self.lds_wait_gt(VFL, F_NV, 8, 60, sleep=1)
            lna, lnd_, lw0, lwx, lnl = (self.new(x) for x in ("na", "ndl", "w0", "wx", "nl"))
            e("ds_read_b32 v7, v6", "s_waitcnt lgkmcnt(0)", "v_readfirstlane_b32 s63, v7", "s_nop 0",
              "s_cmp_ge_u32 s63, 128", f"s_cbranch_scc1 {lpe}",
              "s_lshl_b32 s63, s63, 7", "s_add_u32 s63, s63, s61", "v_lshlrev_b32 v6, 3, v1")
            def ld_sc():
                e(f"buffer_load_dwordx2 v[12:13], v6, {sr(SRD_WS,4)}, s63 offen sc1")
            e("s_cmp_ge_u32 s60, 2", f"s_cbranch_scc0 {lnl}", "s_mov_b64 exec, 0xffff")
            ld_sc()
            self.label(lnl)
            e("s_mov_b32 s54, s58", "s_mov_b32 s58, 0", "s_cmp_eq_u32 s55, 0", f"s_cbranch_scc0 {lw0}",
              "s_mov_b64 exec, 1", "s_and_b32 s62, s60, 1", f"s_cbranch_scc1 {lna}",
              "v_mov_b32 v22, 1", f"buffer_atomic_add v22, v20, {sr(SRD_WS,4)}, s56 offen sc0 sc1", f"s_branch {lnd_}")
            self.label(lna)
            e("v_mov_b32 v23, 1", f"buffer_atomic_add v23, v20, {sr(SRD_WS,4)}, s56 offen sc0 sc1")
            self.label(lnd_)
            e("s_mov_b32 s58, 1", "s_waitcnt vmcnt(1)", f"s_branch {lwx}")
            self.label(lw0)
            e("s_waitcnt vmcnt(0)")
            self.label(lwx)
            self.c("deliver the claim issued one item earlier")
            lnc_, lod, lodx, lretry, lchk, lnp = (self.new(x) for x in ("ncl", "od", "odx", "pr", "pc", "np"))
            e("s_mov_b64 exec, 1", "s_cmp_eq_u32 s54, 1", f"s_cbranch_scc0 {lnc_}",
              "s_and_b32 s62, s60, 1", f"s_cbranch_scc1 {lod}",
              "v_readfirstlane_b32 s53, v23", f"s_branch {lodx}")
            self.label(lod)
            e("v_readfirstlane_b32 s53, v22")
            self.label(lodx)
            e("s_and_b32 s62, s59, 3", "s_lshl_b32 s62, s62, 2", "s_add_u32 s62, s62, s57", "v_mov_b32 v7, s62", "v_mov_b32 v8, s53",
              "s_add_u32 s59, s59, 1", "v_mov_b32 v14, s59", "ds_write_b32 v7, v8",
              f"ds_write_b32 {v(VFL)}, v14 offset:{F_NC}",
              f"s_cmp_ge_u32 s53, {32*(4-SL)}", "s_cselect_b32 s55, 1, s55")
            self.label(lnc_)
            e("s_cmp_ge_u32 s60, 2", f"s_cbranch_scc0 {lnp}", "s_mov_b64 exec, 0xffff")
            self.tagcheck([13], T, T+1, lretry)
            e(f"s_branch {lchk}")
            self.label(lretry)
            self.poll(ld_sc, [13], T, T+1)
            self.label(lchk)
            self.unpack(14, 15, 12)
            e("v_subrev_f32 v14, s92, v14", "v_subrev_f32 v15, s92, v15",
              f"v_mul_f32 v14, {hex(LOG2E)}, v14", f"v_mul_f32 v15, {hex(LOG2E)}, v15", "v_exp_f32 v14, v14", "v_exp_f32 v15, v15", "s_nop 0",
              "v_mul_f32 v14, s93, v14", "v_mul_f32 v15, s93, v15", "v_cvt_pk_bf16_f32 v12, v14, v15",
              "s_and_b32 s62, s52, 3", "s_lshl_b32 s62, s62, 6", "s_add_u32 s62, s62, s95",
              "v_lshlrev_b32 v6, 2, v1", "v_add_u32 v6, s62, v6", "s_add_u32 s52, s52, 1", "v_mov_b32 v7, s52",
              "ds_write_b32 v6, v12", "s_mov_b64 exec, 1", f"ds_write_b32 {v(VFL)}, v7 offset:{F_NP}")
            self.label(lnp)
            e("s_mov_b64 exec, -1", "s_add_u32 s60, s60, 1", f"s_branch {lp}")
            self.label(lpe)
            e("s_mov_b64 exec, -1")
        lhi2, ldone = self.new("hi2"), self.new("done")
        e(f"s_cmp_lt_u32 {s(S_J)}, 5", f"s_cbranch_scc0 {lhi2}")
        self.c("---- stage B: sum the 8 partials per batch, o @ wo")
        GB_ = 204
        FQ = 236
        OV, AB = 16, 28
        e("v_and_b32 v6, 15, v1", "v_lshrrev_b32 v7, 2, v6", "v_and_b32 v6, 3, v6",
          "v_lshl_add_u32 v6, v7, 3, v6", "v_lshlrev_b32 v6, 10, v6",
          "v_lshrrev_b32 v7, 4, v1", "v_lshl_add_u32 v4, v7, 4, v6",
          f"s_lshl_b32 s62, {s(S_H)}, 15", f"s_lshl_b32 s63, {s(S_W)}, 8", "s_add_u32 s62, s62, s63",
          f"s_add_u32 s62, s62, {OBUF}", "s_add_u32 s63, s62, 4096")
        e(f"s_lshl_b32 s64, {s(S_W)}, 11", f"s_add_u32 s64, s64, {RED2}", "v_lshlrev_b32 v5, 5, v1", "v_add_u32 v5, s64, v5")
        e("v_lshrrev_b32 v6, 4, v1", f"s_lshl_b32 s64, {s(S_W)}, 2", "v_add_u32 v6, s64, v6",
          "v_bfe_u32 v7, v1, 2, 2", "v_and_b32 v8, 3, v1",
          "v_lshl_add_u32 v9, v7, 4, v6", "v_lshlrev_b32 v9, 5, v9", "v_lshl_add_u32 v9, v8, 3, v9",
          "v_lshlrev_b32 v6, 13, v7", "v_lshrrev_b32 v7, 4, v1", "v_lshl_add_u32 v7, v7, 2, v8",
          "v_lshl_add_u32 v10, v7, 4, v6",
          f"s_lshl_b32 s64, {s(S_J)}, 2", f"s_add_u32 s64, s64, {s(S_W)}", "s_lshl_b32 s64, s64, 15",
          f"s_lshl_b32 s65, {s(S_H)}, 8", "s_add_u32 s64, s64, s65", f"s_add_u32 s64, s64, {ABUF}",
          f"v_mov_b32 {v(FQ+1)}, {s(S_TAG)}", f"v_mov_b32 {v(FQ+3)}, {s(S_TAG)}")
        def ld_o(js):
            def f():
                for ss in range(4):
                    e(f"buffer_load_dwordx4 {vr(GB_+16*js+4*ss,4)}, v4, {sr(SRD_WS,4)}, {'s63' if js else 's62'} offen offset:{64*ss} sc1")
            return f
        grp = [(36, ld_o(0), [GB_+4*k+3 for k in range(4)]), (38, ld_o(1), [GB_+16+4*k+3 for k in range(4)])]
        if "e1pre" in self.x:
            self.c("the partial outputs of batches 0..2 were published long ago")
            self.masked_gather(grp, T, init=(0x0fff0fff, 0x0fff0fff), care=(0x0fff0fff, 0x0fff0fff), sleep=8)
        self.lds_wait(VFL, F_VE, 8, 1, sleep=2)
        self.stamp(8)
        if "e1pre" in self.x:
            self.masked_gather(grp, T, init=(0xf000f000, 0xf000f000), care=(0xf000f000, 0xf000f000))
        else:
            self.masked_gather(grp, T)
        self.stamp(9)
        for ss in range(4):
            for p in range(3):
                e(f"v_add_f32 {v(OV+3*ss+p)}, {v(GB_+4*ss+p)}, {v(GB_+16+4*ss+p)}")
        for perm in ("[1,0,3,2]", "[2,3,0,1]"):
            for k in range(12):
                e(f"v_add_f32_dpp {v(OV+k)}, {v(OV+k)}, {v(OV+k)} quad_perm:{perm} row_mask:0xf bank_mask:0xf")
        for k in range(6):
            e(f"v_cvt_pk_bf16_f32 {v(AB+k)}, {v(OV+2*k)}, {v(OV+2*k+1)}")
        e("s_nop 0")
        DB = GB_
        for sg in range(3):
            for cc in range(8):
                c = "0" if sg == 0 else vr(DB+4*cc, 4)
                e(f"v_mfma_f32_16x16x16_bf16 {vr(DB+4*cc,4)}, {vr(AB+2*sg,2)}, {vr(WB+16*sg+2*cc,2)}, {c}")
        e("s_nop 1")
        for cc in range(8):
            e(f"v_mov_b32 {v(OV+cc)}, {v(DB+4*cc)}")
            if cc < 7:
                pass
        e(f"ds_write_b128 v5, {vr(OV,4)}", f"ds_write_b128 v5, {vr(OV+4,4)} offset:16", "s_waitcnt lgkmcnt(0)", "s_barrier")
        for ww in range(4):
            e(f"ds_read_b64 {vr(OV+2*ww,2)}, v9 offset:{RED2+2048*ww}")
        e("s_waitcnt lgkmcnt(2)", f"v_pk_add_f32 {vr(OV,2)}, {vr(OV,2)}, {vr(OV+2,2)}",
          "s_waitcnt lgkmcnt(0)", f"v_pk_add_f32 {vr(OV+4,2)}, {vr(OV+4,2)}, {vr(OV+6,2)}",
          f"v_add_f32 {v(FQ)}, {v(OV)}, {v(OV+4)}", f"v_add_f32 {v(FQ+2)}, {v(OV+1)}, {v(OV+5)}",
          f"buffer_store_dwordx4 {vr(FQ,4)}, v10, {sr(SRD_WS,4)}, s64 offen sc1")
        self.stamp(10)
        e(f"s_branch {ldone}")
        self.label(lhi2)
        lnd = self.new("nd")
        e("s_cmp_eq_u32 s69, 2", f"s_cbranch_scc0 {lnd}")
        self.c("---- stage D: hh @ w_down, residual, output")
        X1R = 34
        HGA, HGB = 204, 228
        e(f"v_mov_b32 v32, {v(GBR)}")
        e("v_lshrrev_b32 v6, 4, v1", f"v_mul_u32_u24 v6, {320*8}, v6", "v_and_b32 v7, 15, v1", "v_lshl_add_u32 v4, v7, 3, v6",
          "s_lshl_b32 s64, s68, 7", "s_and_b32 s65, s68, 3", "s_mul_i32 s65, s65, 10240", "s_add_u32 s64, s64, s65",
          f"s_add_u32 s64, s64, {X1BUF}")
        for i in range(6):
            e(f"v_add_u32 v6, {64*i}, v1", "v_mul_u32_u24 v7, 683, v6", "v_lshrrev_b32 v7, 16, v7",
              "v_mul_u32_u24 v8, 96, v7", "v_sub_u32 v8, v6, v8", f"v_mul_u32_u24 v7, {768*8}, v7",
              f"v_lshl_add_u32 {v(16+i)}, v8, 4, v7")
        e(f"s_mul_i32 s62, {s(S_W)}, {192*8}", f"s_add_u32 s62, s62, {HBUF}")
        if self.RH > 1:
            e("s_and_b32 s63, s68, 1", f"s_mul_i32 s63, s63, {HBUF2-HBUF}", "s_add_u32 s62, s62, s63")
        e(f"s_mul_i32 s63, {s(S_W)}, 3072", f"s_add_u32 s63, s63, {HST}", "v_lshlrev_b32 v6, 3, v1", "v_add_u32 v5, s63, v6",
          "v_and_b32 v7, 15, v1", "v_lshrrev_b32 v7, 2, v7", "v_mul_u32_u24 v7, 768, v7", "v_lshrrev_b32 v8, 4, v1",
          "v_lshl_add_u32 v7, v8, 4, v7", "v_add_u32 v9, s63, v7",
          f"s_lshl_b32 s63, {s(S_W)}, 9", f"s_add_u32 s63, s63, {RED2+8192}", "v_add_u32 v10, s63, v6",
          "v_mov_b32 v11, v6",
          "v_lshrrev_b32 v6, 4, v1", "v_mul_u32_u24 v6, 1280, v6", "v_and_b32 v7, 15, v1", "v_lshl_add_u32 v12, v7, 2, v6",
          "s_lshl_b32 s65, s68, 6")
        self.srd(SRD_B, S_OUT, 5120)
        self.lds_wait(VFL, F_VE, 8, 1, sleep=2)
        self.stamp(8)
        def ld_x1d():
            e(f"buffer_load_dwordx2 {vr(X1R,2)}, v4, {sr(SRD_WS,4)}, s64 offen sc1")
        self.poll(ld_x1d, [X1R+1], T, T+1, sleep=3)
        self.stamp(11)
        def ld_h(base):
            def f():
                for i in range(6):
                    e(f"buffer_load_dwordx4 {vr(base+4*i,4)}, {v(16+i)}, {sr(SRD_WS,4)}, s62 offen sc1")
            return f
        def use_h(base):
            def f():
                for i in range(6):
                    e(f"v_mov_b32 {v(base+4*i+1)}, {v(base+4*i+2)}", f"ds_write_b64 v5, {vr(base+4*i,2)} offset:{512*i}")
            return f
        if "e4s" in self.x:
            self.poll(ld_h(HGA), [HGA+4*i+k for i in range(6) for k in (1, 3)], T, T+1)
            use_h(HGA)()
        elif "e4m" in self.x:
            def ld_h2(k):
                def f():
                    for i in (2*k, 2*k+1):
                        e(f"buffer_load_dwordx4 {vr(HGA+4*i,4)}, {v(16+i)}, {sr(SRD_WS,4)}, s62 offen sc1")
                return f
            self.masked_gather([(sp, ld_h2(k), [HGA+8*k+1, HGA+8*k+3, HGA+8*k+5, HGA+8*k+7]) for k, sp in enumerate((36, 38, 48))], T)
            use_h(HGA)()
        else:
            self.poll2(ld_h(HGA), [HGA+4*i+k for i in range(6) for k in (1, 3)], use_h(HGA),
                       ld_h(HGB), [HGB+4*i+k for i in range(6) for k in (1, 3)], use_h(HGB), 6, T)
        self.stamp(12)
        AD = 36
        for ks in range(9):
            e(f"ds_read_b128 {vr(AD+4*ks,4)}, v9 offset:{64*ks}")
        DD2 = 24
        for ks in range(12):
            e(f"s_waitcnt lgkmcnt({min(8, 11-ks)})")
            for hi in range(2):
                c = "0" if ks == 0 else vr(DD2+4*hi, 4)
                e(f"v_mfma_f32_16x16x32_bf16 {vr(DD2+4*hi,4)}, {vr(AD+4*ks,4)}, {vr(WD+8*ks+4*hi,4)}, {c}")
            if ks + 9 < 12:
                e(f"ds_read_b128 {vr(AD+4*(ks+9),4)}, v9 offset:{64*(ks+9)}")
        e("s_nop 7", f"v_mov_b32 {v(DD2+1)}, {v(DD2+4)}", f"ds_write_b64 v10, {vr(DD2,2)}", "s_waitcnt lgkmcnt(0)", "s_barrier")
        e(f"s_cmp_eq_u32 {s(S_W)}, 0", f"s_cbranch_scc0 {ldone}")
        R = 12+4
        for ww in range(4):
            e(f"ds_read_b64 {vr(R+2*ww,2)}, v11 offset:{RED2+8192+512*ww}")
        self.unpack(24, 25, 32)
        self.unpack(26, 27, X1R)
        e("s_waitcnt lgkmcnt(2)", f"v_pk_add_f32 {vr(R,2)}, {vr(R,2)}, {vr(R+2,2)}",
          "s_waitcnt lgkmcnt(0)", f"v_pk_add_f32 {vr(R+4,2)}, {vr(R+4,2)}, {vr(R+6,2)}",
          f"v_pk_add_f32 {vr(R,2)}, {vr(R,2)}, {vr(R+4,2)}")
        self.round2(R, R+1, T)
        e(f"v_pk_mul_f32 {vr(R,2)}, {vr(R,2)}, v[24:25]")
        self.round2(R, R+1, T)
        e(f"v_pk_add_f32 {vr(R,2)}, {vr(R,2)}, v[26:27]", f"v_cvt_pk_bf16_f32 {v(R)}, {v(R)}, {v(R+1)}",
          f"buffer_store_dword {v(R)}, v12, {sr(SRD_B,4)}, s65 offen")
        self.c("the workgroup with d == 0 leaves this launch's tag for the next launch")
        e("s_cmp_eq_u32 s68, 0", f"s_cbranch_scc0 {ldone}",
          f"v_mov_b32 v6, {WS_EPOCH}", f"v_mov_b32 v7, {s(S_TAG)}", "s_mov_b64 exec, 1",
          f"buffer_store_dword v7, v6, {sr(SRD_WS,4)}, 0 offen sc1", "s_mov_b64 exec, -1")
        e(f"s_branch {ldone}")
        self.label(lnd)
        lnr2 = self.new("nr2")
        e("s_cmp_eq_u32 s70, 1", f"s_cbranch_scc0 {lnr2}")
        self.c("---- reducer: sum 32 head partials, residual, publish x1")
        RGm = 184
        e("v_lshlrev_b32 v4, 4, v1", "s_lshl_b32 s62, s71, 13", f"s_add_u32 s62, s62, {ABUF}", "s_add_u32 s63, s62, 4096",
          "v_lshrrev_b32 v6, 4, v1", "v_mul_u32_u24 v6, 10240, v6", "v_and_b32 v7, 15, v1", "v_lshl_add_u32 v5, v7, 3, v6",
          "s_and_b32 s64, s71, 3", f"s_mul_i32 s64, s64, {320*8}", "s_lshr_b32 s65, s71, 2", "s_lshl_b32 s65, s65, 7",
          "s_add_u32 s64, s64, s65", f"s_add_u32 s64, s64, {X1BUF}", f"v_mov_b32 v21, {s(S_TAG)}")
        self.unpack(24, 25, RG)
        self.unpack(26, 27, RX)
        self.lds_wait(VFL, F_VE, 8, 1, sleep=2)
        self.stamp(8)
        if "rgate" in self.x:
            self.c("gate: one of four heads has published its projection for these columns")
            lg, lgd = self.new("rg"), self.new("rgd")
            e("v_lshlrev_b32 v6, 3, v1", f"v_add_u32 v6, {s(S_H)}, v6", "v_and_b32 v6, 31, v6", "v_lshlrev_b32 v6, 8, v6", "s_mov_b64 exec, 15")
            self.label(lg)
            e(f"buffer_load_dwordx2 v[14:15], v6, {sr(SRD_WS,4)}, s62 offen sc1", "s_waitcnt vmcnt(0)",
              f"v_cmp_eq_u32 vcc, {s(S_TAG)}, v15", "s_nop 1", f"s_cbranch_vccnz {lgd}", "s_sleep 2")
            self.spin_check()
            e(f"s_branch {lg}")
            self.label(lgd)
            e("s_mov_b64 exec, -1")
        def ld_a(k):
            def f():
                for i in (2*k, 2*k+1):
                    e(f"buffer_load_dwordx4 {vr(RGm+4*i,4)}, v4, {sr(SRD_WS,4)}, {'s63' if i>=4 else 's62'} offen offset:{1024*(i&3)} sc1")
            return f
        self.masked_gather([(sp, ld_a(k), [RGm+8*k+1, RGm+8*k+3, RGm+8*k+5, RGm+8*k+7]) for k, sp in enumerate((36, 38, 44, 46))], T)
        self.stamp(9)
        a0, a1 = 16, 17
        e(f"v_add_f32 {v(a0)}, {v(RGm)}, {v(RGm+4)}", f"v_add_f32 {v(a1)}, {v(RGm+2)}, {v(RGm+6)}",
          f"v_add_f32 v18, {v(RGm+8)}, {v(RGm+12)}", f"v_add_f32 v19, {v(RGm+10)}, {v(RGm+14)}")
        for i in (4, 5):
            e(f"v_add_f32 {v(a0)}, {v(a0)}, {v(RGm+4*i)}", f"v_add_f32 {v(a1)}, {v(a1)}, {v(RGm+4*i+2)}",
              f"v_add_f32 v18, v18, {v(RGm+4*(i+2))}", f"v_add_f32 v19, v19, {v(RGm+4*(i+2)+2)}")
        e(f"v_pk_add_f32 {vr(a0,2)}, {vr(a0,2)}, v[18:19]")
        for swp in ("v_permlane16_swap_b32", "v_permlane32_swap_b32"):
            e(f"v_mov_b32 v18, {v(a0)}", f"v_mov_b32 v19, {v(a1)}", "s_nop 1",
              f"{swp} v18, {v(a0)}", f"{swp} v19, {v(a1)}",
              f"v_pk_add_f32 {vr(a0,2)}, v[18:19], {vr(a0,2)}")
        self.round2(a0, a1, T)
        e(f"v_pk_mul_f32 {vr(a0,2)}, {vr(a0,2)}, v[24:25]")
        self.round2(a0, a1, T)
        e(f"v_pk_add_f32 {vr(a0,2)}, {vr(a0,2)}, v[26:27]",
          f"v_cvt_pk_bf16_f32 v20, {v(a0)}, {v(a1)}",
          f"buffer_store_dwordx2 v[20:21], v5, {sr(SRD_WS,4)}, s64 offen sc1")
        self.stamp(10)
        e(f"s_branch {ldone}")
        self.label(lnr2)
        e("s_cmp_eq_u32 s69, 1", f"s_cbranch_scc0 {ldone}")
        self.c("---- stage C: LN2, gate/up, hh")
        XGA, XGB = 184, 194
        TD = 204
        AC, DC = 184, 216
        e(f"s_mul_i32 s62, {s(S_W)}, {320*8}", "s_and_b32 s63, s68, 3", "s_mul_i32 s63, s63, 10240", "s_add_u32 s62, s62, s63",
          f"s_add_u32 s62, s62, {X1BUF}", "v_lshlrev_b32 v4, 3, v1",
          f"s_lshl_b32 s63, {s(S_W)}, 10", f"s_add_u32 s63, s63, {RED2}", "v_lshlrev_b32 v10, 4, v1", "v_add_u32 v11, s63, v10",
          "v_lshrrev_b32 v6, 4, v1", f"v_mul_u32_u24 v6, {768*8}, v6", "v_and_b32 v7, 15, v1", "v_lshl_add_u32 v12, v7, 3, v6",
          "s_lshl_b32 s64, s68, 7", f"s_add_u32 s64, s64, {HBUF}", f"v_mov_b32 v33, {s(S_TAG)}")
        self.lds_wait(VFL, F_VE, 8, 1, sleep=2)
        self.stamp(8)
        self.c("gate: wave 0 watches the attention projection finish, then everybody polls x1")
        lg = self.new("gate")
        e(f"s_cmp_eq_u32 {s(S_W)}, 0", f"s_cbranch_scc0 {lg}",
          "s_lshl_b32 s63, s68, 13", f"s_add_u32 s63, s63, {ABUF}", "v_lshlrev_b32 v6, 8, v1",
          "s_mov_b32 exec_lo, -1", "s_mov_b32 exec_hi, 0")
        def ld_gate():
            e(f"buffer_load_dwordx2 v[14:15], v6, {sr(SRD_WS,4)}, s63 offen sc1")
        self.poll(ld_gate, [15], T, T+1, sleep=2)
        e("s_mov_b64 exec, -1")
        self.lds_flag_set(9, F_GT, VONE)
        self.label(lg)
        self.lds_wait(9, F_GT, 8, 1, sleep=1)
        def ld_x1(base):
            def f():
                for i in range(5):
                    e(f"buffer_load_dwordx2 {vr(base+2*i,2)}, v4, {sr(SRD_WS,4)}, s62 offen offset:{512*i} sc1")
            return f
        def use_x1(base):
            def f():
                for i in range(5):
                    self.unpack(XF+2*i, XF+2*i+1, base+2*i)
            return f
        if "e3s" in self.x:
            self.poll(ld_x1(XGA), [XGA+2*i+1 for i in range(5)], T, T+1)
            use_x1(XGA)()
        else:
            self.poll2(ld_x1(XGA), [XGA+2*i+1 for i in range(5)], use_x1(XGA), ld_x1(XGB), [XGB+2*i+1 for i in range(5)], use_x1(XGB), 5, T)
        self.stamp(11)
        self.ln_fast(None, XF, TD, T)
        self.modulate_fast(XF, CC1, CSH, TD, 26)
        e("s_waitcnt lgkmcnt(0)", "s_barrier")
        self.stamp(12)
        e("s_waitcnt vmcnt(0)")
        for ks in range(5):
            e(f"ds_read_b128 {vr(AC+4*ks,4)}, v5 offset:{64*ks}")
        for ks in range(5):
            e(f"s_waitcnt lgkmcnt({4-ks})")
            for mi, base in enumerate((WG, WU)):
                for hi in range(2):
                    d = DC+8*mi+4*hi
                    c = "0" if ks == 0 else vr(d, 4)
                    e(f"v_mfma_f32_16x16x32_bf16 {vr(d,4)}, {vr(AC+4*ks,4)}, {vr(base+8*ks+4*hi,4)}, {c}")
        e("s_nop 5")
        for k in range(4):
            e(f"v_mov_b32 {v(16+k)}, {v(DC+4*k)}")
        e("ds_write_b128 v11, v[16:19]", "s_waitcnt lgkmcnt(0)", "s_barrier")
        e(f"s_cmp_eq_u32 {s(S_W)}, 0", f"s_cbranch_scc0 {ldone}")
        for ww in range(4):
            e(f"ds_read_b128 {vr(AC+4*ww,4)}, v10 offset:{RED2+1024*ww}")
        e("s_waitcnt lgkmcnt(2)", f"v_pk_add_f32 {vr(AC,2)}, {vr(AC,2)}, {vr(AC+4,2)}", f"v_pk_add_f32 {vr(AC+2,2)}, {vr(AC+2,2)}, {vr(AC+6,2)}",
          "s_waitcnt lgkmcnt(0)", f"v_pk_add_f32 {vr(AC+8,2)}, {vr(AC+8,2)}, {vr(AC+12,2)}", f"v_pk_add_f32 {vr(AC+10,2)}, {vr(AC+10,2)}, {vr(AC+14,2)}",
          f"v_pk_add_f32 {vr(AC,2)}, {vr(AC,2)}, {vr(AC+8,2)}", f"v_pk_add_f32 {vr(AC+2,2)}, {vr(AC+2,2)}, {vr(AC+10,2)}",
          f"v_cvt_pk_bf16_f32 {v(T)}, {v(AC)}, {v(AC+1)}", f"v_cvt_pk_bf16_f32 {v(T+1)}, {v(AC+2)}, {v(AC+3)}")
        self.unpack(AC, AC+1, T)
        self.unpack(AC+2, AC+3, T+1)
        e(f"v_pk_mul_f32 {vr(AC,2)}, {vr(AC,2)}, {vr(AC+2,2)}", f"v_cvt_pk_bf16_f32 v32, {v(AC)}, {v(AC+1)}",
          f"buffer_store_dwordx2 v[32:33], v12, {sr(SRD_WS,4)}, s64 offen sc1")
        if self.RH > 1:
            e(f"s_add_u32 s64, s64, {HBUF2-HBUF}", f"buffer_store_dwordx2 v[32:33], v12, {sr(SRD_WS,4)}, s64 offen sc1")
        self.label(ldone)
        self.stamp(13)
        self.stamps_store()
        e("s_waitcnt vmcnt(0)", "s_endpgm")


def main():
    ap = argparse.ArgumentParser()
    ap.add_argument("-o", default="cdna_kernels/" + NAME + ".s")
    ap.add_argument("-D", type=int, default=3)
    ap.add_argument("--diag", action="store_true")
    ap.add_argument("--spin", type=int, default=400000)
    ap.add_argument("-x", default="")
    ap.add_argument("-N", type=int, default=None)
    ap.add_argument("--sv", type=int, default=16)
    ap.add_argument("--sk", type=int, default=16)
    ap.add_argument("--rot", type=int, default=0)
    ap.add_argument("--stag", default="0,32")
    ap.add_argument("--sl", type=int, default=4)
    ap.add_argument("--n2", type=int, default=None)
    ap.add_argument("--rm", type=int, default=1)
    ap.add_argument("--align", type=int, default=0)
    ap.add_argument("--nt", type=int, default=None)
    ap.add_argument("--rh", type=int, default=1)
    a = ap.parse_args()
    g = Gen(D=a.D, diag=a.diag, spin=a.spin, x=[t for t in a.x.split(',') if t], N=a.N, SV=a.sv, SK=a.sk, rot=a.rot, stag=tuple(int(t) for t in a.stag.split(',')), SL=a.sl, N2=a.n2, RM=a.rm, RH=a.rh, align=a.align, NT=a.nt)
    open(a.o, "w").write(g.build())
    print("wrote", a.o, len(g.L), "lines")


if __name__ == "__main__":
    main()
```

```python
import sys, argparse

NAME = "adaLN_cond__gqa_block_cached__glu_gated_bilinear__decode"
KERNEL = NAME + "_kernel"

WS_EPOCH = 0
MODBUF = 0x1000
QBUF   = 0x10000
X1BUF  = 0xF0000
HBUF   = 0x30000
HBUF2  = 0xFA000
MODR   = 0x300000
CNTBUF = 0x38000
ABUF   = 0x40000
MLBUF  = 0xE0000
OBUF   = 0x100000
SBUF   = 0x200000
STAMPS = 0x400000
WS_SIZE = 0x800000

RING_W = 36864
SC     = 147456
OSL    = SC + 4096
PSLOT  = SC + 7168
MISC   = 155648
AVEC   = MISC
QL     = MISC + 5120
MLH    = MISC + 6656
FLAGS  = MISC + 6784
IDQ    = MISC + 7040
CLQ    = MISC + 7104
LDS_TOTAL = 163840
F_SYNCA, F_SYNCR, F_JD, F_GT, F_QC, F_PA, F_OF, F_AL = 0, 4, 8, 12, 16, 20, 24, 28
F_KD, F_PB, F_OC, F_NV, F_NP, F_NC, F_VE = 32, 48, 64, 80, 96, 112, 128
RED2   = 0
HST    = 16384

S_X, S_K, S_V, S_WQ, S_WO, S_BX, S_G, S_U, S_DN, S_C, S_WM, S_OUT, S_DBG, S_WS = range(4, 32, 2)
S_TAG, S_W, S_H, S_J = 32, 33, 34, 35
SRD_A, SRD_WS, SRD_B, SRD_C = 36, 40, 44, 48
S_SPIN, S_SELLO, S_SELHI = 96, 97, 98
S_STAMP0 = 72

SCALE = 0x3d93cd3a
LOG2E = 0x3fb8aa3b
EPS = 0x3727c5ac
INV640 = 0x3acccccd
NINF = 0xff800000
TAGINC = 0x9E3779B9


def v(i): return f"v{i}"
def vr(i, n): return f"v[{i}:{i+n-1}]"
def s(i): return f"s{i}"
def sr(i, n): return f"s[{i}:{i+n-1}]"


class Gen:
    def __init__(self, D=3, diag=False, spin=400000, x=(), N=None, SV=16, SK=16, rot=0, stag=(0,0), SL=4, N2=None, RM=1, RH=1, align=0, NT=None, i0=16, e4sleep=0, A=2):
        self.A = A
        self.e4sleep = e4sleep
        self.i0 = i0
        self._NT = NT
        self.align = align
        self.RM = RM
        self.RH = RH
        self.SL = SL
        self.N2 = N2
        self.rot = rot
        self.stag = stag
        self.SV = SV
        self.SK = SK
        self.x = set(x)
        self.N = 3*(D-1) if N is None else N
        if N is not None:
            D = (N + 3 + 2)//3
        self.L = []
        self.nl = 0
        self.D = D
        self.NT = self.N if self._NT is None else self._NT
        self.diag = diag
        self.spin = spin
        self.nstamp = 0

    def e(self, *lines):
        for l in lines:
            self.L.append("    " + l)

    def c(self, text):
        self.L.append("    ; " + text)

    def label(self, name):
        self.L.append(name + ":")

    def new(self, base):
        self.nl += 1
        return f"L{base}_{self.nl}"

    def srd(self, dst, ptr, size):
        self.e(f"s_mov_b32 {s(dst)}, {s(ptr)}",
               f"s_and_b32 {s(dst+1)}, {s(ptr+1)}, 0xffff",
               f"s_mov_b32 {s(dst+2)}, {size}",
               f"s_mov_b32 {s(dst+3)}, 0x20000")

    def stamp(self, k):
        if not self.diag:
            return
        assert k < 16
        self.e("s_memrealtime s[88:89]", "s_waitcnt lgkmcnt(0)", f"s_mov_b32 {s(S_STAMP0+k)}, s88")

    def stamps_store(self):
        if not self.diag:
            return
        self.e("s_mov_b64 exec, -1")
        self.e("v_mov_b32 v250, 0")
        for k in range(16):
            self.e(f"v_writelane_b32 v250, {s(S_STAMP0+k)}, {k}")
        self.e("v_mbcnt_lo_u32_b32 v251, -1, 0", "v_mbcnt_hi_u32_b32 v251, -1, v251",
               "v_lshlrev_b32 v251, 2, v251",
               "s_lshl_b32 s88, s99, 6", f"s_add_u32 s88, s88, {STAMPS}",
               "s_mov_b64 exec, 0xffff",
               f"buffer_store_dword v250, v251, {sr(SRD_WS,4)}, s88 offen",
               "s_waitcnt vmcnt(0)")

    def tag_load(self):
        self.e(f"s_load_dword {s(S_TAG)}, {sr(S_WS,2)}, {WS_EPOCH}")
        if self.diag:
            self.e("s_memrealtime s[100:101]")

    def tag_ready(self):
        self.e("s_waitcnt lgkmcnt(0)", f"s_add_u32 {s(S_TAG)}, {s(S_TAG)}, {hex(TAGINC)}")
        if self.diag:
            self.e(f"s_mov_b32 {s(S_STAMP0)}, s100")

    def start_sync(self, streamer):
        self.e("s_barrier")

    def spin_check(self):
        self.e(f"s_sub_u32 {s(S_SPIN)}, {s(S_SPIN)}, 1", "s_cbranch_scc1 Labort")

    def allreduce(self, op, x, t):
        for r in (8, 4, 2, 1):
            self.e("s_nop 1", f"v_{op}_f32_dpp {v(x)}, {v(x)}, {v(x)} row_ror:{r} row_mask:0xf bank_mask:0xf")
        self.e(f"v_mov_b32 {v(t)}, {v(x)}", "s_nop 1", f"v_permlane16_swap_b32 {v(t)}, {v(x)}",
               f"v_{op}_f32 {v(x)}, {v(t)}, {v(x)}")
        self.e(f"v_mov_b32 {v(t)}, {v(x)}", "s_nop 1", f"v_permlane32_swap_b32 {v(t)}, {v(x)}",
               f"v_{op}_f32 {v(x)}, {v(t)}, {v(x)}")

    def unpack(self, lo, hi, src):
        self.e(f"v_lshlrev_b32 {v(lo)}, 16, {v(src)}", f"v_and_b32 {v(hi)}, 0xffff0000, {v(src)}")

    def round2(self, a, b, t):
        self.e(f"v_cvt_pk_bf16_f32 {v(t)}, {v(a)}, {v(b)}")
        self.unpack(a, b, t)

    def lds_flag_set(self, vfl, off, vone):
        self.e("s_mov_b64 exec, 1", f"ds_write_b32 {v(vfl)}, {v(vone)} offset:{off}", "s_mov_b64 exec, -1")

    def lds_wait(self, vfl, off, vt, target, sleep=1, body=None):
        l = self.new("w")
        d = self.new("wd")
        self.label(l)
        if body:
            body()
        self.e(f"ds_read_b32 {v(vt)}, {v(vfl)} offset:{off}", "s_waitcnt lgkmcnt(0)",
               f"v_readfirstlane_b32 s90, {v(vt)}", "s_nop 0",
               f"s_cmp_ge_u32 s90, {target}", f"s_cbranch_scc1 {d}")
        if sleep:
            self.e(f"s_sleep {sleep}")
        self.spin_check()
        self.e(f"s_branch {l}")
        self.label(d)

    def lds_wait_gt(self, vfl, off, vt, sreg, sleep=1, body=None):
        l, d = self.new("w"), self.new("wd")
        self.label(l)
        self.e(f"ds_read_b32 {v(vt)}, {v(vfl)} offset:{off}", "s_waitcnt lgkmcnt(0)",
               f"v_readfirstlane_b32 s90, {v(vt)}", "s_nop 0",
               f"s_cmp_gt_u32 s90, {s(sreg)}", f"s_cbranch_scc1 {d}")
        if body:
            body()
        if sleep:
            self.e(f"s_sleep {sleep}")
        self.spin_check()
        self.e(f"s_branch {l}")
        self.label(d)

    def sync4(self, vfl, off, vone, vt):
        self.e("s_mov_b64 exec, 1", f"ds_add_u32 {v(vfl)}, {v(vone)} offset:{off}", "s_mov_b64 exec, -1")
        self.lds_wait(vfl, off, vt, 4, sleep=0)

    def tagcheck(self, regs, acc, tmp, retry):
        first = True
        i = 0
        while i < len(regs):
            if first:
                self.e(f"v_xor_b32 {v(acc)}, {s(S_TAG)}, {v(regs[i])}")
                first = False
                i += 1
            elif i + 1 < len(regs):
                self.e(f"v_xor_b32 {v(tmp)}, {s(S_TAG)}, {v(regs[i])}",
                       f"v_xor_b32 {v(tmp+1)}, {s(S_TAG)}, {v(regs[i+1])}",
                       f"v_or3_b32 {v(acc)}, {v(acc)}, {v(tmp)}, {v(tmp+1)}")
                i += 2
            else:
                self.e(f"v_xor_b32 {v(tmp)}, {s(S_TAG)}, {v(regs[i])}",
                       f"v_or_b32 {v(acc)}, {v(acc)}, {v(tmp)}")
                i += 1
        self.e(f"v_cmp_ne_u32 vcc, 0, {v(acc)}", "s_nop 1", f"s_cbranch_vccnz {retry}")

    def poll(self, loads, tags, acc, tmp, sleep=0):
        l = self.new("poll")
        r = self.new("pollr")
        d = self.new("polld")
        self.e(f"s_branch {l}")
        self.label(r)
        if sleep:
            self.e(f"s_sleep {sleep}")
        self.spin_check()
        self.label(l)
        loads()
        self.e("s_waitcnt vmcnt(0)")
        self.tagcheck(tags, acc, tmp, r)
        self.label(d)

    def build(self):
        e = self.e
        hdr = open("cdna_kernels/" + NAME + ".s.ref").read().split("\n")
        for l in hdr:
            if l.startswith("; Override"):
                break
            self.L.append(l)
        self.L.append(f"; @launch grid=(256,1,1) block=(512,1,1) lds={LDS_TOTAL}")
        self.L.append('.amdgcn_target "amdgcn-amd-amdhsa--gfx950"')
        self.L.append(".text")
        self.L.append(f".globl {KERNEL}")
        self.L.append(".p2align 8")
        self.L.append(f".type {KERNEL},@function")
        self.label(KERNEL)
        e("s_cmp_ge_u32 s2, 256", "s_cbranch_scc1 Lexit")
        e("s_load_dwordx16 s[4:19], s[0:1], 0", "s_load_dwordx8 s[20:27], s[0:1], 64", "s_load_dwordx4 s[28:31], s[0:1], 96")
        e("v_lshrrev_b32 v2, 6, v0", "v_and_b32 v1, 63, v0", "s_nop 0", f"v_readfirstlane_b32 {s(S_W)}, v2")
        e(f"s_lshr_b32 {s(S_H)}, s2, 3", f"s_and_b32 {s(S_J)}, s2, 7")
        if self.rot:
            self.c("the workgroups of one head sit at different dispatch slots of the eight dies")
            e(f"s_mul_i32 s3, {s(S_J)}, {self.rot}", f"s_add_u32 {s(S_H)}, {s(S_H)}, s3", f"s_and_b32 {s(S_H)}, {s(S_H)}, 31")
        e(f"s_mov_b32 {s(S_SPIN)}, {self.spin}", f"s_mov_b32 {s(S_SELLO)}, 0x05040100", f"s_mov_b32 {s(S_SELHI)}, 0x07060302")
        if self.diag:
            e("s_lshl_b32 s99, s2, 3", f"s_add_u32 s99, s99, {s(S_W)}")
            for k in range(16):
                e(f"s_mov_b32 {s(S_STAMP0+k)}, 0")
        e("s_waitcnt lgkmcnt(0)")
        self.srd(SRD_WS, S_WS, WS_SIZE)
        e(f"s_cmp_ge_u32 {s(S_W)}, 4", "s_cbranch_scc1 Lhelper")
        self.streamer()
        self.label("Lhelper")
        self.helper()
        self.label("Labort")
        self.c("spin budget exhausted: leave a mark in d_debug and stop")
        e("s_mov_b64 exec, 1", "v_mov_b32 v2, 0", "v_mov_b32 v3, 0xdead",
          f"global_store_dword v2, v3, {sr(S_DBG,2)}", "s_waitcnt vmcnt(0)")
        self.label("Lexit")
        e("s_endpgm")
        self.L.append('.section .rodata,"a"')
        self.L.append(".p2align 6")
        self.L.append(f".amdhsa_kernel {KERNEL}")
        self.L += ["  .amdhsa_next_free_vgpr 256", "  .amdhsa_next_free_sgpr 102", "  .amdhsa_accum_offset 256",
                   "  .amdhsa_group_segment_fixed_size 0", "  .amdhsa_kernarg_size 112",
                   "  .amdhsa_user_sgpr_count 2", "  .amdhsa_user_sgpr_kernarg_segment_ptr 1",
                   "  .amdhsa_system_sgpr_workgroup_id_x 1", "  .amdhsa_float_denorm_mode_32 3",
                   ".end_amdhsa_kernel"]
        return "\n".join(self.L) + "\n"

    def take_claim(self, dst):
        e = self.e
        e("s_and_b32 s63, s64, 3", "s_lshl_b32 s63, s63, 2", "s_add_u32 s63, s63, s50", "v_mov_b32 v21, s63")
        self.lds_wait_gt(18, F_NC, 22, 64)
        e("ds_read_b32 v13, v21", "s_waitcnt lgkmcnt(0)", f"v_readfirstlane_b32 {s(dst)}, v13", "s_add_u32 s64, s64, 1")

    def issue_unit(self):
        e = self.e
        SL = self.SL
        sI, sSrc, sPos, sBase, sEnd, sStop, sHb = 52, 53, 54, 55, 56, 60, 61
        sNV, sCur = 65, 71
        lmid, lstop, ldone, ldyn, lhave, lnn = (self.new(x) for x in ("im", "is", "id", "iy", "ih", "nn"))
        e(f"s_and_b32 s62, {s(sI)}, 3", f"s_cbranch_scc1 {lmid}")
        e(f"s_lshr_b32 s62, {s(sI)}, 2", f"s_cmp_lt_u32 s62, {28+SL}", f"s_cbranch_scc0 {ldyn}")
        if self.align:
            self.c("the four waves of the workgroup start every align-th item together (adjacent tiles stay close in time)")
            lal = self.new("al")
            e(f"s_and_b32 s63, s62, {self.align-1}", f"s_cbranch_scc1 {lal}", "s_cmp_eq_u32 s62, 0", f"s_cbranch_scc1 {lal}",
              "s_add_u32 s51, s51, 4", "s_sub_u32 s66, s51, 1", "s_mov_b64 exec, 1", f"ds_add_u32 v178, v19 offset:{F_AL}", "s_mov_b64 exec, -1")
            self.lds_wait_gt(178, F_AL, 13, 66, sleep=0)
            e(f"s_lshr_b32 s62, {s(sI)}, 2")
            self.label(lal)
        self.c("static item: batch (m>>2)&3, tile 32*(m&3) + 4j + w")
        e("s_and_b32 s63, s62, 3", "s_lshl_b32 s63, s63, 5", f"s_add_u32 {s(sCur)}, s63, s48",
          "s_bfe_u32 s63, s62, 0x20002", "s_cmp_lt_u32 s62, 16",
          f"s_cselect_b32 {s(SRD_A)}, {s(S_K)}, {s(S_V)}", f"s_cselect_b32 {s(SRD_A+1)}, s92, s93", f"s_branch {lhave}")
        self.label(ldyn)
        if SL == 4:
            e(f"s_branch {lstop}")
        else:
            self.take_claim(sCur)
            e(f"s_cmp_ge_u32 {s(sCur)}, {32*(4-SL)}", f"s_cbranch_scc1 {lstop}", f"s_add_u32 {s(sCur)}, {s(sCur)}, {32*SL}",
              "s_mov_b32 s63, 3", f"s_lshr_b32 s62, {s(sI)}, 2")
        self.label(lhave)
        e("s_mul_i32 s63, s63, 50331648", f"s_add_u32 {s(sSrc)}, {s(sHb)}, s63",
          f"s_add_u32 s63, {s(sCur)}, s49", "s_and_b32 s63, s63, 127", "s_mul_i32 s63, s63, 12288", f"s_add_u32 {s(sSrc)}, {s(sSrc)}, s63")
        if SL < 4:
            self.c("from two items before the pool on, the helper follows the item starts")
            e(f"s_cmp_ge_u32 s62, {28-self.A+SL}", f"s_cbranch_scc0 {lmid}",
              f"s_and_b32 s62, {s(sNV)}, 3", "s_lshl_b32 s62, s62, 2", "s_add_u32 s62, s62, s94", "v_mov_b32 v13, s62",
              f"v_mov_b32 v21, {s(sCur)}", f"s_add_u32 {s(sNV)}, {s(sNV)}, 1", f"v_mov_b32 v22, {s(sNV)}",
              "s_mov_b64 exec, 1", "ds_write_b32 v13, v21", f"ds_write_b32 v18, v22 offset:{F_NV}", "s_mov_b64 exec, -1")
        self.label(lmid)
        if self.N2 is not None:
            lw1, lw2 = self.new("n1"), self.new("n2")
            e(f"s_cmp_lt_u32 {s(sI)}, {4*(28+SL)}", f"s_cbranch_scc1 {lw1}", f"s_waitcnt vmcnt({self.N2})", f"s_branch {lw2}")
            self.label(lw1)
            e(f"s_waitcnt vmcnt({self.N})")
            self.label(lw2)
        else:
            e(f"s_waitcnt vmcnt({self.N})")
        e(f"s_mov_b32 m0, {s(sPos)}",
          f"s_add_u32 {s(sPos)}, {s(sPos)}, 3072",
          f"buffer_load_dwordx4 v2, {sr(SRD_A,4)}, {s(sSrc)} offen nt lds",
          f"buffer_load_dwordx4 v3, {sr(SRD_A,4)}, {s(sSrc)} offen offset:1024 nt lds",
          f"buffer_load_dwordx4 v4, {sr(SRD_A,4)}, {s(sSrc)} offen offset:2048 nt lds",
          f"s_cmp_eq_u32 {s(sPos)}, {s(sEnd)}", f"s_cselect_b32 {s(sPos)}, {s(sBase)}, {s(sPos)}",
          f"s_add_u32 {s(sSrc)}, {s(sSrc)}, 3072",
          f"s_add_u32 {s(sI)}, {s(sI)}, 1", f"s_branch {ldone}")
        self.label(lstop)
        e(f"s_mov_b32 {s(sStop)}, 1")
        if SL < 4:
            e(f"s_and_b32 s62, {s(sNV)}, 3", "s_lshl_b32 s62, s62, 2", "s_add_u32 s62, s62, s94", "v_mov_b32 v13, s62",
              "v_mov_b32 v21, 0xffff", f"s_add_u32 {s(sNV)}, {s(sNV)}, 1", f"v_mov_b32 v22, {s(sNV)}",
              "s_mov_b64 exec, 1", "ds_write_b32 v13, v21", f"ds_write_b32 v18, v22 offset:{F_NV}", "s_mov_b64 exec, -1")
        self.label(ldone)

    def try_issue(self):
        if "try" not in self.x:
            return
        e = self.e
        sI, sSrc, sPos, sBase, sEnd = 52, 53, 54, 55, 56
        l = self.new("ti")
        e("s_getreg_b32 s63, hwreg(HW_REG_IB_STS, 0, 4)", f"s_cmp_le_u32 s63, {self.NT}", f"s_cbranch_scc0 {l}",
          f"s_and_b32 s63, {s(sI)}, 3", f"s_cbranch_scc0 {l}",
          f"s_waitcnt vmcnt({self.N})", f"s_mov_b32 m0, {s(sPos)}", f"s_add_u32 {s(sPos)}, {s(sPos)}, 3072",
          f"buffer_load_dwordx4 v2, {sr(SRD_A,4)}, {s(sSrc)} offen nt lds",
          f"buffer_load_dwordx4 v3, {sr(SRD_A,4)}, {s(sSrc)} offen offset:1024 nt lds",
          f"buffer_load_dwordx4 v4, {sr(SRD_A,4)}, {s(sSrc)} offen offset:2048 nt lds",
          f"s_cmp_eq_u32 {s(sPos)}, {s(sEnd)}", f"s_cselect_b32 {s(sPos)}, {s(sBase)}, {s(sPos)}",
          f"s_add_u32 {s(sSrc)}, {s(sSrc)}, 3072", f"s_add_u32 {s(sI)}, {s(sI)}, 1")
        self.label(l)

    def try2(self):
        if "try2" in self.x:
            self.try_issue()

    def streamer(self):
        e = self.e
        D, SL = self.D, self.SL
        sI, sSrc, sPos, sBase, sEnd, sN, sTile, sTgt, sStop, sHb = 52, 53, 54, 55, 56, 57, 58, 59, 60, 61
        sNV, sPN, sCur = 65, 69, 71
        QF, KF, D0, ACC, PF = 24, 48, 96, 104, 152
        X, T = 156, 164
        vSo, vQa, vOw, vOr, vFl = 180, 181, 182, 183, 178
        Q = 184
        M, Lr, E = 192, 193, 196
        self.c("================= streamer wave =================")
        self.tag_load()
        e(f"s_mul_i32 {s(sHb)}, {s(S_H)}, 1572864",
          f"s_and_b32 s92, {s(S_K+1)}, 0xffff", f"s_and_b32 s93, {s(S_V+1)}, 0xffff",
          f"s_lshl_b32 s94, {s(S_W)}, 4", f"s_add_u32 s50, s94, {CLQ}", f"s_add_u32 s94, s94, {IDQ}",
          f"s_lshl_b32 s48, {s(S_J)}, 2", f"s_add_u32 s48, s48, {s(S_W)}",
          f"s_mul_i32 s49, {s(S_H)}, {self.stag[1]}", "s_mov_b32 s64, 0", "s_mov_b32 s51, 0")
        self.srd(SRD_A, S_K, 201326592)
        e(f"s_mov_b32 {s(sSrc)}, 0", f"s_mov_b32 {s(sI)}, 0", f"s_mul_i32 {s(sBase)}, {s(S_W)}, {RING_W}",
          f"s_mov_b32 {s(sPos)}, {s(sBase)}", f"s_add_u32 {s(sEnd)}, {s(sBase)}, {RING_W}",
          f"s_mov_b32 {s(sTile)}, {s(sBase)}", f"s_mov_b32 {s(sStop)}, 0",
          f"s_mov_b32 {s(sNV)}, 0", f"s_mov_b32 {s(sPN)}, 0", f"s_mov_b32 {s(sN)}, 0", f"s_mov_b32 {s(sCur)}, 0")
        self.c("DMA source offsets (xor swizzle of 16-byte chunks inside each row)")
        for i in range(3):
            e(f"v_add_u32 v13, {64*i}, v1", "v_mul_u32_u24 v14, 2731, v13", "v_lshrrev_b32 v14, 16, v14",
              "v_mul_u32_u24 v15, 24, v14", "v_sub_u32 v15, v13, v15", "v_and_b32 v16, 7, v14",
              "v_xor_b32 v15, v15, v16", "v_mul_u32_u24 v14, 384, v14", f"v_lshl_add_u32 {v(2+i)}, v15, 4, v14")
            if i:
                e(f"v_subrev_u32 {v(2+i)}, {1024*i}, {v(2+i)}")
        self.c("K fragment addresses")
        e("v_and_b32 v13, 15, v1", "v_lshrrev_b32 v14, 4, v1", "v_and_b32 v15, 7, v13", "v_mul_u32_u24 v13, 384, v13")
        for x in range(2):
            e(f"v_add_u32 v16, {4*x}, v14", "v_xor_b32 v16, v16, v15", f"v_lshl_add_u32 {v(5+x)}, v16, 4, v13")
        self.c("V fragment addresses")
        e("v_lshrrev_b32 v13, 2, v1", "v_and_b32 v15, 7, v13", "v_mul_u32_u24 v13, 384, v13",
          "v_and_b32 v16, 1, v1", "v_lshl_add_u32 v13, v16, 3, v13", "v_bfe_u32 v16, v1, 1, 1")
        for u in range(4):
            e(f"v_add_u32 v17, {2*u}, v16", "v_xor_b32 v17, v17, v15", f"v_lshl_add_u32 {v(7+u)}, v17, 4, v13")
        self.c("score / probability / q / partial output addresses, flags")
        e("v_lshlrev_b32 v13, 4, v14",
          f"s_lshl_b32 s62, {s(S_W)}, 8", f"s_add_u32 s62, s62, {PSLOT}", "v_add_u32 v12, s62, v13",
          f"s_lshl_b32 s62, {s(S_W)}, 10", f"s_add_u32 s62, s62, {SC}", f"v_add_u32 {v(vSo)}, s62, v13",
          f"v_add_u32 {v(vQa)}, {QL}, v13",
          f"s_mul_i32 s62, {s(S_W)}, 768", f"s_add_u32 s62, s62, {OSL}",
          "v_and_b32 v15, 15, v1", "v_lshlrev_b32 v15, 2, v15", f"v_add_u32 {v(vOw)}, s62, v15",
          "v_mul_u32_u24 v15, 12, v1", f"v_add_u32 {v(vOr)}, {OSL}, v15",
          f"s_lshl_b32 s63, {s(S_W)}, 2", f"s_add_u32 s63, s63, {FLAGS}",
          "v_mov_b32 v18, s63", "v_mov_b32 v19, 1", f"v_mov_b32 {v(vFl)}, {FLAGS}")
        for i in range(48):
            e(f"v_mov_b32 {v(ACC+i)}, 0")
        e("s_barrier")
        self.c("---- fill the ring while the helpers fetch q")
        l0, l0d = self.new("f0"), self.new("f0d")
        self.label(l0)
        e(f"s_cmp_lt_u32 {s(sI)}, {4+D}", f"s_cbranch_scc0 {l0d}")
        self.issue_unit()
        e(f"s_branch {l0}")
        self.label(l0d)
        lf, lfd, lfn = self.new("f"), self.new("fd"), self.new("fn")
        self.label(lf)
        e(f"ds_read_b64 v[14:15], {v(vFl)} offset:{F_QC}", f"ds_read_b32 v16, {v(vFl)} offset:{F_JD}", "s_waitcnt lgkmcnt(0)",
          "v_readfirstlane_b32 s90, v14", "v_readfirstlane_b32 s62, v15", "v_readfirstlane_b32 s63, v16", "s_nop 0",
          "s_lshl_b32 s63, s63, 2", "s_and_b32 s63, s63, s90")
        if "fullring" in self.x:
            e(f"s_cmp_eq_u32 {s(sI)}, 12", "s_cselect_b32 s63, s63, 0")
        e("s_cmp_eq_u32 s63, 4", f"s_cbranch_scc1 {lfd}",
          "s_cmp_eq_u32 s62, 0", f"s_cbranch_scc0 {lfn}",
          f"s_cmp_lt_u32 {s(sI)}, 12", f"s_cbranch_scc0 {lfn}")
        self.issue_unit()
        e(f"s_branch {lf}")
        self.label(lfn)
        e("s_sleep 1")
        self.spin_check()
        e(f"s_branch {lf}")
        self.label(lfd)
        self.tag_ready()
        self.stamp(2)

        def runahead():
            l = self.new("ra")
            e(f"s_lshl_b32 s62, {s(sN)}, 2", "s_add_u32 s62, s62, 12", f"s_cmp_lt_u32 {s(sI)}, s62", f"s_cbranch_scc0 {l}",
              f"s_cmp_eq_u32 {s(sStop)}, 0", f"s_cbranch_scc0 {l}")
            self.issue_unit()
            self.label(l)

        def finalize():
            self.c("last K tile of this batch: hand (max, sum) to the helper")
            e(f"v_mov_b32 {v(T)}, {v(M)}")
            for swp in ("v_permlane16_swap_b32", "v_permlane32_swap_b32"):
                e(f"v_mov_b32 {v(T+1)}, {v(T)}", "s_nop 1", f"{swp} {v(T+1)}, {v(T)}", f"v_max_f32 {v(T)}, {v(T+1)}, {v(T)}")
            e(f"v_sub_f32 {v(T+1)}, {v(M)}, {v(T)}", f"v_mul_f32 {v(T+1)}, {hex(LOG2E)}, {v(T+1)}",
              f"v_exp_f32 {v(T+1)}, {v(T+1)}", "s_nop 0", f"v_mul_f32 {v(Lr)}, {v(Lr)}, {v(T+1)}")
            for swp in ("v_permlane16_swap_b32", "v_permlane32_swap_b32"):
                e(f"v_mov_b32 {v(T+1)}, {v(Lr)}", "s_nop 1", f"{swp} {v(T+1)}, {v(Lr)}", f"v_add_f32 {v(Lr)}, {v(T+1)}, {v(Lr)}")
            e(f"v_mov_b32 {v(E)}, {v(T)}", f"v_mov_b32 {v(E+1)}, {v(Lr)}",
              f"s_lshr_b32 s63, {s(sN)}, 2", f"s_lshl_b32 s62, {s(S_W)}, 2", "s_add_u32 s62, s62, s63", "s_lshl_b32 s62, s62, 3",
              f"s_add_u32 s62, s62, {MLH}", "v_mov_b32 v13, s62", "s_add_u32 s63, s63, 1", "v_mov_b32 v14, s63",
              "s_mov_b64 exec, 1", f"ds_write_b64 v13, {vr(E,2)}", f"ds_write_b32 v18, v14 offset:{F_KD}", "s_mov_b64 exec, -1")

        def flush_acc():
            self.c("partial output of this batch -> LDS; the last of the four waves sums and publishes")
            e("s_sub_u32 s66, s70, 1")
            lsk = self.new("fs")
            e("s_cmp_eq_u32 s70, 0", f"s_cbranch_scc1 {lsk}")
            self.lds_wait_gt(vFl, F_OF, 13, 66, sleep=1)
            self.label(lsk)
            e("s_lshl_b32 s62, s70, 2", f"s_add_u32 s62, s62, {FLAGS+F_OC}", "v_mov_b32 v14, s62", "s_nop 4", "s_mov_b64 exec, 0xffff")
            for t in range(12):
                e(f"ds_write_b32 {v(vOw)}, {v(ACC+4*t)} offset:{64*t}")
            e("s_mov_b64 exec, 1", "ds_add_rtn_u32 v15, v14, v19", "s_mov_b64 exec, -1")
            self.try_issue()
            for i in range(48):
                e(f"v_mov_b32 {v(ACC+i)}, 0")
                if i in (15, 31, 47):
                    self.try2()
            lno = self.new("fn")
            e("s_waitcnt lgkmcnt(0)", "v_readfirstlane_b32 s62, v15", "s_nop 0", "s_cmp_eq_u32 s62, 3", f"s_cbranch_scc0 {lno}")
            self.try2()
            for ww in range(4):
                for k in range(3):
                    e(f"ds_read_b32 {v(KF+4*ww+k)}, {v(vOr)} offset:{768*ww+4*k}")
            e(f"s_lshl_b32 s63, {s(S_H)}, 2", "s_add_u32 s63, s63, s70", "s_lshl_b32 s63, s63, 3", f"s_add_u32 s63, s63, {s(S_J)}",
              "s_lshl_b32 s63, s63, 10", f"s_add_u32 s63, s63, {OBUF}", "v_lshlrev_b32 v15, 4, v1", f"v_mov_b32 {v(E+3)}, {s(S_TAG)}",
              "s_waitcnt lgkmcnt(6)")
            for k in range(3):
                e(f"v_add_f32 {v(E+k)}, {v(KF+k)}, {v(KF+4+k)}")
            e("s_waitcnt lgkmcnt(0)")
            for k in range(3):
                e(f"v_add_f32 {v(KF+8+k)}, {v(KF+8+k)}, {v(KF+12+k)}")
            for k in range(3):
                e(f"v_add_f32 {v(E+k)}, {v(E+k)}, {v(KF+8+k)}")
            e(f"buffer_store_dwordx4 {vr(E,4)}, v15, {sr(SRD_WS,4)}, s63 offen sc1",
              "s_mov_b64 exec, 1", f"ds_add_u32 {v(vFl)}, v19 offset:{F_OF}", "s_mov_b64 exec, -1")
            self.label(lno)

        self.c("---- item loop")
        lloop, liss, lgo, lhave, lv, lnext, lfin = (self.new(x) for x in ("loop", "iss", "go", "have", "vit", "next", "fin"))
        self.label(lloop)
        e(f"s_lshl_b32 {s(sTgt)}, {s(sN)}, 2", f"s_add_u32 {s(sTgt)}, {s(sTgt)}, {4+D}")
        if self.N2 is not None:
            D2 = (self.N2 + 5)//3
            assert D2 <= 8
            e(f"s_cmp_ge_u32 {s(sN)}, {27+SL}", f"s_cselect_b32 s62, {D2-D}, 0", f"s_add_u32 {s(sTgt)}, {s(sTgt)}, s62")
        self.label(liss)
        e(f"s_cmp_lt_u32 {s(sI)}, {s(sTgt)}", f"s_cbranch_scc0 {lhave}",
          f"s_cmp_eq_u32 {s(sStop)}, 0", f"s_cbranch_scc0 {lgo}")
        self.issue_unit()
        e(f"s_branch {liss}")
        self.label(lgo)
        e(f"s_lshl_b32 s62, {s(sN)}, 2", f"s_cmp_eq_u32 s62, {s(sI)}", f"s_cbranch_scc1 {lfin}", "s_waitcnt vmcnt(0)")
        self.label(lhave)
        if self.diag:
            for kk in range(8):
                ls = self.new("ps")
                itm = 4*kk if "vitems" not in self.x and "kitems" not in self.x else (self.i0 + kk)
                e(f"s_cmp_eq_u32 {s(sN)}, {itm}", f"s_cbranch_scc0 {ls}")
                self.stamp(8+kk)
                self.label(ls)
        e(f"s_cmp_lt_u32 {s(sN)}, 16", f"s_cbranch_scc0 {lv}")
        self.c("K tile: 32 scores")
        lq = self.new("kq")
        e(f"v_add_u32 v14, {s(sTile)}, v5", f"v_add_u32 v15, {s(sTile)}, v6",
          f"s_and_b32 s62, {s(sN)}, 3", f"s_cbranch_scc1 {lq}")
        e(f"s_lshr_b32 s62, {s(sN)}, 2", "s_mul_i32 s62, s62, 384", f"v_add_u32 v13, s62, {v(vQa)}")
        for ks in range(6):
            e(f"ds_read_b128 {vr(QF+4*ks,4)}, v13 offset:{64*ks}")
        e(f"v_mov_b32 {v(M)}, {hex(NINF)}", f"v_mov_b32 {v(Lr)}, 0", "s_waitcnt lgkmcnt(0)")
        self.label(lq)
        for ks in range(6):
            for blk in range(2):
                e(f"ds_read_b128 {vr(KF+8*ks+4*blk,4)}, {v(14+(ks&1))} offset:{blk*6144+(ks>>1)*128}")
        for ks in range(6):
            e(f"s_waitcnt lgkmcnt({10-2*ks})")
            for blk in range(2):
                c = "0" if ks == 0 else vr(D0+4*blk, 4)
                e(f"v_mfma_f32_16x16x32_bf16 {vr(D0+4*blk,4)}, {vr(KF+8*ks+4*blk,4)}, {vr(QF+4*ks,4)}, {c}")
            if ks == 2:
                self.try2()
        self.try_issue()
        e(f"s_lshl_b32 s62, {s(sN)}, 6", f"v_add_u32 v13, s62, {v(vSo)}", "s_nop 6")
        for i in range(0, 8, 2):
            e(f"v_cvt_pk_bf16_f32 {v(T)}, {v(D0+i)}, {v(D0+i+1)}")
            self.unpack(X+i, X+i+1, T)
            e(f"v_mul_f32 {v(X+i)}, {hex(SCALE)}, {v(X+i)}", f"v_mul_f32 {v(X+i+1)}, {hex(SCALE)}, {v(X+i+1)}",
              f"v_cvt_pk_bf16_f32 {v(Q+(i>>1))}, {v(X+i)}, {v(X+i+1)}")
            self.unpack(X+i, X+i+1, Q+(i>>1))
            if i == 2:
                self.try2()
        e("s_mov_b32 exec_lo, 0x00010001", "s_mov_b32 exec_hi, 0x00010001",
          f"ds_write_b128 v13, {vr(Q,4)}", "s_mov_b64 exec, -1")
        self.try_issue()
        e(f"v_max3_f32 {v(T)}, {v(X)}, {v(X+1)}, {v(X+2)}", f"v_max3_f32 {v(T)}, {v(T)}, {v(X+3)}, {v(X+4)}",
          f"v_max3_f32 {v(T)}, {v(T)}, {v(X+5)}, {v(X+6)}", f"v_max3_f32 {v(T)}, {v(T)}, {v(X+7)}, {v(M)}",
          f"v_sub_f32 {v(T+1)}, {v(M)}, {v(T)}", f"v_mul_f32 {v(T+1)}, {hex(LOG2E)}, {v(T+1)}", f"v_mov_b32 {v(M)}, {v(T)}")
        for i in range(8):
            e(f"v_sub_f32 {v(E+i)}, {v(X+i)}, {v(M)}", f"v_mul_f32 {v(E+i)}, {hex(LOG2E)}, {v(E+i)}")
        self.try2()
        e(f"v_exp_f32 {v(T+1)}, {v(T+1)}")
        for i in range(8):
            e(f"v_exp_f32 {v(E+i)}, {v(E+i)}")
        self.try_issue()
        e(f"v_mul_f32 {v(Lr)}, {v(Lr)}, {v(T+1)}")
        for i in range(0, 8, 2):
            e(f"v_add_f32 {v(E+i)}, {v(E+i)}, {v(E+i+1)}")
        e(f"v_add_f32 {v(E)}, {v(E)}, {v(E+2)}", f"v_add_f32 {v(E+4)}, {v(E+4)}, {v(E+6)}",
          f"v_add_f32 {v(E)}, {v(E)}, {v(E+4)}", f"v_add_f32 {v(Lr)}, {v(Lr)}, {v(E)}")
        e(f"s_and_b32 s62, {s(sN)}, 3", "s_cmp_eq_u32 s62, 3", f"s_cbranch_scc0 {lnext}")
        self.try2()
        finalize()
        self.try2()
        if self.diag:
            ls = self.new("st")
            e(f"s_cmp_eq_u32 {s(sN)}, 15", f"s_cbranch_scc0 {ls}")
            self.stamp(3)
            self.label(ls)
        e(f"s_branch {lnext}")
        self.label(lv)
        lpool, lp_ok, lst = self.new("vp"), self.new("vo"), self.new("vs")
        e(f"s_sub_u32 s66, {s(sN)}, 16", f"s_cmp_lt_u32 s66, {12+SL}", f"s_cbranch_scc0 {lpool}")
        e("s_and_b32 s62, s66, 3", f"s_cbranch_scc1 {lst}")
        e("s_lshr_b32 s67, s66, 2")
        self.c("first tile of a batch: its probabilities must be ready; keep the ring filling meanwhile")
        self.lds_wait_gt(18, F_PB, 13, 67, sleep=1, body=runahead)
        if self.diag:
            ls = self.new("st")
            e(f"s_cmp_eq_u32 {s(sN)}, 16", f"s_cbranch_scc0 {ls}")
            self.stamp(5)
            self.label(ls)
        self.label(lst)
        e(f"s_sub_u32 s62, {s(sN)}, 16", "s_lshl_b32 s62, s62, 6", f"v_add_u32 v13, s62, {v(vSo)}", f"s_branch {lp_ok}")
        self.label(lpool)
        self.lds_wait_gt(18, F_NP, 13, sPN, sleep=1, body=runahead)
        e(f"s_and_b32 s62, {s(sPN)}, 3", "s_lshl_b32 s62, s62, 6", "v_add_u32 v13, s62, v12", f"s_add_u32 {s(sPN)}, {s(sPN)}, 1")
        self.label(lp_ok)
        for u in range(4):
            e(f"v_add_u32 {v(14+u)}, {s(sTile)}, {v(7+u)}")
        e(f"ds_read_b128 {vr(PF,4)}, v13")
        def vread(t):
            a, u = t >> 2, t & 3
            e(f"ds_read_b64_tr_b16 {vr(KF+4*t,2)}, {v(14+u)} offset:{a*128}",
              f"ds_read_b64_tr_b16 {vr(KF+4*t+2,2)}, {v(14+u)} offset:{a*128+6144}")
        def vmf(t):
            e(f"v_mfma_f32_16x16x32_bf16 {vr(ACC+4*t,4)}, {vr(PF,4)}, {vr(KF+4*t,4)}, {vr(ACC+4*t,4)}")
        for t in range(6):
            vread(t)
        e("s_waitcnt lgkmcnt(6)")
        for t in range(3): vmf(t)
        self.try_issue()
        for t in range(6, 9): vread(t)
        e("s_waitcnt lgkmcnt(6)")
        for t in range(3, 6): vmf(t)
        self.try2()
        for t in range(9, 12): vread(t)
        e("s_waitcnt lgkmcnt(6)")
        for t in range(6, 9): vmf(t)
        self.try2()
        e("s_waitcnt lgkmcnt(0)")
        for t in range(9, 12): vmf(t)
        self.try_issue()
        self.c("end of batch 0..2: hand the partial output over")
        e(f"s_sub_u32 s62, {s(sN)}, 16", "s_cmp_lt_u32 s62, 12", f"s_cbranch_scc0 {lnext}",
          "s_and_b32 s63, s62, 3", "s_cmp_eq_u32 s63, 3", f"s_cbranch_scc0 {lnext}", "s_lshr_b32 s70, s62, 2")
        flush_acc()
        self.label(lnext)
        e(f"s_add_u32 {s(sTile)}, {s(sTile)}, 12288", f"s_cmp_eq_u32 {s(sTile)}, {s(sEnd)}",
          f"s_cselect_b32 {s(sTile)}, {s(sBase)}, {s(sTile)}",
          f"s_add_u32 {s(sN)}, {s(sN)}, 1", f"s_branch {lloop}")
        self.label(lfin)
        self.stamp(6)
        if self.diag:
            e(f"s_mov_b32 {s(S_STAMP0+4)}, {s(sN)}", f"s_add_u32 {s(S_STAMP0+4)}, {s(S_STAMP0+4)}, 1000")
        e("s_mov_b32 s70, 3")
        flush_acc()
        self.lds_flag_set(18, F_VE, 19)
        self.stamp(7)
        self.stamps_store()
        e("s_endpgm")

    def gemv64_loads(self, W):
        e = self.e
        e("s_mov_b32 s61, 0")
        for ks in range(5):
            for ee in range(8):
                r = W + 16*(ks+1) + 2*ee
                e(f"buffer_load_dwordx2 {vr(r,2)}, v4, {sr(SRD_A,4)}, s61 offen nt")
                if not (ks == 4 and ee == 7):
                    if ee < 7:
                        e("s_add_u32 s61, s61, s60")
                    else:
                        e("s_mul_i32 s62, s60, 25", "s_add_u32 s61, s61, s62")

    def gemv64_perm(self, W):
        e = self.e
        for ks in range(5):
            raw, fr = W + 16*(ks+1), W + 16*ks
            for f in range(4):
                d, hi = f >> 1, f & 1
                for q in range(4):
                    e(f"v_perm_b32 {v(fr+4*f+q)}, {v(raw+2*(2*q+1)+d)}, {v(raw+2*(2*q)+d)}, {s(S_SELHI if hi else S_SELLO)}")

    def gemv64_finish(self, W, AF, DD, vfl, vone, replicas=False):
        e = self.e
        for ks in range(5):
            e(f"ds_read_b128 {vr(AF+4*ks,4)}, v5 offset:{64*ks}")
        for ks in range(5):
            e(f"s_waitcnt lgkmcnt({4-ks})")
            for f in range(4):
                c = "0" if ks == 0 else vr(DD+4*f, 4)
                e(f"v_mfma_f32_16x16x32_bf16 {vr(DD+4*f,4)}, {vr(AF+4*ks,4)}, {vr(W+16*ks+4*f,4)}, {c}")
        e("s_nop 7", "s_nop 1")
        for f in range(4):
            e(f"v_mov_b32 {v(AF+f)}, {v(DD+4*f)}")
        e(f"s_lshl_b32 s62, {s(S_W)}, 10", f"s_add_u32 s62, s62, {SC}", "v_lshlrev_b32 v6, 4, v1",
          "v_add_u32 v7, s62, v6", f"ds_write_b128 v7, {vr(AF,4)}")
        self.sync4(vfl, F_SYNCR, vone, 8)
        l = self.new("gf")
        e(f"s_cmp_eq_u32 {s(S_W)}, 0", f"s_cbranch_scc0 {l}")
        e(f"v_add_u32 v7, {SC}, v6")
        for ww in range(4):
            e(f"ds_read_b128 {vr(AF+4*ww,4)}, v7 offset:{1024*ww}")
        e("s_waitcnt lgkmcnt(0)")
        for f in range(4):
            e(f"v_add_f32 {v(AF+f)}, {v(AF+f)}, {v(AF+4+f)}", f"v_add_f32 {v(AF+8+f)}, {v(AF+8+f)}, {v(AF+12+f)}")
        for f in range(4):
            e(f"v_add_f32 {v(AF+f)}, {v(AF+f)}, {v(AF+8+f)}")
        e(f"v_cvt_pk_bf16_f32 {v(AF+4)}, {v(AF)}, {v(AF+1)}", f"v_cvt_pk_bf16_f32 {v(AF+6)}, {v(AF+2)}, {v(AF+3)}",
          f"v_mov_b32 {v(AF+5)}, {s(S_TAG)}", f"v_mov_b32 {v(AF+7)}, {s(S_TAG)}",
          "v_lshrrev_b32 v6, 4, v1", "v_mul_lo_u32 v6, v6, s65", "v_and_b32 v7, 15, v1", "v_lshl_add_u32 v6, v7, 4, v6",
          )
        if replicas and self.RM > 1:
            self.c("shift / scale of the first layer norm go to eight copies: many workgroups poll them")
            lr_ = self.new("rp")
            e("s_cmp_lt_u32 s68, 20", f"s_cbranch_scc0 {lr_}",
              "v_lshrrev_b32 v8, 4, v1", "v_mul_u32_u24 v8, 5120, v8", "v_lshl_add_u32 v8, v7, 4, v8",
              "s_lshl_b32 s62, s68, 8", f"s_add_u32 s62, s62, {MODR}")
            for rp in range(self.RM):
                e(f"buffer_store_dwordx4 {vr(AF+4,4)}, v8, {sr(SRD_WS,4)}, s62 offen sc1")
                if rp < self.RM-1:
                    e("s_add_u32 s62, s62, 20480")
            self.label(lr_)
        e(f"buffer_store_dwordx4 {vr(AF+4,4)}, v6, {sr(SRD_WS,4)}, s64 offen sc1")
        self.label(l)

    def ln_stats(self, PX, XF, T):
        e = self.e
        for i in range(5):
            self.unpack(XF+2*i, XF+2*i+1, PX+i)
        e(f"v_add_f32 {v(T)}, {v(XF)}, {v(XF+1)}")
        for i in range(2, 10):
            e(f"v_add_f32 {v(T)}, {v(T)}, {v(XF+i)}")
        self.allreduce("add", T, T+1)
        e(f"v_mul_f32 {v(T)}, {hex(INV640)}, {v(T)}")
        e(f"v_sub_f32 {v(T+2)}, {v(XF)}, {v(T)}", f"v_mul_f32 {v(T+3)}, {v(T+2)}, {v(T+2)}")
        for i in range(1, 10):
            e(f"v_sub_f32 {v(T+2)}, {v(XF+i)}, {v(T)}", f"v_fmac_f32 {v(T+3)}, {v(T+2)}, {v(T+2)}")
        self.allreduce("add", T+3, T+1)
        e(f"v_mul_f32 {v(T+3)}, {hex(INV640)}, {v(T+3)}")
        self.round2(T, T+3, T+1)
        e(f"v_add_f32 {v(T+3)}, {hex(EPS)}, {v(T+3)}")
        e(f"v_cvt_pk_bf16_f32 {v(T+1)}, {v(T+3)}, {v(T+3)}", f"v_lshlrev_b32 {v(T+3)}, 16, {v(T+1)}",
          f"v_sqrt_f32 {v(T+3)}, {v(T+3)}", "s_nop 0",
          f"v_cvt_pk_bf16_f32 {v(T+1)}, {v(T+3)}, {v(T+3)}", f"v_lshlrev_b32 {v(T+3)}, 16, {v(T+1)}",
          f"v_rcp_f32 {v(T+3)}, {v(T+3)}", "s_nop 0")
        for i in range(0, 10, 2):
            e(f"v_sub_f32 {v(XF+i)}, {v(XF+i)}, {v(T)}", f"v_sub_f32 {v(XF+i+1)}, {v(XF+i+1)}, {v(T)}")
            self.round2(XF+i, XF+i+1, T+1)
            e(f"v_mul_f32 {v(XF+i)}, {v(XF+i)}, {v(T+3)}", f"v_mul_f32 {v(XF+i+1)}, {v(XF+i+1)}, {v(T+3)}")
            self.round2(XF+i, XF+i+1, T+1)

    def ln_fast(self, PX, XF, TD, T):
        e = self.e
        if PX is not None:
            for i in range(5):
                self.unpack(XF+2*i, XF+2*i+1, PX[i])
        e("s_nop 0", f"v_readfirstlane_b32 s90, {v(XF)}", "s_nop 0", "s_mov_b32 s91, s90")
        for i in range(5):
            e(f"v_pk_add_f32 {vr(TD+2*i,2)}, {vr(XF+2*i,2)}, s[90:91] neg_lo:[0,1] neg_hi:[0,1]")
        A, B = T, T+2
        e(f"v_pk_mul_f32 {vr(B,2)}, {vr(TD,2)}, {vr(TD,2)}", f"v_pk_add_f32 {vr(A,2)}, {vr(TD,2)}, {vr(TD+2,2)}",
          f"v_pk_fma_f32 {vr(B,2)}, {vr(TD+2,2)}, {vr(TD+2,2)}, {vr(B,2)}")
        for i in range(2, 5):
            e(f"v_pk_add_f32 {vr(A,2)}, {vr(A,2)}, {vr(TD+2*i,2)}",
              f"v_pk_fma_f32 {vr(B,2)}, {vr(TD+2*i,2)}, {vr(TD+2*i,2)}, {vr(B,2)}")
        e(f"v_add_f32 {v(A)}, {v(A)}, {v(A+1)}", f"v_add_f32 {v(B)}, {v(B)}, {v(B+1)}")
        for r in (8, 4, 2, 1):
            e("s_nop 0", f"v_add_f32_dpp {v(A)}, {v(A)}, {v(A)} row_ror:{r} row_mask:0xf bank_mask:0xf",
              f"v_add_f32_dpp {v(B)}, {v(B)}, {v(B)} row_ror:{r} row_mask:0xf bank_mask:0xf")
        for swp in ("v_permlane16_swap_b32", "v_permlane32_swap_b32"):
            e(f"v_mov_b32 {v(A+1)}, {v(A)}", f"v_mov_b32 {v(B+1)}, {v(B)}", "s_nop 1",
              f"{swp} {v(A+1)}, {v(A)}", f"{swp} {v(B+1)}, {v(B)}",
              f"v_add_f32 {v(A)}, {v(A+1)}, {v(A)}", f"v_add_f32 {v(B)}, {v(B+1)}, {v(B)}")
        e(f"v_mul_f32 {v(A)}, {hex(INV640)}, {v(A)}", f"v_mul_f32 {v(B)}, {hex(INV640)}, {v(B)}",
          f"v_fma_f32 {v(B)}, -{v(A)}, {v(A)}, {v(B)}", f"v_add_f32 {v(A)}, s90, {v(A)}", f"v_max_f32 {v(B)}, 0, {v(B)}",
          f"v_cvt_pk_bf16_f32 {v(A+1)}, {v(A)}, {v(B)}")
        self.unpack(A, B, A+1)
        e(f"v_add_f32 {v(B)}, {hex(EPS)}, {v(B)}",
          f"v_cvt_pk_bf16_f32 {v(B+1)}, {v(B)}, {v(B)}", f"v_lshlrev_b32 {v(B)}, 16, {v(B+1)}",
          f"v_sqrt_f32 {v(B)}, {v(B)}")
        for i in range(5):
            e(f"v_pk_add_f32 {vr(XF+2*i,2)}, {vr(XF+2*i,2)}, {vr(A,2)} op_sel_hi:[1,0] neg_lo:[0,1] neg_hi:[0,1]")
        e(f"v_cvt_pk_bf16_f32 {v(B+1)}, {v(B)}, {v(B)}", f"v_lshlrev_b32 {v(B)}, 16, {v(B+1)}", f"v_rcp_f32 {v(B)}, {v(B)}")
        for i in range(5):
            e(f"v_cvt_pk_bf16_f32 {v(TD+i)}, {v(XF+2*i)}, {v(XF+2*i+1)}")
        for i in range(5):
            self.unpack(XF+2*i, XF+2*i+1, TD+i)
        for i in range(5):
            e(f"v_pk_mul_f32 {vr(XF+2*i,2)}, {vr(XF+2*i,2)}, {vr(B,2)} op_sel_hi:[1,0]")
        for i in range(5):
            e(f"v_cvt_pk_bf16_f32 {v(TD+i)}, {v(XF+2*i)}, {v(XF+2*i+1)}")
        for i in range(5):
            self.unpack(XF+2*i, XF+2*i+1, TD+i)

    def modulate_fast(self, XF, C1, SH, TD, vaddr):
        e = self.e
        for i in range(5):
            e(f"v_pk_mul_f32 {vr(XF+2*i,2)}, {vr(XF+2*i,2)}, {vr(C1+2*i,2)}")
        for i in range(5):
            e(f"v_cvt_pk_bf16_f32 {v(TD+i)}, {v(XF+2*i)}, {v(XF+2*i+1)}")
        for i in range(5):
            self.unpack(XF+2*i, XF+2*i+1, TD+i)
        for i in range(5):
            e(f"v_pk_add_f32 {vr(XF+2*i,2)}, {vr(XF+2*i,2)}, {vr(SH+2*i,2)}")
        for i in range(5):
            e(f"v_cvt_pk_bf16_f32 {v(TD+i)}, {v(XF+2*i)}, {v(XF+2*i+1)}", f"ds_write_b32 {v(vaddr)}, {v(TD+i)} offset:{256*i}")

    def bad_lanes(self, tags, sdst, t):
        e = self.e
        assert len(tags) in (2, 4)
        for k, r in enumerate(tags):
            e(f"v_xor_b32 {v(t+k)}, {s(S_TAG)}, {v(r)}")
        if len(tags) == 4:
            e(f"v_or3_b32 {v(t)}, {v(t)}, {v(t+1)}, {v(t+2)}", f"v_or_b32 {v(t)}, {v(t)}, {v(t+3)}")
        else:
            e(f"v_or_b32 {v(t)}, {v(t)}, {v(t+1)}")
        e(f"v_cmp_ne_u32 {sr(sdst,2)}, 0, {v(t)}")

    def masked_gather(self, groups, t, init=None, care=None, sleep=0):
        e = self.e
        l, d = self.new("mg"), self.new("mgd")
        for (sp, _, _) in groups:
            if init is None:
                e(f"s_mov_b64 {sr(sp,2)}, -1")
            else:
                e(f"s_mov_b32 {s(sp)}, {hex(init[0])}", f"s_mov_b32 {s(sp+1)}, {hex(init[1])}")
        self.label(l)
        for (sp, loads, _) in groups:
            k = self.new("mk")
            e(f"s_mov_b64 exec, {sr(sp,2)}", f"s_cbranch_execz {k}")
            loads()
            self.label(k)
        e("s_mov_b64 exec, -1", "s_waitcnt vmcnt(0)")
        for (sp, _, tags) in groups:
            self.bad_lanes(tags, sp, t)
            if care is not None:
                e(f"s_and_b32 {s(sp)}, {s(sp)}, {hex(care[0])}", f"s_and_b32 {s(sp+1)}, {s(sp+1)}, {hex(care[1])}")
        e(f"s_mov_b64 s[90:91], {sr(groups[0][0],2)}")
        for (sp, _, _) in groups[1:]:
            e(f"s_or_b64 s[90:91], s[90:91], {sr(sp,2)}")
        e("s_cmp_eq_u64 s[90:91], 0", f"s_cbranch_scc1 {d}")
        if sleep:
            e(f"s_sleep {sleep}")
        self.spin_check()
        e(f"s_branch {l}")
        self.label(d)

    def poll2(self, loadsA, tagsA, useA, loadsB, tagsB, useB, nloads, t):
        e = self.e
        l, dA, dB, d = self.new("p2"), self.new("p2a"), self.new("p2b"), self.new("p2d")
        loadsA()
        loadsB()
        self.label(l)
        e(f"s_waitcnt vmcnt({nloads})")
        ra, rb = self.new("p2ra"), self.new("p2rb")
        self.tagcheck(tagsA, t, t+1, ra)
        e(f"s_branch {dA}")
        self.label(ra)
        loadsA()
        e(f"s_waitcnt vmcnt({nloads})")
        self.tagcheck(tagsB, t, t+1, rb)
        e(f"s_branch {dB}")
        self.label(rb)
        loadsB()
        self.spin_check()
        e(f"s_branch {l}")
        self.label(dA)
        useA()
        e(f"s_branch {d}")
        self.label(dB)
        useB()
        self.label(d)

    def modulate(self, XF, C1, SH, T, vaddr):
        e = self.e
        for i in range(5):
            a, b = XF+2*i, XF+2*i+1
            e(f"v_mul_f32 {v(a)}, {v(a)}, {v(C1+2*i)}", f"v_mul_f32 {v(b)}, {v(b)}, {v(C1+2*i+1)}")
            self.round2(a, b, T)
            e(f"v_add_f32 {v(a)}, {v(a)}, {v(SH+2*i)}", f"v_add_f32 {v(b)}, {v(b)}, {v(SH+2*i+1)}",
              f"v_cvt_pk_bf16_f32 {v(T)}, {v(a)}, {v(b)}", f"ds_write_b32 {v(vaddr)}, {v(T)} offset:{256*i}")

    def prep_mod_pair(self, G, C1, SH, T):
        e = self.e
        for i in range(5):
            self.unpack(SH+2*i, SH+2*i+1, G+2*i)
        for i in range(5):
            self.unpack(C1+2*i, C1+2*i+1, G+10+2*i)
            e(f"v_add_f32 {v(C1+2*i)}, 1.0, {v(C1+2*i)}", f"v_add_f32 {v(C1+2*i+1)}, 1.0, {v(C1+2*i+1)}")
            self.round2(C1+2*i, C1+2*i+1, T)

    def helper(self):
        e = self.e
        self.c("================= helper wave =================")
        e(f"s_sub_u32 {s(S_W)}, {s(S_W)}, 4")
        VFL, VONE = 2, 3
        W = 100
        PX, XF, T = 10, 16, 28
        G, C1, SH = 32, 56, 68
        AF, DD = 200, 220
        e(f"s_lshl_b32 s62, {s(S_W)}, 2", f"s_add_u32 s62, s62, {FLAGS}", f"v_mov_b32 {v(VFL)}, s62", f"v_mov_b32 {v(VONE)}, 1",
          f"v_mov_b32 v9, {FLAGS}")
        self.c("zero the LDS flags (helper 0)")
        l = self.new("zf")
        e(f"s_cmp_eq_u32 {s(S_W)}, 0", f"s_cbranch_scc0 {l}",
          "v_lshlrev_b32 v6, 2, v1", f"v_add_u32 v6, {FLAGS}, v6", "v_mov_b32 v7, 0",
          "ds_write_b32 v6, v7", "s_waitcnt lgkmcnt(0)")
        self.label(l)
        self.tag_load()
        self.c("work counters of this head: cleared by helper 0 of workgroup j == 0 (drained before q is published)")
        l = self.new("zc")
        e(f"s_cmp_eq_u32 {s(S_W)}, 0", f"s_cbranch_scc0 {l}", f"s_cmp_eq_u32 {s(S_J)}, 0", f"s_cbranch_scc0 {l}",
          f"s_lshl_b32 s62, {s(S_H)}, 7", f"s_add_u32 s62, s62, {CNTBUF}", "v_mov_b32 v6, 0", "v_mov_b32 v7, 0",
          "s_mov_b64 exec, 1", f"buffer_store_dword v7, v6, {sr(SRD_WS,4)}, s62 offen sc1", "s_mov_b64 exec, -1")
        self.label(l)
        self.c("prologue role: s67 = 0 none, 1 Q block, 2 MOD block")
        lq, lm, lr, lm7 = self.new("rq"), self.new("rm"), self.new("rr"), self.new("m7")
        e("s_mov_b32 s67, 0", f"s_cmp_lt_u32 {s(S_J)}, 3", f"s_cbranch_scc1 {lq}",
          f"s_cmp_lt_u32 {s(S_J)}, 5", f"s_cbranch_scc0 {lm7}",
          f"s_lshl_b32 s68, {s(S_H)}, 1", f"s_add_u32 s68, s68, {s(S_J)}", "s_sub_u32 s68, s68, 3",
          f"s_cmp_lt_u32 {s(S_H)}, 28", f"s_cbranch_scc1 {lm}", f"s_branch {lr}")
        self.label(lm7)
        e(f"s_add_u32 s68, {s(S_H)}, 56", f"s_cmp_eq_u32 {s(S_J)}, 7", f"s_cbranch_scc0 {lr}",
          f"s_cmp_lt_u32 {s(S_H)}, 4", f"s_cbranch_scc1 {lm}", f"s_branch {lr}")
        self.label(lq)
        e("s_mov_b32 s67, 1")
        if "qfirst" not in self.x:
            e("s_barrier")
        self.srd(SRD_A, S_WQ, 7864320)
        self.srd(SRD_B, S_X, 5120)
        e("s_mov_b32 s60, 12288", f"s_mul_i32 s68, {s(S_H)}, 3", f"s_add_u32 s68, s68, {s(S_J)}",
          "s_lshl_b32 s64, s68, 8", f"s_add_u32 s64, s64, {QBUF}", f"s_mov_b32 s65, {3072*8}")
        lcommon = self.new("rc")
        e(f"s_branch {lcommon}")
        self.label(lm)
        e("s_mov_b32 s67, 2")
        self.srd(SRD_A, S_WM, 4915200)
        self.srd(SRD_B, S_C, 5120)
        e("s_mov_b32 s60, 7680", "s_lshl_b32 s64, s68, 8", f"s_add_u32 s64, s64, {MODBUF}", f"s_mov_b32 s65, {1920*8}")
        self.label(lcommon)
        self.c("issue vector + weight loads")
        e(f"s_mul_i32 s62, {s(S_W)}, 1280", "v_lshlrev_b32 v6, 2, v1")
        for i in range(5):
            e(f"buffer_load_dword {v(PX+i)}, v6, {sr(SRD_B,4)}, s62 offen offset:{256*i}")
        e(f"s_mul_i32 s62, {s(S_W)}, 160", "v_lshrrev_b32 v4, 4, v1", "v_lshlrev_b32 v4, 3, v4", "v_add_u32 v4, s62, v4",
          "v_mul_lo_u32 v4, v4, s60", "v_and_b32 v7, 15, v1", "v_lshl_add_u32 v4, v7, 3, v4",
          "s_lshl_b32 s62, s68, 7", "v_add_u32 v4, s62, v4")
        self.gemv64_loads(W)
        lnb = self.new("nb")
        if "qfirst" not in self.x:
            e("s_cmp_eq_u32 s67, 1", f"s_cbranch_scc1 {lnb}")
        self.label(lr)
        e("s_barrier")
        self.label(lnb)
        self.tag_ready()
        self.stamp(1)
        self.c("A fragment address for the [4][640] vector: AVEC + b*1280 + w*320 + g*16")
        e("v_and_b32 v6, 15, v1", "v_lshrrev_b32 v6, 2, v6", "v_mul_u32_u24 v6, 1280, v6",
          "v_lshrrev_b32 v7, 4, v1", "v_lshl_add_u32 v6, v7, 4, v6",
          f"s_mul_i32 s62, {s(S_W)}, 320", f"s_add_u32 s62, s62, {AVEC}", "v_add_u32 v5, s62, v6")
        e(f"s_mul_i32 s62, {s(S_W)}, 1280", f"s_add_u32 s62, s62, {AVEC}", "v_lshlrev_b32 v6, 2, v1", "v_add_u32 v8, s62, v6",
          "v_mov_b32 v26, v8")
        lq2, lm2, lpq = self.new("q2"), self.new("m2"), self.new("pq")
        e("s_cmp_eq_u32 s67, 1", f"s_cbranch_scc1 {lq2}", "s_cmp_eq_u32 s67, 2", f"s_cbranch_scc1 {lm2}", f"s_branch {lpq}")
        self.label(lm2)
        e("s_waitcnt vmcnt(40)", "s_mov_b32 s91, 0x207")
        for i in range(5):
            a, b = XF, XF+1
            self.unpack(a, b, PX+i)
            for x in (a, b):
                e(f"v_mul_f32 {v(T)}, {hex(LOG2E ^ 0x80000000)}, {v(x)}", f"v_exp_f32 {v(T)}, {v(T)}", "s_nop 0",
                  f"v_add_f32 {v(T)}, 1.0, {v(T)}", f"v_rcp_f32 {v(T+1)}, {v(T)}", "s_nop 0",
                  f"v_mul_f32 {v(T+2)}, {v(x)}, {v(T+1)}",
                  f"v_fma_f32 {v(T+3)}, -{v(T+2)}, {v(T)}, {v(x)}",
                  f"v_cmp_class_f32 vcc, {v(T+3)}, s91",
                  f"v_fma_f32 {v(x)}, {v(T+3)}, {v(T+1)}, {v(T+2)}", "s_nop 0",
                  f"v_cndmask_b32 {v(x)}, {v(x)}, {v(T+2)}, vcc")
            e(f"v_cvt_pk_bf16_f32 {v(T)}, {v(a)}, {v(b)}", f"ds_write_b32 v26, {v(T)} offset:{256*i}")
        self.sync4(9, F_SYNCA, VONE, 8)
        e("s_waitcnt vmcnt(0)")
        self.stamp(2)
        self.gemv64_perm(W)
        self.gemv64_finish(W, AF, DD, 9, VONE, replicas=True)
        self.stamp(3)
        e(f"s_branch {lpq}")
        self.label(lq2)
        e("s_waitcnt vmcnt(40)")
        self.ln_fast([PX+i for i in range(5)], XF, 80, T)
        e("s_waitcnt vmcnt(0)")
        self.gemv64_perm(W)
        self.stamp(2)
        if self.RM > 1:
            e(f"s_and_b32 s62, s68, {self.RM-1}", "s_mul_i32 s62, s62, 20480", f"s_mul_i32 s63, {s(S_W)}, 5120", "s_add_u32 s62, s62, s63",
              f"s_add_u32 s62, s62, {MODR}", f"s_add_u32 s63, s62, {320*8}", "v_lshlrev_b32 v6, 3, v1")
        else:
            e(f"s_mul_i32 s62, {s(S_W)}, {1920*8}", f"s_add_u32 s62, s62, {MODBUF}", f"s_add_u32 s63, s62, {320*8}",
              "v_lshlrev_b32 v6, 3, v1")
        def ld_mod():
            for i in range(5):
                e(f"buffer_load_dwordx2 {vr(G+2*i,2)}, v6, {sr(SRD_WS,4)}, s62 offen offset:{512*i} sc1")
            for i in range(5):
                e(f"buffer_load_dwordx2 {vr(G+10+2*i,2)}, v6, {sr(SRD_WS,4)}, s63 offen offset:{512*i} sc1")
        if "pause" in self.x:
            self.lds_flag_set(9, F_PA, VONE)
        self.poll(ld_mod, [G+2*i+1 for i in range(10)], T, T+1)
        self.stamp(3)
        self.prep_mod_pair(G, C1, SH, T)
        self.modulate_fast(XF, C1, SH, 80, 26)
        self.sync4(9, F_SYNCA, VONE, 8)
        if "pause" in self.x:
            e("v_mov_b32 v8, 0")
            self.lds_flag_set(9, F_PA, 8)
        self.gemv64_finish(W, AF, DD, 9, VONE)
        self.stamp(4)
        self.label(lpq)
        l = self.new("jd")
        e(f"s_cmp_eq_u32 {s(S_W)}, 0", f"s_cbranch_scc0 {l}", "s_waitcnt lgkmcnt(0)")
        self.lds_flag_set(9, F_JD, VONE)
        self.label(l)
        WB = 36
        def wb_issue():
            self.c("stage B weights: wo rows 192h+48w+.., columns 128j..")
            self.srd(SRD_A, S_WO, 7864320)
            e(f"s_mul_i32 s62, {s(S_H)}, 192", f"s_mul_i32 s63, {s(S_W)}, 48", "s_add_u32 s62, s62, s63",
              "v_lshrrev_b32 v6, 4, v1", "v_mul_u32_u24 v6, 3, v6", "v_add_u32 v6, s62, v6", "v_mul_u32_u24 v6, 1280, v6",
              "v_and_b32 v7, 15, v1", "v_lshl_add_u32 v6, v7, 4, v6", f"s_lshl_b32 s62, {s(S_J)}, 8", "v_add_u32 v6, s62, v6")
            for vv in range(12):
                sg, ee = vv >> 2, vv & 3
                e(f"s_mov_b32 s62, {(12*(vv//3)+vv%3)*1280}",
                  f"buffer_load_dwordx4 {vr(WB+16*(sg+1)+4*ee,4)}, v6, {sr(SRD_A,4)}, s62 offen nt")
        def wb_perm():
            for sg in range(3):
                raw, fr = WB+16*(sg+1), WB+16*sg
                for cc in range(8):
                    for q in range(2):
                        e(f"v_perm_b32 {v(fr+2*cc+q)}, {v(raw+4*(2*q+1)+(cc>>1))}, {v(raw+4*(2*q)+(cc>>1))}, {s(S_SELHI if cc&1 else S_SELLO)}")
        def load_wb():
            wb_issue()
            e("s_waitcnt vmcnt(0)")
            wb_perm()
        WD, GBR = 100, 240
        WG, WU = 36, 84
        CC1, CSH = 140, 150
        RX, RG = 180, 182
        lc, ld, lnc, l6, l7, lrd = (self.new(x) for x in ("c", "d", "nc", "j6", "j7", "rd"))
        e("s_mov_b32 s69, 0", "s_mov_b32 s70, 0", f"s_cmp_lt_u32 {s(S_J)}, 5", f"s_cbranch_scc1 {lrd}")
        e(f"s_cmp_eq_u32 {s(S_J)}, 5", f"s_cbranch_scc0 {l6}", f"s_mov_b32 s68, {s(S_H)}", f"s_branch {lc}")
        self.label(l6)
        e(f"s_cmp_eq_u32 {s(S_J)}, 6", f"s_cbranch_scc0 {l7}",
          f"s_add_u32 s68, {s(S_H)}, 32", f"s_cmp_lt_u32 {s(S_H)}, 16", f"s_cbranch_scc1 {lc}",
          f"s_sub_u32 s68, {s(S_H)}, 16", f"s_branch {ld}")
        self.label(l7)
        e(f"s_sub_u32 s68, {s(S_H)}, 12", f"s_cmp_ge_u32 {s(S_H)}, 28", f"s_cbranch_scc1 {ld}", f"s_branch {lnc}")
        self.label(lc)
        e("s_mov_b32 s69, 1", f"s_branch {lrd}")
        self.label(ld)
        e("s_mov_b32 s69, 2", f"s_branch {lrd}")
        self.label(lnc)
        e(f"s_mul_i32 s71, {s(S_H)}, 3", f"s_add_u32 s71, s71, {s(S_W)}",
          "s_cmp_lt_u32 s71, 80", f"s_cbranch_scc0 {lrd}", f"s_cmp_lt_u32 {s(S_W)}, 3", f"s_cbranch_scc0 {lrd}",
          "s_mov_b32 s70, 1")
        self.label(lrd)

        def load_heavy(part):
            lnc2, lnd2 = self.new("hc"), self.new("hd")
            e("s_cmp_eq_u32 s69, 1", f"s_cbranch_scc0 {lnc2}")
            self.c("gate / up weights: rows 160w.., columns 32c..")
            base = (WG, WU)[part]
            self.srd(SRD_A, (S_G, S_U)[part], 1966080)
            e(f"s_mul_i32 s62, {s(S_W)}, 160", "v_lshrrev_b32 v6, 4, v1", "v_lshlrev_b32 v6, 3, v6", "v_add_u32 v6, s62, v6",
              "v_mul_u32_u24 v6, 3072, v6", "v_and_b32 v7, 15, v1", "v_lshl_add_u32 v6, v7, 2, v6",
              "s_lshl_b32 s62, s68, 6", "v_add_u32 v6, s62, v6")
            for ks in range(5):
                for ee in range(8):
                    e(f"s_mov_b32 s62, {(32*ks+ee)*3072}",
                      f"buffer_load_dword {v(base+8*(ks+1)+ee)}, v6, {sr(SRD_A,4)}, s62 offen nt")
            e("s_waitcnt vmcnt(0)")
            for ks in range(5):
                raw, fr = base+8*(ks+1), base+8*ks
                for hi in range(2):
                    for q in range(4):
                        e(f"v_perm_b32 {v(fr+4*hi+q)}, {v(raw+2*q+1)}, {v(raw+2*q)}, {s(S_SELHI if hi else S_SELLO)}")
            self.label(lnc2)
            e("s_cmp_eq_u32 s69, 2", f"s_cbranch_scc0 {lnd2}")
            self.c("down weights: rows 384w.., columns 32d..")
            self.srd(SRD_A, S_DN, 1966080)
            e(f"s_mul_i32 s62, {s(S_W)}, 384", "v_lshrrev_b32 v6, 4, v1", "v_lshlrev_b32 v6, 3, v6", "v_add_u32 v6, s62, v6",
              "v_mul_u32_u24 v6, 1280, v6", "v_and_b32 v7, 15, v1", "v_lshl_add_u32 v6, v7, 2, v6",
              "s_lshl_b32 s62, s68, 6", "v_add_u32 v6, s62, v6")
            half = part
            for ks in range(6*half, 6*half+6):
                for ee in range(8):
                    e(f"s_mov_b32 s62, {(32*ks+ee)*1280}",
                      f"buffer_load_dword {v(WD+8*(ks+1)+ee)}, v6, {sr(SRD_A,4)}, s62 offen nt")
            e("s_waitcnt vmcnt(0)")
            for ks in range(6*half, 6*half+6):
                raw, fr = WD+8*(ks+1), WD+8*ks
                for hi in range(2):
                    for q in range(4):
                        e(f"v_perm_b32 {v(fr+4*hi+q)}, {v(raw+2*q+1)}, {v(raw+2*q)}, {s(S_SELHI if hi else S_SELLO)}")
            self.label(lnd2)

        self.c("slices that are not needed before the tail: loaded while q is still on its way where the helper is free")
        lnb2 = self.new("nb2")
        e(f"s_cmp_ge_u32 {s(S_J)}, 3", f"s_cbranch_scc0 {lnb2}", f"s_cmp_lt_u32 {s(S_J)}, 5", f"s_cbranch_scc0 {lnb2}")
        wbdef = "wbs" in self.x or "wbve" in self.x
        if not wbdef:
            load_wb()
        self.label(lnb2)
        if "heavylate" not in self.x:
            load_heavy(0)
            if "heavyall" in self.x:
                load_heavy(1)
        self.c("q of batch w of this head -> LDS")
        e(f"s_mul_i32 s62, {s(S_W)}, {3072*8}", f"s_mul_i32 s63, {s(S_H)}, {96*8}", "s_add_u32 s62, s62, s63",
          f"s_add_u32 s62, s62, {QBUF}", "v_lshlrev_b32 v6, 4, v1",
          "s_mov_b32 exec_lo, -1", "s_mov_b32 exec_hi, 0xffff")
        def ld_q():
            e(f"buffer_load_dwordx4 {vr(G,4)}, v6, {sr(SRD_WS,4)}, s62 offen sc1")
        self.poll(ld_q, [G+1, G+3], T, T+1, sleep=2)
        e(f"v_mov_b32 {v(G+1)}, {v(G+2)}", f"s_mul_i32 s62, {s(S_W)}, 384", f"s_add_u32 s62, s62, {QL}",
          "v_lshlrev_b32 v6, 3, v1", "v_add_u32 v6, s62, v6", f"ds_write_b64 v6, {vr(G,2)}",
          "s_mov_b64 exec, 1", f"ds_add_u32 v9, {v(VONE)} offset:{F_QC}", "s_mov_b64 exec, -1")
        self.stamp(5)
        lbd = self.new("bd")
        e(f"s_cmp_lt_u32 {s(S_J)}, 3", f"s_cbranch_scc0 {lbd}")
        if not wbdef:
            load_wb()
        self.label(lbd)
        if "heavylate" in self.x:
            load_heavy(0)
        if ("heavyall" not in self.x or "heavylate" in self.x) and "defer" not in self.x:
            load_heavy(1)
        lmid, lpc, lpd = self.new("mid"), self.new("pc"), self.new("pd")
        e("s_cmp_eq_u32 s69, 1", f"s_cbranch_scc0 {lpc}")
        self.c("sb (segment 3), cb (segment 4) for batch w")
        G2 = 160
        e(f"s_mul_i32 s62, {s(S_W)}, {1920*8}", f"s_add_u32 s62, s62, {MODBUF+3*320*8}", f"s_add_u32 s63, s62, {320*8}",
          "v_lshlrev_b32 v6, 3, v1")
        def ld_mod2():
            for i in range(5):
                e(f"buffer_load_dwordx2 {vr(G2+2*i,2)}, v6, {sr(SRD_WS,4)}, s62 offen offset:{512*i} sc1")
            for i in range(5):
                e(f"buffer_load_dwordx2 {vr(G2+10+2*i,2)}, v6, {sr(SRD_WS,4)}, s63 offen offset:{512*i} sc1")
        self.poll(ld_mod2, [G2+2*i+1 for i in range(10)], T, T+1, sleep=8)
        self.prep_mod_pair(G2, CC1, CSH, T)
        e(f"s_branch {lmid}")
        self.label(lpc)
        e("s_cmp_eq_u32 s69, 2", f"s_cbranch_scc0 {lpd}")
        self.c("gb pairs for (b = lane>>4, pair 16d + (lane&15))")
        e("v_lshrrev_b32 v6, 4, v1", f"v_mul_u32_u24 v6, {1920*8}, v6", "v_and_b32 v7, 15, v1", "v_lshl_add_u32 v6, v7, 3, v6",
          "s_lshl_b32 s62, s68, 7", f"s_add_u32 s62, s62, {MODBUF+5*320*8}")
        def ld_gb():
            e(f"buffer_load_dwordx2 {vr(GBR,2)}, v6, {sr(SRD_WS,4)}, s62 offen sc1")
        self.poll(ld_gb, [GBR+1], T, T+1, sleep=8)
        e(f"s_branch {lmid}")
        self.label(lpd)
        e("s_cmp_eq_u32 s70, 1", f"s_cbranch_scc0 {lmid}")
        self.srd(SRD_B, S_X, 5120)
        e("v_and_b32 v7, 15, v1", "s_and_b32 s63, s71, 3", "s_lshr_b32 s64, s71, 2",
          "s_mul_i32 s62, s63, 1280", "s_lshl_b32 s65, s64, 6", "s_add_u32 s62, s62, s65", "v_lshlrev_b32 v8, 2, v7",
          f"buffer_load_dword {v(RX)}, v8, {sr(SRD_B,4)}, s62 offen",
          "v_lshlrev_b32 v8, 3, v7", f"s_mul_i32 s62, s63, {1920*8}", "s_lshl_b32 s65, s64, 7", "s_add_u32 s62, s62, s65",
          f"s_add_u32 s62, s62, {MODBUF+2*320*8}")
        def ld_ga():
            e(f"buffer_load_dwordx2 {vr(RG,2)}, v8, {sr(SRD_WS,4)}, s62 offen sc1")
        self.poll(ld_ga, [RG+1], T, T+1, sleep=8)
        self.label(lmid)
        self.stamp(6)
        SL = self.SL
        MLR = 12
        e(f"s_lshl_b32 s61, {s(S_J)}, 2", f"s_add_u32 s61, s61, {s(S_W)}",
          f"s_lshl_b32 s95, {s(S_W)}, 10", f"s_add_u32 s95, s95, {SC}")

        def publish_ml(bi):
            e(f"s_mov_b32 s60, {bi}")
            self.lds_wait_gt(VFL, F_KD, 8, 60, sleep=4)
            e(f"s_lshl_b32 s62, {s(S_W)}, 5", f"s_add_u32 s62, s62, {MLH+8*bi}",
              "v_mov_b32 v6, s62", f"ds_read_b64 {vr(MLR,2)}, v6",
              f"s_lshl_b32 s63, {s(S_H)}, 2", f"s_add_u32 s63, s63, {bi}", "s_lshl_b32 s63, s63, 9", f"s_add_u32 s63, s63, {MLBUF}",
              "s_lshl_b32 s62, s61, 4", "s_add_u32 s62, s62, s63",
              "s_waitcnt lgkmcnt(0)",
              f"v_mov_b32 {v(MLR+2)}, {v(MLR+1)}", f"v_mov_b32 {v(MLR+1)}, {s(S_TAG)}", f"v_mov_b32 {v(MLR+3)}, {s(S_TAG)}",
              "v_mov_b32 v6, 0", "s_mov_b64 exec, 1",
              f"buffer_store_dwordx4 {vr(MLR,4)}, v6, {sr(SRD_WS,4)}, s62 offen sc1", "s_mov_b64 exec, -1")
            if bi == 3 and SL < 4:
                self.c("last batch: publish the scores of this wave's pool tiles")
                e(f"s_add_u32 s62, s95, {(12+SL)*64}", "v_lshlrev_b32 v6, 2, v1", "v_add_u32 v6, s62, v6",
                  "ds_read_b32 v16, v6", f"v_mov_b32 v17, {s(S_TAG)}",
                  "v_lshrrev_b32 v7, 4, v1", "v_lshlrev_b32 v7, 12, v7", "v_and_b32 v8, 15, v1", "v_lshl_add_u32 v7, v8, 3, v7",
                  f"s_lshl_b32 s62, {s(S_H)}, 7", f"s_add_u32 s62, s62, {32*SL}", "s_add_u32 s62, s62, s61", "s_lshl_b32 s62, s62, 7",
                  f"s_add_u32 s62, s62, {SBUF}", "s_waitcnt lgkmcnt(0)")
                n = 16*(4-SL)
                if n < 64:
                    lo = (1 << min(n, 32)) - 1
                    hi = (1 << max(n-32, 0)) - 1
                    e(f"s_mov_b32 exec_lo, {hex(lo)}", f"s_mov_b32 exec_hi, {hex(hi)}")
                e(f"buffer_store_dwordx2 v[16:17], v7, {sr(SRD_WS,4)}, s62 offen sc1", "s_mov_b64 exec, -1")

        def make_p(bi):
            e(f"s_lshl_b32 s63, {s(S_H)}, 2", f"s_add_u32 s63, s63, {bi}", "s_lshl_b32 s63, s63, 9", f"s_add_u32 s63, s63, {MLBUF}",
              "v_lshlrev_b32 v6, 4, v1", "s_mov_b32 exec_lo, -1", "s_mov_b32 exec_hi, 0")
            def ld_ml():
                e(f"buffer_load_dwordx4 {vr(MLR,4)}, v6, {sr(SRD_WS,4)}, s63 offen sc1")
            self.poll(ld_ml, [MLR+1, MLR+3], T, T+1, sleep=8)
            e("s_mov_b64 exec, -1", f"v_cmp_gt_u32 vcc, 32, v1", f"v_mov_b32 v6, {hex(NINF)}", "v_mov_b32 v7, 0", "s_nop 0",
              f"v_cndmask_b32 {v(MLR)}, v6, {v(MLR)}, vcc", f"v_cndmask_b32 {v(MLR+2)}, v7, {v(MLR+2)}, vcc",
              f"v_mov_b32 v6, {v(MLR)}")
            self.allreduce("max", 6, 8)
            e(f"v_sub_f32 v7, {v(MLR)}, v6", f"v_mul_f32 v7, {hex(LOG2E)}, v7", "v_exp_f32 v7, v7", "s_nop 0",
              f"v_mul_f32 v7, v7, {v(MLR+2)}")
            self.allreduce("add", 7, 8)
            e("v_rcp_f32 v7, v7", "s_nop 1", "v_readfirstlane_b32 s92, v6", "v_readfirstlane_b32 s93, v7")
            self.c("probabilities of the four static tiles of this batch, in place of their scores")
            e(f"s_add_u32 s62, s95, {256*bi}", "v_lshlrev_b32 v6, 2, v1", "v_add_u32 v6, s62, v6",
              "ds_read_b32 v12, v6", "s_waitcnt lgkmcnt(0)")
            self.unpack(14, 15, 12)
            e("v_subrev_f32 v14, s92, v14", "v_subrev_f32 v15, s92, v15",
              f"v_mul_f32 v14, {hex(LOG2E)}, v14", f"v_mul_f32 v15, {hex(LOG2E)}, v15", "v_exp_f32 v14, v14", "v_exp_f32 v15, v15", "s_nop 0",
              "v_mul_f32 v14, s93, v14", "v_mul_f32 v15, s93, v15", "v_cvt_pk_bf16_f32 v12, v14, v15",
              f"v_mov_b32 v7, {bi+1}", "ds_write_b32 v6, v12",
              "s_mov_b64 exec, 1", f"ds_write_b32 {v(VFL)}, v7 offset:{F_PB}", "s_mov_b64 exec, -1")

        for bi in range(4):
            publish_ml(bi)
            if bi >= 1:
                make_p(bi-1)
        self.c("the last batch's statistics: once this workgroup has finished the first V batch")
        self.lds_wait(9, F_OF, 8, 1, sleep=4)
        make_p(3)
        self.stamp(7)
        if SL < 4:
            self.c("---- pool: claim tiles for the paired streamer and prepare their probabilities")
            e("s_mov_b32 s60, 0", "s_mov_b32 s59, 0", f"s_lshl_b32 s57, {s(S_W)}, 4", f"s_add_u32 s94, s57, {IDQ}", f"s_add_u32 s57, s57, {CLQ}",
              f"s_lshl_b32 s56, {s(S_H)}, 7", f"s_add_u32 s56, s56, {CNTBUF}",
              f"s_lshl_b32 s61, {s(S_H)}, 14", f"s_add_u32 s61, s61, {SBUF}",
              f"s_lshl_b32 s95, {s(S_W)}, 8", f"s_add_u32 s95, s95, {PSLOT}",
              "s_mov_b32 s58, 0", "s_mov_b32 s55, 0", "s_mov_b32 s52, 0", "v_mov_b32 v20, 0")
            lp, lpe = self.new("pp"), self.new("pe")
            self.label(lp)
            e("s_and_b32 s62, s60, 3", "s_lshl_b32 s62, s62, 2", "s_add_u32 s62, s62, s94", "v_mov_b32 v6, s62")
            self.lds_wait_gt(VFL, F_NV, 8, 60, sleep=1)
            if self.A == 1:
                lnat, lnsc, lretry, lchk, lnp = (self.new(x) for x in ("nat", "nsc", "pr", "pc", "np"))
                e("ds_read_b32 v7, v6", "s_waitcnt lgkmcnt(0)", "v_readfirstlane_b32 s63, v7", "s_nop 0",
                  "s_cmp_ge_u32 s63, 128", f"s_cbranch_scc1 {lpe}",
                  "s_lshl_b32 s63, s63, 7", "s_add_u32 s63, s63, s61", "v_lshlrev_b32 v6, 3, v1")
                def ld_sc():
                    e(f"buffer_load_dwordx2 v[12:13], v6, {sr(SRD_WS,4)}, s63 offen sc1")
                self.c("claim the tile of the next item first, then fetch the scores of the item that has just started")
                e("s_mov_b32 s54, 0", "s_cmp_eq_u32 s55, 0", f"s_cbranch_scc0 {lnat}", "s_mov_b64 exec, 1", "v_mov_b32 v22, 1",
                  f"buffer_atomic_add v22, v20, {sr(SRD_WS,4)}, s56 offen sc0 sc1", "s_mov_b32 s54, 1")
                self.label(lnat)
                lns2, lw1 = self.new("ns2"), self.new("w1")
                e("s_cmp_ge_u32 s60, 1", f"s_cbranch_scc0 {lns2}", "s_mov_b64 exec, 0xffff")
                ld_sc()
                e("s_waitcnt vmcnt(1)", f"s_branch {lw1}")
                self.label(lns2)
                e("s_waitcnt vmcnt(0)")
                self.label(lw1)
                e("s_mov_b64 exec, 1", "s_cmp_eq_u32 s54, 1", f"s_cbranch_scc0 {lnsc}",
                  "v_readfirstlane_b32 s53, v22",
                  "s_and_b32 s62, s59, 3", "s_lshl_b32 s62, s62, 2", "s_add_u32 s62, s62, s57", "v_mov_b32 v7, s62", "v_mov_b32 v8, s53",
                  "s_add_u32 s59, s59, 1", "v_mov_b32 v14, s59", "ds_write_b32 v7, v8",
                  f"ds_write_b32 {v(VFL)}, v14 offset:{F_NC}",
                  f"s_cmp_ge_u32 s53, {32*(4-SL)}", "s_cselect_b32 s55, 1, s55")
                self.label(lnsc)
                e("s_cmp_ge_u32 s60, 1", f"s_cbranch_scc0 {lnp}", "s_mov_b64 exec, 0xffff", "s_waitcnt vmcnt(0)")
                self.tagcheck([13], T, T+1, lretry)
                e(f"s_branch {lchk}")
                self.label(lretry)
                self.poll(ld_sc, [13], T, T+1)
                self.label(lchk)
                self.unpack(14, 15, 12)
                e("v_subrev_f32 v14, s92, v14", "v_subrev_f32 v15, s92, v15",
                  f"v_mul_f32 v14, {hex(LOG2E)}, v14", f"v_mul_f32 v15, {hex(LOG2E)}, v15", "v_exp_f32 v14, v14", "v_exp_f32 v15, v15", "s_nop 0",
                  "v_mul_f32 v14, s93, v14", "v_mul_f32 v15, s93, v15", "v_cvt_pk_bf16_f32 v12, v14, v15",
                  "s_and_b32 s62, s52, 3", "s_lshl_b32 s62, s62, 6", "s_add_u32 s62, s62, s95",
                  "v_lshlrev_b32 v6, 2, v1", "v_add_u32 v6, s62, v6", "s_add_u32 s52, s52, 1", "v_mov_b32 v7, s52",
                  "ds_write_b32 v6, v12", "s_mov_b64 exec, 1", f"ds_write_b32 {v(VFL)}, v7 offset:{F_NP}")
                self.label(lnp)
                e("s_mov_b64 exec, -1", "s_add_u32 s60, s60, 1", f"s_branch {lp}")
            else:
                lna, lnd_, lw0, lwx, lnl = (self.new(x) for x in ("na", "ndl", "w0", "wx", "nl"))
                e("ds_read_b32 v7, v6", "s_waitcnt lgkmcnt(0)", "v_readfirstlane_b32 s63, v7", "s_nop 0",
                  "s_cmp_ge_u32 s63, 128", f"s_cbranch_scc1 {lpe}",
                  "s_lshl_b32 s63, s63, 7", "s_add_u32 s63, s63, s61", "v_lshlrev_b32 v6, 3, v1")
                def ld_sc():
                    e(f"buffer_load_dwordx2 v[12:13], v6, {sr(SRD_WS,4)}, s63 offen sc1")
                e("s_cmp_ge_u32 s60, 2", f"s_cbranch_scc0 {lnl}", "s_mov_b64 exec, 0xffff")
                ld_sc()
                self.label(lnl)
                e("s_mov_b32 s54, s58", "s_mov_b32 s58, 0", "s_cmp_eq_u32 s55, 0", f"s_cbranch_scc0 {lw0}",
                  "s_mov_b64 exec, 1", "s_and_b32 s62, s60, 1", f"s_cbranch_scc1 {lna}",
                  "v_mov_b32 v22, 1", f"buffer_atomic_add v22, v20, {sr(SRD_WS,4)}, s56 offen sc0 sc1", f"s_branch {lnd_}")
                self.label(lna)
                e("v_mov_b32 v23, 1", f"buffer_atomic_add v23, v20, {sr(SRD_WS,4)}, s56 offen sc0 sc1")
                self.label(lnd_)
                e("s_mov_b32 s58, 1", "s_waitcnt vmcnt(1)", f"s_branch {lwx}")
                self.label(lw0)
                e("s_waitcnt vmcnt(0)")
                self.label(lwx)
                self.c("deliver the claim issued one item earlier")
                lnc_, lod, lodx, lretry, lchk, lnp = (self.new(x) for x in ("ncl", "od", "odx", "pr", "pc", "np"))
                e("s_mov_b64 exec, 1", "s_cmp_eq_u32 s54, 1", f"s_cbranch_scc0 {lnc_}",
                  "s_and_b32 s62, s60, 1", f"s_cbranch_scc1 {lod}",
                  "v_readfirstlane_b32 s53, v23", f"s_branch {lodx}")
                self.label(lod)
                e("v_readfirstlane_b32 s53, v22")
                self.label(lodx)
                e("s_and_b32 s62, s59, 3", "s_lshl_b32 s62, s62, 2", "s_add_u32 s62, s62, s57", "v_mov_b32 v7, s62", "v_mov_b32 v8, s53",
                  "s_add_u32 s59, s59, 1", "v_mov_b32 v14, s59", "ds_write_b32 v7, v8",
                  f"ds_write_b32 {v(VFL)}, v14 offset:{F_NC}",
                  f"s_cmp_ge_u32 s53, {32*(4-SL)}", "s_cselect_b32 s55, 1, s55")
                self.label(lnc_)
                e("s_cmp_ge_u32 s60, 2", f"s_cbranch_scc0 {lnp}", "s_mov_b64 exec, 0xffff")
                self.tagcheck([13], T, T+1, lretry)
                e(f"s_branch {lchk}")
                self.label(lretry)
                self.poll(ld_sc, [13], T, T+1)
                self.label(lchk)
                self.unpack(14, 15, 12)
                e("v_subrev_f32 v14, s92, v14", "v_subrev_f32 v15, s92, v15",
                  f"v_mul_f32 v14, {hex(LOG2E)}, v14", f"v_mul_f32 v15, {hex(LOG2E)}, v15", "v_exp_f32 v14, v14", "v_exp_f32 v15, v15", "s_nop 0",
                  "v_mul_f32 v14, s93, v14", "v_mul_f32 v15, s93, v15", "v_cvt_pk_bf16_f32 v12, v14, v15",
                  "s_and_b32 s62, s52, 3", "s_lshl_b32 s62, s62, 6", "s_add_u32 s62, s62, s95",
                  "v_lshlrev_b32 v6, 2, v1", "v_add_u32 v6, s62, v6", "s_add_u32 s52, s52, 1", "v_mov_b32 v7, s52",
                  "ds_write_b32 v6, v12", "s_mov_b64 exec, 1", f"ds_write_b32 {v(VFL)}, v7 offset:{F_NP}")
                self.label(lnp)
                e("s_mov_b64 exec, -1", "s_add_u32 s60, s60, 1", f"s_branch {lp}")
            self.label(lpe)
            e("s_mov_b64 exec, -1")
        lhi2, ldone = self.new("hi2"), self.new("done")
        e(f"s_cmp_lt_u32 {s(S_J)}, 5", f"s_cbranch_scc0 {lhi2}")
        self.c("---- stage B: sum the 8 partials per batch, o @ wo")
        GB_ = 204
        FQ = 236
        OV, AB = 16, 28
        e("v_and_b32 v6, 15, v1", "v_lshrrev_b32 v7, 2, v6", "v_and_b32 v6, 3, v6",
          "v_lshl_add_u32 v6, v7, 3, v6", "v_lshlrev_b32 v6, 10, v6",
          "v_lshrrev_b32 v7, 4, v1", "v_lshl_add_u32 v4, v7, 4, v6",
          f"s_lshl_b32 s62, {s(S_H)}, 15", f"s_lshl_b32 s63, {s(S_W)}, 8", "s_add_u32 s62, s62, s63",
          f"s_add_u32 s62, s62, {OBUF}", "s_add_u32 s63, s62, 4096")
        e(f"s_lshl_b32 s64, {s(S_W)}, 11", f"s_add_u32 s64, s64, {RED2}", "v_lshlrev_b32 v5, 5, v1", "v_add_u32 v5, s64, v5")
        e("v_lshrrev_b32 v6, 4, v1", f"s_lshl_b32 s64, {s(S_W)}, 2", "v_add_u32 v6, s64, v6",
          "v_bfe_u32 v7, v1, 2, 2", "v_and_b32 v8, 3, v1",
          "v_lshl_add_u32 v9, v7, 4, v6", "v_lshlrev_b32 v9, 5, v9", "v_lshl_add_u32 v9, v8, 3, v9",
          "v_lshlrev_b32 v6, 13, v7", "v_lshrrev_b32 v7, 4, v1", "v_lshl_add_u32 v7, v7, 2, v8",
          "v_lshl_add_u32 v10, v7, 4, v6",
          f"s_lshl_b32 s64, {s(S_J)}, 2", f"s_add_u32 s64, s64, {s(S_W)}", "s_lshl_b32 s64, s64, 15",
          f"s_lshl_b32 s65, {s(S_H)}, 8", "s_add_u32 s64, s64, s65", f"s_add_u32 s64, s64, {ABUF}",
          f"v_mov_b32 {v(FQ+1)}, {s(S_TAG)}", f"v_mov_b32 {v(FQ+3)}, {s(S_TAG)}")
        def ld_o(js):
            def f():
                for ss in range(4):
                    e(f"buffer_load_dwordx4 {vr(GB_+16*js+4*ss,4)}, v4, {sr(SRD_WS,4)}, {'s63' if js else 's62'} offen offset:{64*ss} sc1")
            return f
        grp = [(36, ld_o(0), [GB_+4*k+3 for k in range(4)]), (38, ld_o(1), [GB_+16+4*k+3 for k in range(4)])]
        if "wbs" in self.x:
            e("s_mov_b32 s58, s62", "s_mov_b32 s59, s63")
            load_wb()
            e("s_mov_b32 s62, s58", "s_mov_b32 s63, s59")
        if "e1pre" in self.x:
            self.c("the partial outputs of batches 0..2 were published long ago")
            self.masked_gather(grp, T, init=(0x0fff0fff, 0x0fff0fff), care=(0x0fff0fff, 0x0fff0fff), sleep=8)
        self.lds_wait(VFL, F_VE, 8, 1, sleep=2)
        self.stamp(8)
        if "wbve" in self.x:
            e("s_mov_b32 s58, s62", "s_mov_b32 s59, s63")
            wb_issue()
            e("s_mov_b32 s62, s58", "s_mov_b32 s63, s59")
            self.c("(the descriptor registers become the lane masks of the gather: the loads above have been issued)")
        if "e1pre" in self.x:
            self.masked_gather(grp, T, init=(0xf000f000, 0xf000f000), care=(0xf000f000, 0xf000f000))
            if "wbve" in self.x:
                wb_perm()
        else:
            self.masked_gather(grp, T)
        self.stamp(9)
        for ss in range(4):
            for p in range(3):
                e(f"v_add_f32 {v(OV+3*ss+p)}, {v(GB_+4*ss+p)}, {v(GB_+16+4*ss+p)}")
        for perm in ("[1,0,3,2]", "[2,3,0,1]"):
            for k in range(12):
                e(f"v_add_f32_dpp {v(OV+k)}, {v(OV+k)}, {v(OV+k)} quad_perm:{perm} row_mask:0xf bank_mask:0xf")
        for k in range(6):
            e(f"v_cvt_pk_bf16_f32 {v(AB+k)}, {v(OV+2*k)}, {v(OV+2*k+1)}")
        e("s_nop 0")
        DB = GB_
        for sg in range(3):
            for cc in range(8):
                c = "0" if sg == 0 else vr(DB+4*cc, 4)
                e(f"v_mfma_f32_16x16x16_bf16 {vr(DB+4*cc,4)}, {vr(AB+2*sg,2)}, {vr(WB+16*sg+2*cc,2)}, {c}")
        e("s_nop 1")
        for cc in range(8):
            e(f"v_mov_b32 {v(OV+cc)}, {v(DB+4*cc)}")
            if cc < 7:
                pass
        e(f"ds_write_b128 v5, {vr(OV,4)}", f"ds_write_b128 v5, {vr(OV+4,4)} offset:16", "s_waitcnt lgkmcnt(0)", "s_barrier")
        for ww in range(4):
            e(f"ds_read_b64 {vr(OV+2*ww,2)}, v9 offset:{RED2+2048*ww}")
        e("s_waitcnt lgkmcnt(2)", f"v_pk_add_f32 {vr(OV,2)}, {vr(OV,2)}, {vr(OV+2,2)}",
          "s_waitcnt lgkmcnt(0)", f"v_pk_add_f32 {vr(OV+4,2)}, {vr(OV+4,2)}, {vr(OV+6,2)}",
          f"v_add_f32 {v(FQ)}, {v(OV)}, {v(OV+4)}", f"v_add_f32 {v(FQ+2)}, {v(OV+1)}, {v(OV+5)}",
          f"buffer_store_dwordx4 {vr(FQ,4)}, v10, {sr(SRD_WS,4)}, s64 offen sc1")
        self.stamp(10)
        e(f"s_branch {ldone}")
        self.label(lhi2)
        lnd = self.new("nd")
        e("s_cmp_eq_u32 s69, 2", f"s_cbranch_scc0 {lnd}")
        self.c("---- stage D: hh @ w_down, residual, output")
        X1R = 34
        HGA, HGB = 204, 228
        e(f"v_mov_b32 v32, {v(GBR)}")
        e("v_lshrrev_b32 v6, 4, v1", f"v_mul_u32_u24 v6, {320*8}, v6", "v_and_b32 v7, 15, v1", "v_lshl_add_u32 v4, v7, 3, v6",
          "s_lshl_b32 s64, s68, 7", "s_and_b32 s65, s68, 3", "s_mul_i32 s65, s65, 10240", "s_add_u32 s64, s64, s65",
          f"s_add_u32 s64, s64, {X1BUF}")
        for i in range(6):
            e(f"v_add_u32 v6, {64*i}, v1", "v_mul_u32_u24 v7, 683, v6", "v_lshrrev_b32 v7, 16, v7",
              "v_mul_u32_u24 v8, 96, v7", "v_sub_u32 v8, v6, v8", f"v_mul_u32_u24 v7, {768*8}, v7",
              f"v_lshl_add_u32 {v(16+i)}, v8, 4, v7")
        e(f"s_mul_i32 s62, {s(S_W)}, {192*8}", f"s_add_u32 s62, s62, {HBUF}")
        if self.RH > 1:
            e("s_and_b32 s63, s68, 1", f"s_mul_i32 s63, s63, {HBUF2-HBUF}", "s_add_u32 s62, s62, s63")
        e(f"s_mul_i32 s63, {s(S_W)}, 3072", f"s_add_u32 s63, s63, {HST}", "v_lshlrev_b32 v6, 3, v1", "v_add_u32 v5, s63, v6",
          "v_and_b32 v7, 15, v1", "v_lshrrev_b32 v7, 2, v7", "v_mul_u32_u24 v7, 768, v7", "v_lshrrev_b32 v8, 4, v1",
          "v_lshl_add_u32 v7, v8, 4, v7", "v_add_u32 v9, s63, v7",
          f"s_lshl_b32 s63, {s(S_W)}, 9", f"s_add_u32 s63, s63, {RED2+8192}", "v_add_u32 v10, s63, v6",
          "v_mov_b32 v11, v6",
          "v_lshrrev_b32 v6, 4, v1", "v_mul_u32_u24 v6, 1280, v6", "v_and_b32 v7, 15, v1", "v_lshl_add_u32 v12, v7, 2, v6",
          "s_lshl_b32 s65, s68, 6")
        self.srd(SRD_B, S_OUT, 5120)
        self.lds_wait(VFL, F_VE, 8, 1, sleep=2)
        self.stamp(8)
        if "defer" in self.x:
            self.c("second half of the weight slice: while the attention tail runs elsewhere")
            e("s_mov_b32 s58, s62")
            load_heavy(1)
            e("s_mov_b32 s62, s58")
        def ld_x1d():
            e(f"buffer_load_dwordx2 {vr(X1R,2)}, v4, {sr(SRD_WS,4)}, s64 offen sc1")
        self.poll(ld_x1d, [X1R+1], T, T+1, sleep=3)
        self.stamp(11)
        def ld_h(base):
            def f():
                for i in range(6):
                    e(f"buffer_load_dwordx4 {vr(base+4*i,4)}, {v(16+i)}, {sr(SRD_WS,4)}, s62 offen sc1")
            return f
        def use_h(base):
            def f():
                for i in range(6):
                    e(f"v_mov_b32 {v(base+4*i+1)}, {v(base+4*i+2)}", f"ds_write_b64 v5, {vr(base+4*i,2)} offset:{512*i}")
            return f
        if "e4g" in self.x:
            self.c("gate on the first sixth of this wave's slice, then fetch the rest")
            def ld_h0():
                e(f"buffer_load_dwordx4 {vr(HGA,4)}, {v(16)}, {sr(SRD_WS,4)}, s62 offen sc1")
            self.poll(ld_h0, [HGA+1, HGA+3], T, T+1)
            def ld_hr():
                for i in range(1, 6):
                    e(f"buffer_load_dwordx4 {vr(HGA+4*i,4)}, {v(16+i)}, {sr(SRD_WS,4)}, s62 offen sc1")
            self.poll(ld_hr, [HGA+4*i+k for i in range(1, 6) for k in (1, 3)], T, T+1)
            use_h(HGA)()
        elif "e4s" in self.x:
            self.poll(ld_h(HGA), [HGA+4*i+k for i in range(6) for k in (1, 3)], T, T+1, sleep=self.e4sleep)
            use_h(HGA)()
        elif "e4m" in self.x:
            def ld_h2(k):
                def f():
                    for i in (2*k, 2*k+1):
                        e(f"buffer_load_dwordx4 {vr(HGA+4*i,4)}, {v(16+i)}, {sr(SRD_WS,4)}, s62 offen sc1")
                return f
            self.masked_gather([(sp, ld_h2(k), [HGA+8*k+1, HGA+8*k+3, HGA+8*k+5, HGA+8*k+7]) for k, sp in enumerate((36, 38, 48))], T)
            use_h(HGA)()
        else:
            self.poll2(ld_h(HGA), [HGA+4*i+k for i in range(6) for k in (1, 3)], use_h(HGA),
                       ld_h(HGB), [HGB+4*i+k for i in range(6) for k in (1, 3)], use_h(HGB), 6, T)
        self.stamp(12)
        AD = 36
        for ks in range(9):
            e(f"ds_read_b128 {vr(AD+4*ks,4)}, v9 offset:{64*ks}")
        DD2 = 24
        for ks in range(12):
            e(f"s_waitcnt lgkmcnt({min(8, 11-ks)})")
            for hi in range(2):
                c = "0" if ks == 0 else vr(DD2+4*hi, 4)
                e(f"v_mfma_f32_16x16x32_bf16 {vr(DD2+4*hi,4)}, {vr(AD+4*ks,4)}, {vr(WD+8*ks+4*hi,4)}, {c}")
            if ks + 9 < 12:
                e(f"ds_read_b128 {vr(AD+4*(ks+9),4)}, v9 offset:{64*(ks+9)}")
        e("s_nop 7", f"v_mov_b32 {v(DD2+1)}, {v(DD2+4)}", f"ds_write_b64 v10, {vr(DD2,2)}", "s_waitcnt lgkmcnt(0)", "s_barrier")
        e(f"s_cmp_eq_u32 {s(S_W)}, 0", f"s_cbranch_scc0 {ldone}")
        R = 12+4
        for ww in range(4):
            e(f"ds_read_b64 {vr(R+2*ww,2)}, v11 offset:{RED2+8192+512*ww}")
        self.unpack(24, 25, 32)
        self.unpack(26, 27, X1R)
        e("s_waitcnt lgkmcnt(2)", f"v_pk_add_f32 {vr(R,2)}, {vr(R,2)}, {vr(R+2,2)}",
          "s_waitcnt lgkmcnt(0)", f"v_pk_add_f32 {vr(R+4,2)}, {vr(R+4,2)}, {vr(R+6,2)}",
          f"v_pk_add_f32 {vr(R,2)}, {vr(R,2)}, {vr(R+4,2)}")
        self.round2(R, R+1, T)
        e(f"v_pk_mul_f32 {vr(R,2)}, {vr(R,2)}, v[24:25]")
        self.round2(R, R+1, T)
        e(f"v_pk_add_f32 {vr(R,2)}, {vr(R,2)}, v[26:27]", f"v_cvt_pk_bf16_f32 {v(R)}, {v(R)}, {v(R+1)}",
          f"buffer_store_dword {v(R)}, v12, {sr(SRD_B,4)}, s65 offen")
        self.c("the workgroup with d == 0 leaves this launch's tag for the next launch")
        e("s_cmp_eq_u32 s68, 0", f"s_cbranch_scc0 {ldone}",
          f"v_mov_b32 v6, {WS_EPOCH}", f"v_mov_b32 v7, {s(S_TAG)}", "s_mov_b64 exec, 1",
          f"buffer_store_dword v7, v6, {sr(SRD_WS,4)}, 0 offen sc1", "s_mov_b64 exec, -1")
        e(f"s_branch {ldone}")
        self.label(lnd)
        lnr2 = self.new("nr2")
        e("s_cmp_eq_u32 s70, 1", f"s_cbranch_scc0 {lnr2}")
        self.c("---- reducer: sum 32 head partials, residual, publish x1")
        RGm = 184
        e("v_lshlrev_b32 v4, 4, v1", "s_lshl_b32 s62, s71, 13", f"s_add_u32 s62, s62, {ABUF}", "s_add_u32 s63, s62, 4096",
          "v_lshrrev_b32 v6, 4, v1", "v_mul_u32_u24 v6, 10240, v6", "v_and_b32 v7, 15, v1", "v_lshl_add_u32 v5, v7, 3, v6",
          "s_and_b32 s64, s71, 3", f"s_mul_i32 s64, s64, {320*8}", "s_lshr_b32 s65, s71, 2", "s_lshl_b32 s65, s65, 7",
          "s_add_u32 s64, s64, s65", f"s_add_u32 s64, s64, {X1BUF}", f"v_mov_b32 v21, {s(S_TAG)}")
        self.unpack(24, 25, RG)
        self.unpack(26, 27, RX)
        self.lds_wait(VFL, F_VE, 8, 1, sleep=2)
        self.stamp(8)
        if "rgate" in self.x:
            self.c("gate: one of four heads has published its projection for these columns")
            lg, lgd = self.new("rg"), self.new("rgd")
            e("v_lshlrev_b32 v6, 3, v1", f"v_add_u32 v6, {s(S_H)}, v6", "v_and_b32 v6, 31, v6", "v_lshlrev_b32 v6, 8, v6", "s_mov_b64 exec, 15")
            self.label(lg)
            e(f"buffer_load_dwordx2 v[14:15], v6, {sr(SRD_WS,4)}, s62 offen sc1", "s_waitcnt vmcnt(0)",
              f"v_cmp_eq_u32 vcc, {s(S_TAG)}, v15", "s_nop 1", f"s_cbranch_vccnz {lgd}", "s_sleep 2")
            self.spin_check()
            e(f"s_branch {lg}")
            self.label(lgd)
            e("s_mov_b64 exec, -1")
        def ld_a(k):
            def f():
                for i in (2*k, 2*k+1):
                    e(f"buffer_load_dwordx4 {vr(RGm+4*i,4)}, v4, {sr(SRD_WS,4)}, {'s63' if i>=4 else 's62'} offen offset:{1024*(i&3)} sc1")
            return f
        self.masked_gather([(sp, ld_a(k), [RGm+8*k+1, RGm+8*k+3, RGm+8*k+5, RGm+8*k+7]) for k, sp in enumerate((36, 38, 44, 46))], T)
        self.stamp(9)
        a0, a1 = 16, 17
        e(f"v_add_f32 {v(a0)}, {v(RGm)}, {v(RGm+4)}", f"v_add_f32 {v(a1)}, {v(RGm+2)}, {v(RGm+6)}",
          f"v_add_f32 v18, {v(RGm+8)}, {v(RGm+12)}", f"v_add_f32 v19, {v(RGm+10)}, {v(RGm+14)}")
        for i in (4, 5):
            e(f"v_add_f32 {v(a0)}, {v(a0)}, {v(RGm+4*i)}", f"v_add_f32 {v(a1)}, {v(a1)}, {v(RGm+4*i+2)}",
              f"v_add_f32 v18, v18, {v(RGm+4*(i+2))}", f"v_add_f32 v19, v19, {v(RGm+4*(i+2)+2)}")
        e(f"v_pk_add_f32 {vr(a0,2)}, {vr(a0,2)}, v[18:19]")
        for swp in ("v_permlane16_swap_b32", "v_permlane32_swap_b32"):
            e(f"v_mov_b32 v18, {v(a0)}", f"v_mov_b32 v19, {v(a1)}", "s_nop 1",
              f"{swp} v18, {v(a0)}", f"{swp} v19, {v(a1)}",
              f"v_pk_add_f32 {vr(a0,2)}, v[18:19], {vr(a0,2)}")
        self.round2(a0, a1, T)
        e(f"v_pk_mul_f32 {vr(a0,2)}, {vr(a0,2)}, v[24:25]")
        self.round2(a0, a1, T)
        e(f"v_pk_add_f32 {vr(a0,2)}, {vr(a0,2)}, v[26:27]",
          f"v_cvt_pk_bf16_f32 v20, {v(a0)}, {v(a1)}",
          f"buffer_store_dwordx2 v[20:21], v5, {sr(SRD_WS,4)}, s64 offen sc1")
        self.stamp(10)
        e(f"s_branch {ldone}")
        self.label(lnr2)
        e("s_cmp_eq_u32 s69, 1", f"s_cbranch_scc0 {ldone}")
        self.c("---- stage C: LN2, gate/up, hh")
        XGA, XGB = 184, 194
        TD = 204
        AC, DC = 184, 216
        e(f"s_mul_i32 s62, {s(S_W)}, {320*8}", "s_and_b32 s63, s68, 3", "s_mul_i32 s63, s63, 10240", "s_add_u32 s62, s62, s63",
          f"s_add_u32 s62, s62, {X1BUF}", "v_lshlrev_b32 v4, 3, v1",
          f"s_lshl_b32 s63, {s(S_W)}, 10", f"s_add_u32 s63, s63, {RED2}", "v_lshlrev_b32 v10, 4, v1", "v_add_u32 v11, s63, v10",
          "v_lshrrev_b32 v6, 4, v1", f"v_mul_u32_u24 v6, {768*8}, v6", "v_and_b32 v7, 15, v1", "v_lshl_add_u32 v12, v7, 3, v6",
          "s_lshl_b32 s64, s68, 7", f"s_add_u32 s64, s64, {HBUF}", f"v_mov_b32 v33, {s(S_TAG)}")
        self.lds_wait(VFL, F_VE, 8, 1, sleep=2)
        self.stamp(8)
        if "defer" in self.x:
            self.c("second half of the weight slice: while the attention tail runs elsewhere")
            e("s_mov_b32 s58, s62")
            load_heavy(1)
            e("s_mov_b32 s62, s58")
        self.c("gate: wave 0 watches the attention projection finish, then everybody polls x1")
        lg = self.new("gate")
        lng = self.new("ngate")
        if "nogate" in self.x:
            e(f"s_branch {lng}")
        e(f"s_cmp_eq_u32 {s(S_W)}, 0", f"s_cbranch_scc0 {lg}",
          "s_lshl_b32 s63, s68, 13", f"s_add_u32 s63, s63, {ABUF}", "v_lshlrev_b32 v6, 8, v1",
          "s_mov_b32 exec_lo, -1", "s_mov_b32 exec_hi, 0")
        def ld_gate():
            e(f"buffer_load_dwordx2 v[14:15], v6, {sr(SRD_WS,4)}, s63 offen sc1")
        self.poll(ld_gate, [15], T, T+1, sleep=2)
        e("s_mov_b64 exec, -1")
        self.lds_flag_set(9, F_GT, VONE)
        self.label(lg)
        self.lds_wait(9, F_GT, 8, 1, sleep=1)
        self.label(lng)
        def ld_x1(base):
            def f():
                for i in range(5):
                    e(f"buffer_load_dwordx2 {vr(base+2*i,2)}, v4, {sr(SRD_WS,4)}, s62 offen offset:{512*i} sc1")
            return f
        def use_x1(base):
            def f():
                for i in range(5):
                    self.unpack(XF+2*i, XF+2*i+1, base+2*i)
            return f
        if "e3g" in self.x:
            def ld_x0():
                e(f"buffer_load_dwordx2 {vr(XGA,2)}, v4, {sr(SRD_WS,4)}, s62 offen sc1")
            self.poll(ld_x0, [XGA+1], T, T+1)
            def ld_xr():
                for i in range(1, 5):
                    e(f"buffer_load_dwordx2 {vr(XGA+2*i,2)}, v4, {sr(SRD_WS,4)}, s62 offen offset:{512*i} sc1")
            self.poll(ld_xr, [XGA+2*i+1 for i in range(1, 5)], T, T+1)
            use_x1(XGA)()
        elif "e3s" in self.x:
            self.poll(ld_x1(XGA), [XGA+2*i+1 for i in range(5)], T, T+1)
            use_x1(XGA)()
        else:
            self.poll2(ld_x1(XGA), [XGA+2*i+1 for i in range(5)], use_x1(XGA), ld_x1(XGB), [XGB+2*i+1 for i in range(5)], use_x1(XGB), 5, T)
        self.stamp(11)
        self.ln_fast(None, XF, TD, T)
        self.modulate_fast(XF, CC1, CSH, TD, 26)
        e("s_waitcnt lgkmcnt(0)", "s_barrier")
        self.stamp(12)
        e("s_waitcnt vmcnt(0)")
        for ks in range(5):
            e(f"ds_read_b128 {vr(AC+4*ks,4)}, v5 offset:{64*ks}")
        for ks in range(5):
            e(f"s_waitcnt lgkmcnt({4-ks})")
            for mi, base in enumerate((WG, WU)):
                for hi in range(2):
                    d = DC+8*mi+4*hi
                    c = "0" if ks == 0 else vr(d, 4)
                    e(f"v_mfma_f32_16x16x32_bf16 {vr(d,4)}, {vr(AC+4*ks,4)}, {vr(base+8*ks+4*hi,4)}, {c}")
        e("s_nop 5")
        for k in range(4):
            e(f"v_mov_b32 {v(16+k)}, {v(DC+4*k)}")
        e("ds_write_b128 v11, v[16:19]", "s_waitcnt lgkmcnt(0)", "s_barrier")
        e(f"s_cmp_eq_u32 {s(S_W)}, 0", f"s_cbranch_scc0 {ldone}")
        for ww in range(4):
            e(f"ds_read_b128 {vr(AC+4*ww,4)}, v10 offset:{RED2+1024*ww}")
        e("s_waitcnt lgkmcnt(2)", f"v_pk_add_f32 {vr(AC,2)}, {vr(AC,2)}, {vr(AC+4,2)}", f"v_pk_add_f32 {vr(AC+2,2)}, {vr(AC+2,2)}, {vr(AC+6,2)}",
          "s_waitcnt lgkmcnt(0)", f"v_pk_add_f32 {vr(AC+8,2)}, {vr(AC+8,2)}, {vr(AC+12,2)}", f"v_pk_add_f32 {vr(AC+10,2)}, {vr(AC+10,2)}, {vr(AC+14,2)}",
          f"v_pk_add_f32 {vr(AC,2)}, {vr(AC,2)}, {vr(AC+8,2)}", f"v_pk_add_f32 {vr(AC+2,2)}, {vr(AC+2,2)}, {vr(AC+10,2)}",
          f"v_cvt_pk_bf16_f32 {v(T)}, {v(AC)}, {v(AC+1)}", f"v_cvt_pk_bf16_f32 {v(T+1)}, {v(AC+2)}, {v(AC+3)}")
        self.unpack(AC, AC+1, T)
        self.unpack(AC+2, AC+3, T+1)
        e(f"v_pk_mul_f32 {vr(AC,2)}, {vr(AC,2)}, {vr(AC+2,2)}", f"v_cvt_pk_bf16_f32 v32, {v(AC)}, {v(AC+1)}",
          f"buffer_store_dwordx2 v[32:33], v12, {sr(SRD_WS,4)}, s64 offen sc1")
        if self.RH > 1:
            e(f"s_add_u32 s64, s64, {HBUF2-HBUF}", f"buffer_store_dwordx2 v[32:33], v12, {sr(SRD_WS,4)}, s64 offen sc1")
        self.label(ldone)
        self.stamp(13)
        self.stamps_store()
        e("s_waitcnt vmcnt(0)", "s_endpgm")


def main():
    ap = argparse.ArgumentParser()
    ap.add_argument("-o", default="cdna_kernels/" + NAME + ".s")
    ap.add_argument("-D", type=int, default=3)
    ap.add_argument("--diag", action="store_true")
    ap.add_argument("--spin", type=int, default=400000)
    ap.add_argument("-x", default="")
    ap.add_argument("-N", type=int, default=None)
    ap.add_argument("--sv", type=int, default=16)
    ap.add_argument("--sk", type=int, default=16)
    ap.add_argument("--rot", type=int, default=0)
    ap.add_argument("--stag", default="0,32")
    ap.add_argument("--sl", type=int, default=4)
    ap.add_argument("--n2", type=int, default=None)
    ap.add_argument("--rm", type=int, default=1)
    ap.add_argument("--align", type=int, default=0)
    ap.add_argument("--nt", type=int, default=None)
    ap.add_argument("--i0", type=int, default=16)
    ap.add_argument("--e4sleep", type=int, default=0)
    ap.add_argument("-A", type=int, default=2)
    ap.add_argument("--rh", type=int, default=1)
    a = ap.parse_args()
    g = Gen(D=a.D, diag=a.diag, spin=a.spin, x=[t for t in a.x.split(',') if t], N=a.N, SV=a.sv, SK=a.sk, rot=a.rot, stag=tuple(int(t) for t in a.stag.split(',')), SL=a.sl, N2=a.n2, RM=a.rm, RH=a.rh, align=a.align, NT=a.nt, i0=a.i0, e4sleep=a.e4sleep, A=a.A)
    open(a.o, "w").write(g.build())
    print("wrote", a.o, len(g.L), "lines")


if __name__ == "__main__":
    main()
```

```python
import sys, argparse

NAME = "adaLN_cond__gqa_block_cached__glu_gated_bilinear__decode"
KERNEL = NAME + "_kernel"

WS_EPOCH = 0
MODBUF = 0x1000
QBUF   = 0x10000
X1BUF  = 0xF0000
HBUF   = 0x30000
HBUF2  = 0xFA000
MODR   = 0x300000
CNTBUF = 0x38000
ABUF   = 0x40000
MLBUF  = 0xE0000
OBUF   = 0x100000
SBUF   = 0x200000
STAMPS = 0x400000
WS_SIZE = 0x800000

RING_W = 36864
SC     = 147456
OSL    = SC + 4096
PSLOT  = SC + 7168
MISC   = 155648
AVEC   = MISC
QL     = MISC + 5120
MLH    = MISC + 6656
FLAGS  = MISC + 6784
IDQ    = MISC + 7040
CLQ    = MISC + 7104
LDS_TOTAL = 163840
F_SYNCA, F_SYNCR, F_JD, F_GT, F_QC, F_PA, F_OF, F_AL = 0, 4, 8, 12, 16, 20, 24, 28
F_KD, F_PB, F_OC, F_NV, F_NP, F_NC, F_VE = 32, 48, 64, 80, 96, 112, 128
RED2   = 0
HST    = 16384

S_X, S_K, S_V, S_WQ, S_WO, S_BX, S_G, S_U, S_DN, S_C, S_WM, S_OUT, S_DBG, S_WS = range(4, 32, 2)
S_TAG, S_W, S_H, S_J = 32, 33, 34, 35
SRD_A, SRD_WS, SRD_B, SRD_C = 36, 40, 44, 48
S_SPIN, S_SELLO, S_SELHI = 96, 97, 98
S_STAMP0 = 72

SCALE = 0x3d93cd3a
LOG2E = 0x3fb8aa3b
EPS = 0x3727c5ac
INV640 = 0x3acccccd
NINF = 0xff800000
TAGINC = 0x9E3779B9


def v(i): return f"v{i}"
def vr(i, n): return f"v[{i}:{i+n-1}]"
def s(i): return f"s{i}"
def sr(i, n): return f"s[{i}:{i+n-1}]"


class Gen:
    def __init__(self, D=3, diag=False, spin=400000, x=(), N=None, SV=16, SK=16, rot=0, stag=(0,0), SL=4, N2=None, RM=1, RH=1, align=0, NT=None, i0=16, e4sleep=0, A=2):
        self.A = A
        self.e4sleep = e4sleep
        self.i0 = i0
        self._NT = NT
        self.align = align
        self.RM = RM
        self.RH = RH
        self.SL = SL
        self.N2 = N2
        self.rot = rot
        self.stag = stag
        self.SV = SV
        self.SK = SK
        self.x = set(x)
        self.N = 3*(D-1) if N is None else N
        if N is not None:
            D = (N + 3 + 2)//3
        self.L = []
        self.nl = 0
        self.D = D
        self.NT = self.N if self._NT is None else self._NT
        self.diag = diag
        self.spin = spin
        self.nstamp = 0

    def e(self, *lines):
        for l in lines:
            self.L.append("    " + l)

    def c(self, text):
        self.L.append("    ; " + text)

    def label(self, name):
        self.L.append(name + ":")

    def new(self, base):
        self.nl += 1
        return f"L{base}_{self.nl}"

    def srd(self, dst, ptr, size):
        self.e(f"s_mov_b32 {s(dst)}, {s(ptr)}",
               f"s_and_b32 {s(dst+1)}, {s(ptr+1)}, 0xffff",
               f"s_mov_b32 {s(dst+2)}, {size}",
               f"s_mov_b32 {s(dst+3)}, 0x20000")

    def stamp(self, k):
        if not self.diag:
            return
        assert k < 16
        self.e("s_memrealtime s[88:89]", "s_waitcnt lgkmcnt(0)", f"s_mov_b32 {s(S_STAMP0+k)}, s88")

    def stamps_store(self):
        if not self.diag:
            return
        self.e("s_mov_b64 exec, -1")
        self.e("v_mov_b32 v250, 0")
        for k in range(16):
            self.e(f"v_writelane_b32 v250, {s(S_STAMP0+k)}, {k}")
        self.e("v_mbcnt_lo_u32_b32 v251, -1, 0", "v_mbcnt_hi_u32_b32 v251, -1, v251",
               "v_lshlrev_b32 v251, 2, v251",
               "s_lshl_b32 s88, s99, 6", f"s_add_u32 s88, s88, {STAMPS}",
               "s_mov_b64 exec, 0xffff",
               f"buffer_store_dword v250, v251, {sr(SRD_WS,4)}, s88 offen",
               "s_waitcnt vmcnt(0)")

    def tag_load(self):
        self.e(f"s_load_dword {s(S_TAG)}, {sr(S_WS,2)}, {WS_EPOCH}")
        if self.diag:
            self.e("s_memrealtime s[100:101]")

    def tag_ready(self):
        self.e("s_waitcnt lgkmcnt(0)", f"s_add_u32 {s(S_TAG)}, {s(S_TAG)}, {hex(TAGINC)}")
        if self.diag:
            self.e(f"s_mov_b32 {s(S_STAMP0)}, s100")

    def start_sync(self, streamer):
        self.e("s_barrier")

    def spin_check(self):
        self.e(f"s_sub_u32 {s(S_SPIN)}, {s(S_SPIN)}, 1", "s_cbranch_scc1 Labort")

    def allreduce(self, op, x, t):
        for r in (8, 4, 2, 1):
            self.e("s_nop 1", f"v_{op}_f32_dpp {v(x)}, {v(x)}, {v(x)} row_ror:{r} row_mask:0xf bank_mask:0xf")
        self.e(f"v_mov_b32 {v(t)}, {v(x)}", "s_nop 1", f"v_permlane16_swap_b32 {v(t)}, {v(x)}",
               f"v_{op}_f32 {v(x)}, {v(t)}, {v(x)}")
        self.e(f"v_mov_b32 {v(t)}, {v(x)}", "s_nop 1", f"v_permlane32_swap_b32 {v(t)}, {v(x)}",
               f"v_{op}_f32 {v(x)}, {v(t)}, {v(x)}")

    def unpack(self, lo, hi, src):
        self.e(f"v_lshlrev_b32 {v(lo)}, 16, {v(src)}", f"v_and_b32 {v(hi)}, 0xffff0000, {v(src)}")

    def round2(self, a, b, t):
        self.e(f"v_cvt_pk_bf16_f32 {v(t)}, {v(a)}, {v(b)}")
        self.unpack(a, b, t)

    def lds_flag_set(self, vfl, off, vone):
        self.e("s_mov_b64 exec, 1", f"ds_write_b32 {v(vfl)}, {v(vone)} offset:{off}", "s_mov_b64 exec, -1")

    def lds_wait(self, vfl, off, vt, target, sleep=1, body=None):
        l = self.new("w")
        d = self.new("wd")
        self.label(l)
        if body:
            body()
        self.e(f"ds_read_b32 {v(vt)}, {v(vfl)} offset:{off}", "s_waitcnt lgkmcnt(0)",
               f"v_readfirstlane_b32 s90, {v(vt)}", "s_nop 0",
               f"s_cmp_ge_u32 s90, {target}", f"s_cbranch_scc1 {d}")
        if sleep:
            self.e(f"s_sleep {sleep}")
        self.spin_check()
        self.e(f"s_branch {l}")
        self.label(d)

    def lds_wait_gt(self, vfl, off, vt, sreg, sleep=1, body=None):
        l, d = self.new("w"), self.new("wd")
        self.label(l)
        self.e(f"ds_read_b32 {v(vt)}, {v(vfl)} offset:{off}", "s_waitcnt lgkmcnt(0)",
               f"v_readfirstlane_b32 s90, {v(vt)}", "s_nop 0",
               f"s_cmp_gt_u32 s90, {s(sreg)}", f"s_cbranch_scc1 {d}")
        if body:
            body()
        if sleep:
            self.e(f"s_sleep {sleep}")
        self.spin_check()
        self.e(f"s_branch {l}")
        self.label(d)

    def sync4(self, vfl, off, vone, vt):
        self.e("s_mov_b64 exec, 1", f"ds_add_u32 {v(vfl)}, {v(vone)} offset:{off}", "s_mov_b64 exec, -1")
        self.lds_wait(vfl, off, vt, 4, sleep=0)

    def tagcheck(self, regs, acc, tmp, retry):
        first = True
        i = 0
        while i < len(regs):
            if first:
                self.e(f"v_xor_b32 {v(acc)}, {s(S_TAG)}, {v(regs[i])}")
                first = False
                i += 1
            elif i + 1 < len(regs):
                self.e(f"v_xor_b32 {v(tmp)}, {s(S_TAG)}, {v(regs[i])}",
                       f"v_xor_b32 {v(tmp+1)}, {s(S_TAG)}, {v(regs[i+1])}",
                       f"v_or3_b32 {v(acc)}, {v(acc)}, {v(tmp)}, {v(tmp+1)}")
                i += 2
            else:
                self.e(f"v_xor_b32 {v(tmp)}, {s(S_TAG)}, {v(regs[i])}",
                       f"v_or_b32 {v(acc)}, {v(acc)}, {v(tmp)}")
                i += 1
        self.e(f"v_cmp_ne_u32 vcc, 0, {v(acc)}", "s_nop 1", f"s_cbranch_vccnz {retry}")

    def poll(self, loads, tags, acc, tmp, sleep=0):
        l = self.new("poll")
        r = self.new("pollr")
        d = self.new("polld")
        self.e(f"s_branch {l}")
        self.label(r)
        if sleep:
            self.e(f"s_sleep {sleep}")
        self.spin_check()
        self.label(l)
        loads()
        self.e("s_waitcnt vmcnt(0)")
        self.tagcheck(tags, acc, tmp, r)
        self.label(d)

    def build(self):
        e = self.e
        hdr = open("cdna_kernels/" + NAME + ".s.ref").read().split("\n")
        for l in hdr:
            if l.startswith("; Override"):
                break
            self.L.append(l)
        self.L.append(f"; @launch grid=(256,1,1) block=(512,1,1) lds={LDS_TOTAL}")
        self.L.append('.amdgcn_target "amdgcn-amd-amdhsa--gfx950"')
        self.L.append(".text")
        self.L.append(f".globl {KERNEL}")
        self.L.append(".p2align 8")
        self.L.append(f".type {KERNEL},@function")
        self.label(KERNEL)
        e("s_cmp_ge_u32 s2, 256", "s_cbranch_scc1 Lexit")
        e("s_load_dwordx16 s[4:19], s[0:1], 0", "s_load_dwordx8 s[20:27], s[0:1], 64", "s_load_dwordx4 s[28:31], s[0:1], 96")
        e("v_lshrrev_b32 v2, 6, v0", "v_and_b32 v1, 63, v0", "s_nop 0", f"v_readfirstlane_b32 {s(S_W)}, v2")
        e(f"s_lshr_b32 {s(S_H)}, s2, 3", f"s_and_b32 {s(S_J)}, s2, 7")
        if self.rot:
            self.c("the workgroups of one head sit at different dispatch slots of the eight dies")
            e(f"s_mul_i32 s3, {s(S_J)}, {self.rot}", f"s_add_u32 {s(S_H)}, {s(S_H)}, s3", f"s_and_b32 {s(S_H)}, {s(S_H)}, 31")
        e(f"s_mov_b32 {s(S_SPIN)}, {self.spin}", f"s_mov_b32 {s(S_SELLO)}, 0x05040100", f"s_mov_b32 {s(S_SELHI)}, 0x07060302")
        if self.diag:
            e("s_lshl_b32 s99, s2, 3", f"s_add_u32 s99, s99, {s(S_W)}")
            for k in range(16):
                e(f"s_mov_b32 {s(S_STAMP0+k)}, 0")
        e(f"s_cmp_ge_u32 {s(S_W)}, 4", "s_cbranch_scc1 Lhelper")
        self.streamer()
        self.label("Lhelper")
        self.helper()
        self.label("Labort")
        self.c("spin budget exhausted: leave a mark in d_debug and stop")
        e("s_mov_b64 exec, 1", "v_mov_b32 v2, 0", "v_mov_b32 v3, 0xdead",
          f"global_store_dword v2, v3, {sr(S_DBG,2)}", "s_waitcnt vmcnt(0)")
        self.label("Lexit")
        e("s_endpgm")
        self.L.append('.section .rodata,"a"')
        self.L.append(".p2align 6")
        self.L.append(f".amdhsa_kernel {KERNEL}")
        self.L += ["  .amdhsa_next_free_vgpr 256", "  .amdhsa_next_free_sgpr 102", "  .amdhsa_accum_offset 256",
                   "  .amdhsa_group_segment_fixed_size 0", "  .amdhsa_kernarg_size 112",
                   "  .amdhsa_user_sgpr_count 2", "  .amdhsa_user_sgpr_kernarg_segment_ptr 1",
                   "  .amdhsa_system_sgpr_workgroup_id_x 1", "  .amdhsa_float_denorm_mode_32 3",
                   ".end_amdhsa_kernel"]
        return "\n".join(self.L) + "\n"

    def take_claim(self, dst):
        e = self.e
        e("s_and_b32 s63, s64, 3", "s_lshl_b32 s63, s63, 2", "s_add_u32 s63, s63, s50", "v_mov_b32 v21, s63")
        self.lds_wait_gt(18, F_NC, 22, 64)
        e("ds_read_b32 v13, v21", "s_waitcnt lgkmcnt(0)", f"v_readfirstlane_b32 {s(dst)}, v13", "s_add_u32 s64, s64, 1")

    def issue_unit(self):
        e = self.e
        SL = self.SL
        sI, sSrc, sPos, sBase, sEnd, sStop, sHb = 52, 53, 54, 55, 56, 60, 61
        sNV, sCur = 65, 71
        lmid, lstop, ldone, ldyn, lhave, lnn = (self.new(x) for x in ("im", "is", "id", "iy", "ih", "nn"))
        e(f"s_and_b32 s62, {s(sI)}, 3", f"s_cbranch_scc1 {lmid}")
        e(f"s_lshr_b32 s62, {s(sI)}, 2", f"s_cmp_lt_u32 s62, {28+SL}", f"s_cbranch_scc0 {ldyn}")
        if self.align:
            self.c("the four waves of the workgroup start every align-th item together (adjacent tiles stay close in time)")
            lal = self.new("al")
            e(f"s_and_b32 s63, s62, {self.align-1}", f"s_cbranch_scc1 {lal}", "s_cmp_eq_u32 s62, 0", f"s_cbranch_scc1 {lal}",
              "s_add_u32 s51, s51, 4", "s_sub_u32 s66, s51, 1", "s_mov_b64 exec, 1", f"ds_add_u32 v178, v19 offset:{F_AL}", "s_mov_b64 exec, -1")
            self.lds_wait_gt(178, F_AL, 13, 66, sleep=0)
            e(f"s_lshr_b32 s62, {s(sI)}, 2")
            self.label(lal)
        self.c("static item: batch (m>>2)&3, tile 32*(m&3) + 4j + w")
        e("s_and_b32 s63, s62, 3", "s_lshl_b32 s63, s63, 5", f"s_add_u32 {s(sCur)}, s63, s48",
          "s_bfe_u32 s63, s62, 0x20002", "s_cmp_lt_u32 s62, 16",
          f"s_cselect_b32 {s(SRD_A)}, {s(S_K)}, {s(S_V)}", f"s_cselect_b32 {s(SRD_A+1)}, s92, s93", f"s_branch {lhave}")
        self.label(ldyn)
        if SL == 4:
            e(f"s_branch {lstop}")
        else:
            self.take_claim(sCur)
            e(f"s_cmp_ge_u32 {s(sCur)}, {32*(4-SL)}", f"s_cbranch_scc1 {lstop}", f"s_add_u32 {s(sCur)}, {s(sCur)}, {32*SL}",
              "s_mov_b32 s63, 3", f"s_lshr_b32 s62, {s(sI)}, 2")
        self.label(lhave)
        e("s_mul_i32 s63, s63, 50331648", f"s_add_u32 {s(sSrc)}, {s(sHb)}, s63",
          f"s_add_u32 s63, {s(sCur)}, s49", "s_and_b32 s63, s63, 127", "s_mul_i32 s63, s63, 12288", f"s_add_u32 {s(sSrc)}, {s(sSrc)}, s63")
        if SL < 4:
            self.c("from two items before the pool on, the helper follows the item starts")
            e(f"s_cmp_ge_u32 s62, {28-self.A+SL}", f"s_cbranch_scc0 {lmid}",
              f"s_and_b32 s62, {s(sNV)}, 3", "s_lshl_b32 s62, s62, 2", "s_add_u32 s62, s62, s94", "v_mov_b32 v13, s62",
              f"v_mov_b32 v21, {s(sCur)}", f"s_add_u32 {s(sNV)}, {s(sNV)}, 1", f"v_mov_b32 v22, {s(sNV)}",
              "s_mov_b64 exec, 1", "ds_write_b32 v13, v21", f"ds_write_b32 v18, v22 offset:{F_NV}", "s_mov_b64 exec, -1")
        self.label(lmid)
        if self.N2 is not None:
            lw1, lw2 = self.new("n1"), self.new("n2")
            e(f"s_cmp_lt_u32 {s(sI)}, {4*(28+SL)}", f"s_cbranch_scc1 {lw1}", f"s_waitcnt vmcnt({self.N2})", f"s_branch {lw2}")
            self.label(lw1)
            e(f"s_waitcnt vmcnt({self.N})")
            self.label(lw2)
        else:
            e(f"s_waitcnt vmcnt({self.N})")
        e(f"s_mov_b32 m0, {s(sPos)}",
          f"s_add_u32 {s(sPos)}, {s(sPos)}, 3072",
          f"buffer_load_dwordx4 v2, {sr(SRD_A,4)}, {s(sSrc)} offen nt lds",
          f"buffer_load_dwordx4 v3, {sr(SRD_A,4)}, {s(sSrc)} offen offset:1024 nt lds",
          f"buffer_load_dwordx4 v4, {sr(SRD_A,4)}, {s(sSrc)} offen offset:2048 nt lds",
          f"s_cmp_eq_u32 {s(sPos)}, {s(sEnd)}", f"s_cselect_b32 {s(sPos)}, {s(sBase)}, {s(sPos)}",
          f"s_add_u32 {s(sSrc)}, {s(sSrc)}, 3072",
          f"s_add_u32 {s(sI)}, {s(sI)}, 1", f"s_branch {ldone}")
        self.label(lstop)
        e(f"s_mov_b32 {s(sStop)}, 1")
        if SL < 4:
            e(f"s_and_b32 s62, {s(sNV)}, 3", "s_lshl_b32 s62, s62, 2", "s_add_u32 s62, s62, s94", "v_mov_b32 v13, s62",
              "v_mov_b32 v21, 0xffff", f"s_add_u32 {s(sNV)}, {s(sNV)}, 1", f"v_mov_b32 v22, {s(sNV)}",
              "s_mov_b64 exec, 1", "ds_write_b32 v13, v21", f"ds_write_b32 v18, v22 offset:{F_NV}", "s_mov_b64 exec, -1")
        self.label(ldone)

    def try_issue(self, burst=False):
        if "try" not in self.x:
            return
        e = self.e
        NT, NW = (9, 9) if burst else (self.NT, self.N)
        sI, sSrc, sPos, sBase, sEnd = 52, 53, 54, 55, 56
        l = self.new("ti")
        e("s_getreg_b32 s63, hwreg(HW_REG_IB_STS, 0, 4)", f"s_cmp_le_u32 s63, {NT}", f"s_cbranch_scc0 {l}",
          f"s_and_b32 s63, {s(sI)}, 3", f"s_cbranch_scc0 {l}",
          f"s_waitcnt vmcnt({NW})", f"s_mov_b32 m0, {s(sPos)}", f"s_add_u32 {s(sPos)}, {s(sPos)}, 3072",
          f"buffer_load_dwordx4 v2, {sr(SRD_A,4)}, {s(sSrc)} offen nt lds",
          f"buffer_load_dwordx4 v3, {sr(SRD_A,4)}, {s(sSrc)} offen offset:1024 nt lds",
          f"buffer_load_dwordx4 v4, {sr(SRD_A,4)}, {s(sSrc)} offen offset:2048 nt lds",
          f"s_cmp_eq_u32 {s(sPos)}, {s(sEnd)}", f"s_cselect_b32 {s(sPos)}, {s(sBase)}, {s(sPos)}",
          f"s_add_u32 {s(sSrc)}, {s(sSrc)}, 3072", f"s_add_u32 {s(sI)}, {s(sI)}, 1")
        self.label(l)

    def try2(self):
        if "try2" in self.x:
            self.try_issue()

    def streamer(self):
        e = self.e
        D, SL = self.D, self.SL
        sI, sSrc, sPos, sBase, sEnd, sN, sTile, sTgt, sStop, sHb = 52, 53, 54, 55, 56, 57, 58, 59, 60, 61
        sNV, sPN, sCur = 65, 69, 71
        QF, KF, D0, ACC, PF = 24, 48, 96, 104, 152
        X, T = 156, 164
        vSo, vQa, vOw, vOr, vFl = 180, 181, 182, 183, 178
        Q = 184
        M, Lr, E = 192, 193, 196
        self.c("================= streamer wave =================")
        self.c("DMA source offsets (xor swizzle of 16-byte chunks inside each row)")
        for i in range(3):
            e(f"v_add_u32 v13, {64*i}, v1", "v_mul_u32_u24 v14, 2731, v13", "v_lshrrev_b32 v14, 16, v14",
              "v_mul_u32_u24 v15, 24, v14", "v_sub_u32 v15, v13, v15", "v_and_b32 v16, 7, v14",
              "v_xor_b32 v15, v15, v16", "v_mul_u32_u24 v14, 384, v14", f"v_lshl_add_u32 {v(2+i)}, v15, 4, v14")
            if i:
                e(f"v_subrev_u32 {v(2+i)}, {1024*i}, {v(2+i)}")
        self.c("K fragment addresses")
        e("v_and_b32 v13, 15, v1", "v_lshrrev_b32 v14, 4, v1", "v_and_b32 v15, 7, v13", "v_mul_u32_u24 v13, 384, v13")
        for x in range(2):
            e(f"v_add_u32 v16, {4*x}, v14", "v_xor_b32 v16, v16, v15", f"v_lshl_add_u32 {v(5+x)}, v16, 4, v13")
        self.c("V fragment addresses")
        e("v_lshrrev_b32 v13, 2, v1", "v_and_b32 v15, 7, v13", "v_mul_u32_u24 v13, 384, v13",
          "v_and_b32 v16, 1, v1", "v_lshl_add_u32 v13, v16, 3, v13", "v_bfe_u32 v16, v1, 1, 1")
        for u in range(4):
            e(f"v_add_u32 v17, {2*u}, v16", "v_xor_b32 v17, v17, v15", f"v_lshl_add_u32 {v(7+u)}, v17, 4, v13")
        self.c("score / probability / q / partial output addresses, flags")
        e("v_lshlrev_b32 v13, 4, v14",
          f"s_lshl_b32 s62, {s(S_W)}, 8", f"s_add_u32 s62, s62, {PSLOT}", "v_add_u32 v12, s62, v13",
          f"s_lshl_b32 s62, {s(S_W)}, 10", f"s_add_u32 s62, s62, {SC}", f"v_add_u32 {v(vSo)}, s62, v13",
          f"v_add_u32 {v(vQa)}, {QL}, v13",
          f"s_mul_i32 s62, {s(S_W)}, 768", f"s_add_u32 s62, s62, {OSL}",
          "v_and_b32 v15, 15, v1", "v_lshlrev_b32 v15, 2, v15", f"v_add_u32 {v(vOw)}, s62, v15",
          "v_mul_u32_u24 v15, 12, v1", f"v_add_u32 {v(vOr)}, {OSL}, v15",
          f"s_lshl_b32 s63, {s(S_W)}, 2", f"s_add_u32 s63, s63, {FLAGS}",
          "v_mov_b32 v18, s63", "v_mov_b32 v19, 1", f"v_mov_b32 {v(vFl)}, {FLAGS}")
        self.c("the kernel arguments have arrived by now")
        e(f"s_mul_i32 {s(sHb)}, {s(S_H)}, 1572864",
          f"s_lshl_b32 s94, {s(S_W)}, 4", f"s_add_u32 s50, s94, {CLQ}", f"s_add_u32 s94, s94, {IDQ}",
          f"s_lshl_b32 s48, {s(S_J)}, 2", f"s_add_u32 s48, s48, {s(S_W)}",
          f"s_mul_i32 s49, {s(S_H)}, {self.stag[1]}", "s_mov_b32 s64, 0", "s_mov_b32 s51, 0")
        e(f"s_mov_b32 {s(sSrc)}, 0", f"s_mov_b32 {s(sI)}, 0", f"s_mul_i32 {s(sBase)}, {s(S_W)}, {RING_W}",
          f"s_mov_b32 {s(sPos)}, {s(sBase)}", f"s_add_u32 {s(sEnd)}, {s(sBase)}, {RING_W}",
          f"s_mov_b32 {s(sTile)}, {s(sBase)}", f"s_mov_b32 {s(sStop)}, 0",
          f"s_mov_b32 {s(sNV)}, 0", f"s_mov_b32 {s(sPN)}, 0", f"s_mov_b32 {s(sN)}, 0", f"s_mov_b32 {s(sCur)}, 0")
        e("s_waitcnt lgkmcnt(0)")
        self.srd(SRD_WS, S_WS, WS_SIZE)
        self.tag_load()
        e(f"s_and_b32 s92, {s(S_K+1)}, 0xffff", f"s_and_b32 s93, {s(S_V+1)}, 0xffff")
        self.srd(SRD_A, S_K, 201326592)
        e("s_barrier")
        self.c("---- fill the ring while the helpers fetch q")
        l0, l0d = self.new("f0"), self.new("f0d")
        self.label(l0)
        e(f"s_cmp_lt_u32 {s(sI)}, {4+D}", f"s_cbranch_scc0 {l0d}")
        self.issue_unit()
        e(f"s_branch {l0}")
        self.label(l0d)
        for i in range(48):
            e(f"v_mov_b32 {v(ACC+i)}, 0")
        lf, lfd, lfn = self.new("f"), self.new("fd"), self.new("fn")
        self.label(lf)
        e(f"ds_read_b64 v[14:15], {v(vFl)} offset:{F_QC}", f"ds_read_b32 v16, {v(vFl)} offset:{F_JD}", "s_waitcnt lgkmcnt(0)",
          "v_readfirstlane_b32 s90, v14", "v_readfirstlane_b32 s62, v15", "v_readfirstlane_b32 s63, v16", "s_nop 0",
          "s_lshl_b32 s63, s63, 2", "s_and_b32 s63, s63, s90")
        if "fullring" in self.x:
            e(f"s_cmp_eq_u32 {s(sI)}, 12", "s_cselect_b32 s63, s63, 0")
        e("s_cmp_eq_u32 s63, 4", f"s_cbranch_scc1 {lfd}",
          "s_cmp_eq_u32 s62, 0", f"s_cbranch_scc0 {lfn}",
          f"s_cmp_lt_u32 {s(sI)}, 12", f"s_cbranch_scc0 {lfn}")
        self.issue_unit()
        e(f"s_branch {lf}")
        self.label(lfn)
        e("s_sleep 1")
        self.spin_check()
        e(f"s_branch {lf}")
        self.label(lfd)
        self.tag_ready()
        self.stamp(2)

        def runahead():
            l = self.new("ra")
            e(f"s_lshl_b32 s62, {s(sN)}, 2", "s_add_u32 s62, s62, 12", f"s_cmp_lt_u32 {s(sI)}, s62", f"s_cbranch_scc0 {l}",
              f"s_cmp_eq_u32 {s(sStop)}, 0", f"s_cbranch_scc0 {l}")
            self.issue_unit()
            self.label(l)

        def finalize():
            self.c("last K tile of this batch: hand (max, sum) to the helper")
            e(f"v_mov_b32 {v(T)}, {v(M)}")
            for swp in ("v_permlane16_swap_b32", "v_permlane32_swap_b32"):
                e(f"v_mov_b32 {v(T+1)}, {v(T)}", "s_nop 1", f"{swp} {v(T+1)}, {v(T)}", f"v_max_f32 {v(T)}, {v(T+1)}, {v(T)}")
            e(f"v_sub_f32 {v(T+1)}, {v(M)}, {v(T)}", f"v_mul_f32 {v(T+1)}, {hex(LOG2E)}, {v(T+1)}",
              f"v_exp_f32 {v(T+1)}, {v(T+1)}", "s_nop 0", f"v_mul_f32 {v(Lr)}, {v(Lr)}, {v(T+1)}")
            for swp in ("v_permlane16_swap_b32", "v_permlane32_swap_b32"):
                e(f"v_mov_b32 {v(T+1)}, {v(Lr)}", "s_nop 1", f"{swp} {v(T+1)}, {v(Lr)}", f"v_add_f32 {v(Lr)}, {v(T+1)}, {v(Lr)}")
            e(f"v_mov_b32 {v(E)}, {v(T)}", f"v_mov_b32 {v(E+1)}, {v(Lr)}",
              f"s_lshr_b32 s63, {s(sN)}, 2", f"s_lshl_b32 s62, {s(S_W)}, 2", "s_add_u32 s62, s62, s63", "s_lshl_b32 s62, s62, 3",
              f"s_add_u32 s62, s62, {MLH}", "v_mov_b32 v13, s62", "s_add_u32 s63, s63, 1", "v_mov_b32 v14, s63",
              "s_mov_b64 exec, 1", f"ds_write_b64 v13, {vr(E,2)}", f"ds_write_b32 v18, v14 offset:{F_KD}", "s_mov_b64 exec, -1")

        def flush_acc(last=False):
            self.c("partial output of this batch -> LDS; the last of the four waves sums and publishes")
            e("s_sub_u32 s66, s70, 1")
            lsk = self.new("fs")
            e("s_cmp_eq_u32 s70, 0", f"s_cbranch_scc1 {lsk}")
            self.lds_wait_gt(vFl, F_OF, 13, 66, sleep=1)
            self.label(lsk)
            e("s_lshl_b32 s62, s70, 2", f"s_add_u32 s62, s62, {FLAGS+F_OC}", "v_mov_b32 v14, s62", "s_nop 4", "s_mov_b64 exec, 0xffff")
            for t in range(12):
                e(f"ds_write_b32 {v(vOw)}, {v(ACC+4*t)} offset:{64*t}")
            e("s_mov_b64 exec, 1", "ds_add_rtn_u32 v15, v14, v19", "s_mov_b64 exec, -1")
            if not last:
                self.try_issue()
                for i in range(48):
                    e(f"v_mov_b32 {v(ACC+i)}, 0")
                    if i in (15, 31, 47):
                        self.try2()
            lno = self.new("fn")
            e("s_waitcnt lgkmcnt(0)", "v_readfirstlane_b32 s62, v15", "s_nop 0", "s_cmp_eq_u32 s62, 3", f"s_cbranch_scc0 {lno}")
            self.try2()
            for ww in range(4):
                for k in range(3):
                    e(f"ds_read_b32 {v(KF+4*ww+k)}, {v(vOr)} offset:{768*ww+4*k}")
            e(f"s_lshl_b32 s63, {s(S_H)}, 2", "s_add_u32 s63, s63, s70", "s_lshl_b32 s63, s63, 3", f"s_add_u32 s63, s63, {s(S_J)}",
              "s_lshl_b32 s63, s63, 10", f"s_add_u32 s63, s63, {OBUF}", "v_lshlrev_b32 v15, 4, v1", f"v_mov_b32 {v(E+3)}, {s(S_TAG)}",
              "s_waitcnt lgkmcnt(6)")
            for k in range(3):
                e(f"v_add_f32 {v(E+k)}, {v(KF+k)}, {v(KF+4+k)}")
            e("s_waitcnt lgkmcnt(0)")
            for k in range(3):
                e(f"v_add_f32 {v(KF+8+k)}, {v(KF+8+k)}, {v(KF+12+k)}")
            for k in range(3):
                e(f"v_add_f32 {v(E+k)}, {v(E+k)}, {v(KF+8+k)}")
            e(f"buffer_store_dwordx4 {vr(E,4)}, v15, {sr(SRD_WS,4)}, s63 offen sc1",
              "s_mov_b64 exec, 1", f"ds_add_u32 {v(vFl)}, v19 offset:{F_OF}", "s_mov_b64 exec, -1")
            self.label(lno)

        self.c("---- item loop")
        lloop, liss, lgo, lhave, lv, lnext, lfin = (self.new(x) for x in ("loop", "iss", "go", "have", "vit", "next", "fin"))
        self.label(lloop)
        e(f"s_lshl_b32 {s(sTgt)}, {s(sN)}, 2", f"s_add_u32 {s(sTgt)}, {s(sTgt)}, {4+D}")
        if self.N2 is not None:
            D2 = (self.N2 + 5)//3
            assert D2 <= 8
            e(f"s_cmp_ge_u32 {s(sN)}, {27+SL}", f"s_cselect_b32 s62, {D2-D}, 0", f"s_add_u32 {s(sTgt)}, {s(sTgt)}, s62")
        self.label(liss)
        e(f"s_cmp_lt_u32 {s(sI)}, {s(sTgt)}", f"s_cbranch_scc0 {lhave}",
          f"s_cmp_eq_u32 {s(sStop)}, 0", f"s_cbranch_scc0 {lgo}")
        self.issue_unit()
        e(f"s_branch {liss}")
        self.label(lgo)
        e(f"s_lshl_b32 s62, {s(sN)}, 2", f"s_cmp_eq_u32 s62, {s(sI)}", f"s_cbranch_scc1 {lfin}", "s_waitcnt vmcnt(0)")
        self.label(lhave)
        if self.diag:
            for kk in range(8):
                ls = self.new("ps")
                itm = 4*kk if "vitems" not in self.x and "kitems" not in self.x else (self.i0 + kk)
                e(f"s_cmp_eq_u32 {s(sN)}, {itm}", f"s_cbranch_scc0 {ls}")
                self.stamp(8+kk)
                self.label(ls)
        e(f"s_cmp_lt_u32 {s(sN)}, 16", f"s_cbranch_scc0 {lv}")
        self.c("K tile: 32 scores")
        lq = self.new("kq")
        e(f"v_add_u32 v14, {s(sTile)}, v5", f"v_add_u32 v15, {s(sTile)}, v6",
          f"s_and_b32 s62, {s(sN)}, 3", f"s_cbranch_scc1 {lq}")
        e(f"s_lshr_b32 s62, {s(sN)}, 2", "s_mul_i32 s62, s62, 384", f"v_add_u32 v13, s62, {v(vQa)}")
        for ks in range(6):
            e(f"ds_read_b128 {vr(QF+4*ks,4)}, v13 offset:{64*ks}")
        e(f"v_mov_b32 {v(M)}, {hex(NINF)}", f"v_mov_b32 {v(Lr)}, 0", "s_waitcnt lgkmcnt(0)")
        self.label(lq)
        for ks in range(6):
            for blk in range(2):
                e(f"ds_read_b128 {vr(KF+8*ks+4*blk,4)}, {v(14+(ks&1))} offset:{blk*6144+(ks>>1)*128}")
        for ks in range(6):
            e(f"s_waitcnt lgkmcnt({10-2*ks})")
            for blk in range(2):
                c = "0" if ks == 0 else vr(D0+4*blk, 4)
                e(f"v_mfma_f32_16x16x32_bf16 {vr(D0+4*blk,4)}, {vr(KF+8*ks+4*blk,4)}, {vr(QF+4*ks,4)}, {c}")
            if ks == 2:
                self.try2()
        self.try_issue()
        e(f"s_lshl_b32 s62, {s(sN)}, 6", f"v_add_u32 v13, s62, {v(vSo)}", "s_nop 6")
        for i in range(0, 8, 2):
            e(f"v_cvt_pk_bf16_f32 {v(T)}, {v(D0+i)}, {v(D0+i+1)}")
            self.unpack(X+i, X+i+1, T)
            e(f"v_mul_f32 {v(X+i)}, {hex(SCALE)}, {v(X+i)}", f"v_mul_f32 {v(X+i+1)}, {hex(SCALE)}, {v(X+i+1)}",
              f"v_cvt_pk_bf16_f32 {v(Q+(i>>1))}, {v(X+i)}, {v(X+i+1)}")
            self.unpack(X+i, X+i+1, Q+(i>>1))
            if i == 2:
                self.try2()
        e("s_mov_b32 exec_lo, 0x00010001", "s_mov_b32 exec_hi, 0x00010001",
          f"ds_write_b128 v13, {vr(Q,4)}", "s_mov_b64 exec, -1")
        self.try_issue()
        e(f"v_max3_f32 {v(T)}, {v(X)}, {v(X+1)}, {v(X+2)}", f"v_max3_f32 {v(T)}, {v(T)}, {v(X+3)}, {v(X+4)}",
          f"v_max3_f32 {v(T)}, {v(T)}, {v(X+5)}, {v(X+6)}", f"v_max3_f32 {v(T)}, {v(T)}, {v(X+7)}, {v(M)}",
          f"v_sub_f32 {v(T+1)}, {v(M)}, {v(T)}", f"v_mul_f32 {v(T+1)}, {hex(LOG2E)}, {v(T+1)}", f"v_mov_b32 {v(M)}, {v(T)}")
        for i in range(8):
            e(f"v_sub_f32 {v(E+i)}, {v(X+i)}, {v(M)}", f"v_mul_f32 {v(E+i)}, {hex(LOG2E)}, {v(E+i)}")
        self.try2()
        e(f"v_exp_f32 {v(T+1)}, {v(T+1)}")
        for i in range(8):
            e(f"v_exp_f32 {v(E+i)}, {v(E+i)}")
        self.try_issue()
        e(f"v_mul_f32 {v(Lr)}, {v(Lr)}, {v(T+1)}")
        for i in range(0, 8, 2):
            e(f"v_add_f32 {v(E+i)}, {v(E+i)}, {v(E+i+1)}")
        e(f"v_add_f32 {v(E)}, {v(E)}, {v(E+2)}", f"v_add_f32 {v(E+4)}, {v(E+4)}, {v(E+6)}",
          f"v_add_f32 {v(E)}, {v(E)}, {v(E+4)}", f"v_add_f32 {v(Lr)}, {v(Lr)}, {v(E)}")
        e(f"s_and_b32 s62, {s(sN)}, 3", "s_cmp_eq_u32 s62, 3", f"s_cbranch_scc0 {lnext}")
        self.try2()
        finalize()
        self.try2()
        if self.diag:
            ls = self.new("st")
            e(f"s_cmp_eq_u32 {s(sN)}, 15", f"s_cbranch_scc0 {ls}")
            self.stamp(3)
            self.label(ls)
        e(f"s_branch {lnext}")
        self.label(lv)
        lpool, lp_ok, lst = self.new("vp"), self.new("vo"), self.new("vs")
        e(f"s_sub_u32 s66, {s(sN)}, 16", f"s_cmp_lt_u32 s66, {12+SL}", f"s_cbranch_scc0 {lpool}")
        e("s_and_b32 s62, s66, 3", f"s_cbranch_scc1 {lst}")
        e("s_lshr_b32 s67, s66, 2")
        self.c("first tile of a batch: its probabilities must be ready; keep the ring filling meanwhile")
        self.lds_wait_gt(18, F_PB, 13, 67, sleep=1, body=runahead)
        if self.diag:
            ls = self.new("st")
            e(f"s_cmp_eq_u32 {s(sN)}, 16", f"s_cbranch_scc0 {ls}")
            self.stamp(5)
            self.label(ls)
        self.label(lst)
        e(f"s_sub_u32 s62, {s(sN)}, 16", "s_lshl_b32 s62, s62, 6", f"v_add_u32 v13, s62, {v(vSo)}", f"s_branch {lp_ok}")
        self.label(lpool)
        self.lds_wait_gt(18, F_NP, 13, sPN, sleep=1, body=runahead)
        e(f"s_and_b32 s62, {s(sPN)}, 3", "s_lshl_b32 s62, s62, 6", "v_add_u32 v13, s62, v12", f"s_add_u32 {s(sPN)}, {s(sPN)}, 1")
        self.label(lp_ok)
        for u in range(4):
            e(f"v_add_u32 {v(14+u)}, {s(sTile)}, {v(7+u)}")
        e(f"ds_read_b128 {vr(PF,4)}, v13")
        def vread(t):
            a, u = t >> 2, t & 3
            e(f"ds_read_b64_tr_b16 {vr(KF+4*t,2)}, {v(14+u)} offset:{a*128}",
              f"ds_read_b64_tr_b16 {vr(KF+4*t+2,2)}, {v(14+u)} offset:{a*128+6144}")
        def vmf(t):
            e(f"v_mfma_f32_16x16x32_bf16 {vr(ACC+4*t,4)}, {vr(PF,4)}, {vr(KF+4*t,4)}, {vr(ACC+4*t,4)}")
        for t in range(6):
            vread(t)
        e("s_waitcnt lgkmcnt(6)")
        for t in range(3): vmf(t)
        self.try_issue()
        for t in range(6, 9): vread(t)
        e("s_waitcnt lgkmcnt(6)")
        for t in range(3, 6): vmf(t)
        self.try2()
        for t in range(9, 12): vread(t)
        e("s_waitcnt lgkmcnt(6)")
        for t in range(6, 9): vmf(t)
        self.try2()
        e("s_waitcnt lgkmcnt(0)")
        for t in range(9, 12): vmf(t)
        self.try_issue()
        self.c("end of batch 0..2: hand the partial output over")
        e(f"s_sub_u32 s62, {s(sN)}, 16", "s_cmp_lt_u32 s62, 12", f"s_cbranch_scc0 {lnext}",
          "s_and_b32 s63, s62, 3", "s_cmp_eq_u32 s63, 3", f"s_cbranch_scc0 {lnext}", "s_lshr_b32 s70, s62, 2")
        if "burst" in self.x:
            self.try_issue(burst=True)
            self.try_issue(burst=True)
        flush_acc()
        self.label(lnext)
        e(f"s_add_u32 {s(sTile)}, {s(sTile)}, 12288", f"s_cmp_eq_u32 {s(sTile)}, {s(sEnd)}",
          f"s_cselect_b32 {s(sTile)}, {s(sBase)}, {s(sTile)}",
          f"s_add_u32 {s(sN)}, {s(sN)}, 1", f"s_branch {lloop}")
        self.label(lfin)
        self.stamp(6)
        if self.diag:
            e(f"s_mov_b32 {s(S_STAMP0+4)}, {s(sN)}", f"s_add_u32 {s(S_STAMP0+4)}, {s(S_STAMP0+4)}, 1000")
        e("s_mov_b32 s70, 3")
        flush_acc(last=True)
        self.lds_flag_set(18, F_VE, 19)
        self.stamp(7)
        self.stamps_store()
        e("s_endpgm")

    def gemv64_loads(self, W):
        e = self.e
        e("s_mov_b32 s61, 0")
        for ks in range(5):
            for ee in range(8):
                r = W + 16*(ks+1) + 2*ee
                e(f"buffer_load_dwordx2 {vr(r,2)}, v4, {sr(SRD_A,4)}, s61 offen nt")
                if not (ks == 4 and ee == 7):
                    if ee < 7:
                        e("s_add_u32 s61, s61, s60")
                    else:
                        e("s_mul_i32 s62, s60, 25", "s_add_u32 s61, s61, s62")

    def gemv64_perm(self, W):
        e = self.e
        for ks in range(5):
            raw, fr = W + 16*(ks+1), W + 16*ks
            for f in range(4):
                d, hi = f >> 1, f & 1
                for q in range(4):
                    e(f"v_perm_b32 {v(fr+4*f+q)}, {v(raw+2*(2*q+1)+d)}, {v(raw+2*(2*q)+d)}, {s(S_SELHI if hi else S_SELLO)}")

    def gemv64_finish(self, W, AF, DD, vfl, vone, replicas=False):
        e = self.e
        for ks in range(5):
            e(f"ds_read_b128 {vr(AF+4*ks,4)}, v5 offset:{64*ks}")
        for ks in range(5):
            e(f"s_waitcnt lgkmcnt({4-ks})")
            for f in range(4):
                c = "0" if ks == 0 else vr(DD+4*f, 4)
                e(f"v_mfma_f32_16x16x32_bf16 {vr(DD+4*f,4)}, {vr(AF+4*ks,4)}, {vr(W+16*ks+4*f,4)}, {c}")
        e("s_nop 7", "s_nop 1")
        for f in range(4):
            e(f"v_mov_b32 {v(AF+f)}, {v(DD+4*f)}")
        e(f"s_lshl_b32 s62, {s(S_W)}, 10", f"s_add_u32 s62, s62, {SC}", "v_lshlrev_b32 v6, 4, v1",
          "v_add_u32 v7, s62, v6", f"ds_write_b128 v7, {vr(AF,4)}")
        self.sync4(vfl, F_SYNCR, vone, 8)
        l = self.new("gf")
        e(f"s_cmp_eq_u32 {s(S_W)}, 0", f"s_cbranch_scc0 {l}")
        e(f"v_add_u32 v7, {SC}, v6")
        for ww in range(4):
            e(f"ds_read_b128 {vr(AF+4*ww,4)}, v7 offset:{1024*ww}")
        e("s_waitcnt lgkmcnt(0)")
        for f in range(4):
            e(f"v_add_f32 {v(AF+f)}, {v(AF+f)}, {v(AF+4+f)}", f"v_add_f32 {v(AF+8+f)}, {v(AF+8+f)}, {v(AF+12+f)}")
        for f in range(4):
            e(f"v_add_f32 {v(AF+f)}, {v(AF+f)}, {v(AF+8+f)}")
        e(f"v_cvt_pk_bf16_f32 {v(AF+4)}, {v(AF)}, {v(AF+1)}", f"v_cvt_pk_bf16_f32 {v(AF+6)}, {v(AF+2)}, {v(AF+3)}",
          f"v_mov_b32 {v(AF+5)}, {s(S_TAG)}", f"v_mov_b32 {v(AF+7)}, {s(S_TAG)}",
          "v_lshrrev_b32 v6, 4, v1", "v_mul_lo_u32 v6, v6, s65", "v_and_b32 v7, 15, v1", "v_lshl_add_u32 v6, v7, 4, v6",
          )
        if replicas and self.RM > 1:
            self.c("shift / scale of the first layer norm go to eight copies: many workgroups poll them")
            lr_ = self.new("rp")
            e("s_cmp_lt_u32 s68, 20", f"s_cbranch_scc0 {lr_}",
              "v_lshrrev_b32 v8, 4, v1", "v_mul_u32_u24 v8, 5120, v8", "v_lshl_add_u32 v8, v7, 4, v8",
              "s_lshl_b32 s62, s68, 8", f"s_add_u32 s62, s62, {MODR}")
            for rp in range(self.RM):
                e(f"buffer_store_dwordx4 {vr(AF+4,4)}, v8, {sr(SRD_WS,4)}, s62 offen sc1")
                if rp < self.RM-1:
                    e("s_add_u32 s62, s62, 20480")
            self.label(lr_)
        e(f"buffer_store_dwordx4 {vr(AF+4,4)}, v6, {sr(SRD_WS,4)}, s64 offen sc1")
        self.label(l)

    def ln_stats(self, PX, XF, T):
        e = self.e
        for i in range(5):
            self.unpack(XF+2*i, XF+2*i+1, PX+i)
        e(f"v_add_f32 {v(T)}, {v(XF)}, {v(XF+1)}")
        for i in range(2, 10):
            e(f"v_add_f32 {v(T)}, {v(T)}, {v(XF+i)}")
        self.allreduce("add", T, T+1)
        e(f"v_mul_f32 {v(T)}, {hex(INV640)}, {v(T)}")
        e(f"v_sub_f32 {v(T+2)}, {v(XF)}, {v(T)}", f"v_mul_f32 {v(T+3)}, {v(T+2)}, {v(T+2)}")
        for i in range(1, 10):
            e(f"v_sub_f32 {v(T+2)}, {v(XF+i)}, {v(T)}", f"v_fmac_f32 {v(T+3)}, {v(T+2)}, {v(T+2)}")
        self.allreduce("add", T+3, T+1)
        e(f"v_mul_f32 {v(T+3)}, {hex(INV640)}, {v(T+3)}")
        self.round2(T, T+3, T+1)
        e(f"v_add_f32 {v(T+3)}, {hex(EPS)}, {v(T+3)}")
        e(f"v_cvt_pk_bf16_f32 {v(T+1)}, {v(T+3)}, {v(T+3)}", f"v_lshlrev_b32 {v(T+3)}, 16, {v(T+1)}",
          f"v_sqrt_f32 {v(T+3)}, {v(T+3)}", "s_nop 0",
          f"v_cvt_pk_bf16_f32 {v(T+1)}, {v(T+3)}, {v(T+3)}", f"v_lshlrev_b32 {v(T+3)}, 16, {v(T+1)}",
          f"v_rcp_f32 {v(T+3)}, {v(T+3)}", "s_nop 0")
        for i in range(0, 10, 2):
            e(f"v_sub_f32 {v(XF+i)}, {v(XF+i)}, {v(T)}", f"v_sub_f32 {v(XF+i+1)}, {v(XF+i+1)}, {v(T)}")
            self.round2(XF+i, XF+i+1, T+1)
            e(f"v_mul_f32 {v(XF+i)}, {v(XF+i)}, {v(T+3)}", f"v_mul_f32 {v(XF+i+1)}, {v(XF+i+1)}, {v(T+3)}")
            self.round2(XF+i, XF+i+1, T+1)

    def ln_fast(self, PX, XF, TD, T):
        e = self.e
        if PX is not None:
            for i in range(5):
                self.unpack(XF+2*i, XF+2*i+1, PX[i])
        e("s_nop 0", f"v_readfirstlane_b32 s90, {v(XF)}", "s_nop 0", "s_mov_b32 s91, s90")
        for i in range(5):
            e(f"v_pk_add_f32 {vr(TD+2*i,2)}, {vr(XF+2*i,2)}, s[90:91] neg_lo:[0,1] neg_hi:[0,1]")
        A, B = T, T+2
        e(f"v_pk_mul_f32 {vr(B,2)}, {vr(TD,2)}, {vr(TD,2)}", f"v_pk_add_f32 {vr(A,2)}, {vr(TD,2)}, {vr(TD+2,2)}",
          f"v_pk_fma_f32 {vr(B,2)}, {vr(TD+2,2)}, {vr(TD+2,2)}, {vr(B,2)}")
        for i in range(2, 5):
            e(f"v_pk_add_f32 {vr(A,2)}, {vr(A,2)}, {vr(TD+2*i,2)}",
              f"v_pk_fma_f32 {vr(B,2)}, {vr(TD+2*i,2)}, {vr(TD+2*i,2)}, {vr(B,2)}")
        e(f"v_add_f32 {v(A)}, {v(A)}, {v(A+1)}", f"v_add_f32 {v(B)}, {v(B)}, {v(B+1)}")
        for r in (8, 4, 2, 1):
            e("s_nop 0", f"v_add_f32_dpp {v(A)}, {v(A)}, {v(A)} row_ror:{r} row_mask:0xf bank_mask:0xf",
              f"v_add_f32_dpp {v(B)}, {v(B)}, {v(B)} row_ror:{r} row_mask:0xf bank_mask:0xf")
        for swp in ("v_permlane16_swap_b32", "v_permlane32_swap_b32"):
            e(f"v_mov_b32 {v(A+1)}, {v(A)}", f"v_mov_b32 {v(B+1)}, {v(B)}", "s_nop 1",
              f"{swp} {v(A+1)}, {v(A)}", f"{swp} {v(B+1)}, {v(B)}",
              f"v_add_f32 {v(A)}, {v(A+1)}, {v(A)}", f"v_add_f32 {v(B)}, {v(B+1)}, {v(B)}")
        e(f"v_mul_f32 {v(A)}, {hex(INV640)}, {v(A)}", f"v_mul_f32 {v(B)}, {hex(INV640)}, {v(B)}",
          f"v_fma_f32 {v(B)}, -{v(A)}, {v(A)}, {v(B)}", f"v_add_f32 {v(A)}, s90, {v(A)}", f"v_max_f32 {v(B)}, 0, {v(B)}",
          f"v_cvt_pk_bf16_f32 {v(A+1)}, {v(A)}, {v(B)}")
        self.unpack(A, B, A+1)
        e(f"v_add_f32 {v(B)}, {hex(EPS)}, {v(B)}",
          f"v_cvt_pk_bf16_f32 {v(B+1)}, {v(B)}, {v(B)}", f"v_lshlrev_b32 {v(B)}, 16, {v(B+1)}",
          f"v_sqrt_f32 {v(B)}, {v(B)}")
        for i in range(5):
            e(f"v_pk_add_f32 {vr(XF+2*i,2)}, {vr(XF+2*i,2)}, {vr(A,2)} op_sel_hi:[1,0] neg_lo:[0,1] neg_hi:[0,1]")
        e(f"v_cvt_pk_bf16_f32 {v(B+1)}, {v(B)}, {v(B)}", f"v_lshlrev_b32 {v(B)}, 16, {v(B+1)}", f"v_rcp_f32 {v(B)}, {v(B)}")
        for i in range(5):
            e(f"v_cvt_pk_bf16_f32 {v(TD+i)}, {v(XF+2*i)}, {v(XF+2*i+1)}")
        for i in range(5):
            self.unpack(XF+2*i, XF+2*i+1, TD+i)
        for i in range(5):
            e(f"v_pk_mul_f32 {vr(XF+2*i,2)}, {vr(XF+2*i,2)}, {vr(B,2)} op_sel_hi:[1,0]")
        for i in range(5):
            e(f"v_cvt_pk_bf16_f32 {v(TD+i)}, {v(XF+2*i)}, {v(XF+2*i+1)}")
        for i in range(5):
            self.unpack(XF+2*i, XF+2*i+1, TD+i)

    def modulate_fast(self, XF, C1, SH, TD, vaddr):
        e = self.e
        for i in range(5):
            e(f"v_pk_mul_f32 {vr(XF+2*i,2)}, {vr(XF+2*i,2)}, {vr(C1+2*i,2)}")
        for i in range(5):
            e(f"v_cvt_pk_bf16_f32 {v(TD+i)}, {v(XF+2*i)}, {v(XF+2*i+1)}")
        for i in range(5):
            self.unpack(XF+2*i, XF+2*i+1, TD+i)
        for i in range(5):
            e(f"v_pk_add_f32 {vr(XF+2*i,2)}, {vr(XF+2*i,2)}, {vr(SH+2*i,2)}")
        for i in range(5):
            e(f"v_cvt_pk_bf16_f32 {v(TD+i)}, {v(XF+2*i)}, {v(XF+2*i+1)}", f"ds_write_b32 {v(vaddr)}, {v(TD+i)} offset:{256*i}")

    def bad_lanes(self, tags, sdst, t):
        e = self.e
        assert len(tags) in (2, 4)
        for k, r in enumerate(tags):
            e(f"v_xor_b32 {v(t+k)}, {s(S_TAG)}, {v(r)}")
        if len(tags) == 4:
            e(f"v_or3_b32 {v(t)}, {v(t)}, {v(t+1)}, {v(t+2)}", f"v_or_b32 {v(t)}, {v(t)}, {v(t+3)}")
        else:
            e(f"v_or_b32 {v(t)}, {v(t)}, {v(t+1)}")
        e(f"v_cmp_ne_u32 {sr(sdst,2)}, 0, {v(t)}")

    def masked_gather(self, groups, t, init=None, care=None, sleep=0):
        e = self.e
        l, d = self.new("mg"), self.new("mgd")
        for (sp, _, _) in groups:
            if init is None:
                e(f"s_mov_b64 {sr(sp,2)}, -1")
            else:
                e(f"s_mov_b32 {s(sp)}, {hex(init[0])}", f"s_mov_b32 {s(sp+1)}, {hex(init[1])}")
        self.label(l)
        for (sp, loads, _) in groups:
            k = self.new("mk")
            e(f"s_mov_b64 exec, {sr(sp,2)}", f"s_cbranch_execz {k}")
            loads()
            self.label(k)
        e("s_mov_b64 exec, -1", "s_waitcnt vmcnt(0)")
        for (sp, _, tags) in groups:
            self.bad_lanes(tags, sp, t)
            if care is not None:
                e(f"s_and_b32 {s(sp)}, {s(sp)}, {hex(care[0])}", f"s_and_b32 {s(sp+1)}, {s(sp+1)}, {hex(care[1])}")
        e(f"s_mov_b64 s[90:91], {sr(groups[0][0],2)}")
        for (sp, _, _) in groups[1:]:
            e(f"s_or_b64 s[90:91], s[90:91], {sr(sp,2)}")
        e("s_cmp_eq_u64 s[90:91], 0", f"s_cbranch_scc1 {d}")
        if sleep:
            e(f"s_sleep {sleep}")
        self.spin_check()
        e(f"s_branch {l}")
        self.label(d)

    def poll2(self, loadsA, tagsA, useA, loadsB, tagsB, useB, nloads, t):
        e = self.e
        l, dA, dB, d = self.new("p2"), self.new("p2a"), self.new("p2b"), self.new("p2d")
        loadsA()
        loadsB()
        self.label(l)
        e(f"s_waitcnt vmcnt({nloads})")
        ra, rb = self.new("p2ra"), self.new("p2rb")
        self.tagcheck(tagsA, t, t+1, ra)
        e(f"s_branch {dA}")
        self.label(ra)
        loadsA()
        e(f"s_waitcnt vmcnt({nloads})")
        self.tagcheck(tagsB, t, t+1, rb)
        e(f"s_branch {dB}")
        self.label(rb)
        loadsB()
        self.spin_check()
        e(f"s_branch {l}")
        self.label(dA)
        useA()
        e(f"s_branch {d}")
        self.label(dB)
        useB()
        self.label(d)

    def modulate(self, XF, C1, SH, T, vaddr):
        e = self.e
        for i in range(5):
            a, b = XF+2*i, XF+2*i+1
            e(f"v_mul_f32 {v(a)}, {v(a)}, {v(C1+2*i)}", f"v_mul_f32 {v(b)}, {v(b)}, {v(C1+2*i+1)}")
            self.round2(a, b, T)
            e(f"v_add_f32 {v(a)}, {v(a)}, {v(SH+2*i)}", f"v_add_f32 {v(b)}, {v(b)}, {v(SH+2*i+1)}",
              f"v_cvt_pk_bf16_f32 {v(T)}, {v(a)}, {v(b)}", f"ds_write_b32 {v(vaddr)}, {v(T)} offset:{256*i}")

    def prep_mod_pair(self, G, C1, SH, T):
        e = self.e
        for i in range(5):
            self.unpack(SH+2*i, SH+2*i+1, G+2*i)
        for i in range(5):
            self.unpack(C1+2*i, C1+2*i+1, G+10+2*i)
            e(f"v_add_f32 {v(C1+2*i)}, 1.0, {v(C1+2*i)}", f"v_add_f32 {v(C1+2*i+1)}, 1.0, {v(C1+2*i+1)}")
            self.round2(C1+2*i, C1+2*i+1, T)

    def helper(self):
        e = self.e
        self.c("================= helper wave =================")
        e(f"s_sub_u32 {s(S_W)}, {s(S_W)}, 4")
        VFL, VONE = 2, 3
        W = 100
        PX, XF, T = 10, 16, 28
        G, C1, SH = 32, 56, 68
        AF, DD = 200, 220
        e(f"s_lshl_b32 s62, {s(S_W)}, 2", f"s_add_u32 s62, s62, {FLAGS}", f"v_mov_b32 {v(VFL)}, s62", f"v_mov_b32 {v(VONE)}, 1",
          f"v_mov_b32 v9, {FLAGS}")
        self.c("zero the LDS flags (helper 0)")
        l = self.new("zf")
        e(f"s_cmp_eq_u32 {s(S_W)}, 0", f"s_cbranch_scc0 {l}",
          "v_lshlrev_b32 v6, 2, v1", f"v_add_u32 v6, {FLAGS}, v6", "v_mov_b32 v7, 0",
          "ds_write_b32 v6, v7")
        self.label(l)
        e("s_waitcnt lgkmcnt(0)")
        self.srd(SRD_WS, S_WS, WS_SIZE)
        self.tag_load()
        self.c("work counters of this head: cleared by helper 0 of workgroup j == 0 (drained before q is published)")
        l = self.new("zc")
        e(f"s_cmp_eq_u32 {s(S_W)}, 0", f"s_cbranch_scc0 {l}", f"s_cmp_eq_u32 {s(S_J)}, 0", f"s_cbranch_scc0 {l}",
          f"s_lshl_b32 s62, {s(S_H)}, 7", f"s_add_u32 s62, s62, {CNTBUF}", "v_mov_b32 v6, 0", "v_mov_b32 v7, 0",
          "s_mov_b64 exec, 1", f"buffer_store_dword v7, v6, {sr(SRD_WS,4)}, s62 offen sc1", "s_mov_b64 exec, -1")
        self.label(l)
        self.c("prologue role: s67 = 0 none, 1 Q block, 2 MOD block")
        lq, lm, lr, lm7 = self.new("rq"), self.new("rm"), self.new("rr"), self.new("m7")
        e("s_mov_b32 s67, 0", f"s_cmp_lt_u32 {s(S_J)}, 3", f"s_cbranch_scc1 {lq}",
          f"s_cmp_lt_u32 {s(S_J)}, 5", f"s_cbranch_scc0 {lm7}",
          f"s_lshl_b32 s68, {s(S_H)}, 1", f"s_add_u32 s68, s68, {s(S_J)}", "s_sub_u32 s68, s68, 3",
          f"s_cmp_lt_u32 {s(S_H)}, 28", f"s_cbranch_scc1 {lm}", f"s_branch {lr}")
        self.label(lm7)
        e(f"s_add_u32 s68, {s(S_H)}, 56", f"s_cmp_eq_u32 {s(S_J)}, 7", f"s_cbranch_scc0 {lr}",
          f"s_cmp_lt_u32 {s(S_H)}, 4", f"s_cbranch_scc1 {lm}", f"s_branch {lr}")
        self.label(lq)
        e("s_mov_b32 s67, 1")
        if "qfirst" not in self.x:
            e("s_barrier")
        self.srd(SRD_A, S_WQ, 7864320)
        self.srd(SRD_B, S_X, 5120)
        e("s_mov_b32 s60, 12288", f"s_mul_i32 s68, {s(S_H)}, 3", f"s_add_u32 s68, s68, {s(S_J)}",
          "s_lshl_b32 s64, s68, 8", f"s_add_u32 s64, s64, {QBUF}", f"s_mov_b32 s65, {3072*8}")
        lcommon = self.new("rc")
        e(f"s_branch {lcommon}")
        self.label(lm)
        e("s_mov_b32 s67, 2")
        self.srd(SRD_A, S_WM, 4915200)
        self.srd(SRD_B, S_C, 5120)
        e("s_mov_b32 s60, 7680", "s_lshl_b32 s64, s68, 8", f"s_add_u32 s64, s64, {MODBUF}", f"s_mov_b32 s65, {1920*8}")
        self.label(lcommon)
        self.c("issue vector + weight loads")
        e(f"s_mul_i32 s62, {s(S_W)}, 1280", "v_lshlrev_b32 v6, 2, v1")
        for i in range(5):
            e(f"buffer_load_dword {v(PX+i)}, v6, {sr(SRD_B,4)}, s62 offen offset:{256*i}")
        e(f"s_mul_i32 s62, {s(S_W)}, 160", "v_lshrrev_b32 v4, 4, v1", "v_lshlrev_b32 v4, 3, v4", "v_add_u32 v4, s62, v4",
          "v_mul_lo_u32 v4, v4, s60", "v_and_b32 v7, 15, v1", "v_lshl_add_u32 v4, v7, 3, v4",
          "s_lshl_b32 s62, s68, 7", "v_add_u32 v4, s62, v4")
        self.gemv64_loads(W)
        lnb = self.new("nb")
        if "qfirst" not in self.x:
            e("s_cmp_eq_u32 s67, 1", f"s_cbranch_scc1 {lnb}")
        self.label(lr)
        e("s_barrier")
        self.label(lnb)
        self.tag_ready()
        self.stamp(1)
        self.c("A fragment address for the [4][640] vector: AVEC + b*1280 + w*320 + g*16")
        e("v_and_b32 v6, 15, v1", "v_lshrrev_b32 v6, 2, v6", "v_mul_u32_u24 v6, 1280, v6",
          "v_lshrrev_b32 v7, 4, v1", "v_lshl_add_u32 v6, v7, 4, v6",
          f"s_mul_i32 s62, {s(S_W)}, 320", f"s_add_u32 s62, s62, {AVEC}", "v_add_u32 v5, s62, v6")
        e(f"s_mul_i32 s62, {s(S_W)}, 1280", f"s_add_u32 s62, s62, {AVEC}", "v_lshlrev_b32 v6, 2, v1", "v_add_u32 v8, s62, v6",
          "v_mov_b32 v26, v8")
        lq2, lm2, lpq = self.new("q2"), self.new("m2"), self.new("pq")
        e("s_cmp_eq_u32 s67, 1", f"s_cbranch_scc1 {lq2}", "s_cmp_eq_u32 s67, 2", f"s_cbranch_scc1 {lm2}", f"s_branch {lpq}")
        self.label(lm2)
        e("s_waitcnt vmcnt(40)", "s_mov_b32 s91, 0x207")
        for i in range(5):
            a, b = XF, XF+1
            self.unpack(a, b, PX+i)
            for x in (a, b):
                e(f"v_mul_f32 {v(T)}, {hex(LOG2E ^ 0x80000000)}, {v(x)}", f"v_exp_f32 {v(T)}, {v(T)}", "s_nop 0",
                  f"v_add_f32 {v(T)}, 1.0, {v(T)}", f"v_rcp_f32 {v(T+1)}, {v(T)}", "s_nop 0",
                  f"v_mul_f32 {v(T+2)}, {v(x)}, {v(T+1)}",
                  f"v_fma_f32 {v(T+3)}, -{v(T+2)}, {v(T)}, {v(x)}",
                  f"v_cmp_class_f32 vcc, {v(T+3)}, s91",
                  f"v_fma_f32 {v(x)}, {v(T+3)}, {v(T+1)}, {v(T+2)}", "s_nop 0",
                  f"v_cndmask_b32 {v(x)}, {v(x)}, {v(T+2)}, vcc")
                if "probe_nofix" in self.x:
                    e(f"v_mov_b32 {v(x)}, {v(T+2)}")
            e(f"v_cvt_pk_bf16_f32 {v(T)}, {v(a)}, {v(b)}", f"ds_write_b32 v26, {v(T)} offset:{256*i}")
        self.sync4(9, F_SYNCA, VONE, 8)
        e("s_waitcnt vmcnt(0)")
        self.stamp(2)
        self.gemv64_perm(W)
        self.gemv64_finish(W, AF, DD, 9, VONE, replicas=True)
        self.stamp(3)
        e(f"s_branch {lpq}")
        self.label(lq2)
        e("s_waitcnt vmcnt(40)")
        self.ln_fast([PX+i for i in range(5)], XF, 80, T)
        e("s_waitcnt vmcnt(0)")
        self.gemv64_perm(W)
        self.stamp(2)
        if self.RM > 1:
            e(f"s_and_b32 s62, s68, {self.RM-1}", "s_mul_i32 s62, s62, 20480", f"s_mul_i32 s63, {s(S_W)}, 5120", "s_add_u32 s62, s62, s63",
              f"s_add_u32 s62, s62, {MODR}", f"s_add_u32 s63, s62, {320*8}", "v_lshlrev_b32 v6, 3, v1")
        else:
            e(f"s_mul_i32 s62, {s(S_W)}, {1920*8}", f"s_add_u32 s62, s62, {MODBUF}", f"s_add_u32 s63, s62, {320*8}",
              "v_lshlrev_b32 v6, 3, v1")
        def ld_mod():
            for i in range(5):
                e(f"buffer_load_dwordx2 {vr(G+2*i,2)}, v6, {sr(SRD_WS,4)}, s62 offen offset:{512*i} sc1")
            for i in range(5):
                e(f"buffer_load_dwordx2 {vr(G+10+2*i,2)}, v6, {sr(SRD_WS,4)}, s63 offen offset:{512*i} sc1")
        if "pause" in self.x:
            self.lds_flag_set(9, F_PA, VONE)
        if "modm" in self.x:
            def ld_m(i):
                def f():
                    e(f"buffer_load_dwordx2 {vr(G+2*i,2)}, v6, {sr(SRD_WS,4)}, s62 offen offset:{512*i} sc1",
                      f"buffer_load_dwordx2 {vr(G+10+2*i,2)}, v6, {sr(SRD_WS,4)}, s63 offen offset:{512*i} sc1")
                return f
            self.masked_gather([(sp, ld_m(i), [G+2*i+1, G+10+2*i+1]) for i, sp in enumerate((36, 38, 44, 46, 48))], T)
        else:
            self.poll(ld_mod, [G+2*i+1 for i in range(10)], T, T+1)
        self.stamp(3)
        self.prep_mod_pair(G, C1, SH, T)
        self.modulate_fast(XF, C1, SH, 80, 26)
        self.sync4(9, F_SYNCA, VONE, 8)
        if "pause" in self.x:
            e("v_mov_b32 v8, 0")
            self.lds_flag_set(9, F_PA, 8)
        self.gemv64_finish(W, AF, DD, 9, VONE)
        self.stamp(4)
        self.label(lpq)
        l = self.new("jd")
        e(f"s_cmp_eq_u32 {s(S_W)}, 0", f"s_cbranch_scc0 {l}", "s_waitcnt lgkmcnt(0)")
        self.lds_flag_set(9, F_JD, VONE)
        self.label(l)
        WB = 36
        def wb_issue():
            self.c("stage B weights: wo rows 192h+48w+.., columns 128j..")
            self.srd(SRD_A, S_WO, 7864320)
            e(f"s_mul_i32 s62, {s(S_H)}, 192", f"s_mul_i32 s63, {s(S_W)}, 48", "s_add_u32 s62, s62, s63",
              "v_lshrrev_b32 v6, 4, v1", "v_mul_u32_u24 v6, 3, v6", "v_add_u32 v6, s62, v6", "v_mul_u32_u24 v6, 1280, v6",
              "v_and_b32 v7, 15, v1", "v_lshl_add_u32 v6, v7, 4, v6", f"s_lshl_b32 s62, {s(S_J)}, 8", "v_add_u32 v6, s62, v6")
            for vv in range(12):
                sg, ee = vv >> 2, vv & 3
                e(f"s_mov_b32 s62, {(12*(vv//3)+vv%3)*1280}",
                  f"buffer_load_dwordx4 {vr(WB+16*(sg+1)+4*ee,4)}, v6, {sr(SRD_A,4)}, s62 offen nt")
        def wb_perm():
            for sg in range(3):
                raw, fr = WB+16*(sg+1), WB+16*sg
                for cc in range(8):
                    for q in range(2):
                        e(f"v_perm_b32 {v(fr+2*cc+q)}, {v(raw+4*(2*q+1)+(cc>>1))}, {v(raw+4*(2*q)+(cc>>1))}, {s(S_SELHI if cc&1 else S_SELLO)}")
        def load_wb():
            wb_issue()
            e("s_waitcnt vmcnt(0)")
            wb_perm()
        WD, GBR = 100, 240
        WG, WU = 36, 84
        CC1, CSH = 140, 150
        RX, RG = 180, 182
        lc, ld, lnc, l6, l7, lrd = (self.new(x) for x in ("c", "d", "nc", "j6", "j7", "rd"))
        e("s_mov_b32 s69, 0", "s_mov_b32 s70, 0", f"s_cmp_lt_u32 {s(S_J)}, 5", f"s_cbranch_scc1 {lrd}")
        e(f"s_cmp_eq_u32 {s(S_J)}, 5", f"s_cbranch_scc0 {l6}", f"s_mov_b32 s68, {s(S_H)}", f"s_branch {lc}")
        self.label(l6)
        e(f"s_cmp_eq_u32 {s(S_J)}, 6", f"s_cbranch_scc0 {l7}",
          f"s_add_u32 s68, {s(S_H)}, 32", f"s_cmp_lt_u32 {s(S_H)}, 16", f"s_cbranch_scc1 {lc}",
          f"s_sub_u32 s68, {s(S_H)}, 16", f"s_branch {ld}")
        self.label(l7)
        e(f"s_sub_u32 s68, {s(S_H)}, 12", f"s_cmp_ge_u32 {s(S_H)}, 28", f"s_cbranch_scc1 {ld}", f"s_branch {lnc}")
        self.label(lc)
        e("s_mov_b32 s69, 1", f"s_branch {lrd}")
        self.label(ld)
        e("s_mov_b32 s69, 2", f"s_branch {lrd}")
        self.label(lnc)
        e(f"s_mul_i32 s71, {s(S_H)}, 3", f"s_add_u32 s71, s71, {s(S_W)}",
          "s_cmp_lt_u32 s71, 80", f"s_cbranch_scc0 {lrd}", f"s_cmp_lt_u32 {s(S_W)}, 3", f"s_cbranch_scc0 {lrd}",
          "s_mov_b32 s70, 1")
        self.label(lrd)

        def load_heavy(part):
            lnc2, lnd2 = self.new("hc"), self.new("hd")
            e("s_cmp_eq_u32 s69, 1", f"s_cbranch_scc0 {lnc2}")
            self.c("gate / up weights: rows 160w.., columns 32c..")
            base = (WG, WU)[part]
            self.srd(SRD_A, (S_G, S_U)[part], 1966080)
            e(f"s_mul_i32 s62, {s(S_W)}, 160", "v_lshrrev_b32 v6, 4, v1", "v_lshlrev_b32 v6, 3, v6", "v_add_u32 v6, s62, v6",
              "v_mul_u32_u24 v6, 3072, v6", "v_and_b32 v7, 15, v1", "v_lshl_add_u32 v6, v7, 2, v6",
              "s_lshl_b32 s62, s68, 6", "v_add_u32 v6, s62, v6")
            for ks in range(5):
                for ee in range(8):
                    e(f"s_mov_b32 s62, {(32*ks+ee)*3072}",
                      f"buffer_load_dword {v(base+8*(ks+1)+ee)}, v6, {sr(SRD_A,4)}, s62 offen nt")
            e("s_waitcnt vmcnt(0)")
            for ks in range(5):
                raw, fr = base+8*(ks+1), base+8*ks
                for hi in range(2):
                    for q in range(4):
                        e(f"v_perm_b32 {v(fr+4*hi+q)}, {v(raw+2*q+1)}, {v(raw+2*q)}, {s(S_SELHI if hi else S_SELLO)}")
            self.label(lnc2)
            e("s_cmp_eq_u32 s69, 2", f"s_cbranch_scc0 {lnd2}")
            self.c("down weights: rows 384w.., columns 32d..")
            self.srd(SRD_A, S_DN, 1966080)
            e(f"s_mul_i32 s62, {s(S_W)}, 384", "v_lshrrev_b32 v6, 4, v1", "v_lshlrev_b32 v6, 3, v6", "v_add_u32 v6, s62, v6",
              "v_mul_u32_u24 v6, 1280, v6", "v_and_b32 v7, 15, v1", "v_lshl_add_u32 v6, v7, 2, v6",
              "s_lshl_b32 s62, s68, 6", "v_add_u32 v6, s62, v6")
            half = part
            for ks in range(6*half, 6*half+6):
                for ee in range(8):
                    e(f"s_mov_b32 s62, {(32*ks+ee)*1280}",
                      f"buffer_load_dword {v(WD+8*(ks+1)+ee)}, v6, {sr(SRD_A,4)}, s62 offen nt")
            e("s_waitcnt vmcnt(0)")
            for ks in range(6*half, 6*half+6):
                raw, fr = WD+8*(ks+1), WD+8*ks
                for hi in range(2):
                    for q in range(4):
                        e(f"v_perm_b32 {v(fr+4*hi+q)}, {v(raw+2*q+1)}, {v(raw+2*q)}, {s(S_SELHI if hi else S_SELLO)}")
            self.label(lnd2)

        self.c("slices that are not needed before the tail: loaded while q is still on its way where the helper is free")
        lnb2 = self.new("nb2")
        e(f"s_cmp_ge_u32 {s(S_J)}, 3", f"s_cbranch_scc0 {lnb2}", f"s_cmp_lt_u32 {s(S_J)}, 5", f"s_cbranch_scc0 {lnb2}")
        wbdef = "wbs" in self.x or "wbve" in self.x
        if not wbdef:
            load_wb()
        self.label(lnb2)
        if "heavylate" not in self.x:
            load_heavy(0)
            if "heavyall" in self.x:
                load_heavy(1)
        self.c("q of batch w of this head -> LDS")
        e(f"s_mul_i32 s62, {s(S_W)}, {3072*8}", f"s_mul_i32 s63, {s(S_H)}, {96*8}", "s_add_u32 s62, s62, s63",
          f"s_add_u32 s62, s62, {QBUF}", "v_lshlrev_b32 v6, 4, v1",
          "s_mov_b32 exec_lo, -1", "s_mov_b32 exec_hi, 0xffff")
        def ld_q():
            e(f"buffer_load_dwordx4 {vr(G,4)}, v6, {sr(SRD_WS,4)}, s62 offen sc1")
        self.poll(ld_q, [G+1, G+3], T, T+1, sleep=2)
        e(f"v_mov_b32 {v(G+1)}, {v(G+2)}", f"s_mul_i32 s62, {s(S_W)}, 384", f"s_add_u32 s62, s62, {QL}",
          "v_lshlrev_b32 v6, 3, v1", "v_add_u32 v6, s62, v6", f"ds_write_b64 v6, {vr(G,2)}",
          "s_mov_b64 exec, 1", f"ds_add_u32 v9, {v(VONE)} offset:{F_QC}", "s_mov_b64 exec, -1")
        self.stamp(5)
        lbd = self.new("bd")
        e(f"s_cmp_lt_u32 {s(S_J)}, 3", f"s_cbranch_scc0 {lbd}")
        if not wbdef:
            load_wb()
        self.label(lbd)
        if "heavylate" in self.x:
            load_heavy(0)
        if ("heavyall" not in self.x or "heavylate" in self.x) and "defer" not in self.x:
            load_heavy(1)
        lmid, lpc, lpd = self.new("mid"), self.new("pc"), self.new("pd")
        e("s_cmp_eq_u32 s69, 1", f"s_cbranch_scc0 {lpc}")
        self.c("sb (segment 3), cb (segment 4) for batch w")
        G2 = 160
        e(f"s_mul_i32 s62, {s(S_W)}, {1920*8}", f"s_add_u32 s62, s62, {MODBUF+3*320*8}", f"s_add_u32 s63, s62, {320*8}",
          "v_lshlrev_b32 v6, 3, v1")
        def ld_mod2():
            for i in range(5):
                e(f"buffer_load_dwordx2 {vr(G2+2*i,2)}, v6, {sr(SRD_WS,4)}, s62 offen offset:{512*i} sc1")
            for i in range(5):
                e(f"buffer_load_dwordx2 {vr(G2+10+2*i,2)}, v6, {sr(SRD_WS,4)}, s63 offen offset:{512*i} sc1")
        self.poll(ld_mod2, [G2+2*i+1 for i in range(10)], T, T+1, sleep=8)
        self.prep_mod_pair(G2, CC1, CSH, T)
        e(f"s_branch {lmid}")
        self.label(lpc)
        e("s_cmp_eq_u32 s69, 2", f"s_cbranch_scc0 {lpd}")
        self.c("gb pairs for (b = lane>>4, pair 16d + (lane&15))")
        e("v_lshrrev_b32 v6, 4, v1", f"v_mul_u32_u24 v6, {1920*8}, v6", "v_and_b32 v7, 15, v1", "v_lshl_add_u32 v6, v7, 3, v6",
          "s_lshl_b32 s62, s68, 7", f"s_add_u32 s62, s62, {MODBUF+5*320*8}")
        def ld_gb():
            e(f"buffer_load_dwordx2 {vr(GBR,2)}, v6, {sr(SRD_WS,4)}, s62 offen sc1")
        self.poll(ld_gb, [GBR+1], T, T+1, sleep=8)
        e(f"s_branch {lmid}")
        self.label(lpd)
        e("s_cmp_eq_u32 s70, 1", f"s_cbranch_scc0 {lmid}")
        self.srd(SRD_B, S_X, 5120)
        e("v_and_b32 v7, 15, v1", "s_and_b32 s63, s71, 3", "s_lshr_b32 s64, s71, 2",
          "s_mul_i32 s62, s63, 1280", "s_lshl_b32 s65, s64, 6", "s_add_u32 s62, s62, s65", "v_lshlrev_b32 v8, 2, v7",
          f"buffer_load_dword {v(RX)}, v8, {sr(SRD_B,4)}, s62 offen",
          "v_lshlrev_b32 v8, 3, v7", f"s_mul_i32 s62, s63, {1920*8}", "s_lshl_b32 s65, s64, 7", "s_add_u32 s62, s62, s65",
          f"s_add_u32 s62, s62, {MODBUF+2*320*8}")
        def ld_ga():
            e(f"buffer_load_dwordx2 {vr(RG,2)}, v8, {sr(SRD_WS,4)}, s62 offen sc1")
        self.poll(ld_ga, [RG+1], T, T+1, sleep=8)
        self.label(lmid)
        self.stamp(6)
        SL = self.SL
        MLR = 12
        e(f"s_lshl_b32 s61, {s(S_J)}, 2", f"s_add_u32 s61, s61, {s(S_W)}",
          f"s_lshl_b32 s95, {s(S_W)}, 10", f"s_add_u32 s95, s95, {SC}")

        def publish_ml(bi):
            e(f"s_mov_b32 s60, {bi}")
            self.lds_wait_gt(VFL, F_KD, 8, 60, sleep=4)
            e(f"s_lshl_b32 s62, {s(S_W)}, 5", f"s_add_u32 s62, s62, {MLH+8*bi}",
              "v_mov_b32 v6, s62", f"ds_read_b64 {vr(MLR,2)}, v6",
              f"s_lshl_b32 s63, {s(S_H)}, 2", f"s_add_u32 s63, s63, {bi}", "s_lshl_b32 s63, s63, 9", f"s_add_u32 s63, s63, {MLBUF}",
              "s_lshl_b32 s62, s61, 4", "s_add_u32 s62, s62, s63",
              "s_waitcnt lgkmcnt(0)",
              f"v_mov_b32 {v(MLR+2)}, {v(MLR+1)}", f"v_mov_b32 {v(MLR+1)}, {s(S_TAG)}", f"v_mov_b32 {v(MLR+3)}, {s(S_TAG)}",
              "v_mov_b32 v6, 0", "s_mov_b64 exec, 1",
              f"buffer_store_dwordx4 {vr(MLR,4)}, v6, {sr(SRD_WS,4)}, s62 offen sc1", "s_mov_b64 exec, -1")
            if bi == 3 and SL < 4:
                self.c("last batch: publish the scores of this wave's pool tiles")
                e(f"s_add_u32 s62, s95, {(12+SL)*64}", "v_lshlrev_b32 v6, 2, v1", "v_add_u32 v6, s62, v6",
                  "ds_read_b32 v16, v6", f"v_mov_b32 v17, {s(S_TAG)}",
                  "v_lshrrev_b32 v7, 4, v1", "v_lshlrev_b32 v7, 12, v7", "v_and_b32 v8, 15, v1", "v_lshl_add_u32 v7, v8, 3, v7",
                  f"s_lshl_b32 s62, {s(S_H)}, 7", f"s_add_u32 s62, s62, {32*SL}", "s_add_u32 s62, s62, s61", "s_lshl_b32 s62, s62, 7",
                  f"s_add_u32 s62, s62, {SBUF}", "s_waitcnt lgkmcnt(0)")
                n = 16*(4-SL)
                if n < 64:
                    lo = (1 << min(n, 32)) - 1
                    hi = (1 << max(n-32, 0)) - 1
                    e(f"s_mov_b32 exec_lo, {hex(lo)}", f"s_mov_b32 exec_hi, {hex(hi)}")
                e(f"buffer_store_dwordx2 v[16:17], v7, {sr(SRD_WS,4)}, s62 offen sc1", "s_mov_b64 exec, -1")

        def make_p(bi):
            e(f"s_lshl_b32 s63, {s(S_H)}, 2", f"s_add_u32 s63, s63, {bi}", "s_lshl_b32 s63, s63, 9", f"s_add_u32 s63, s63, {MLBUF}",
              "v_lshlrev_b32 v6, 4, v1", "s_mov_b32 exec_lo, -1", "s_mov_b32 exec_hi, 0")
            def ld_ml():
                e(f"buffer_load_dwordx4 {vr(MLR,4)}, v6, {sr(SRD_WS,4)}, s63 offen sc1")
            self.poll(ld_ml, [MLR+1, MLR+3], T, T+1, sleep=8)
            e("s_mov_b64 exec, -1", f"v_cmp_gt_u32 vcc, 32, v1", f"v_mov_b32 v6, {hex(NINF)}", "v_mov_b32 v7, 0", "s_nop 0",
              f"v_cndmask_b32 {v(MLR)}, v6, {v(MLR)}, vcc", f"v_cndmask_b32 {v(MLR+2)}, v7, {v(MLR+2)}, vcc",
              f"v_mov_b32 v6, {v(MLR)}")
            self.allreduce("max", 6, 8)
            e(f"v_sub_f32 v7, {v(MLR)}, v6", f"v_mul_f32 v7, {hex(LOG2E)}, v7", "v_exp_f32 v7, v7", "s_nop 0",
              f"v_mul_f32 v7, v7, {v(MLR+2)}")
            self.allreduce("add", 7, 8)
            e("v_rcp_f32 v7, v7", "s_nop 1", "v_readfirstlane_b32 s92, v6", "v_readfirstlane_b32 s93, v7")
            self.c("probabilities of the four static tiles of this batch, in place of their scores")
            e(f"s_add_u32 s62, s95, {256*bi}", "v_lshlrev_b32 v6, 2, v1", "v_add_u32 v6, s62, v6",
              "ds_read_b32 v12, v6", "s_waitcnt lgkmcnt(0)")
            self.unpack(14, 15, 12)
            e("v_subrev_f32 v14, s92, v14", "v_subrev_f32 v15, s92, v15",
              f"v_mul_f32 v14, {hex(LOG2E)}, v14", f"v_mul_f32 v15, {hex(LOG2E)}, v15", "v_exp_f32 v14, v14", "v_exp_f32 v15, v15", "s_nop 0",
              "v_mul_f32 v14, s93, v14", "v_mul_f32 v15, s93, v15", "v_cvt_pk_bf16_f32 v12, v14, v15",
              f"v_mov_b32 v7, {bi+1}", "ds_write_b32 v6, v12",
              "s_mov_b64 exec, 1", f"ds_write_b32 {v(VFL)}, v7 offset:{F_PB}", "s_mov_b64 exec, -1")

        for bi in range(4):
            publish_ml(bi)
            if bi >= 1:
                make_p(bi-1)
        self.c("the last batch's statistics: once this workgroup has finished the first V batch")
        self.lds_wait(9, F_OF, 8, 1, sleep=4)
        make_p(3)
        self.stamp(7)
        if SL < 4:
            self.c("---- pool: claim tiles for the paired streamer and prepare their probabilities")
            e("s_mov_b32 s60, 0", "s_mov_b32 s59, 0", f"s_lshl_b32 s57, {s(S_W)}, 4", f"s_add_u32 s94, s57, {IDQ}", f"s_add_u32 s57, s57, {CLQ}",
              f"s_lshl_b32 s56, {s(S_H)}, 7", f"s_add_u32 s56, s56, {CNTBUF}",
              f"s_lshl_b32 s61, {s(S_H)}, 14", f"s_add_u32 s61, s61, {SBUF}",
              f"s_lshl_b32 s95, {s(S_W)}, 8", f"s_add_u32 s95, s95, {PSLOT}",
              "s_mov_b32 s58, 0", "s_mov_b32 s55, 0", "s_mov_b32 s52, 0", "v_mov_b32 v20, 0")
            lp, lpe = self.new("pp"), self.new("pe")
            self.label(lp)
            e("s_and_b32 s62, s60, 3", "s_lshl_b32 s62, s62, 2", "s_add_u32 s62, s62, s94", "v_mov_b32 v6, s62")
            self.lds_wait_gt(VFL, F_NV, 8, 60, sleep=1)
            if self.A == 1:
                lnat, lnsc, lretry, lchk, lnp = (self.new(x) for x in ("nat", "nsc", "pr", "pc", "np"))
                e("ds_read_b32 v7, v6", "s_waitcnt lgkmcnt(0)", "v_readfirstlane_b32 s63, v7", "s_nop 0",
                  "s_cmp_ge_u32 s63, 128", f"s_cbranch_scc1 {lpe}",
                  "s_lshl_b32 s63, s63, 7", "s_add_u32 s63, s63, s61", "v_lshlrev_b32 v6, 3, v1")
                def ld_sc():
                    e(f"buffer_load_dwordx2 v[12:13], v6, {sr(SRD_WS,4)}, s63 offen sc1")
                self.c("claim the tile of the next item first, then fetch the scores of the item that has just started")
                e("s_mov_b32 s54, 0", "s_cmp_eq_u32 s55, 0", f"s_cbranch_scc0 {lnat}", "s_mov_b64 exec, 1", "v_mov_b32 v22, 1",
                  f"buffer_atomic_add v22, v20, {sr(SRD_WS,4)}, s56 offen sc0 sc1", "s_mov_b32 s54, 1")
                self.label(lnat)
                lns2, lw1 = self.new("ns2"), self.new("w1")
                e("s_cmp_ge_u32 s60, 1", f"s_cbranch_scc0 {lns2}", "s_mov_b64 exec, 0xffff")
                ld_sc()
                e("s_waitcnt vmcnt(1)", f"s_branch {lw1}")
                self.label(lns2)
                e("s_waitcnt vmcnt(0)")
                self.label(lw1)
                e("s_mov_b64 exec, 1", "s_cmp_eq_u32 s54, 1", f"s_cbranch_scc0 {lnsc}",
                  "v_readfirstlane_b32 s53, v22",
                  "s_and_b32 s62, s59, 3", "s_lshl_b32 s62, s62, 2", "s_add_u32 s62, s62, s57", "v_mov_b32 v7, s62", "v_mov_b32 v8, s53",
                  "s_add_u32 s59, s59, 1", "v_mov_b32 v14, s59", "ds_write_b32 v7, v8",
                  f"ds_write_b32 {v(VFL)}, v14 offset:{F_NC}",
                  f"s_cmp_ge_u32 s53, {32*(4-SL)}", "s_cselect_b32 s55, 1, s55")
                self.label(lnsc)
                e("s_cmp_ge_u32 s60, 1", f"s_cbranch_scc0 {lnp}", "s_mov_b64 exec, 0xffff", "s_waitcnt vmcnt(0)")
                self.tagcheck([13], T, T+1, lretry)
                e(f"s_branch {lchk}")
                self.label(lretry)
                self.poll(ld_sc, [13], T, T+1)
                self.label(lchk)
                self.unpack(14, 15, 12)
                e("v_subrev_f32 v14, s92, v14", "v_subrev_f32 v15, s92, v15",
                  f"v_mul_f32 v14, {hex(LOG2E)}, v14", f"v_mul_f32 v15, {hex(LOG2E)}, v15", "v_exp_f32 v14, v14", "v_exp_f32 v15, v15", "s_nop 0",
                  "v_mul_f32 v14, s93, v14", "v_mul_f32 v15, s93, v15", "v_cvt_pk_bf16_f32 v12, v14, v15",
                  "s_and_b32 s62, s52, 3", "s_lshl_b32 s62, s62, 6", "s_add_u32 s62, s62, s95",
                  "v_lshlrev_b32 v6, 2, v1", "v_add_u32 v6, s62, v6", "s_add_u32 s52, s52, 1", "v_mov_b32 v7, s52",
                  "ds_write_b32 v6, v12", "s_mov_b64 exec, 1", f"ds_write_b32 {v(VFL)}, v7 offset:{F_NP}")
                self.label(lnp)
                e("s_mov_b64 exec, -1", "s_add_u32 s60, s60, 1", f"s_branch {lp}")
            else:
                lna, lnd_, lw0, lwx, lnl = (self.new(x) for x in ("na", "ndl", "w0", "wx", "nl"))
                e("ds_read_b32 v7, v6", "s_waitcnt lgkmcnt(0)", "v_readfirstlane_b32 s63, v7", "s_nop 0",
                  "s_cmp_ge_u32 s63, 128", f"s_cbranch_scc1 {lpe}",
                  "s_lshl_b32 s63, s63, 7", "s_add_u32 s63, s63, s61", "v_lshlrev_b32 v6, 3, v1")
                def ld_sc():
                    e(f"buffer_load_dwordx2 v[12:13], v6, {sr(SRD_WS,4)}, s63 offen sc1")
                e("s_cmp_ge_u32 s60, 2", f"s_cbranch_scc0 {lnl}", "s_mov_b64 exec, 0xffff")
                ld_sc()
                self.label(lnl)
                e("s_mov_b32 s54, s58", "s_mov_b32 s58, 0", "s_cmp_eq_u32 s55, 0", f"s_cbranch_scc0 {lw0}",
                  "s_mov_b64 exec, 1", "s_and_b32 s62, s60, 1", f"s_cbranch_scc1 {lna}",
                  "v_mov_b32 v22, 1", f"buffer_atomic_add v22, v20, {sr(SRD_WS,4)}, s56 offen sc0 sc1", f"s_branch {lnd_}")
                self.label(lna)
                e("v_mov_b32 v23, 1", f"buffer_atomic_add v23, v20, {sr(SRD_WS,4)}, s56 offen sc0 sc1")
                self.label(lnd_)
                e("s_mov_b32 s58, 1", "s_waitcnt vmcnt(1)", f"s_branch {lwx}")
                self.label(lw0)
                e("s_waitcnt vmcnt(0)")
                self.label(lwx)
                self.c("deliver the claim issued one item earlier")
                lnc_, lod, lodx, lretry, lchk, lnp = (self.new(x) for x in ("ncl", "od", "odx", "pr", "pc", "np"))
                e("s_mov_b64 exec, 1", "s_cmp_eq_u32 s54, 1", f"s_cbranch_scc0 {lnc_}",
                  "s_and_b32 s62, s60, 1", f"s_cbranch_scc1 {lod}",
                  "v_readfirstlane_b32 s53, v23", f"s_branch {lodx}")
                self.label(lod)
                e("v_readfirstlane_b32 s53, v22")
                self.label(lodx)
                e("s_and_b32 s62, s59, 3", "s_lshl_b32 s62, s62, 2", "s_add_u32 s62, s62, s57", "v_mov_b32 v7, s62", "v_mov_b32 v8, s53",
                  "s_add_u32 s59, s59, 1", "v_mov_b32 v14, s59", "ds_write_b32 v7, v8",
                  f"ds_write_b32 {v(VFL)}, v14 offset:{F_NC}",
                  f"s_cmp_ge_u32 s53, {32*(4-SL)}", "s_cselect_b32 s55, 1, s55")
                self.label(lnc_)
                e("s_cmp_ge_u32 s60, 2", f"s_cbranch_scc0 {lnp}", "s_mov_b64 exec, 0xffff")
                self.tagcheck([13], T, T+1, lretry)
                e(f"s_branch {lchk}")
                self.label(lretry)
                self.poll(ld_sc, [13], T, T+1)
                self.label(lchk)
                self.unpack(14, 15, 12)
                e("v_subrev_f32 v14, s92, v14", "v_subrev_f32 v15, s92, v15",
                  f"v_mul_f32 v14, {hex(LOG2E)}, v14", f"v_mul_f32 v15, {hex(LOG2E)}, v15", "v_exp_f32 v14, v14", "v_exp_f32 v15, v15", "s_nop 0",
                  "v_mul_f32 v14, s93, v14", "v_mul_f32 v15, s93, v15", "v_cvt_pk_bf16_f32 v12, v14, v15",
                  "s_and_b32 s62, s52, 3", "s_lshl_b32 s62, s62, 6", "s_add_u32 s62, s62, s95",
                  "v_lshlrev_b32 v6, 2, v1", "v_add_u32 v6, s62, v6", "s_add_u32 s52, s52, 1", "v_mov_b32 v7, s52",
                  "ds_write_b32 v6, v12", "s_mov_b64 exec, 1", f"ds_write_b32 {v(VFL)}, v7 offset:{F_NP}")
                self.label(lnp)
                e("s_mov_b64 exec, -1", "s_add_u32 s60, s60, 1", f"s_branch {lp}")
            self.label(lpe)
            e("s_mov_b64 exec, -1")
        lhi2, ldone = self.new("hi2"), self.new("done")
        e(f"s_cmp_lt_u32 {s(S_J)}, 5", f"s_cbranch_scc0 {lhi2}")
        self.c("---- stage B: sum the 8 partials per batch, o @ wo")
        GB_ = 204
        FQ = 236
        OV, AB = 16, 28
        e("v_and_b32 v6, 15, v1", "v_lshrrev_b32 v7, 2, v6", "v_and_b32 v6, 3, v6",
          "v_lshl_add_u32 v6, v7, 3, v6", "v_lshlrev_b32 v6, 10, v6",
          "v_lshrrev_b32 v7, 4, v1", "v_lshl_add_u32 v4, v7, 4, v6",
          f"s_lshl_b32 s62, {s(S_H)}, 15", f"s_lshl_b32 s63, {s(S_W)}, 8", "s_add_u32 s62, s62, s63",
          f"s_add_u32 s62, s62, {OBUF}", "s_add_u32 s63, s62, 4096")
        e(f"s_lshl_b32 s64, {s(S_W)}, 11", f"s_add_u32 s64, s64, {RED2}", "v_lshlrev_b32 v5, 5, v1", "v_add_u32 v5, s64, v5")
        e("v_lshrrev_b32 v6, 4, v1", f"s_lshl_b32 s64, {s(S_W)}, 2", "v_add_u32 v6, s64, v6",
          "v_bfe_u32 v7, v1, 2, 2", "v_and_b32 v8, 3, v1",
          "v_lshl_add_u32 v9, v7, 4, v6", "v_lshlrev_b32 v9, 5, v9", "v_lshl_add_u32 v9, v8, 3, v9",
          "v_lshlrev_b32 v6, 13, v7", "v_lshrrev_b32 v7, 4, v1", "v_lshl_add_u32 v7, v7, 2, v8",
          "v_lshl_add_u32 v10, v7, 4, v6",
          f"s_lshl_b32 s64, {s(S_J)}, 2", f"s_add_u32 s64, s64, {s(S_W)}", "s_lshl_b32 s64, s64, 15",
          f"s_lshl_b32 s65, {s(S_H)}, 8", "s_add_u32 s64, s64, s65", f"s_add_u32 s64, s64, {ABUF}",
          f"v_mov_b32 {v(FQ+1)}, {s(S_TAG)}", f"v_mov_b32 {v(FQ+3)}, {s(S_TAG)}")
        def ld_o(js):
            def f():
                for ss in range(4):
                    e(f"buffer_load_dwordx4 {vr(GB_+16*js+4*ss,4)}, v4, {sr(SRD_WS,4)}, {'s63' if js else 's62'} offen offset:{64*ss} sc1")
            return f
        grp = [(36, ld_o(0), [GB_+4*k+3 for k in range(4)]), (38, ld_o(1), [GB_+16+4*k+3 for k in range(4)])]
        if "wbs" in self.x:
            e("s_mov_b32 s58, s62", "s_mov_b32 s59, s63")
            load_wb()
            e("s_mov_b32 s62, s58", "s_mov_b32 s63, s59")
        if "e1pre" in self.x:
            self.c("the partial outputs of batches 0..2 were published long ago")
            self.masked_gather(grp, T, init=(0x0fff0fff, 0x0fff0fff), care=(0x0fff0fff, 0x0fff0fff), sleep=8)
        self.lds_wait(VFL, F_VE, 8, 1, sleep=2)
        self.stamp(8)
        if "wbve" in self.x:
            e("s_mov_b32 s58, s62", "s_mov_b32 s59, s63")
            wb_issue()
            e("s_mov_b32 s62, s58", "s_mov_b32 s63, s59")
            self.c("(the descriptor registers become the lane masks of the gather: the loads above have been issued)")
        if "e1pre" in self.x:
            self.masked_gather(grp, T, init=(0xf000f000, 0xf000f000), care=(0xf000f000, 0xf000f000))
            if "wbve" in self.x:
                wb_perm()
        else:
            self.masked_gather(grp, T)
        self.stamp(9)
        for ss in range(4):
            for p in range(3):
                e(f"v_add_f32 {v(OV+3*ss+p)}, {v(GB_+4*ss+p)}, {v(GB_+16+4*ss+p)}")
        for perm in ("[1,0,3,2]", "[2,3,0,1]"):
            for k in range(12):
                e(f"v_add_f32_dpp {v(OV+k)}, {v(OV+k)}, {v(OV+k)} quad_perm:{perm} row_mask:0xf bank_mask:0xf")
        for k in range(6):
            e(f"v_cvt_pk_bf16_f32 {v(AB+k)}, {v(OV+2*k)}, {v(OV+2*k+1)}")
        e("s_nop 0")
        DB = GB_
        for sg in range(3):
            for cc in range(8):
                c = "0" if sg == 0 else vr(DB+4*cc, 4)
                e(f"v_mfma_f32_16x16x16_bf16 {vr(DB+4*cc,4)}, {vr(AB+2*sg,2)}, {vr(WB+16*sg+2*cc,2)}, {c}")
        e("s_nop 1")
        for cc in range(8):
            e(f"v_mov_b32 {v(OV+cc)}, {v(DB+4*cc)}")
            if cc < 7:
                pass
        e(f"ds_write_b128 v5, {vr(OV,4)}", f"ds_write_b128 v5, {vr(OV+4,4)} offset:16", "s_waitcnt lgkmcnt(0)", "s_barrier")
        for ww in range(4):
            e(f"ds_read_b64 {vr(OV+2*ww,2)}, v9 offset:{RED2+2048*ww}")
        e("s_waitcnt lgkmcnt(2)", f"v_pk_add_f32 {vr(OV,2)}, {vr(OV,2)}, {vr(OV+2,2)}",
          "s_waitcnt lgkmcnt(0)", f"v_pk_add_f32 {vr(OV+4,2)}, {vr(OV+4,2)}, {vr(OV+6,2)}",
          f"v_add_f32 {v(FQ)}, {v(OV)}, {v(OV+4)}", f"v_add_f32 {v(FQ+2)}, {v(OV+1)}, {v(OV+5)}",
          f"buffer_store_dwordx4 {vr(FQ,4)}, v10, {sr(SRD_WS,4)}, s64 offen sc1")
        self.stamp(10)
        e(f"s_branch {ldone}")
        self.label(lhi2)
        lnd = self.new("nd")
        e("s_cmp_eq_u32 s69, 2", f"s_cbranch_scc0 {lnd}")
        self.c("---- stage D: hh @ w_down, residual, output")
        X1R = 34
        HGA, HGB = 204, 228
        e(f"v_mov_b32 v32, {v(GBR)}")
        e("v_lshrrev_b32 v6, 4, v1", f"v_mul_u32_u24 v6, {320*8}, v6", "v_and_b32 v7, 15, v1", "v_lshl_add_u32 v4, v7, 3, v6",
          "s_lshl_b32 s64, s68, 7", "s_and_b32 s65, s68, 3", "s_mul_i32 s65, s65, 10240", "s_add_u32 s64, s64, s65",
          f"s_add_u32 s64, s64, {X1BUF}")
        for i in range(6):
            e(f"v_add_u32 v6, {64*i}, v1", "v_mul_u32_u24 v7, 683, v6", "v_lshrrev_b32 v7, 16, v7",
              "v_mul_u32_u24 v8, 96, v7", "v_sub_u32 v8, v6, v8", f"v_mul_u32_u24 v7, {768*8}, v7",
              f"v_lshl_add_u32 {v(16+i)}, v8, 4, v7")
        e(f"s_mul_i32 s62, {s(S_W)}, {192*8}", f"s_add_u32 s62, s62, {HBUF}")
        if self.RH > 1:
            e("s_and_b32 s63, s68, 1", f"s_mul_i32 s63, s63, {HBUF2-HBUF}", "s_add_u32 s62, s62, s63")
        e(f"s_mul_i32 s63, {s(S_W)}, 3072", f"s_add_u32 s63, s63, {HST}", "v_lshlrev_b32 v6, 3, v1", "v_add_u32 v5, s63, v6",
          "v_and_b32 v7, 15, v1", "v_lshrrev_b32 v7, 2, v7", "v_mul_u32_u24 v7, 768, v7", "v_lshrrev_b32 v8, 4, v1",
          "v_lshl_add_u32 v7, v8, 4, v7", "v_add_u32 v9, s63, v7",
          f"s_lshl_b32 s63, {s(S_W)}, 9", f"s_add_u32 s63, s63, {RED2+8192}", "v_add_u32 v10, s63, v6",
          "v_mov_b32 v11, v6",
          "v_lshrrev_b32 v6, 4, v1", "v_mul_u32_u24 v6, 1280, v6", "v_and_b32 v7, 15, v1", "v_lshl_add_u32 v12, v7, 2, v6",
          "s_lshl_b32 s65, s68, 6")
        self.srd(SRD_B, S_OUT, 5120)
        self.lds_wait(VFL, F_VE, 8, 1, sleep=2)
        self.stamp(8)
        if "defer" in self.x:
            self.c("second half of the weight slice: while the attention tail runs elsewhere")
            e("s_mov_b32 s58, s62")
            load_heavy(1)
            e("s_mov_b32 s62, s58")
        def ld_x1d():
            e(f"buffer_load_dwordx2 {vr(X1R,2)}, v4, {sr(SRD_WS,4)}, s64 offen sc1")
        self.poll(ld_x1d, [X1R+1], T, T+1, sleep=3)
        self.stamp(11)
        def ld_h(base):
            def f():
                for i in range(6):
                    e(f"buffer_load_dwordx4 {vr(base+4*i,4)}, {v(16+i)}, {sr(SRD_WS,4)}, s62 offen sc1")
            return f
        def use_h(base):
            def f():
                for i in range(6):
                    e(f"v_mov_b32 {v(base+4*i+1)}, {v(base+4*i+2)}", f"ds_write_b64 v5, {vr(base+4*i,2)} offset:{512*i}")
            return f
        if "e4g" in self.x:
            self.c("gate on the first sixth of this wave's slice, then fetch the rest")
            def ld_h0():
                e(f"buffer_load_dwordx4 {vr(HGA,4)}, {v(16)}, {sr(SRD_WS,4)}, s62 offen sc1")
            self.poll(ld_h0, [HGA+1, HGA+3], T, T+1)
            def ld_hr():
                for i in range(1, 6):
                    e(f"buffer_load_dwordx4 {vr(HGA+4*i,4)}, {v(16+i)}, {sr(SRD_WS,4)}, s62 offen sc1")
            self.poll(ld_hr, [HGA+4*i+k for i in range(1, 6) for k in (1, 3)], T, T+1)
            use_h(HGA)()
        elif "e4s" in self.x:
            self.poll(ld_h(HGA), [HGA+4*i+k for i in range(6) for k in (1, 3)], T, T+1, sleep=self.e4sleep)
            use_h(HGA)()
        elif "e4m" in self.x:
            def ld_h2(k):
                def f():
                    for i in (2*k, 2*k+1):
                        e(f"buffer_load_dwordx4 {vr(HGA+4*i,4)}, {v(16+i)}, {sr(SRD_WS,4)}, s62 offen sc1")
                return f
            self.masked_gather([(sp, ld_h2(k), [HGA+8*k+1, HGA+8*k+3, HGA+8*k+5, HGA+8*k+7]) for k, sp in enumerate((36, 38, 48))], T)
            use_h(HGA)()
        else:
            self.poll2(ld_h(HGA), [HGA+4*i+k for i in range(6) for k in (1, 3)], use_h(HGA),
                       ld_h(HGB), [HGB+4*i+k for i in range(6) for k in (1, 3)], use_h(HGB), 6, T)
        self.stamp(12)
        AD = 36
        for ks in range(9):
            e(f"ds_read_b128 {vr(AD+4*ks,4)}, v9 offset:{64*ks}")
        DD2 = 24
        for ks in range(12):
            e(f"s_waitcnt lgkmcnt({min(8, 11-ks)})")
            for hi in range(2):
                c = "0" if ks == 0 else vr(DD2+4*hi, 4)
                e(f"v_mfma_f32_16x16x32_bf16 {vr(DD2+4*hi,4)}, {vr(AD+4*ks,4)}, {vr(WD+8*ks+4*hi,4)}, {c}")
            if ks + 9 < 12:
                e(f"ds_read_b128 {vr(AD+4*(ks+9),4)}, v9 offset:{64*(ks+9)}")
        e("s_nop 7", f"v_mov_b32 {v(DD2+1)}, {v(DD2+4)}", f"ds_write_b64 v10, {vr(DD2,2)}", "s_waitcnt lgkmcnt(0)", "s_barrier")
        e(f"s_cmp_eq_u32 {s(S_W)}, 0", f"s_cbranch_scc0 {ldone}")
        R = 12+4
        for ww in range(4):
            e(f"ds_read_b64 {vr(R+2*ww,2)}, v11 offset:{RED2+8192+512*ww}")
        self.unpack(24, 25, 32)
        self.unpack(26, 27, X1R)
        e("s_waitcnt lgkmcnt(2)", f"v_pk_add_f32 {vr(R,2)}, {vr(R,2)}, {vr(R+2,2)}",
          "s_waitcnt lgkmcnt(0)", f"v_pk_add_f32 {vr(R+4,2)}, {vr(R+4,2)}, {vr(R+6,2)}",
          f"v_pk_add_f32 {vr(R,2)}, {vr(R,2)}, {vr(R+4,2)}")
        self.round2(R, R+1, T)
        e(f"v_pk_mul_f32 {vr(R,2)}, {vr(R,2)}, v[24:25]")
        self.round2(R, R+1, T)
        e(f"v_pk_add_f32 {vr(R,2)}, {vr(R,2)}, v[26:27]", f"v_cvt_pk_bf16_f32 {v(R)}, {v(R)}, {v(R+1)}",
          f"buffer_store_dword {v(R)}, v12, {sr(SRD_B,4)}, s65 offen" + (" sc1" if "outsc1" in self.x else ""))
        self.c("the workgroup with d == 0 leaves this launch's tag for the next launch")
        e("s_cmp_eq_u32 s68, 0", f"s_cbranch_scc0 {ldone}",
          f"v_mov_b32 v6, {WS_EPOCH}", f"v_mov_b32 v7, {s(S_TAG)}", "s_mov_b64 exec, 1",
          f"buffer_store_dword v7, v6, {sr(SRD_WS,4)}, 0 offen sc1", "s_mov_b64 exec, -1")
        e(f"s_branch {ldone}")
        self.label(lnd)
        lnr2 = self.new("nr2")
        e("s_cmp_eq_u32 s70, 1", f"s_cbranch_scc0 {lnr2}")
        self.c("---- reducer: sum 32 head partials, residual, publish x1")
        RGm = 184
        e("v_lshlrev_b32 v4, 4, v1", "s_lshl_b32 s62, s71, 13", f"s_add_u32 s62, s62, {ABUF}", "s_add_u32 s63, s62, 4096",
          "v_lshrrev_b32 v6, 4, v1", "v_mul_u32_u24 v6, 10240, v6", "v_and_b32 v7, 15, v1", "v_lshl_add_u32 v5, v7, 3, v6",
          "s_and_b32 s64, s71, 3", f"s_mul_i32 s64, s64, {320*8}", "s_lshr_b32 s65, s71, 2", "s_lshl_b32 s65, s65, 7",
          "s_add_u32 s64, s64, s65", f"s_add_u32 s64, s64, {X1BUF}", f"v_mov_b32 v21, {s(S_TAG)}")
        self.unpack(24, 25, RG)
        self.unpack(26, 27, RX)
        self.lds_wait(VFL, F_VE, 8, 1, sleep=2)
        self.stamp(8)
        if "rgate" in self.x:
            self.c("gate: one of four heads has published its projection for these columns")
            lg, lgd = self.new("rg"), self.new("rgd")
            e("v_lshlrev_b32 v6, 3, v1", f"v_add_u32 v6, {s(S_H)}, v6", "v_and_b32 v6, 31, v6", "v_lshlrev_b32 v6, 8, v6", "s_mov_b64 exec, 15")
            self.label(lg)
            e(f"buffer_load_dwordx2 v[14:15], v6, {sr(SRD_WS,4)}, s62 offen sc1", "s_waitcnt vmcnt(0)",
              f"v_cmp_eq_u32 vcc, {s(S_TAG)}, v15", "s_nop 1", f"s_cbranch_vccnz {lgd}", "s_sleep 2")
            self.spin_check()
            e(f"s_branch {lg}")
            self.label(lgd)
            e("s_mov_b64 exec, -1")
        def ld_a(k):
            def f():
                for i in (2*k, 2*k+1):
                    e(f"buffer_load_dwordx4 {vr(RGm+4*i,4)}, v4, {sr(SRD_WS,4)}, {'s63' if i>=4 else 's62'} offen offset:{1024*(i&3)} sc1")
            return f
        self.masked_gather([(sp, ld_a(k), [RGm+8*k+1, RGm+8*k+3, RGm+8*k+5, RGm+8*k+7]) for k, sp in enumerate((36, 38, 44, 46))], T)
        self.stamp(9)
        a0, a1 = 16, 17
        e(f"v_add_f32 {v(a0)}, {v(RGm)}, {v(RGm+4)}", f"v_add_f32 {v(a1)}, {v(RGm+2)}, {v(RGm+6)}",
          f"v_add_f32 v18, {v(RGm+8)}, {v(RGm+12)}", f"v_add_f32 v19, {v(RGm+10)}, {v(RGm+14)}")
        for i in (4, 5):
            e(f"v_add_f32 {v(a0)}, {v(a0)}, {v(RGm+4*i)}", f"v_add_f32 {v(a1)}, {v(a1)}, {v(RGm+4*i+2)}",
              f"v_add_f32 v18, v18, {v(RGm+4*(i+2))}", f"v_add_f32 v19, v19, {v(RGm+4*(i+2)+2)}")
        e(f"v_pk_add_f32 {vr(a0,2)}, {vr(a0,2)}, v[18:19]")
        for swp in ("v_permlane16_swap_b32", "v_permlane32_swap_b32"):
            e(f"v_mov_b32 v18, {v(a0)}", f"v_mov_b32 v19, {v(a1)}", "s_nop 1",
              f"{swp} v18, {v(a0)}", f"{swp} v19, {v(a1)}",
              f"v_pk_add_f32 {vr(a0,2)}, v[18:19], {vr(a0,2)}")
        self.round2(a0, a1, T)
        e(f"v_pk_mul_f32 {vr(a0,2)}, {vr(a0,2)}, v[24:25]")
        self.round2(a0, a1, T)
        e(f"v_pk_add_f32 {vr(a0,2)}, {vr(a0,2)}, v[26:27]",
          f"v_cvt_pk_bf16_f32 v20, {v(a0)}, {v(a1)}",
          f"buffer_store_dwordx2 v[20:21], v5, {sr(SRD_WS,4)}, s64 offen sc1")
        self.stamp(10)
        e(f"s_branch {ldone}")
        self.label(lnr2)
        e("s_cmp_eq_u32 s69, 1", f"s_cbranch_scc0 {ldone}")
        self.c("---- stage C: LN2, gate/up, hh")
        XGA, XGB = 184, 194
        TD = 204
        AC, DC = 184, 216
        e(f"s_mul_i32 s62, {s(S_W)}, {320*8}", "s_and_b32 s63, s68, 3", "s_mul_i32 s63, s63, 10240", "s_add_u32 s62, s62, s63",
          f"s_add_u32 s62, s62, {X1BUF}", "v_lshlrev_b32 v4, 3, v1",
          f"s_lshl_b32 s63, {s(S_W)}, 10", f"s_add_u32 s63, s63, {RED2}", "v_lshlrev_b32 v10, 4, v1", "v_add_u32 v11, s63, v10",
          "v_lshrrev_b32 v6, 4, v1", f"v_mul_u32_u24 v6, {768*8}, v6", "v_and_b32 v7, 15, v1", "v_lshl_add_u32 v12, v7, 3, v6",
          "s_lshl_b32 s64, s68, 7", f"s_add_u32 s64, s64, {HBUF}", f"v_mov_b32 v33, {s(S_TAG)}")
        self.lds_wait(VFL, F_VE, 8, 1, sleep=2)
        self.stamp(8)
        if "defer" in self.x:
            self.c("second half of the weight slice: while the attention tail runs elsewhere")
            e("s_mov_b32 s58, s62")
            load_heavy(1)
            e("s_mov_b32 s62, s58")
        self.c("gate: wave 0 watches the attention projection finish, then everybody polls x1")
        lg = self.new("gate")
        lng = self.new("ngate")
        if "nogate" in self.x:
            e(f"s_branch {lng}")
        e(f"s_cmp_eq_u32 {s(S_W)}, 0", f"s_cbranch_scc0 {lg}",
          "s_lshl_b32 s63, s68, 13", f"s_add_u32 s63, s63, {ABUF}", "v_lshlrev_b32 v6, 8, v1",
          "s_mov_b32 exec_lo, -1", "s_mov_b32 exec_hi, 0")
        def ld_gate():
            e(f"buffer_load_dwordx2 v[14:15], v6, {sr(SRD_WS,4)}, s63 offen sc1")
        self.poll(ld_gate, [15], T, T+1, sleep=2)
        e("s_mov_b64 exec, -1")
        self.lds_flag_set(9, F_GT, VONE)
        self.label(lg)
        self.lds_wait(9, F_GT, 8, 1, sleep=1)
        self.label(lng)
        def ld_x1(base):
            def f():
                for i in range(5):
                    e(f"buffer_load_dwordx2 {vr(base+2*i,2)}, v4, {sr(SRD_WS,4)}, s62 offen offset:{512*i} sc1")
            return f
        def use_x1(base):
            def f():
                for i in range(5):
                    self.unpack(XF+2*i, XF+2*i+1, base+2*i)
            return f
        if "e3g" in self.x:
            def ld_x0():
                e(f"buffer_load_dwordx2 {vr(XGA,2)}, v4, {sr(SRD_WS,4)}, s62 offen sc1")
            self.poll(ld_x0, [XGA+1], T, T+1)
            def ld_xr():
                for i in range(1, 5):
                    e(f"buffer_load_dwordx2 {vr(XGA+2*i,2)}, v4, {sr(SRD_WS,4)}, s62 offen offset:{512*i} sc1")
            self.poll(ld_xr, [XGA+2*i+1 for i in range(1, 5)], T, T+1)
            use_x1(XGA)()
        elif "e3s" in self.x:
            self.poll(ld_x1(XGA), [XGA+2*i+1 for i in range(5)], T, T+1)
            use_x1(XGA)()
        else:
            self.poll2(ld_x1(XGA), [XGA+2*i+1 for i in range(5)], use_x1(XGA), ld_x1(XGB), [XGB+2*i+1 for i in range(5)], use_x1(XGB), 5, T)
        self.stamp(11)
        self.ln_fast(None, XF, TD, T)
        self.modulate_fast(XF, CC1, CSH, TD, 26)
        e("s_waitcnt lgkmcnt(0)", "s_barrier")
        self.stamp(12)
        e("s_waitcnt vmcnt(0)")
        for ks in range(5):
            e(f"ds_read_b128 {vr(AC+4*ks,4)}, v5 offset:{64*ks}")
        for ks in range(5):
            e(f"s_waitcnt lgkmcnt({4-ks})")
            for mi, base in enumerate((WG, WU)):
                for hi in range(2):
                    d = DC+8*mi+4*hi
                    c = "0" if ks == 0 else vr(d, 4)
                    e(f"v_mfma_f32_16x16x32_bf16 {vr(d,4)}, {vr(AC+4*ks,4)}, {vr(base+8*ks+4*hi,4)}, {c}")
        e("s_nop 5")
        for k in range(4):
            e(f"v_mov_b32 {v(16+k)}, {v(DC+4*k)}")
        e("ds_write_b128 v11, v[16:19]", "s_waitcnt lgkmcnt(0)", "s_barrier")
        e(f"s_cmp_eq_u32 {s(S_W)}, 0", f"s_cbranch_scc0 {ldone}")
        for ww in range(4):
            e(f"ds_read_b128 {vr(AC+4*ww,4)}, v10 offset:{RED2+1024*ww}")
        e("s_waitcnt lgkmcnt(2)", f"v_pk_add_f32 {vr(AC,2)}, {vr(AC,2)}, {vr(AC+4,2)}", f"v_pk_add_f32 {vr(AC+2,2)}, {vr(AC+2,2)}, {vr(AC+6,2)}",
          "s_waitcnt lgkmcnt(0)", f"v_pk_add_f32 {vr(AC+8,2)}, {vr(AC+8,2)}, {vr(AC+12,2)}", f"v_pk_add_f32 {vr(AC+10,2)}, {vr(AC+10,2)}, {vr(AC+14,2)}",
          f"v_pk_add_f32 {vr(AC,2)}, {vr(AC,2)}, {vr(AC+8,2)}", f"v_pk_add_f32 {vr(AC+2,2)}, {vr(AC+2,2)}, {vr(AC+10,2)}",
          f"v_cvt_pk_bf16_f32 {v(T)}, {v(AC)}, {v(AC+1)}", f"v_cvt_pk_bf16_f32 {v(T+1)}, {v(AC+2)}, {v(AC+3)}")
        self.unpack(AC, AC+1, T)
        self.unpack(AC+2, AC+3, T+1)
        e(f"v_pk_mul_f32 {vr(AC,2)}, {vr(AC,2)}, {vr(AC+2,2)}", f"v_cvt_pk_bf16_f32 v32, {v(AC)}, {v(AC+1)}",
          f"buffer_store_dwordx2 v[32:33], v12, {sr(SRD_WS,4)}, s64 offen sc1")
        if self.RH > 1:
            e(f"s_add_u32 s64, s64, {HBUF2-HBUF}", f"buffer_store_dwordx2 v[32:33], v12, {sr(SRD_WS,4)}, s64 offen sc1")
        self.label(ldone)
        self.stamp(13)
        self.stamps_store()
        e("s_waitcnt vmcnt(0)", "s_endpgm")


def main():
    ap = argparse.ArgumentParser()
    ap.add_argument("-o", default="cdna_kernels/" + NAME + ".s")
    ap.add_argument("-D", type=int, default=3)
    ap.add_argument("--diag", action="store_true")
    ap.add_argument("--spin", type=int, default=400000)
    ap.add_argument("-x", default="")
    ap.add_argument("-N", type=int, default=None)
    ap.add_argument("--sv", type=int, default=16)
    ap.add_argument("--sk", type=int, default=16)
    ap.add_argument("--rot", type=int, default=0)
    ap.add_argument("--stag", default="0,32")
    ap.add_argument("--sl", type=int, default=4)
    ap.add_argument("--n2", type=int, default=None)
    ap.add_argument("--rm", type=int, default=1)
    ap.add_argument("--align", type=int, default=0)
    ap.add_argument("--nt", type=int, default=None)
    ap.add_argument("--i0", type=int, default=16)
    ap.add_argument("--e4sleep", type=int, default=0)
    ap.add_argument("-A", type=int, default=2)
    ap.add_argument("--rh", type=int, default=1)
    a = ap.parse_args()
    g = Gen(D=a.D, diag=a.diag, spin=a.spin, x=[t for t in a.x.split(',') if t], N=a.N, SV=a.sv, SK=a.sk, rot=a.rot, stag=tuple(int(t) for t in a.stag.split(',')), SL=a.sl, N2=a.n2, RM=a.rm, RH=a.rh, align=a.align, NT=a.nt, i0=a.i0, e4sleep=a.e4sleep, A=a.A)
    open(a.o, "w").write(g.build())
    print("wrote", a.o, len(g.L), "lines")


if __name__ == "__main__":
    main()
```

```python
import sys, argparse

NAME = "adaLN_cond__gqa_block_cached__glu_gated_bilinear__decode"
KERNEL = NAME + "_kernel"

WS_EPOCH = 0
MODBUF = 0x1000
QBUF   = 0x10000
X1BUF  = 0xF0000
HBUF   = 0x30000
HBUF2  = 0xFA000
MODR   = 0x300000
CNTBUF = 0x38000
ABUF   = 0x40000
MLBUF  = 0xE0000
OBUF   = 0x100000
SBUF   = 0x200000
STAMPS = 0x400000
WS_SIZE = 0x800000

RING_W = 36864
SC     = 147456
OSL    = SC + 4096
PSLOT  = SC + 7168
MISC   = 155648
AVEC   = MISC
QL     = MISC + 5120
MLH    = MISC + 6656
FLAGS  = MISC + 6784
IDQ    = MISC + 7040
CLQ    = MISC + 7104
LDS_TOTAL = 163840
F_SYNCA, F_SYNCR, F_JD, F_GT, F_QC, F_PA, F_OF, F_AL = 0, 4, 8, 12, 16, 20, 24, 28
F_KD, F_PB, F_OC, F_NV, F_NP, F_NC, F_VE = 32, 48, 64, 80, 96, 112, 128
RED2   = 0
HST    = 16384

S_X, S_K, S_V, S_WQ, S_WO, S_BX, S_G, S_U, S_DN, S_C, S_WM, S_OUT, S_DBG, S_WS = range(4, 32, 2)
S_TAG, S_W, S_H, S_J = 32, 33, 34, 35
SRD_A, SRD_WS, SRD_B, SRD_C = 36, 40, 44, 48
S_SPIN, S_SELLO, S_SELHI = 96, 97, 98
S_STAMP0 = 72

SCALE = 0x3d93cd3a
LOG2E = 0x3fb8aa3b
EPS = 0x3727c5ac
INV640 = 0x3acccccd
NINF = 0xff800000
TAGINC = 0x9E3779B9


def v(i): return f"v{i}"
def vr(i, n): return f"v[{i}:{i+n-1}]"
def s(i): return f"s{i}"
def sr(i, n): return f"s[{i}:{i+n-1}]"


class Gen:
    def __init__(self, D=3, diag=False, spin=400000, x=(), N=None, SV=16, SK=16, rot=0, stag=(0,0), SL=4, N2=None, RM=1, RH=1, align=0, NT=None, i0=16, e4sleep=0, A=2, qsleep=2):
        self.qsleep = qsleep
        self.A = A
        self.e4sleep = e4sleep
        self.i0 = i0
        self._NT = NT
        self.align = align
        self.RM = RM
        self.RH = RH
        self.SL = SL
        self.N2 = N2
        self.rot = rot
        self.stag = stag
        self.SV = SV
        self.SK = SK
        self.x = set(x)
        self.N = 3*(D-1) if N is None else N
        if N is not None:
            D = (N + 3 + 2)//3
        self.L = []
        self.nl = 0
        self.D = D
        self.NT = self.N if self._NT is None else self._NT
        self.diag = diag
        self.spin = spin
        self.nstamp = 0

    def e(self, *lines):
        for l in lines:
            self.L.append("    " + l)

    def c(self, text):
        self.L.append("    ; " + text)

    def label(self, name):
        self.L.append(name + ":")

    def new(self, base):
        self.nl += 1
        return f"L{base}_{self.nl}"

    def srd(self, dst, ptr, size):
        self.e(f"s_mov_b32 {s(dst)}, {s(ptr)}",
               f"s_and_b32 {s(dst+1)}, {s(ptr+1)}, 0xffff",
               f"s_mov_b32 {s(dst+2)}, {size}",
               f"s_mov_b32 {s(dst+3)}, 0x20000")

    def stamp(self, k):
        if not self.diag:
            return
        assert k < 16
        self.e("s_memrealtime s[88:89]", "s_waitcnt lgkmcnt(0)", f"s_mov_b32 {s(S_STAMP0+k)}, s88")

    def stamps_store(self):
        if not self.diag:
            return
        self.e("s_mov_b64 exec, -1")
        self.e("v_mov_b32 v250, 0")
        for k in range(16):
            self.e(f"v_writelane_b32 v250, {s(S_STAMP0+k)}, {k}")
        self.e("v_mbcnt_lo_u32_b32 v251, -1, 0", "v_mbcnt_hi_u32_b32 v251, -1, v251",
               "v_lshlrev_b32 v251, 2, v251",
               "s_lshl_b32 s88, s99, 6", f"s_add_u32 s88, s88, {STAMPS}",
               "s_mov_b64 exec, 0xffff",
               f"buffer_store_dword v250, v251, {sr(SRD_WS,4)}, s88 offen",
               "s_waitcnt vmcnt(0)")

    def tag_load(self):
        self.e(f"s_load_dword {s(S_TAG)}, {sr(S_WS,2)}, {WS_EPOCH}")
        if self.diag:
            self.e("s_memrealtime s[100:101]")

    def tag_ready(self):
        self.e("s_waitcnt lgkmcnt(0)", f"s_add_u32 {s(S_TAG)}, {s(S_TAG)}, {hex(TAGINC)}")
        if self.diag:
            self.e(f"s_mov_b32 {s(S_STAMP0)}, s100")

    def start_sync(self, streamer):
        self.e("s_barrier")

    def spin_check(self):
        self.e(f"s_sub_u32 {s(S_SPIN)}, {s(S_SPIN)}, 1", "s_cbranch_scc1 Labort")

    def allreduce(self, op, x, t):
        for r in (8, 4, 2, 1):
            self.e("s_nop 1", f"v_{op}_f32_dpp {v(x)}, {v(x)}, {v(x)} row_ror:{r} row_mask:0xf bank_mask:0xf")
        self.e(f"v_mov_b32 {v(t)}, {v(x)}", "s_nop 1", f"v_permlane16_swap_b32 {v(t)}, {v(x)}",
               f"v_{op}_f32 {v(x)}, {v(t)}, {v(x)}")
        self.e(f"v_mov_b32 {v(t)}, {v(x)}", "s_nop 1", f"v_permlane32_swap_b32 {v(t)}, {v(x)}",
               f"v_{op}_f32 {v(x)}, {v(t)}, {v(x)}")

    def unpack(self, lo, hi, src):
        self.e(f"v_lshlrev_b32 {v(lo)}, 16, {v(src)}", f"v_and_b32 {v(hi)}, 0xffff0000, {v(src)}")

    def round2(self, a, b, t):
        self.e(f"v_cvt_pk_bf16_f32 {v(t)}, {v(a)}, {v(b)}")
        self.unpack(a, b, t)

    def lds_flag_set(self, vfl, off, vone):
        self.e("s_mov_b64 exec, 1", f"ds_write_b32 {v(vfl)}, {v(vone)} offset:{off}", "s_mov_b64 exec, -1")

    def lds_wait(self, vfl, off, vt, target, sleep=1, body=None):
        l = self.new("w")
        d = self.new("wd")
        self.label(l)
        if body:
            body()
        self.e(f"ds_read_b32 {v(vt)}, {v(vfl)} offset:{off}", "s_waitcnt lgkmcnt(0)",
               f"v_readfirstlane_b32 s90, {v(vt)}", "s_nop 0",
               f"s_cmp_ge_u32 s90, {target}", f"s_cbranch_scc1 {d}")
        if sleep:
            self.e(f"s_sleep {sleep}")
        self.spin_check()
        self.e(f"s_branch {l}")
        self.label(d)

    def lds_wait_gt(self, vfl, off, vt, sreg, sleep=1, body=None):
        l, d = self.new("w"), self.new("wd")
        self.label(l)
        self.e(f"ds_read_b32 {v(vt)}, {v(vfl)} offset:{off}", "s_waitcnt lgkmcnt(0)",
               f"v_readfirstlane_b32 s90, {v(vt)}", "s_nop 0",
               f"s_cmp_gt_u32 s90, {s(sreg)}", f"s_cbranch_scc1 {d}")
        if body:
            body()
        if sleep:
            self.e(f"s_sleep {sleep}")
        self.spin_check()
        self.e(f"s_branch {l}")
        self.label(d)

    def sync4(self, vfl, off, vone, vt):
        self.e("s_mov_b64 exec, 1", f"ds_add_u32 {v(vfl)}, {v(vone)} offset:{off}", "s_mov_b64 exec, -1")
        self.lds_wait(vfl, off, vt, 4, sleep=0)

    def tagcheck(self, regs, acc, tmp, retry):
        first = True
        i = 0
        while i < len(regs):
            if first:
                self.e(f"v_xor_b32 {v(acc)}, {s(S_TAG)}, {v(regs[i])}")
                first = False
                i += 1
            elif i + 1 < len(regs):
                self.e(f"v_xor_b32 {v(tmp)}, {s(S_TAG)}, {v(regs[i])}",
                       f"v_xor_b32 {v(tmp+1)}, {s(S_TAG)}, {v(regs[i+1])}",
                       f"v_or3_b32 {v(acc)}, {v(acc)}, {v(tmp)}, {v(tmp+1)}")
                i += 2
            else:
                self.e(f"v_xor_b32 {v(tmp)}, {s(S_TAG)}, {v(regs[i])}",
                       f"v_or_b32 {v(acc)}, {v(acc)}, {v(tmp)}")
                i += 1
        self.e(f"v_cmp_ne_u32 vcc, 0, {v(acc)}", "s_nop 1", f"s_cbranch_vccnz {retry}")

    def poll(self, loads, tags, acc, tmp, sleep=0):
        l = self.new("poll")
        r = self.new("pollr")
        d = self.new("polld")
        self.e(f"s_branch {l}")
        self.label(r)
        if sleep:
            self.e(f"s_sleep {sleep}")
        self.spin_check()
        self.label(l)
        loads()
        self.e("s_waitcnt vmcnt(0)")
        self.tagcheck(tags, acc, tmp, r)
        self.label(d)

    def build(self):
        e = self.e
        hdr = open("cdna_kernels/" + NAME + ".s.ref").read().split("\n")
        for l in hdr:
            if l.startswith("; Override"):
                break
            self.L.append(l)
        for l in (
            "One persistent launch: 256 workgroups (one per CU) x 8 waves. Workgroup i works on head i>>3, slot j = i&7.",
            "Waves 0-3 stream the K and then the V cache of the head through an LDS ring (LDS-DMA, 32-key tiles, MFMA);",
            "all waves of a head walk one batch row at a time. Softmax is exact and two-pass: scores stay in LDS, the true",
            "max and sum of a row are exchanged between the 32 waves, then p = bf16(exp(s - max) / sum) multiplies V.",
            "Waves 4-7 hold weight slices in registers and run the small projections: silu(c) @ w_mod, LayerNorm,",
            "h @ wq before the attention; o @ wo, residual, LayerNorm, gate * up, down projection and residual after it.",
            "Workgroups hand vectors to each other through d_ws as granules {data, tag}; the tag is derived from the word",
            "at d_ws[0] found on entry and tells this launch's hand-offs from older contents. All spins are bounded."):
            self.L.append("; " + l)
        self.L.append(f"; @launch grid=(256,1,1) block=(512,1,1) lds={LDS_TOTAL}")
        self.L.append('.amdgcn_target "amdgcn-amd-amdhsa--gfx950"')
        self.L.append(".text")
        self.L.append(f".globl {KERNEL}")
        self.L.append(".p2align 8")
        self.L.append(f".type {KERNEL},@function")
        self.label(KERNEL)
        e("s_cmp_ge_u32 s2, 256", "s_cbranch_scc1 Lexit")
        e("s_load_dwordx16 s[4:19], s[0:1], 0", "s_load_dwordx8 s[20:27], s[0:1], 64", "s_load_dwordx4 s[28:31], s[0:1], 96")
        e("v_lshrrev_b32 v2, 6, v0", "v_and_b32 v1, 63, v0", "s_nop 0", f"v_readfirstlane_b32 {s(S_W)}, v2")
        e(f"s_lshr_b32 {s(S_H)}, s2, 3", f"s_and_b32 {s(S_J)}, s2, 7")
        if self.rot:
            self.c("the workgroups of one head sit at different dispatch slots of the eight dies")
            e(f"s_mul_i32 s3, {s(S_J)}, {self.rot}", f"s_add_u32 {s(S_H)}, {s(S_H)}, s3", f"s_and_b32 {s(S_H)}, {s(S_H)}, 31")
        e(f"s_mov_b32 {s(S_SPIN)}, {self.spin}", f"s_mov_b32 {s(S_SELLO)}, 0x05040100", f"s_mov_b32 {s(S_SELHI)}, 0x07060302")
        if self.diag:
            e("s_lshl_b32 s99, s2, 3", f"s_add_u32 s99, s99, {s(S_W)}")
            for k in range(16):
                e(f"s_mov_b32 {s(S_STAMP0+k)}, 0")
        e(f"s_cmp_ge_u32 {s(S_W)}, 4", "s_cbranch_scc1 Lhelper")
        self.streamer()
        self.label("Lhelper")
        self.helper()
        self.label("Labort")
        self.c("spin budget exhausted: leave a mark in d_debug and stop")
        e("s_mov_b64 exec, 1", "v_mov_b32 v2, 0", "v_mov_b32 v3, 0xdead",
          f"global_store_dword v2, v3, {sr(S_DBG,2)}", "s_waitcnt vmcnt(0)")
        self.label("Lexit")
        e("s_endpgm")
        self.L.append('.section .rodata,"a"')
        self.L.append(".p2align 6")
        self.L.append(f".amdhsa_kernel {KERNEL}")
        self.L += ["  .amdhsa_next_free_vgpr 256", "  .amdhsa_next_free_sgpr 102", "  .amdhsa_accum_offset 256",
                   "  .amdhsa_group_segment_fixed_size 0", "  .amdhsa_kernarg_size 112",
                   "  .amdhsa_user_sgpr_count 2", "  .amdhsa_user_sgpr_kernarg_segment_ptr 1",
                   "  .amdhsa_system_sgpr_workgroup_id_x 1", "  .amdhsa_float_denorm_mode_32 3",
                   ".end_amdhsa_kernel"]
        return "\n".join(self.L) + "\n"

    def take_claim(self, dst):
        e = self.e
        e("s_and_b32 s63, s64, 3", "s_lshl_b32 s63, s63, 2", "s_add_u32 s63, s63, s50", "v_mov_b32 v21, s63")
        self.lds_wait_gt(18, F_NC, 22, 64)
        e("ds_read_b32 v13, v21", "s_waitcnt lgkmcnt(0)", f"v_readfirstlane_b32 {s(dst)}, v13", "s_add_u32 s64, s64, 1")

    def issue_unit(self):
        e = self.e
        SL = self.SL
        sI, sSrc, sPos, sBase, sEnd, sStop, sHb = 52, 53, 54, 55, 56, 60, 61
        sNV, sCur = 65, 71
        lmid, lstop, ldone, ldyn, lhave, lnn = (self.new(x) for x in ("im", "is", "id", "iy", "ih", "nn"))
        e(f"s_and_b32 s62, {s(sI)}, 3", f"s_cbranch_scc1 {lmid}")
        e(f"s_lshr_b32 s62, {s(sI)}, 2", f"s_cmp_lt_u32 s62, {28+SL}", f"s_cbranch_scc0 {ldyn}")
        if self.align:
            self.c("the four waves of the workgroup start every align-th item together (adjacent tiles stay close in time)")
            lal = self.new("al")
            e(f"s_and_b32 s63, s62, {self.align-1}", f"s_cbranch_scc1 {lal}", "s_cmp_eq_u32 s62, 0", f"s_cbranch_scc1 {lal}",
              "s_add_u32 s51, s51, 4", "s_sub_u32 s66, s51, 1", "s_mov_b64 exec, 1", f"ds_add_u32 v178, v19 offset:{F_AL}", "s_mov_b64 exec, -1")
            self.lds_wait_gt(178, F_AL, 13, 66, sleep=0)
            e(f"s_lshr_b32 s62, {s(sI)}, 2")
            self.label(lal)
        self.c("static item: batch (m>>2)&3, tile 32*(m&3) + 4j + w")
        e("s_and_b32 s63, s62, 3", "s_lshl_b32 s63, s63, 5", f"s_add_u32 {s(sCur)}, s63, s48",
          "s_bfe_u32 s63, s62, 0x20002", "s_cmp_lt_u32 s62, 16",
          f"s_cselect_b32 {s(SRD_A)}, {s(S_K)}, {s(S_V)}", f"s_cselect_b32 {s(SRD_A+1)}, s92, s93", f"s_branch {lhave}")
        self.label(ldyn)
        if SL == 4:
            e(f"s_branch {lstop}")
        else:
            self.take_claim(sCur)
            e(f"s_cmp_ge_u32 {s(sCur)}, {32*(4-SL)}", f"s_cbranch_scc1 {lstop}", f"s_add_u32 {s(sCur)}, {s(sCur)}, {32*SL}",
              "s_mov_b32 s63, 3", f"s_lshr_b32 s62, {s(sI)}, 2")
        self.label(lhave)
        e("s_mul_i32 s63, s63, 50331648", f"s_add_u32 {s(sSrc)}, {s(sHb)}, s63",
          f"s_add_u32 s63, {s(sCur)}, s49", "s_and_b32 s63, s63, 127", "s_mul_i32 s63, s63, 12288", f"s_add_u32 {s(sSrc)}, {s(sSrc)}, s63")
        if SL < 4:
            self.c("from two items before the pool on, the helper follows the item starts")
            e(f"s_cmp_ge_u32 s62, {28-self.A+SL}", f"s_cbranch_scc0 {lmid}",
              f"s_and_b32 s62, {s(sNV)}, 3", "s_lshl_b32 s62, s62, 2", "s_add_u32 s62, s62, s94", "v_mov_b32 v13, s62",
              f"v_mov_b32 v21, {s(sCur)}", f"s_add_u32 {s(sNV)}, {s(sNV)}, 1", f"v_mov_b32 v22, {s(sNV)}",
              "s_mov_b64 exec, 1", "ds_write_b32 v13, v21", f"ds_write_b32 v18, v22 offset:{F_NV}", "s_mov_b64 exec, -1")
        self.label(lmid)
        if self.N2 is not None:
            lw1, lw2 = self.new("n1"), self.new("n2")
            e(f"s_cmp_lt_u32 {s(sI)}, {4*(28+SL)}", f"s_cbranch_scc1 {lw1}", f"s_waitcnt vmcnt({self.N2})", f"s_branch {lw2}")
            self.label(lw1)
            e(f"s_waitcnt vmcnt({self.N})")
            self.label(lw2)
        else:
            e(f"s_waitcnt vmcnt({self.N})")
        e(f"s_mov_b32 m0, {s(sPos)}",
          f"s_add_u32 {s(sPos)}, {s(sPos)}, 3072",
          f"buffer_load_dwordx4 v2, {sr(SRD_A,4)}, {s(sSrc)} offen nt lds",
          f"buffer_load_dwordx4 v3, {sr(SRD_A,4)}, {s(sSrc)} offen offset:1024 nt lds",
          f"buffer_load_dwordx4 v4, {sr(SRD_A,4)}, {s(sSrc)} offen offset:2048 nt lds",
          f"s_cmp_eq_u32 {s(sPos)}, {s(sEnd)}", f"s_cselect_b32 {s(sPos)}, {s(sBase)}, {s(sPos)}",
          f"s_add_u32 {s(sSrc)}, {s(sSrc)}, 3072",
          f"s_add_u32 {s(sI)}, {s(sI)}, 1", f"s_branch {ldone}")
        self.label(lstop)
        e(f"s_mov_b32 {s(sStop)}, 1")
        if SL < 4:
            e(f"s_and_b32 s62, {s(sNV)}, 3", "s_lshl_b32 s62, s62, 2", "s_add_u32 s62, s62, s94", "v_mov_b32 v13, s62",
              "v_mov_b32 v21, 0xffff", f"s_add_u32 {s(sNV)}, {s(sNV)}, 1", f"v_mov_b32 v22, {s(sNV)}",
              "s_mov_b64 exec, 1", "ds_write_b32 v13, v21", f"ds_write_b32 v18, v22 offset:{F_NV}", "s_mov_b64 exec, -1")
        self.label(ldone)

    def try_issue(self, burst=False):
        if "try" not in self.x:
            return
        e = self.e
        NT, NW = (9, 9) if burst else (self.NT, self.N)
        sI, sSrc, sPos, sBase, sEnd = 52, 53, 54, 55, 56
        l = self.new("ti")
        e("s_getreg_b32 s63, hwreg(HW_REG_IB_STS, 0, 4)", f"s_cmp_le_u32 s63, {NT}", f"s_cbranch_scc0 {l}",
          f"s_and_b32 s63, {s(sI)}, 3", f"s_cbranch_scc0 {l}",
          f"s_waitcnt vmcnt({NW})", f"s_mov_b32 m0, {s(sPos)}", f"s_add_u32 {s(sPos)}, {s(sPos)}, 3072",
          f"buffer_load_dwordx4 v2, {sr(SRD_A,4)}, {s(sSrc)} offen nt lds",
          f"buffer_load_dwordx4 v3, {sr(SRD_A,4)}, {s(sSrc)} offen offset:1024 nt lds",
          f"buffer_load_dwordx4 v4, {sr(SRD_A,4)}, {s(sSrc)} offen offset:2048 nt lds",
          f"s_cmp_eq_u32 {s(sPos)}, {s(sEnd)}", f"s_cselect_b32 {s(sPos)}, {s(sBase)}, {s(sPos)}",
          f"s_add_u32 {s(sSrc)}, {s(sSrc)}, 3072", f"s_add_u32 {s(sI)}, {s(sI)}, 1")
        self.label(l)

    def try2(self):
        if "try2" in self.x:
            self.try_issue()

    def streamer(self):
        e = self.e
        D, SL = self.D, self.SL
        sI, sSrc, sPos, sBase, sEnd, sN, sTile, sTgt, sStop, sHb = 52, 53, 54, 55, 56, 57, 58, 59, 60, 61
        sNV, sPN, sCur = 65, 69, 71
        QF, KF, D0, ACC, PF = 24, 48, 96, 104, 152
        X, T = 156, 164
        vSo, vQa, vOw, vOr, vFl = 180, 181, 182, 183, 178
        Q = 184
        M, Lr, E = 192, 193, 196
        self.c("================= streamer wave =================")
        self.c("DMA source offsets (xor swizzle of 16-byte chunks inside each row)")
        for i in range(3):
            e(f"v_add_u32 v13, {64*i}, v1", "v_mul_u32_u24 v14, 2731, v13", "v_lshrrev_b32 v14, 16, v14",
              "v_mul_u32_u24 v15, 24, v14", "v_sub_u32 v15, v13, v15", "v_and_b32 v16, 7, v14",
              "v_xor_b32 v15, v15, v16", "v_mul_u32_u24 v14, 384, v14", f"v_lshl_add_u32 {v(2+i)}, v15, 4, v14")
            if i:
                e(f"v_subrev_u32 {v(2+i)}, {1024*i}, {v(2+i)}")
        self.c("K fragment addresses")
        e("v_and_b32 v13, 15, v1", "v_lshrrev_b32 v14, 4, v1", "v_and_b32 v15, 7, v13", "v_mul_u32_u24 v13, 384, v13")
        for x in range(2):
            e(f"v_add_u32 v16, {4*x}, v14", "v_xor_b32 v16, v16, v15", f"v_lshl_add_u32 {v(5+x)}, v16, 4, v13")
        self.c("V fragment addresses")
        e("v_lshrrev_b32 v13, 2, v1", "v_and_b32 v15, 7, v13", "v_mul_u32_u24 v13, 384, v13",
          "v_and_b32 v16, 1, v1", "v_lshl_add_u32 v13, v16, 3, v13", "v_bfe_u32 v16, v1, 1, 1")
        for u in range(4):
            e(f"v_add_u32 v17, {2*u}, v16", "v_xor_b32 v17, v17, v15", f"v_lshl_add_u32 {v(7+u)}, v17, 4, v13")
        self.c("score / probability / q / partial output addresses, flags")
        e("v_lshlrev_b32 v13, 4, v14",
          f"s_lshl_b32 s62, {s(S_W)}, 8", f"s_add_u32 s62, s62, {PSLOT}", "v_add_u32 v12, s62, v13",
          f"s_lshl_b32 s62, {s(S_W)}, 10", f"s_add_u32 s62, s62, {SC}", f"v_add_u32 {v(vSo)}, s62, v13",
          f"v_add_u32 {v(vQa)}, {QL}, v13",
          f"s_mul_i32 s62, {s(S_W)}, 768", f"s_add_u32 s62, s62, {OSL}",
          "v_and_b32 v15, 15, v1", "v_lshlrev_b32 v15, 2, v15", f"v_add_u32 {v(vOw)}, s62, v15",
          "v_mul_u32_u24 v15, 12, v1", f"v_add_u32 {v(vOr)}, {OSL}, v15",
          f"s_lshl_b32 s63, {s(S_W)}, 2", f"s_add_u32 s63, s63, {FLAGS}",
          "v_mov_b32 v18, s63", "v_mov_b32 v19, 1", f"v_mov_b32 {v(vFl)}, {FLAGS}")
        self.c("the kernel arguments have arrived by now")
        e(f"s_mul_i32 {s(sHb)}, {s(S_H)}, 1572864",
          f"s_lshl_b32 s94, {s(S_W)}, 4", f"s_add_u32 s50, s94, {CLQ}", f"s_add_u32 s94, s94, {IDQ}",
          f"s_lshl_b32 s48, {s(S_J)}, 2", f"s_add_u32 s48, s48, {s(S_W)}",
          f"s_mul_i32 s49, {s(S_H)}, {self.stag[1]}", "s_mov_b32 s64, 0", "s_mov_b32 s51, 0")
        e(f"s_mov_b32 {s(sSrc)}, 0", f"s_mov_b32 {s(sI)}, 0", f"s_mul_i32 {s(sBase)}, {s(S_W)}, {RING_W}",
          f"s_mov_b32 {s(sPos)}, {s(sBase)}", f"s_add_u32 {s(sEnd)}, {s(sBase)}, {RING_W}",
          f"s_mov_b32 {s(sTile)}, {s(sBase)}", f"s_mov_b32 {s(sStop)}, 0",
          f"s_mov_b32 {s(sNV)}, 0", f"s_mov_b32 {s(sPN)}, 0", f"s_mov_b32 {s(sN)}, 0", f"s_mov_b32 {s(sCur)}, 0")
        e("s_waitcnt lgkmcnt(0)")
        self.srd(SRD_WS, S_WS, WS_SIZE)
        self.tag_load()
        e(f"s_and_b32 s92, {s(S_K+1)}, 0xffff", f"s_and_b32 s93, {s(S_V+1)}, 0xffff")
        self.srd(SRD_A, S_K, 201326592)
        e("s_barrier")
        self.c("---- fill the ring while the helpers fetch q")
        l0, l0d = self.new("f0"), self.new("f0d")
        self.label(l0)
        e(f"s_cmp_lt_u32 {s(sI)}, {4+D}", f"s_cbranch_scc0 {l0d}")
        self.issue_unit()
        e(f"s_branch {l0}")
        self.label(l0d)
        if "preread" in self.x:
            self.c("tile 0 has landed: its fragments move to registers, which frees its ring slot for a fourth tile")
            e(f"v_add_u32 v14, {s(sTile)}, v5", f"v_add_u32 v15, {s(sTile)}, v6")
            for ks in range(6):
                for blk in range(2):
                    e(f"ds_read_b128 {vr(KF+8*ks+4*blk,4)}, {v(14+(ks&1))} offset:{blk*6144+(ks>>1)*128}")
        for i in range(48):
            e(f"v_mov_b32 {v(ACC+i)}, 0")
        lf, lfd, lfn = self.new("f"), self.new("fd"), self.new("fn")
        self.label(lf)
        e(f"ds_read_b64 v[14:15], {v(vFl)} offset:{F_QC}", f"ds_read_b32 v16, {v(vFl)} offset:{F_JD}", "s_waitcnt lgkmcnt(0)",
          "v_readfirstlane_b32 s90, v14", "v_readfirstlane_b32 s62, v15", "v_readfirstlane_b32 s63, v16", "s_nop 0",
          "s_lshl_b32 s63, s63, 2", "s_and_b32 s63, s63, s90")
        if "fullring" in self.x:
            e(f"s_cmp_eq_u32 {s(sI)}, 12", "s_cselect_b32 s63, s63, 0")
        e("s_cmp_eq_u32 s63, 4", f"s_cbranch_scc1 {lfd}",
          "s_cmp_eq_u32 s62, 0", f"s_cbranch_scc0 {lfn}",
          f"s_cmp_lt_u32 {s(sI)}, {16 if 'preread' in self.x else 12}", f"s_cbranch_scc0 {lfn}")
        self.issue_unit()
        e(f"s_branch {lf}")
        self.label(lfn)
        e("s_sleep 1")
        self.spin_check()
        e(f"s_branch {lf}")
        self.label(lfd)
        self.tag_ready()
        self.stamp(2)

        def runahead():
            l = self.new("ra")
            e(f"s_lshl_b32 s62, {s(sN)}, 2", "s_add_u32 s62, s62, 12", f"s_cmp_lt_u32 {s(sI)}, s62", f"s_cbranch_scc0 {l}",
              f"s_cmp_eq_u32 {s(sStop)}, 0", f"s_cbranch_scc0 {l}")
            self.issue_unit()
            self.label(l)

        def finalize():
            self.c("last K tile of this batch: hand (max, sum) to the helper")
            e(f"v_mov_b32 {v(T)}, {v(M)}")
            for swp in ("v_permlane16_swap_b32", "v_permlane32_swap_b32"):
                e(f"v_mov_b32 {v(T+1)}, {v(T)}", "s_nop 1", f"{swp} {v(T+1)}, {v(T)}", f"v_max_f32 {v(T)}, {v(T+1)}, {v(T)}")
            e(f"v_sub_f32 {v(T+1)}, {v(M)}, {v(T)}", f"v_mul_f32 {v(T+1)}, {hex(LOG2E)}, {v(T+1)}",
              f"v_exp_f32 {v(T+1)}, {v(T+1)}", "s_nop 0", f"v_mul_f32 {v(Lr)}, {v(Lr)}, {v(T+1)}")
            for swp in ("v_permlane16_swap_b32", "v_permlane32_swap_b32"):
                e(f"v_mov_b32 {v(T+1)}, {v(Lr)}", "s_nop 1", f"{swp} {v(T+1)}, {v(Lr)}", f"v_add_f32 {v(Lr)}, {v(T+1)}, {v(Lr)}")
            e(f"v_mov_b32 {v(E)}, {v(T)}", f"v_mov_b32 {v(E+1)}, {v(Lr)}",
              f"s_lshr_b32 s63, {s(sN)}, 2", f"s_lshl_b32 s62, {s(S_W)}, 2", "s_add_u32 s62, s62, s63", "s_lshl_b32 s62, s62, 3",
              f"s_add_u32 s62, s62, {MLH}", "v_mov_b32 v13, s62", "s_add_u32 s63, s63, 1", "v_mov_b32 v14, s63",
              "s_mov_b64 exec, 1", f"ds_write_b64 v13, {vr(E,2)}", f"ds_write_b32 v18, v14 offset:{F_KD}", "s_mov_b64 exec, -1")

        def flush_acc(last=False):
            self.c("partial output of this batch -> LDS; the last of the four waves sums and publishes")
            e("s_sub_u32 s66, s70, 1")
            lsk = self.new("fs")
            e("s_cmp_eq_u32 s70, 0", f"s_cbranch_scc1 {lsk}")
            self.lds_wait_gt(vFl, F_OF, 13, 66, sleep=1)
            self.label(lsk)
            e("s_lshl_b32 s62, s70, 2", f"s_add_u32 s62, s62, {FLAGS+F_OC}", "v_mov_b32 v14, s62", "s_nop 4", "s_mov_b64 exec, 0xffff")
            for t in range(12):
                e(f"ds_write_b32 {v(vOw)}, {v(ACC+4*t)} offset:{64*t}")
            e("s_mov_b64 exec, 1", "ds_add_rtn_u32 v15, v14, v19", "s_mov_b64 exec, -1")
            if not last:
                self.try_issue()
                for i in range(48):
                    e(f"v_mov_b32 {v(ACC+i)}, 0")
                    if i in (15, 31, 47):
                        self.try2()
            lno = self.new("fn")
            e("s_waitcnt lgkmcnt(0)", "v_readfirstlane_b32 s62, v15", "s_nop 0", "s_cmp_eq_u32 s62, 3", f"s_cbranch_scc0 {lno}")
            self.try2()
            for ww in range(4):
                for k in range(3):
                    e(f"ds_read_b32 {v(KF+4*ww+k)}, {v(vOr)} offset:{768*ww+4*k}")
            e(f"s_lshl_b32 s63, {s(S_H)}, 2", "s_add_u32 s63, s63, s70", "s_lshl_b32 s63, s63, 3", f"s_add_u32 s63, s63, {s(S_J)}",
              "s_lshl_b32 s63, s63, 10", f"s_add_u32 s63, s63, {OBUF}", "v_lshlrev_b32 v15, 4, v1", f"v_mov_b32 {v(E+3)}, {s(S_TAG)}",
              "s_waitcnt lgkmcnt(6)")
            for k in range(3):
                e(f"v_add_f32 {v(E+k)}, {v(KF+k)}, {v(KF+4+k)}")
            e("s_waitcnt lgkmcnt(0)")
            for k in range(3):
                e(f"v_add_f32 {v(KF+8+k)}, {v(KF+8+k)}, {v(KF+12+k)}")
            for k in range(3):
                e(f"v_add_f32 {v(E+k)}, {v(E+k)}, {v(KF+8+k)}")
            e(f"buffer_store_dwordx4 {vr(E,4)}, v15, {sr(SRD_WS,4)}, s63 offen sc1",
              "s_mov_b64 exec, 1", f"ds_add_u32 {v(vFl)}, v19 offset:{F_OF}", "s_mov_b64 exec, -1")
            self.label(lno)

        self.c("---- item loop")
        lloop, liss, lgo, lhave, lv, lnext, lfin = (self.new(x) for x in ("loop", "iss", "go", "have", "vit", "next", "fin"))
        self.label(lloop)
        e(f"s_lshl_b32 {s(sTgt)}, {s(sN)}, 2", f"s_add_u32 {s(sTgt)}, {s(sTgt)}, {4+D}")
        if self.N2 is not None:
            D2 = (self.N2 + 5)//3
            assert D2 <= 8
            e(f"s_cmp_ge_u32 {s(sN)}, {27+SL}", f"s_cselect_b32 s62, {D2-D}, 0", f"s_add_u32 {s(sTgt)}, {s(sTgt)}, s62")
        if "topup" in self.x:
            self.c("free ring slots are refilled right away while few loads are in flight (static items only)")
            for rep in range(2):
                ltu = self.new("tu")
                e(f"s_lshl_b32 s62, {s(sN)}, 2", "s_add_u32 s62, s62, 12", f"s_min_u32 s62, s62, {4*(27+SL)}",
                  f"s_cmp_lt_u32 {s(sI)}, s62", f"s_cbranch_scc0 {ltu}",
                  "s_getreg_b32 s63, hwreg(HW_REG_IB_STS, 0, 4)", f"s_cmp_le_u32 s63, {self.N}", f"s_cbranch_scc0 {ltu}")
                self.issue_unit()
                self.label(ltu)
        self.label(liss)
        e(f"s_cmp_lt_u32 {s(sI)}, {s(sTgt)}", f"s_cbranch_scc0 {lhave}",
          f"s_cmp_eq_u32 {s(sStop)}, 0", f"s_cbranch_scc0 {lgo}")
        self.issue_unit()
        e(f"s_branch {liss}")
        self.label(lgo)
        e(f"s_lshl_b32 s62, {s(sN)}, 2", f"s_cmp_eq_u32 s62, {s(sI)}", f"s_cbranch_scc1 {lfin}", "s_waitcnt vmcnt(0)")
        self.label(lhave)
        if self.diag:
            for kk in range(8):
                ls = self.new("ps")
                itm = 4*kk if "vitems" not in self.x and "kitems" not in self.x else (self.i0 + kk)
                e(f"s_cmp_eq_u32 {s(sN)}, {itm}", f"s_cbranch_scc0 {ls}")
                self.stamp(8+kk)
                self.label(ls)
        e(f"s_cmp_lt_u32 {s(sN)}, 16", f"s_cbranch_scc0 {lv}")
        self.c("K tile: 32 scores")
        lq = self.new("kq")
        e(f"v_add_u32 v14, {s(sTile)}, v5", f"v_add_u32 v15, {s(sTile)}, v6",
          f"s_and_b32 s62, {s(sN)}, 3", f"s_cbranch_scc1 {lq}")
        e(f"s_lshr_b32 s62, {s(sN)}, 2", "s_mul_i32 s62, s62, 384", f"v_add_u32 v13, s62, {v(vQa)}")
        for ks in range(6):
            e(f"ds_read_b128 {vr(QF+4*ks,4)}, v13 offset:{64*ks}")
        e(f"v_mov_b32 {v(M)}, {hex(NINF)}", f"v_mov_b32 {v(Lr)}, 0", "s_waitcnt lgkmcnt(0)")
        self.label(lq)
        lpr = self.new("pr0")
        if "preread" in self.x:
            e(f"s_cmp_eq_u32 {s(sN)}, 0", f"s_cbranch_scc1 {lpr}")
        for ks in range(6):
            for blk in range(2):
                e(f"ds_read_b128 {vr(KF+8*ks+4*blk,4)}, {v(14+(ks&1))} offset:{blk*6144+(ks>>1)*128}")
        self.label(lpr)
        for ks in range(6):
            e(f"s_waitcnt lgkmcnt({10-2*ks})")
            for blk in range(2):
                c = "0" if ks == 0 else vr(D0+4*blk, 4)
                e(f"v_mfma_f32_16x16x32_bf16 {vr(D0+4*blk,4)}, {vr(KF+8*ks+4*blk,4)}, {vr(QF+4*ks,4)}, {c}")
            if ks == 2:
                self.try2()
        self.try_issue()
        e(f"s_lshl_b32 s62, {s(sN)}, 6", f"v_add_u32 v13, s62, {v(vSo)}", "s_nop 6")
        for i in range(0, 8, 2):
            e(f"v_cvt_pk_bf16_f32 {v(T)}, {v(D0+i)}, {v(D0+i+1)}")
            self.unpack(X+i, X+i+1, T)
            e(f"v_mul_f32 {v(X+i)}, {hex(SCALE)}, {v(X+i)}", f"v_mul_f32 {v(X+i+1)}, {hex(SCALE)}, {v(X+i+1)}",
              f"v_cvt_pk_bf16_f32 {v(Q+(i>>1))}, {v(X+i)}, {v(X+i+1)}")
            self.unpack(X+i, X+i+1, Q+(i>>1))
            if i == 2:
                self.try2()
        e("s_mov_b32 exec_lo, 0x00010001", "s_mov_b32 exec_hi, 0x00010001",
          f"ds_write_b128 v13, {vr(Q,4)}", "s_mov_b64 exec, -1")
        self.try_issue()
        e(f"v_max3_f32 {v(T)}, {v(X)}, {v(X+1)}, {v(X+2)}", f"v_max3_f32 {v(T)}, {v(T)}, {v(X+3)}, {v(X+4)}",
          f"v_max3_f32 {v(T)}, {v(T)}, {v(X+5)}, {v(X+6)}", f"v_max3_f32 {v(T)}, {v(T)}, {v(X+7)}, {v(M)}",
          f"v_sub_f32 {v(T+1)}, {v(M)}, {v(T)}", f"v_mul_f32 {v(T+1)}, {hex(LOG2E)}, {v(T+1)}", f"v_mov_b32 {v(M)}, {v(T)}")
        for i in range(8):
            e(f"v_sub_f32 {v(E+i)}, {v(X+i)}, {v(M)}", f"v_mul_f32 {v(E+i)}, {hex(LOG2E)}, {v(E+i)}")
        self.try2()
        e(f"v_exp_f32 {v(T+1)}, {v(T+1)}")
        for i in range(8):
            e(f"v_exp_f32 {v(E+i)}, {v(E+i)}")
        self.try_issue()
        e(f"v_mul_f32 {v(Lr)}, {v(Lr)}, {v(T+1)}")
        for i in range(0, 8, 2):
            e(f"v_add_f32 {v(E+i)}, {v(E+i)}, {v(E+i+1)}")
        e(f"v_add_f32 {v(E)}, {v(E)}, {v(E+2)}", f"v_add_f32 {v(E+4)}, {v(E+4)}, {v(E+6)}",
          f"v_add_f32 {v(E)}, {v(E)}, {v(E+4)}", f"v_add_f32 {v(Lr)}, {v(Lr)}, {v(E)}")
        e(f"s_and_b32 s62, {s(sN)}, 3", "s_cmp_eq_u32 s62, 3", f"s_cbranch_scc0 {lnext}")
        self.try2()
        finalize()
        self.try2()
        if self.diag:
            ls = self.new("st")
            e(f"s_cmp_eq_u32 {s(sN)}, 15", f"s_cbranch_scc0 {ls}")
            self.stamp(3)
            self.label(ls)
        e(f"s_branch {lnext}")
        self.label(lv)
        lpool, lp_ok, lst = self.new("vp"), self.new("vo"), self.new("vs")
        e(f"s_sub_u32 s66, {s(sN)}, 16", f"s_cmp_lt_u32 s66, {12+SL}", f"s_cbranch_scc0 {lpool}")
        e("s_and_b32 s62, s66, 3", f"s_cbranch_scc1 {lst}")
        e("s_lshr_b32 s67, s66, 2")
        self.c("first tile of a batch: its probabilities must be ready; keep the ring filling meanwhile")
        self.lds_wait_gt(18, F_PB, 13, 67, sleep=1, body=runahead)
        if self.diag:
            ls = self.new("st")
            e(f"s_cmp_eq_u32 {s(sN)}, 16", f"s_cbranch_scc0 {ls}")
            self.stamp(5)
            self.label(ls)
        self.label(lst)
        e(f"s_sub_u32 s62, {s(sN)}, 16", "s_lshl_b32 s62, s62, 6", f"v_add_u32 v13, s62, {v(vSo)}", f"s_branch {lp_ok}")
        self.label(lpool)
        self.lds_wait_gt(18, F_NP, 13, sPN, sleep=1, body=runahead)
        e(f"s_and_b32 s62, {s(sPN)}, 3", "s_lshl_b32 s62, s62, 6", "v_add_u32 v13, s62, v12", f"s_add_u32 {s(sPN)}, {s(sPN)}, 1")
        self.label(lp_ok)
        for u in range(4):
            e(f"v_add_u32 {v(14+u)}, {s(sTile)}, {v(7+u)}")
        e(f"ds_read_b128 {vr(PF,4)}, v13")
        def vread(t):
            a, u = t >> 2, t & 3
            e(f"ds_read_b64_tr_b16 {vr(KF+4*t,2)}, {v(14+u)} offset:{a*128}",
              f"ds_read_b64_tr_b16 {vr(KF+4*t+2,2)}, {v(14+u)} offset:{a*128+6144}")
        def vmf(t):
            e(f"v_mfma_f32_16x16x32_bf16 {vr(ACC+4*t,4)}, {vr(PF,4)}, {vr(KF+4*t,4)}, {vr(ACC+4*t,4)}")
        for t in range(6):
            vread(t)
        e("s_waitcnt lgkmcnt(6)")
        for t in range(3): vmf(t)
        self.try_issue()
        for t in range(6, 9): vread(t)
        e("s_waitcnt lgkmcnt(6)")
        for t in range(3, 6): vmf(t)
        self.try2()
        for t in range(9, 12): vread(t)
        e("s_waitcnt lgkmcnt(6)")
        for t in range(6, 9): vmf(t)
        self.try2()
        e("s_waitcnt lgkmcnt(0)")
        for t in range(9, 12): vmf(t)
        self.try_issue()
        self.c("end of batch 0..2: hand the partial output over")
        e(f"s_sub_u32 s62, {s(sN)}, 16", "s_cmp_lt_u32 s62, 12", f"s_cbranch_scc0 {lnext}",
          "s_and_b32 s63, s62, 3", "s_cmp_eq_u32 s63, 3", f"s_cbranch_scc0 {lnext}", "s_lshr_b32 s70, s62, 2")
        if "burst" in self.x:
            self.try_issue(burst=True)
            self.try_issue(burst=True)
        flush_acc()
        self.label(lnext)
        e(f"s_add_u32 {s(sTile)}, {s(sTile)}, 12288", f"s_cmp_eq_u32 {s(sTile)}, {s(sEnd)}",
          f"s_cselect_b32 {s(sTile)}, {s(sBase)}, {s(sTile)}",
          f"s_add_u32 {s(sN)}, {s(sN)}, 1", f"s_branch {lloop}")
        self.label(lfin)
        self.stamp(6)
        if self.diag:
            e(f"s_mov_b32 {s(S_STAMP0+4)}, {s(sN)}", f"s_add_u32 {s(S_STAMP0+4)}, {s(S_STAMP0+4)}, 1000")
        e("s_mov_b32 s70, 3")
        flush_acc(last=True)
        self.lds_flag_set(18, F_VE, 19)
        self.stamp(7)
        self.stamps_store()
        e("s_endpgm")

    def gemv64_loads(self, W):
        e = self.e
        e("s_mov_b32 s61, 0")
        for ks in range(5):
            for ee in range(8):
                r = W + 16*(ks+1) + 2*ee
                e(f"buffer_load_dwordx2 {vr(r,2)}, v4, {sr(SRD_A,4)}, s61 offen nt")
                if not (ks == 4 and ee == 7):
                    if ee < 7:
                        e("s_add_u32 s61, s61, s60")
                    else:
                        e("s_mul_i32 s62, s60, 25", "s_add_u32 s61, s61, s62")

    def gemv64_perm(self, W):
        e = self.e
        for ks in range(5):
            raw, fr = W + 16*(ks+1), W + 16*ks
            for f in range(4):
                d, hi = f >> 1, f & 1
                for q in range(4):
                    e(f"v_perm_b32 {v(fr+4*f+q)}, {v(raw+2*(2*q+1)+d)}, {v(raw+2*(2*q)+d)}, {s(S_SELHI if hi else S_SELLO)}")

    def gemv64_finish(self, W, AF, DD, vfl, vone, replicas=False):
        e = self.e
        for ks in range(5):
            e(f"ds_read_b128 {vr(AF+4*ks,4)}, v5 offset:{64*ks}")
        for ks in range(5):
            e(f"s_waitcnt lgkmcnt({4-ks})")
            for f in range(4):
                c = "0" if ks == 0 else vr(DD+4*f, 4)
                e(f"v_mfma_f32_16x16x32_bf16 {vr(DD+4*f,4)}, {vr(AF+4*ks,4)}, {vr(W+16*ks+4*f,4)}, {c}")
        e("s_nop 7", "s_nop 1")
        for f in range(4):
            e(f"v_mov_b32 {v(AF+f)}, {v(DD+4*f)}")
        e(f"s_lshl_b32 s62, {s(S_W)}, 10", f"s_add_u32 s62, s62, {SC}", "v_lshlrev_b32 v6, 4, v1",
          "v_add_u32 v7, s62, v6", f"ds_write_b128 v7, {vr(AF,4)}")
        self.sync4(vfl, F_SYNCR, vone, 8)
        l = self.new("gf")
        e(f"s_cmp_eq_u32 {s(S_W)}, 0", f"s_cbranch_scc0 {l}")
        e(f"v_add_u32 v7, {SC}, v6")
        for ww in range(4):
            e(f"ds_read_b128 {vr(AF+4*ww,4)}, v7 offset:{1024*ww}")
        e("s_waitcnt lgkmcnt(0)")
        for f in range(4):
            e(f"v_add_f32 {v(AF+f)}, {v(AF+f)}, {v(AF+4+f)}", f"v_add_f32 {v(AF+8+f)}, {v(AF+8+f)}, {v(AF+12+f)}")
        for f in range(4):
            e(f"v_add_f32 {v(AF+f)}, {v(AF+f)}, {v(AF+8+f)}")
        e(f"v_cvt_pk_bf16_f32 {v(AF+4)}, {v(AF)}, {v(AF+1)}", f"v_cvt_pk_bf16_f32 {v(AF+6)}, {v(AF+2)}, {v(AF+3)}",
          f"v_mov_b32 {v(AF+5)}, {s(S_TAG)}", f"v_mov_b32 {v(AF+7)}, {s(S_TAG)}",
          "v_lshrrev_b32 v6, 4, v1", "v_mul_lo_u32 v6, v6, s65", "v_and_b32 v7, 15, v1", "v_lshl_add_u32 v6, v7, 4, v6",
          )
        if replicas and self.RM > 1:
            self.c("shift / scale of the first layer norm go to eight copies: many workgroups poll them")
            lr_ = self.new("rp")
            e("s_cmp_lt_u32 s68, 20", f"s_cbranch_scc0 {lr_}",
              "v_lshrrev_b32 v8, 4, v1", "v_mul_u32_u24 v8, 5120, v8", "v_lshl_add_u32 v8, v7, 4, v8",
              "s_lshl_b32 s62, s68, 8", f"s_add_u32 s62, s62, {MODR}")
            for rp in range(self.RM):
                e(f"buffer_store_dwordx4 {vr(AF+4,4)}, v8, {sr(SRD_WS,4)}, s62 offen sc1")
                if rp < self.RM-1:
                    e("s_add_u32 s62, s62, 20480")
            self.label(lr_)
        e(f"buffer_store_dwordx4 {vr(AF+4,4)}, v6, {sr(SRD_WS,4)}, s64 offen sc1")
        self.label(l)

    def ln_stats(self, PX, XF, T):
        e = self.e
        for i in range(5):
            self.unpack(XF+2*i, XF+2*i+1, PX+i)
        e(f"v_add_f32 {v(T)}, {v(XF)}, {v(XF+1)}")
        for i in range(2, 10):
            e(f"v_add_f32 {v(T)}, {v(T)}, {v(XF+i)}")
        self.allreduce("add", T, T+1)
        e(f"v_mul_f32 {v(T)}, {hex(INV640)}, {v(T)}")
        e(f"v_sub_f32 {v(T+2)}, {v(XF)}, {v(T)}", f"v_mul_f32 {v(T+3)}, {v(T+2)}, {v(T+2)}")
        for i in range(1, 10):
            e(f"v_sub_f32 {v(T+2)}, {v(XF+i)}, {v(T)}", f"v_fmac_f32 {v(T+3)}, {v(T+2)}, {v(T+2)}")
        self.allreduce("add", T+3, T+1)
        e(f"v_mul_f32 {v(T+3)}, {hex(INV640)}, {v(T+3)}")
        self.round2(T, T+3, T+1)
        e(f"v_add_f32 {v(T+3)}, {hex(EPS)}, {v(T+3)}")
        e(f"v_cvt_pk_bf16_f32 {v(T+1)}, {v(T+3)}, {v(T+3)}", f"v_lshlrev_b32 {v(T+3)}, 16, {v(T+1)}",
          f"v_sqrt_f32 {v(T+3)}, {v(T+3)}", "s_nop 0",
          f"v_cvt_pk_bf16_f32 {v(T+1)}, {v(T+3)}, {v(T+3)}", f"v_lshlrev_b32 {v(T+3)}, 16, {v(T+1)}",
          f"v_rcp_f32 {v(T+3)}, {v(T+3)}", "s_nop 0")
        for i in range(0, 10, 2):
            e(f"v_sub_f32 {v(XF+i)}, {v(XF+i)}, {v(T)}", f"v_sub_f32 {v(XF+i+1)}, {v(XF+i+1)}, {v(T)}")
            self.round2(XF+i, XF+i+1, T+1)
            e(f"v_mul_f32 {v(XF+i)}, {v(XF+i)}, {v(T+3)}", f"v_mul_f32 {v(XF+i+1)}, {v(XF+i+1)}, {v(T+3)}")
            self.round2(XF+i, XF+i+1, T+1)

    def ln_fast(self, PX, XF, TD, T):
        e = self.e
        if PX is not None:
            for i in range(5):
                self.unpack(XF+2*i, XF+2*i+1, PX[i])
        e("s_nop 0", f"v_readfirstlane_b32 s90, {v(XF)}", "s_nop 0", "s_mov_b32 s91, s90")
        for i in range(5):
            e(f"v_pk_add_f32 {vr(TD+2*i,2)}, {vr(XF+2*i,2)}, s[90:91] neg_lo:[0,1] neg_hi:[0,1]")
        A, B = T, T+2
        e(f"v_pk_mul_f32 {vr(B,2)}, {vr(TD,2)}, {vr(TD,2)}", f"v_pk_add_f32 {vr(A,2)}, {vr(TD,2)}, {vr(TD+2,2)}",
          f"v_pk_fma_f32 {vr(B,2)}, {vr(TD+2,2)}, {vr(TD+2,2)}, {vr(B,2)}")
        for i in range(2, 5):
            e(f"v_pk_add_f32 {vr(A,2)}, {vr(A,2)}, {vr(TD+2*i,2)}",
              f"v_pk_fma_f32 {vr(B,2)}, {vr(TD+2*i,2)}, {vr(TD+2*i,2)}, {vr(B,2)}")
        e(f"v_add_f32 {v(A)}, {v(A)}, {v(A+1)}", f"v_add_f32 {v(B)}, {v(B)}, {v(B+1)}")
        for r in (8, 4, 2, 1):
            e("s_nop 0", f"v_add_f32_dpp {v(A)}, {v(A)}, {v(A)} row_ror:{r} row_mask:0xf bank_mask:0xf",
              f"v_add_f32_dpp {v(B)}, {v(B)}, {v(B)} row_ror:{r} row_mask:0xf bank_mask:0xf")
        for swp in ("v_permlane16_swap_b32", "v_permlane32_swap_b32"):
            e(f"v_mov_b32 {v(A+1)}, {v(A)}", f"v_mov_b32 {v(B+1)}, {v(B)}", "s_nop 1",
              f"{swp} {v(A+1)}, {v(A)}", f"{swp} {v(B+1)}, {v(B)}",
              f"v_add_f32 {v(A)}, {v(A+1)}, {v(A)}", f"v_add_f32 {v(B)}, {v(B+1)}, {v(B)}")
        e(f"v_mul_f32 {v(A)}, {hex(INV640)}, {v(A)}", f"v_mul_f32 {v(B)}, {hex(INV640)}, {v(B)}",
          f"v_fma_f32 {v(B)}, -{v(A)}, {v(A)}, {v(B)}", f"v_add_f32 {v(A)}, s90, {v(A)}", f"v_max_f32 {v(B)}, 0, {v(B)}",
          f"v_cvt_pk_bf16_f32 {v(A+1)}, {v(A)}, {v(B)}")
        self.unpack(A, B, A+1)
        e(f"v_add_f32 {v(B)}, {hex(EPS)}, {v(B)}",
          f"v_cvt_pk_bf16_f32 {v(B+1)}, {v(B)}, {v(B)}", f"v_lshlrev_b32 {v(B)}, 16, {v(B+1)}",
          f"v_sqrt_f32 {v(B)}, {v(B)}")
        for i in range(5):
            e(f"v_pk_add_f32 {vr(XF+2*i,2)}, {vr(XF+2*i,2)}, {vr(A,2)} op_sel_hi:[1,0] neg_lo:[0,1] neg_hi:[0,1]")
        e(f"v_cvt_pk_bf16_f32 {v(B+1)}, {v(B)}, {v(B)}", f"v_lshlrev_b32 {v(B)}, 16, {v(B+1)}", f"v_rcp_f32 {v(B)}, {v(B)}")
        for i in range(5):
            e(f"v_cvt_pk_bf16_f32 {v(TD+i)}, {v(XF+2*i)}, {v(XF+2*i+1)}")
        for i in range(5):
            self.unpack(XF+2*i, XF+2*i+1, TD+i)
        for i in range(5):
            e(f"v_pk_mul_f32 {vr(XF+2*i,2)}, {vr(XF+2*i,2)}, {vr(B,2)} op_sel_hi:[1,0]")
        for i in range(5):
            e(f"v_cvt_pk_bf16_f32 {v(TD+i)}, {v(XF+2*i)}, {v(XF+2*i+1)}")
        for i in range(5):
            self.unpack(XF+2*i, XF+2*i+1, TD+i)

    def modulate_fast(self, XF, C1, SH, TD, vaddr):
        e = self.e
        for i in range(5):
            e(f"v_pk_mul_f32 {vr(XF+2*i,2)}, {vr(XF+2*i,2)}, {vr(C1+2*i,2)}")
        for i in range(5):
            e(f"v_cvt_pk_bf16_f32 {v(TD+i)}, {v(XF+2*i)}, {v(XF+2*i+1)}")
        for i in range(5):
            self.unpack(XF+2*i, XF+2*i+1, TD+i)
        for i in range(5):
            e(f"v_pk_add_f32 {vr(XF+2*i,2)}, {vr(XF+2*i,2)}, {vr(SH+2*i,2)}")
        for i in range(5):
            e(f"v_cvt_pk_bf16_f32 {v(TD+i)}, {v(XF+2*i)}, {v(XF+2*i+1)}", f"ds_write_b32 {v(vaddr)}, {v(TD+i)} offset:{256*i}")

    def bad_lanes(self, tags, sdst, t):
        e = self.e
        assert len(tags) in (2, 4)
        for k, r in enumerate(tags):
            e(f"v_xor_b32 {v(t+k)}, {s(S_TAG)}, {v(r)}")
        if len(tags) == 4:
            e(f"v_or3_b32 {v(t)}, {v(t)}, {v(t+1)}, {v(t+2)}", f"v_or_b32 {v(t)}, {v(t)}, {v(t+3)}")
        else:
            e(f"v_or_b32 {v(t)}, {v(t)}, {v(t+1)}")
        e(f"v_cmp_ne_u32 {sr(sdst,2)}, 0, {v(t)}")

    def masked_gather(self, groups, t, init=None, care=None, sleep=0):
        e = self.e
        l, d = self.new("mg"), self.new("mgd")
        for (sp, _, _) in groups:
            if init is None:
                e(f"s_mov_b64 {sr(sp,2)}, -1")
            else:
                e(f"s_mov_b32 {s(sp)}, {hex(init[0])}", f"s_mov_b32 {s(sp+1)}, {hex(init[1])}")
        self.label(l)
        for (sp, loads, _) in groups:
            k = self.new("mk")
            e(f"s_mov_b64 exec, {sr(sp,2)}", f"s_cbranch_execz {k}")
            loads()
            self.label(k)
        e("s_mov_b64 exec, -1", "s_waitcnt vmcnt(0)")
        for (sp, _, tags) in groups:
            self.bad_lanes(tags, sp, t)
            if care is not None:
                e(f"s_and_b32 {s(sp)}, {s(sp)}, {hex(care[0])}", f"s_and_b32 {s(sp+1)}, {s(sp+1)}, {hex(care[1])}")
        e(f"s_mov_b64 s[90:91], {sr(groups[0][0],2)}")
        for (sp, _, _) in groups[1:]:
            e(f"s_or_b64 s[90:91], s[90:91], {sr(sp,2)}")
        e("s_cmp_eq_u64 s[90:91], 0", f"s_cbranch_scc1 {d}")
        if sleep:
            e(f"s_sleep {sleep}")
        self.spin_check()
        e(f"s_branch {l}")
        self.label(d)

    def poll2(self, loadsA, tagsA, useA, loadsB, tagsB, useB, nloads, t):
        e = self.e
        l, dA, dB, d = self.new("p2"), self.new("p2a"), self.new("p2b"), self.new("p2d")
        loadsA()
        loadsB()
        self.label(l)
        e(f"s_waitcnt vmcnt({nloads})")
        ra, rb = self.new("p2ra"), self.new("p2rb")
        self.tagcheck(tagsA, t, t+1, ra)
        e(f"s_branch {dA}")
        self.label(ra)
        loadsA()
        e(f"s_waitcnt vmcnt({nloads})")
        self.tagcheck(tagsB, t, t+1, rb)
        e(f"s_branch {dB}")
        self.label(rb)
        loadsB()
        self.spin_check()
        e(f"s_branch {l}")
        self.label(dA)
        useA()
        e(f"s_branch {d}")
        self.label(dB)
        useB()
        self.label(d)

    def modulate(self, XF, C1, SH, T, vaddr):
        e = self.e
        for i in range(5):
            a, b = XF+2*i, XF+2*i+1
            e(f"v_mul_f32 {v(a)}, {v(a)}, {v(C1+2*i)}", f"v_mul_f32 {v(b)}, {v(b)}, {v(C1+2*i+1)}")
            self.round2(a, b, T)
            e(f"v_add_f32 {v(a)}, {v(a)}, {v(SH+2*i)}", f"v_add_f32 {v(b)}, {v(b)}, {v(SH+2*i+1)}",
              f"v_cvt_pk_bf16_f32 {v(T)}, {v(a)}, {v(b)}", f"ds_write_b32 {v(vaddr)}, {v(T)} offset:{256*i}")

    def prep_mod_pair(self, G, C1, SH, T):
        e = self.e
        for i in range(5):
            self.unpack(SH+2*i, SH+2*i+1, G+2*i)
        for i in range(5):
            self.unpack(C1+2*i, C1+2*i+1, G+10+2*i)
            e(f"v_add_f32 {v(C1+2*i)}, 1.0, {v(C1+2*i)}", f"v_add_f32 {v(C1+2*i+1)}, 1.0, {v(C1+2*i+1)}")
            self.round2(C1+2*i, C1+2*i+1, T)

    def helper(self):
        e = self.e
        self.c("================= helper wave =================")
        e(f"s_sub_u32 {s(S_W)}, {s(S_W)}, 4")
        VFL, VONE = 2, 3
        W = 100
        PX, XF, T = 10, 16, 28
        G, C1, SH = 32, 56, 68
        AF, DD = 200, 220
        e(f"s_lshl_b32 s62, {s(S_W)}, 2", f"s_add_u32 s62, s62, {FLAGS}", f"v_mov_b32 {v(VFL)}, s62", f"v_mov_b32 {v(VONE)}, 1",
          f"v_mov_b32 v9, {FLAGS}")
        self.c("zero the LDS flags (helper 0)")
        l = self.new("zf")
        e(f"s_cmp_eq_u32 {s(S_W)}, 0", f"s_cbranch_scc0 {l}",
          "v_lshlrev_b32 v6, 2, v1", f"v_add_u32 v6, {FLAGS}, v6", "v_mov_b32 v7, 0",
          "ds_write_b32 v6, v7")
        self.label(l)
        e("s_waitcnt lgkmcnt(0)")
        self.srd(SRD_WS, S_WS, WS_SIZE)
        self.tag_load()
        self.c("work counters of this head: cleared by helper 0 of workgroup j == 0 (drained before q is published)")
        l = self.new("zc")
        e(f"s_cmp_eq_u32 {s(S_W)}, 0", f"s_cbranch_scc0 {l}", f"s_cmp_eq_u32 {s(S_J)}, 0", f"s_cbranch_scc0 {l}",
          f"s_lshl_b32 s62, {s(S_H)}, 7", f"s_add_u32 s62, s62, {CNTBUF}", "v_mov_b32 v6, 0", "v_mov_b32 v7, 0",
          "s_mov_b64 exec, 1", f"buffer_store_dword v7, v6, {sr(SRD_WS,4)}, s62 offen sc1", "s_mov_b64 exec, -1")
        self.label(l)
        self.c("prologue role: s67 = 0 none, 1 Q block, 2 MOD block")
        lq, lm, lr, lm7 = self.new("rq"), self.new("rm"), self.new("rr"), self.new("m7")
        e("s_mov_b32 s67, 0", f"s_cmp_lt_u32 {s(S_J)}, 3", f"s_cbranch_scc1 {lq}",
          f"s_cmp_lt_u32 {s(S_J)}, 5", f"s_cbranch_scc0 {lm7}",
          f"s_lshl_b32 s68, {s(S_H)}, 1", f"s_add_u32 s68, s68, {s(S_J)}", "s_sub_u32 s68, s68, 3",
          f"s_cmp_lt_u32 {s(S_H)}, 28", f"s_cbranch_scc1 {lm}", f"s_branch {lr}")
        self.label(lm7)
        e(f"s_add_u32 s68, {s(S_H)}, 56", f"s_cmp_eq_u32 {s(S_J)}, 7", f"s_cbranch_scc0 {lr}",
          f"s_cmp_lt_u32 {s(S_H)}, 4", f"s_cbranch_scc1 {lm}", f"s_branch {lr}")
        self.label(lq)
        e("s_mov_b32 s67, 1")
        if "qfirst" not in self.x:
            e("s_barrier")
        self.srd(SRD_A, S_WQ, 7864320)
        self.srd(SRD_B, S_X, 5120)
        e("s_mov_b32 s60, 12288", f"s_mul_i32 s68, {s(S_H)}, 3", f"s_add_u32 s68, s68, {s(S_J)}",
          "s_lshl_b32 s64, s68, 8", f"s_add_u32 s64, s64, {QBUF}", f"s_mov_b32 s65, {3072*8}")
        lcommon = self.new("rc")
        e(f"s_branch {lcommon}")
        self.label(lm)
        e("s_mov_b32 s67, 2")
        self.srd(SRD_A, S_WM, 4915200)
        self.srd(SRD_B, S_C, 5120)
        e("s_mov_b32 s60, 7680", "s_lshl_b32 s64, s68, 8", f"s_add_u32 s64, s64, {MODBUF}", f"s_mov_b32 s65, {1920*8}")
        self.label(lcommon)
        self.c("issue vector + weight loads")
        e(f"s_mul_i32 s62, {s(S_W)}, 1280", "v_lshlrev_b32 v6, 2, v1")
        for i in range(5):
            e(f"buffer_load_dword {v(PX+i)}, v6, {sr(SRD_B,4)}, s62 offen offset:{256*i}")
        e(f"s_mul_i32 s62, {s(S_W)}, 160", "v_lshrrev_b32 v4, 4, v1", "v_lshlrev_b32 v4, 3, v4", "v_add_u32 v4, s62, v4",
          "v_mul_lo_u32 v4, v4, s60", "v_and_b32 v7, 15, v1", "v_lshl_add_u32 v4, v7, 3, v4",
          "s_lshl_b32 s62, s68, 7", "v_add_u32 v4, s62, v4")
        self.gemv64_loads(W)
        lnb = self.new("nb")
        if "qfirst" not in self.x:
            e("s_cmp_eq_u32 s67, 1", f"s_cbranch_scc1 {lnb}")
        self.label(lr)
        e("s_barrier")
        self.label(lnb)
        self.tag_ready()
        self.stamp(1)
        self.c("A fragment address for the [4][640] vector: AVEC + b*1280 + w*320 + g*16")
        e("v_and_b32 v6, 15, v1", "v_lshrrev_b32 v6, 2, v6", "v_mul_u32_u24 v6, 1280, v6",
          "v_lshrrev_b32 v7, 4, v1", "v_lshl_add_u32 v6, v7, 4, v6",
          f"s_mul_i32 s62, {s(S_W)}, 320", f"s_add_u32 s62, s62, {AVEC}", "v_add_u32 v5, s62, v6")
        e(f"s_mul_i32 s62, {s(S_W)}, 1280", f"s_add_u32 s62, s62, {AVEC}", "v_lshlrev_b32 v6, 2, v1", "v_add_u32 v8, s62, v6",
          "v_mov_b32 v26, v8")
        lq2, lm2, lpq = self.new("q2"), self.new("m2"), self.new("pq")
        e("s_cmp_eq_u32 s67, 1", f"s_cbranch_scc1 {lq2}", "s_cmp_eq_u32 s67, 2", f"s_cbranch_scc1 {lm2}", f"s_branch {lpq}")
        self.label(lm2)
        e("s_waitcnt vmcnt(40)", "s_mov_b32 s91, 0x207")
        for i in range(5):
            a, b = XF, XF+1
            self.unpack(a, b, PX+i)
            for x in (a, b):
                e(f"v_mul_f32 {v(T)}, {hex(LOG2E ^ 0x80000000)}, {v(x)}", f"v_exp_f32 {v(T)}, {v(T)}", "s_nop 0",
                  f"v_add_f32 {v(T)}, 1.0, {v(T)}", f"v_rcp_f32 {v(T+1)}, {v(T)}", "s_nop 0",
                  f"v_mul_f32 {v(T+2)}, {v(x)}, {v(T+1)}",
                  f"v_fma_f32 {v(T+3)}, -{v(T+2)}, {v(T)}, {v(x)}",
                  f"v_cmp_class_f32 vcc, {v(T+3)}, s91",
                  f"v_fma_f32 {v(x)}, {v(T+3)}, {v(T+1)}, {v(T+2)}", "s_nop 0",
                  f"v_cndmask_b32 {v(x)}, {v(x)}, {v(T+2)}, vcc")
                if "probe_nofix" in self.x:
                    e(f"v_mov_b32 {v(x)}, {v(T+2)}")
            e(f"v_cvt_pk_bf16_f32 {v(T)}, {v(a)}, {v(b)}", f"ds_write_b32 v26, {v(T)} offset:{256*i}")
        self.sync4(9, F_SYNCA, VONE, 8)
        e("s_waitcnt vmcnt(0)")
        self.stamp(2)
        self.gemv64_perm(W)
        self.gemv64_finish(W, AF, DD, 9, VONE, replicas=True)
        self.stamp(3)
        e(f"s_branch {lpq}")
        self.label(lq2)
        e("s_waitcnt vmcnt(40)")
        self.ln_fast([PX+i for i in range(5)], XF, 80, T)
        e("s_waitcnt vmcnt(0)")
        self.gemv64_perm(W)
        self.stamp(2)
        if self.RM > 1:
            e(f"s_and_b32 s62, s68, {self.RM-1}", "s_mul_i32 s62, s62, 20480", f"s_mul_i32 s63, {s(S_W)}, 5120", "s_add_u32 s62, s62, s63",
              f"s_add_u32 s62, s62, {MODR}", f"s_add_u32 s63, s62, {320*8}", "v_lshlrev_b32 v6, 3, v1")
        else:
            e(f"s_mul_i32 s62, {s(S_W)}, {1920*8}", f"s_add_u32 s62, s62, {MODBUF}", f"s_add_u32 s63, s62, {320*8}",
              "v_lshlrev_b32 v6, 3, v1")
        def ld_mod():
            for i in range(5):
                e(f"buffer_load_dwordx2 {vr(G+2*i,2)}, v6, {sr(SRD_WS,4)}, s62 offen offset:{512*i} sc1")
            for i in range(5):
                e(f"buffer_load_dwordx2 {vr(G+10+2*i,2)}, v6, {sr(SRD_WS,4)}, s63 offen offset:{512*i} sc1")
        if "pause" in self.x:
            self.lds_flag_set(9, F_PA, VONE)
        if "modm" in self.x:
            def ld_m(i):
                def f():
                    e(f"buffer_load_dwordx2 {vr(G+2*i,2)}, v6, {sr(SRD_WS,4)}, s62 offen offset:{512*i} sc1",
                      f"buffer_load_dwordx2 {vr(G+10+2*i,2)}, v6, {sr(SRD_WS,4)}, s63 offen offset:{512*i} sc1")
                return f
            self.masked_gather([(sp, ld_m(i), [G+2*i+1, G+10+2*i+1]) for i, sp in enumerate((36, 38, 44, 46, 48))], T)
        else:
            self.poll(ld_mod, [G+2*i+1 for i in range(10)], T, T+1)
        self.stamp(3)
        self.prep_mod_pair(G, C1, SH, T)
        self.modulate_fast(XF, C1, SH, 80, 26)
        self.sync4(9, F_SYNCA, VONE, 8)
        if "pause" in self.x:
            e("v_mov_b32 v8, 0")
            self.lds_flag_set(9, F_PA, 8)
        self.gemv64_finish(W, AF, DD, 9, VONE)
        self.stamp(4)
        self.label(lpq)
        l = self.new("jd")
        e(f"s_cmp_eq_u32 {s(S_W)}, 0", f"s_cbranch_scc0 {l}", "s_waitcnt lgkmcnt(0)")
        self.lds_flag_set(9, F_JD, VONE)
        self.label(l)
        WB = 36
        def wb_issue():
            self.c("stage B weights: wo rows 192h+48w+.., columns 128j..")
            self.srd(SRD_A, S_WO, 7864320)
            e(f"s_mul_i32 s62, {s(S_H)}, 192", f"s_mul_i32 s63, {s(S_W)}, 48", "s_add_u32 s62, s62, s63",
              "v_lshrrev_b32 v6, 4, v1", "v_mul_u32_u24 v6, 3, v6", "v_add_u32 v6, s62, v6", "v_mul_u32_u24 v6, 1280, v6",
              "v_and_b32 v7, 15, v1", "v_lshl_add_u32 v6, v7, 4, v6", f"s_lshl_b32 s62, {s(S_J)}, 8", "v_add_u32 v6, s62, v6")
            for vv in range(12):
                sg, ee = vv >> 2, vv & 3
                e(f"s_mov_b32 s62, {(12*(vv//3)+vv%3)*1280}",
                  f"buffer_load_dwordx4 {vr(WB+16*(sg+1)+4*ee,4)}, v6, {sr(SRD_A,4)}, s62 offen nt")
        def wb_perm():
            for sg in range(3):
                raw, fr = WB+16*(sg+1), WB+16*sg
                for cc in range(8):
                    for q in range(2):
                        e(f"v_perm_b32 {v(fr+2*cc+q)}, {v(raw+4*(2*q+1)+(cc>>1))}, {v(raw+4*(2*q)+(cc>>1))}, {s(S_SELHI if cc&1 else S_SELLO)}")
        def load_wb():
            wb_issue()
            e("s_waitcnt vmcnt(0)")
            wb_perm()
        WD, GBR = 100, 240
        WG, WU = 36, 84
        CC1, CSH = 140, 150
        RX, RG = 180, 182
        lc, ld, lnc, l6, l7, lrd = (self.new(x) for x in ("c", "d", "nc", "j6", "j7", "rd"))
        e("s_mov_b32 s69, 0", "s_mov_b32 s70, 0", f"s_cmp_lt_u32 {s(S_J)}, 5", f"s_cbranch_scc1 {lrd}")
        e(f"s_cmp_eq_u32 {s(S_J)}, 5", f"s_cbranch_scc0 {l6}", f"s_mov_b32 s68, {s(S_H)}", f"s_branch {lc}")
        self.label(l6)
        e(f"s_cmp_eq_u32 {s(S_J)}, 6", f"s_cbranch_scc0 {l7}",
          f"s_add_u32 s68, {s(S_H)}, 32", f"s_cmp_lt_u32 {s(S_H)}, 16", f"s_cbranch_scc1 {lc}",
          f"s_sub_u32 s68, {s(S_H)}, 16", f"s_branch {ld}")
        self.label(l7)
        e(f"s_sub_u32 s68, {s(S_H)}, 12", f"s_cmp_ge_u32 {s(S_H)}, 28", f"s_cbranch_scc1 {ld}", f"s_branch {lnc}")
        self.label(lc)
        e("s_mov_b32 s69, 1", f"s_branch {lrd}")
        self.label(ld)
        e("s_mov_b32 s69, 2", f"s_branch {lrd}")
        self.label(lnc)
        e(f"s_mul_i32 s71, {s(S_H)}, 3", f"s_add_u32 s71, s71, {s(S_W)}",
          "s_cmp_lt_u32 s71, 80", f"s_cbranch_scc0 {lrd}", f"s_cmp_lt_u32 {s(S_W)}, 3", f"s_cbranch_scc0 {lrd}",
          "s_mov_b32 s70, 1")
        self.label(lrd)

        def load_heavy(part):
            lnc2, lnd2 = self.new("hc"), self.new("hd")
            e("s_cmp_eq_u32 s69, 1", f"s_cbranch_scc0 {lnc2}")
            self.c("gate / up weights: rows 160w.., columns 32c..")
            base = (WG, WU)[part]
            self.srd(SRD_A, (S_G, S_U)[part], 1966080)
            e(f"s_mul_i32 s62, {s(S_W)}, 160", "v_lshrrev_b32 v6, 4, v1", "v_lshlrev_b32 v6, 3, v6", "v_add_u32 v6, s62, v6",
              "v_mul_u32_u24 v6, 3072, v6", "v_and_b32 v7, 15, v1", "v_lshl_add_u32 v6, v7, 2, v6",
              "s_lshl_b32 s62, s68, 6", "v_add_u32 v6, s62, v6")
            for ks in range(5):
                for ee in range(8):
                    e(f"s_mov_b32 s62, {(32*ks+ee)*3072}",
                      f"buffer_load_dword {v(base+8*(ks+1)+ee)}, v6, {sr(SRD_A,4)}, s62 offen nt")
            e("s_waitcnt vmcnt(0)")
            for ks in range(5):
                raw, fr = base+8*(ks+1), base+8*ks
                for hi in range(2):
                    for q in range(4):
                        e(f"v_perm_b32 {v(fr+4*hi+q)}, {v(raw+2*q+1)}, {v(raw+2*q)}, {s(S_SELHI if hi else S_SELLO)}")
            self.label(lnc2)
            e("s_cmp_eq_u32 s69, 2", f"s_cbranch_scc0 {lnd2}")
            self.c("down weights: rows 384w.., columns 32d..")
            self.srd(SRD_A, S_DN, 1966080)
            e(f"s_mul_i32 s62, {s(S_W)}, 384", "v_lshrrev_b32 v6, 4, v1", "v_lshlrev_b32 v6, 3, v6", "v_add_u32 v6, s62, v6",
              "v_mul_u32_u24 v6, 1280, v6", "v_and_b32 v7, 15, v1", "v_lshl_add_u32 v6, v7, 2, v6",
              "s_lshl_b32 s62, s68, 6", "v_add_u32 v6, s62, v6")
            half = part
            for ks in range(6*half, 6*half+6):
                for ee in range(8):
                    e(f"s_mov_b32 s62, {(32*ks+ee)*1280}",
                      f"buffer_load_dword {v(WD+8*(ks+1)+ee)}, v6, {sr(SRD_A,4)}, s62 offen nt")
            e("s_waitcnt vmcnt(0)")
            for ks in range(6*half, 6*half+6):
                raw, fr = WD+8*(ks+1), WD+8*ks
                for hi in range(2):
                    for q in range(4):
                        e(f"v_perm_b32 {v(fr+4*hi+q)}, {v(raw+2*q+1)}, {v(raw+2*q)}, {s(S_SELHI if hi else S_SELLO)}")
            self.label(lnd2)

        self.c("slices that are not needed before the tail: loaded while q is still on its way where the helper is free")
        lnb2 = self.new("nb2")
        e(f"s_cmp_ge_u32 {s(S_J)}, 3", f"s_cbranch_scc0 {lnb2}", f"s_cmp_lt_u32 {s(S_J)}, 5", f"s_cbranch_scc0 {lnb2}")
        wbdef = "wbs" in self.x or "wbve" in self.x
        if not wbdef:
            load_wb()
        self.label(lnb2)
        if "heavylate" not in self.x:
            load_heavy(0)
            if "heavyall" in self.x:
                load_heavy(1)
        if "wbride" in self.x and not wbdef:
            self.c("q workgroups: the stage B slice travels while q of the other two workgroups is awaited")
            lwr = self.new("wr")
            e(f"s_cmp_lt_u32 {s(S_J)}, 3", f"s_cbranch_scc0 {lwr}")
            wb_issue()
            self.label(lwr)
        self.c("q of batch w of this head -> LDS")
        e(f"s_mul_i32 s62, {s(S_W)}, {3072*8}", f"s_mul_i32 s63, {s(S_H)}, {96*8}", "s_add_u32 s62, s62, s63",
          f"s_add_u32 s62, s62, {QBUF}", "v_lshlrev_b32 v6, 4, v1",
          "s_mov_b32 exec_lo, -1", "s_mov_b32 exec_hi, 0xffff")
        def ld_q():
            e(f"buffer_load_dwordx4 {vr(G,4)}, v6, {sr(SRD_WS,4)}, s62 offen sc1")
        self.poll(ld_q, [G+1, G+3], T, T+1, sleep=self.qsleep)
        e(f"v_mov_b32 {v(G+1)}, {v(G+2)}", f"s_mul_i32 s62, {s(S_W)}, 384", f"s_add_u32 s62, s62, {QL}",
          "v_lshlrev_b32 v6, 3, v1", "v_add_u32 v6, s62, v6", f"ds_write_b64 v6, {vr(G,2)}",
          "s_mov_b64 exec, 1", f"ds_add_u32 v9, {v(VONE)} offset:{F_QC}", "s_mov_b64 exec, -1")
        self.stamp(5)
        lbd = self.new("bd")
        e(f"s_cmp_lt_u32 {s(S_J)}, 3", f"s_cbranch_scc0 {lbd}")
        if not wbdef:
            if "wbride" in self.x:
                wb_perm()
            else:
                load_wb()
        self.label(lbd)
        if "heavylate" in self.x:
            load_heavy(0)
        if ("heavyall" not in self.x or "heavylate" in self.x) and "defer" not in self.x:
            load_heavy(1)
        lmid, lpc, lpd = self.new("mid"), self.new("pc"), self.new("pd")
        e("s_cmp_eq_u32 s69, 1", f"s_cbranch_scc0 {lpc}")
        self.c("sb (segment 3), cb (segment 4) for batch w")
        G2 = 160
        e(f"s_mul_i32 s62, {s(S_W)}, {1920*8}", f"s_add_u32 s62, s62, {MODBUF+3*320*8}", f"s_add_u32 s63, s62, {320*8}",
          "v_lshlrev_b32 v6, 3, v1")
        def ld_mod2():
            for i in range(5):
                e(f"buffer_load_dwordx2 {vr(G2+2*i,2)}, v6, {sr(SRD_WS,4)}, s62 offen offset:{512*i} sc1")
            for i in range(5):
                e(f"buffer_load_dwordx2 {vr(G2+10+2*i,2)}, v6, {sr(SRD_WS,4)}, s63 offen offset:{512*i} sc1")
        self.poll(ld_mod2, [G2+2*i+1 for i in range(10)], T, T+1, sleep=8)
        self.prep_mod_pair(G2, CC1, CSH, T)
        e(f"s_branch {lmid}")
        self.label(lpc)
        e("s_cmp_eq_u32 s69, 2", f"s_cbranch_scc0 {lpd}")
        self.c("gb pairs for (b = lane>>4, pair 16d + (lane&15))")
        e("v_lshrrev_b32 v6, 4, v1", f"v_mul_u32_u24 v6, {1920*8}, v6", "v_and_b32 v7, 15, v1", "v_lshl_add_u32 v6, v7, 3, v6",
          "s_lshl_b32 s62, s68, 7", f"s_add_u32 s62, s62, {MODBUF+5*320*8}")
        def ld_gb():
            e(f"buffer_load_dwordx2 {vr(GBR,2)}, v6, {sr(SRD_WS,4)}, s62 offen sc1")
        self.poll(ld_gb, [GBR+1], T, T+1, sleep=8)
        e(f"s_branch {lmid}")
        self.label(lpd)
        e("s_cmp_eq_u32 s70, 1", f"s_cbranch_scc0 {lmid}")
        self.srd(SRD_B, S_X, 5120)
        e("v_and_b32 v7, 15, v1", "s_and_b32 s63, s71, 3", "s_lshr_b32 s64, s71, 2",
          "s_mul_i32 s62, s63, 1280", "s_lshl_b32 s65, s64, 6", "s_add_u32 s62, s62, s65", "v_lshlrev_b32 v8, 2, v7",
          f"buffer_load_dword {v(RX)}, v8, {sr(SRD_B,4)}, s62 offen",
          "v_lshlrev_b32 v8, 3, v7", f"s_mul_i32 s62, s63, {1920*8}", "s_lshl_b32 s65, s64, 7", "s_add_u32 s62, s62, s65",
          f"s_add_u32 s62, s62, {MODBUF+2*320*8}")
        def ld_ga():
            e(f"buffer_load_dwordx2 {vr(RG,2)}, v8, {sr(SRD_WS,4)}, s62 offen sc1")
        self.poll(ld_ga, [RG+1], T, T+1, sleep=8)
        self.label(lmid)
        self.stamp(6)
        SL = self.SL
        MLR = 12
        e(f"s_lshl_b32 s61, {s(S_J)}, 2", f"s_add_u32 s61, s61, {s(S_W)}",
          f"s_lshl_b32 s95, {s(S_W)}, 10", f"s_add_u32 s95, s95, {SC}")

        def publish_ml(bi):
            e(f"s_mov_b32 s60, {bi}")
            self.lds_wait_gt(VFL, F_KD, 8, 60, sleep=4)
            e(f"s_lshl_b32 s62, {s(S_W)}, 5", f"s_add_u32 s62, s62, {MLH+8*bi}",
              "v_mov_b32 v6, s62", f"ds_read_b64 {vr(MLR,2)}, v6",
              f"s_lshl_b32 s63, {s(S_H)}, 2", f"s_add_u32 s63, s63, {bi}", "s_lshl_b32 s63, s63, 9", f"s_add_u32 s63, s63, {MLBUF}",
              "s_lshl_b32 s62, s61, 4", "s_add_u32 s62, s62, s63",
              "s_waitcnt lgkmcnt(0)",
              f"v_mov_b32 {v(MLR+2)}, {v(MLR+1)}", f"v_mov_b32 {v(MLR+1)}, {s(S_TAG)}", f"v_mov_b32 {v(MLR+3)}, {s(S_TAG)}",
              "v_mov_b32 v6, 0", "s_mov_b64 exec, 1",
              f"buffer_store_dwordx4 {vr(MLR,4)}, v6, {sr(SRD_WS,4)}, s62 offen sc1", "s_mov_b64 exec, -1")
            if bi == 3 and SL < 4:
                self.c("last batch: publish the scores of this wave's pool tiles")
                e(f"s_add_u32 s62, s95, {(12+SL)*64}", "v_lshlrev_b32 v6, 2, v1", "v_add_u32 v6, s62, v6",
                  "ds_read_b32 v16, v6", f"v_mov_b32 v17, {s(S_TAG)}",
                  "v_lshrrev_b32 v7, 4, v1", "v_lshlrev_b32 v7, 12, v7", "v_and_b32 v8, 15, v1", "v_lshl_add_u32 v7, v8, 3, v7",
                  f"s_lshl_b32 s62, {s(S_H)}, 7", f"s_add_u32 s62, s62, {32*SL}", "s_add_u32 s62, s62, s61", "s_lshl_b32 s62, s62, 7",
                  f"s_add_u32 s62, s62, {SBUF}", "s_waitcnt lgkmcnt(0)")
                n = 16*(4-SL)
                if n < 64:
                    lo = (1 << min(n, 32)) - 1
                    hi = (1 << max(n-32, 0)) - 1
                    e(f"s_mov_b32 exec_lo, {hex(lo)}", f"s_mov_b32 exec_hi, {hex(hi)}")
                e(f"buffer_store_dwordx2 v[16:17], v7, {sr(SRD_WS,4)}, s62 offen sc1", "s_mov_b64 exec, -1")

        def make_p(bi):
            e(f"s_lshl_b32 s63, {s(S_H)}, 2", f"s_add_u32 s63, s63, {bi}", "s_lshl_b32 s63, s63, 9", f"s_add_u32 s63, s63, {MLBUF}",
              "v_lshlrev_b32 v6, 4, v1", "s_mov_b32 exec_lo, -1", "s_mov_b32 exec_hi, 0")
            def ld_ml():
                e(f"buffer_load_dwordx4 {vr(MLR,4)}, v6, {sr(SRD_WS,4)}, s63 offen sc1")
            self.poll(ld_ml, [MLR+1, MLR+3], T, T+1, sleep=8)
            e("s_mov_b64 exec, -1", f"v_cmp_gt_u32 vcc, 32, v1", f"v_mov_b32 v6, {hex(NINF)}", "v_mov_b32 v7, 0", "s_nop 0",
              f"v_cndmask_b32 {v(MLR)}, v6, {v(MLR)}, vcc", f"v_cndmask_b32 {v(MLR+2)}, v7, {v(MLR+2)}, vcc",
              f"v_mov_b32 v6, {v(MLR)}")
            self.allreduce("max", 6, 8)
            e(f"v_sub_f32 v7, {v(MLR)}, v6", f"v_mul_f32 v7, {hex(LOG2E)}, v7", "v_exp_f32 v7, v7", "s_nop 0",
              f"v_mul_f32 v7, v7, {v(MLR+2)}")
            self.allreduce("add", 7, 8)
            e("v_rcp_f32 v7, v7", "s_nop 1", "v_readfirstlane_b32 s92, v6", "v_readfirstlane_b32 s93, v7")
            self.c("probabilities of the four static tiles of this batch, in place of their scores")
            e(f"s_add_u32 s62, s95, {256*bi}", "v_lshlrev_b32 v6, 2, v1", "v_add_u32 v6, s62, v6",
              "ds_read_b32 v12, v6", "s_waitcnt lgkmcnt(0)")
            self.unpack(14, 15, 12)
            e("v_subrev_f32 v14, s92, v14", "v_subrev_f32 v15, s92, v15",
              f"v_mul_f32 v14, {hex(LOG2E)}, v14", f"v_mul_f32 v15, {hex(LOG2E)}, v15", "v_exp_f32 v14, v14", "v_exp_f32 v15, v15", "s_nop 0",
              "v_mul_f32 v14, s93, v14", "v_mul_f32 v15, s93, v15", "v_cvt_pk_bf16_f32 v12, v14, v15",
              f"v_mov_b32 v7, {bi+1}", "ds_write_b32 v6, v12",
              "s_mov_b64 exec, 1", f"ds_write_b32 {v(VFL)}, v7 offset:{F_PB}", "s_mov_b64 exec, -1")

        for bi in range(4):
            publish_ml(bi)
            if bi >= 1:
                make_p(bi-1)
        self.c("the last batch's statistics: once this workgroup has finished the first V batch")
        self.lds_wait(9, F_OF, 8, 1, sleep=4)
        make_p(3)
        self.stamp(7)
        if SL < 4:
            self.c("---- pool: claim tiles for the paired streamer and prepare their probabilities")
            e("s_mov_b32 s60, 0", "s_mov_b32 s59, 0", f"s_lshl_b32 s57, {s(S_W)}, 4", f"s_add_u32 s94, s57, {IDQ}", f"s_add_u32 s57, s57, {CLQ}",
              f"s_lshl_b32 s56, {s(S_H)}, 7", f"s_add_u32 s56, s56, {CNTBUF}",
              f"s_lshl_b32 s61, {s(S_H)}, 14", f"s_add_u32 s61, s61, {SBUF}",
              f"s_lshl_b32 s95, {s(S_W)}, 8", f"s_add_u32 s95, s95, {PSLOT}",
              "s_mov_b32 s58, 0", "s_mov_b32 s55, 0", "s_mov_b32 s52, 0", "v_mov_b32 v20, 0")
            lp, lpe = self.new("pp"), self.new("pe")
            self.label(lp)
            e("s_and_b32 s62, s60, 3", "s_lshl_b32 s62, s62, 2", "s_add_u32 s62, s62, s94", "v_mov_b32 v6, s62")
            self.lds_wait_gt(VFL, F_NV, 8, 60, sleep=1)
            if self.A == 1:
                lnat, lnsc, lretry, lchk, lnp = (self.new(x) for x in ("nat", "nsc", "pr", "pc", "np"))
                e("ds_read_b32 v7, v6", "s_waitcnt lgkmcnt(0)", "v_readfirstlane_b32 s63, v7", "s_nop 0",
                  "s_cmp_ge_u32 s63, 128", f"s_cbranch_scc1 {lpe}",
                  "s_lshl_b32 s63, s63, 7", "s_add_u32 s63, s63, s61", "v_lshlrev_b32 v6, 3, v1")
                def ld_sc():
                    e(f"buffer_load_dwordx2 v[12:13], v6, {sr(SRD_WS,4)}, s63 offen sc1")
                self.c("claim the tile of the next item first, then fetch the scores of the item that has just started")
                e("s_mov_b32 s54, 0", "s_cmp_eq_u32 s55, 0", f"s_cbranch_scc0 {lnat}", "s_mov_b64 exec, 1", "v_mov_b32 v22, 1",
                  f"buffer_atomic_add v22, v20, {sr(SRD_WS,4)}, s56 offen sc0 sc1", "s_mov_b32 s54, 1")
                self.label(lnat)
                lns2, lw1 = self.new("ns2"), self.new("w1")
                e("s_cmp_ge_u32 s60, 1", f"s_cbranch_scc0 {lns2}", "s_mov_b64 exec, 0xffff")
                ld_sc()
                e("s_waitcnt vmcnt(1)", f"s_branch {lw1}")
                self.label(lns2)
                e("s_waitcnt vmcnt(0)")
                self.label(lw1)
                e("s_mov_b64 exec, 1", "s_cmp_eq_u32 s54, 1", f"s_cbranch_scc0 {lnsc}",
                  "v_readfirstlane_b32 s53, v22",
                  "s_and_b32 s62, s59, 3", "s_lshl_b32 s62, s62, 2", "s_add_u32 s62, s62, s57", "v_mov_b32 v7, s62", "v_mov_b32 v8, s53",
                  "s_add_u32 s59, s59, 1", "v_mov_b32 v14, s59", "ds_write_b32 v7, v8",
                  f"ds_write_b32 {v(VFL)}, v14 offset:{F_NC}",
                  f"s_cmp_ge_u32 s53, {32*(4-SL)}", "s_cselect_b32 s55, 1, s55")
                self.label(lnsc)
                e("s_cmp_ge_u32 s60, 1", f"s_cbranch_scc0 {lnp}", "s_mov_b64 exec, 0xffff", "s_waitcnt vmcnt(0)")
                self.tagcheck([13], T, T+1, lretry)
                e(f"s_branch {lchk}")
                self.label(lretry)
                self.poll(ld_sc, [13], T, T+1)
                self.label(lchk)
                self.unpack(14, 15, 12)
                e("v_subrev_f32 v14, s92, v14", "v_subrev_f32 v15, s92, v15",
                  f"v_mul_f32 v14, {hex(LOG2E)}, v14", f"v_mul_f32 v15, {hex(LOG2E)}, v15", "v_exp_f32 v14, v14", "v_exp_f32 v15, v15", "s_nop 0",
                  "v_mul_f32 v14, s93, v14", "v_mul_f32 v15, s93, v15", "v_cvt_pk_bf16_f32 v12, v14, v15",
                  "s_and_b32 s62, s52, 3", "s_lshl_b32 s62, s62, 6", "s_add_u32 s62, s62, s95",
                  "v_lshlrev_b32 v6, 2, v1", "v_add_u32 v6, s62, v6", "s_add_u32 s52, s52, 1", "v_mov_b32 v7, s52",
                  "ds_write_b32 v6, v12", "s_mov_b64 exec, 1", f"ds_write_b32 {v(VFL)}, v7 offset:{F_NP}")
                self.label(lnp)
                e("s_mov_b64 exec, -1", "s_add_u32 s60, s60, 1", f"s_branch {lp}")
            else:
                lna, lnd_, lw0, lwx, lnl = (self.new(x) for x in ("na", "ndl", "w0", "wx", "nl"))
                e("ds_read_b32 v7, v6", "s_waitcnt lgkmcnt(0)", "v_readfirstlane_b32 s63, v7", "s_nop 0",
                  "s_cmp_ge_u32 s63, 128", f"s_cbranch_scc1 {lpe}",
                  "s_lshl_b32 s63, s63, 7", "s_add_u32 s63, s63, s61", "v_lshlrev_b32 v6, 3, v1")
                def ld_sc():
                    e(f"buffer_load_dwordx2 v[12:13], v6, {sr(SRD_WS,4)}, s63 offen sc1")
                e("s_cmp_ge_u32 s60, 2", f"s_cbranch_scc0 {lnl}", "s_mov_b64 exec, 0xffff")
                ld_sc()
                self.label(lnl)
                e("s_mov_b32 s54, s58", "s_mov_b32 s58, 0", "s_cmp_eq_u32 s55, 0", f"s_cbranch_scc0 {lw0}",
                  "s_mov_b64 exec, 1", "s_and_b32 s62, s60, 1", f"s_cbranch_scc1 {lna}",
                  "v_mov_b32 v22, 1", f"buffer_atomic_add v22, v20, {sr(SRD_WS,4)}, s56 offen sc0 sc1", f"s_branch {lnd_}")
                self.label(lna)
                e("v_mov_b32 v23, 1", f"buffer_atomic_add v23, v20, {sr(SRD_WS,4)}, s56 offen sc0 sc1")
                self.label(lnd_)
                e("s_mov_b32 s58, 1", "s_waitcnt vmcnt(1)", f"s_branch {lwx}")
                self.label(lw0)
                e("s_waitcnt vmcnt(0)")
                self.label(lwx)
                self.c("deliver the claim issued one item earlier")
                lnc_, lod, lodx, lretry, lchk, lnp = (self.new(x) for x in ("ncl", "od", "odx", "pr", "pc", "np"))
                e("s_mov_b64 exec, 1", "s_cmp_eq_u32 s54, 1", f"s_cbranch_scc0 {lnc_}",
                  "s_and_b32 s62, s60, 1", f"s_cbranch_scc1 {lod}",
                  "v_readfirstlane_b32 s53, v23", f"s_branch {lodx}")
                self.label(lod)
                e("v_readfirstlane_b32 s53, v22")
                self.label(lodx)
                e("s_and_b32 s62, s59, 3", "s_lshl_b32 s62, s62, 2", "s_add_u32 s62, s62, s57", "v_mov_b32 v7, s62", "v_mov_b32 v8, s53",
                  "s_add_u32 s59, s59, 1", "v_mov_b32 v14, s59", "ds_write_b32 v7, v8",
                  f"ds_write_b32 {v(VFL)}, v14 offset:{F_NC}",
                  f"s_cmp_ge_u32 s53, {32*(4-SL)}", "s_cselect_b32 s55, 1, s55")
                self.label(lnc_)
                e("s_cmp_ge_u32 s60, 2", f"s_cbranch_scc0 {lnp}", "s_mov_b64 exec, 0xffff")
                self.tagcheck([13], T, T+1, lretry)
                e(f"s_branch {lchk}")
                self.label(lretry)
                self.poll(ld_sc, [13], T, T+1)
                self.label(lchk)
                self.unpack(14, 15, 12)
                e("v_subrev_f32 v14, s92, v14", "v_subrev_f32 v15, s92, v15",
                  f"v_mul_f32 v14, {hex(LOG2E)}, v14", f"v_mul_f32 v15, {hex(LOG2E)}, v15", "v_exp_f32 v14, v14", "v_exp_f32 v15, v15", "s_nop 0",
                  "v_mul_f32 v14, s93, v14", "v_mul_f32 v15, s93, v15", "v_cvt_pk_bf16_f32 v12, v14, v15",
                  "s_and_b32 s62, s52, 3", "s_lshl_b32 s62, s62, 6", "s_add_u32 s62, s62, s95",
                  "v_lshlrev_b32 v6, 2, v1", "v_add_u32 v6, s62, v6", "s_add_u32 s52, s52, 1", "v_mov_b32 v7, s52",
                  "ds_write_b32 v6, v12", "s_mov_b64 exec, 1", f"ds_write_b32 {v(VFL)}, v7 offset:{F_NP}")
                self.label(lnp)
                e("s_mov_b64 exec, -1", "s_add_u32 s60, s60, 1", f"s_branch {lp}")
            self.label(lpe)
            e("s_mov_b64 exec, -1")
        lhi2, ldone = self.new("hi2"), self.new("done")
        e(f"s_cmp_lt_u32 {s(S_J)}, 5", f"s_cbranch_scc0 {lhi2}")
        self.c("---- stage B: sum the 8 partials per batch, o @ wo")
        GB_ = 204
        FQ = 236
        OV, AB = 16, 28
        e("v_and_b32 v6, 15, v1", "v_lshrrev_b32 v7, 2, v6", "v_and_b32 v6, 3, v6",
          "v_lshl_add_u32 v6, v7, 3, v6", "v_lshlrev_b32 v6, 10, v6",
          "v_lshrrev_b32 v7, 4, v1", "v_lshl_add_u32 v4, v7, 4, v6",
          f"s_lshl_b32 s62, {s(S_H)}, 15", f"s_lshl_b32 s63, {s(S_W)}, 8", "s_add_u32 s62, s62, s63",
          f"s_add_u32 s62, s62, {OBUF}", "s_add_u32 s63, s62, 4096")
        e(f"s_lshl_b32 s64, {s(S_W)}, 11", f"s_add_u32 s64, s64, {RED2}", "v_lshlrev_b32 v5, 5, v1", "v_add_u32 v5, s64, v5")
        e("v_lshrrev_b32 v6, 4, v1", f"s_lshl_b32 s64, {s(S_W)}, 2", "v_add_u32 v6, s64, v6",
          "v_bfe_u32 v7, v1, 2, 2", "v_and_b32 v8, 3, v1",
          "v_lshl_add_u32 v9, v7, 4, v6", "v_lshlrev_b32 v9, 5, v9", "v_lshl_add_u32 v9, v8, 3, v9",
          "v_lshlrev_b32 v6, 13, v7", "v_lshrrev_b32 v7, 4, v1", "v_lshl_add_u32 v7, v7, 2, v8",
          "v_lshl_add_u32 v10, v7, 4, v6",
          f"s_lshl_b32 s64, {s(S_J)}, 2", f"s_add_u32 s64, s64, {s(S_W)}", "s_lshl_b32 s64, s64, 15",
          f"s_lshl_b32 s65, {s(S_H)}, 8", "s_add_u32 s64, s64, s65", f"s_add_u32 s64, s64, {ABUF}",
          f"v_mov_b32 {v(FQ+1)}, {s(S_TAG)}", f"v_mov_b32 {v(FQ+3)}, {s(S_TAG)}")
        def ld_o(js):
            def f():
                for ss in range(4):
                    e(f"buffer_load_dwordx4 {vr(GB_+16*js+4*ss,4)}, v4, {sr(SRD_WS,4)}, {'s63' if js else 's62'} offen offset:{64*ss} sc1")
            return f
        grp = [(36, ld_o(0), [GB_+4*k+3 for k in range(4)]), (38, ld_o(1), [GB_+16+4*k+3 for k in range(4)])]
        if "wbs" in self.x:
            e("s_mov_b32 s58, s62", "s_mov_b32 s59, s63")
            load_wb()
            e("s_mov_b32 s62, s58", "s_mov_b32 s63, s59")
        if "e1pre" in self.x:
            self.c("the partial outputs of batches 0..2 were published long ago")
            self.masked_gather(grp, T, init=(0x0fff0fff, 0x0fff0fff), care=(0x0fff0fff, 0x0fff0fff), sleep=8)
        self.lds_wait(VFL, F_VE, 8, 1, sleep=2)
        self.stamp(8)
        if "wbve" in self.x:
            e("s_mov_b32 s58, s62", "s_mov_b32 s59, s63")
            wb_issue()
            e("s_mov_b32 s62, s58", "s_mov_b32 s63, s59")
            self.c("(the descriptor registers become the lane masks of the gather: the loads above have been issued)")
        if "e1pre" in self.x:
            self.masked_gather(grp, T, init=(0xf000f000, 0xf000f000), care=(0xf000f000, 0xf000f000))
            if "wbve" in self.x:
                wb_perm()
        else:
            self.masked_gather(grp, T)
        self.stamp(9)
        for ss in range(4):
            for p in range(3):
                e(f"v_add_f32 {v(OV+3*ss+p)}, {v(GB_+4*ss+p)}, {v(GB_+16+4*ss+p)}")
        for perm in ("[1,0,3,2]", "[2,3,0,1]"):
            for k in range(12):
                e(f"v_add_f32_dpp {v(OV+k)}, {v(OV+k)}, {v(OV+k)} quad_perm:{perm} row_mask:0xf bank_mask:0xf")
        for k in range(6):
            e(f"v_cvt_pk_bf16_f32 {v(AB+k)}, {v(OV+2*k)}, {v(OV+2*k+1)}")
        e("s_nop 0")
        DB = GB_
        for sg in range(3):
            for cc in range(8):
                c = "0" if sg == 0 else vr(DB+4*cc, 4)
                e(f"v_mfma_f32_16x16x16_bf16 {vr(DB+4*cc,4)}, {vr(AB+2*sg,2)}, {vr(WB+16*sg+2*cc,2)}, {c}")
        e("s_nop 1")
        for cc in range(8):
            e(f"v_mov_b32 {v(OV+cc)}, {v(DB+4*cc)}")
            if cc < 7:
                pass
        e(f"ds_write_b128 v5, {vr(OV,4)}", f"ds_write_b128 v5, {vr(OV+4,4)} offset:16", "s_waitcnt lgkmcnt(0)", "s_barrier")
        for ww in range(4):
            e(f"ds_read_b64 {vr(OV+2*ww,2)}, v9 offset:{RED2+2048*ww}")
        e("s_waitcnt lgkmcnt(2)", f"v_pk_add_f32 {vr(OV,2)}, {vr(OV,2)}, {vr(OV+2,2)}",
          "s_waitcnt lgkmcnt(0)", f"v_pk_add_f32 {vr(OV+4,2)}, {vr(OV+4,2)}, {vr(OV+6,2)}",
          f"v_add_f32 {v(FQ)}, {v(OV)}, {v(OV+4)}", f"v_add_f32 {v(FQ+2)}, {v(OV+1)}, {v(OV+5)}",
          f"buffer_store_dwordx4 {vr(FQ,4)}, v10, {sr(SRD_WS,4)}, s64 offen sc1")
        self.stamp(10)
        e(f"s_branch {ldone}")
        self.label(lhi2)
        lnd = self.new("nd")
        e("s_cmp_eq_u32 s69, 2", f"s_cbranch_scc0 {lnd}")
        self.c("---- stage D: hh @ w_down, residual, output")
        X1R = 34
        HGA, HGB = 204, 228
        e(f"v_mov_b32 v32, {v(GBR)}")
        e("v_lshrrev_b32 v6, 4, v1", f"v_mul_u32_u24 v6, {320*8}, v6", "v_and_b32 v7, 15, v1", "v_lshl_add_u32 v4, v7, 3, v6",
          "s_lshl_b32 s64, s68, 7", "s_and_b32 s65, s68, 3", "s_mul_i32 s65, s65, 10240", "s_add_u32 s64, s64, s65",
          f"s_add_u32 s64, s64, {X1BUF}")
        for i in range(6):
            e(f"v_add_u32 v6, {64*i}, v1", "v_mul_u32_u24 v7, 683, v6", "v_lshrrev_b32 v7, 16, v7",
              "v_mul_u32_u24 v8, 96, v7", "v_sub_u32 v8, v6, v8", f"v_mul_u32_u24 v7, {768*8}, v7",
              f"v_lshl_add_u32 {v(16+i)}, v8, 4, v7")
        e(f"s_mul_i32 s62, {s(S_W)}, {192*8}", f"s_add_u32 s62, s62, {HBUF}")
        if self.RH > 1:
            e("s_and_b32 s63, s68, 1", f"s_mul_i32 s63, s63, {HBUF2-HBUF}", "s_add_u32 s62, s62, s63")
        e(f"s_mul_i32 s63, {s(S_W)}, 3072", f"s_add_u32 s63, s63, {HST}", "v_lshlrev_b32 v6, 3, v1", "v_add_u32 v5, s63, v6",
          "v_and_b32 v7, 15, v1", "v_lshrrev_b32 v7, 2, v7", "v_mul_u32_u24 v7, 768, v7", "v_lshrrev_b32 v8, 4, v1",
          "v_lshl_add_u32 v7, v8, 4, v7", "v_add_u32 v9, s63, v7",
          f"s_lshl_b32 s63, {s(S_W)}, 9", f"s_add_u32 s63, s63, {RED2+8192}", "v_add_u32 v10, s63, v6",
          "v_mov_b32 v11, v6",
          "v_lshrrev_b32 v6, 4, v1", "v_mul_u32_u24 v6, 1280, v6", "v_and_b32 v7, 15, v1", "v_lshl_add_u32 v12, v7, 2, v6",
          "s_lshl_b32 s65, s68, 6")
        self.srd(SRD_B, S_OUT, 5120)
        self.lds_wait(VFL, F_VE, 8, 1, sleep=2)
        self.stamp(8)
        if "defer" in self.x:
            self.c("second half of the weight slice: while the attention tail runs elsewhere")
            e("s_mov_b32 s58, s62")
            load_heavy(1)
            e("s_mov_b32 s62, s58")
        def ld_x1d():
            e(f"buffer_load_dwordx2 {vr(X1R,2)}, v4, {sr(SRD_WS,4)}, s64 offen sc1")
        self.poll(ld_x1d, [X1R+1], T, T+1, sleep=3)
        self.stamp(11)
        def ld_h(base):
            def f():
                for i in range(6):
                    e(f"buffer_load_dwordx4 {vr(base+4*i,4)}, {v(16+i)}, {sr(SRD_WS,4)}, s62 offen sc1")
            return f
        def use_h(base):
            def f():
                for i in range(6):
                    e(f"v_mov_b32 {v(base+4*i+1)}, {v(base+4*i+2)}", f"ds_write_b64 v5, {vr(base+4*i,2)} offset:{512*i}")
            return f
        if "e4g" in self.x:
            self.c("gate on the first sixth of this wave's slice, then fetch the rest")
            def ld_h0():
                e(f"buffer_load_dwordx4 {vr(HGA,4)}, {v(16)}, {sr(SRD_WS,4)}, s62 offen sc1")
            self.poll(ld_h0, [HGA+1, HGA+3], T, T+1)
            def ld_hr():
                for i in range(1, 6):
                    e(f"buffer_load_dwordx4 {vr(HGA+4*i,4)}, {v(16+i)}, {sr(SRD_WS,4)}, s62 offen sc1")
            self.poll(ld_hr, [HGA+4*i+k for i in range(1, 6) for k in (1, 3)], T, T+1)
            use_h(HGA)()
        elif "e4s" in self.x:
            self.poll(ld_h(HGA), [HGA+4*i+k for i in range(6) for k in (1, 3)], T, T+1, sleep=self.e4sleep)
            use_h(HGA)()
        elif "e4m" in self.x:
            def ld_h2(k):
                def f():
                    for i in (2*k, 2*k+1):
                        e(f"buffer_load_dwordx4 {vr(HGA+4*i,4)}, {v(16+i)}, {sr(SRD_WS,4)}, s62 offen sc1")
                return f
            self.masked_gather([(sp, ld_h2(k), [HGA+8*k+1, HGA+8*k+3, HGA+8*k+5, HGA+8*k+7]) for k, sp in enumerate((36, 38, 48))], T)
            use_h(HGA)()
        else:
            self.poll2(ld_h(HGA), [HGA+4*i+k for i in range(6) for k in (1, 3)], use_h(HGA),
                       ld_h(HGB), [HGB+4*i+k for i in range(6) for k in (1, 3)], use_h(HGB), 6, T)
        self.stamp(12)
        AD = 36
        for ks in range(9):
            e(f"ds_read_b128 {vr(AD+4*ks,4)}, v9 offset:{64*ks}")
        DD2 = 24
        for ks in range(12):
            e(f"s_waitcnt lgkmcnt({min(8, 11-ks)})")
            for hi in range(2):
                c = "0" if ks == 0 else vr(DD2+4*hi, 4)
                e(f"v_mfma_f32_16x16x32_bf16 {vr(DD2+4*hi,4)}, {vr(AD+4*ks,4)}, {vr(WD+8*ks+4*hi,4)}, {c}")
            if ks + 9 < 12:
                e(f"ds_read_b128 {vr(AD+4*(ks+9),4)}, v9 offset:{64*(ks+9)}")
        e("s_nop 7", f"v_mov_b32 {v(DD2+1)}, {v(DD2+4)}", f"ds_write_b64 v10, {vr(DD2,2)}", "s_waitcnt lgkmcnt(0)", "s_barrier")
        e(f"s_cmp_eq_u32 {s(S_W)}, 0", f"s_cbranch_scc0 {ldone}")
        R = 12+4
        for ww in range(4):
            e(f"ds_read_b64 {vr(R+2*ww,2)}, v11 offset:{RED2+8192+512*ww}")
        self.unpack(24, 25, 32)
        self.unpack(26, 27, X1R)
        e("s_waitcnt lgkmcnt(2)", f"v_pk_add_f32 {vr(R,2)}, {vr(R,2)}, {vr(R+2,2)}",
          "s_waitcnt lgkmcnt(0)", f"v_pk_add_f32 {vr(R+4,2)}, {vr(R+4,2)}, {vr(R+6,2)}",
          f"v_pk_add_f32 {vr(R,2)}, {vr(R,2)}, {vr(R+4,2)}")
        self.round2(R, R+1, T)
        e(f"v_pk_mul_f32 {vr(R,2)}, {vr(R,2)}, v[24:25]")
        self.round2(R, R+1, T)
        e(f"v_pk_add_f32 {vr(R,2)}, {vr(R,2)}, v[26:27]", f"v_cvt_pk_bf16_f32 {v(R)}, {v(R)}, {v(R+1)}",
          f"buffer_store_dword {v(R)}, v12, {sr(SRD_B,4)}, s65 offen" + (" sc1" if "outsc1" in self.x else ""))
        self.c("the workgroup with d == 0 leaves this launch's tag for the next launch")
        e("s_cmp_eq_u32 s68, 0", f"s_cbranch_scc0 {ldone}",
          f"v_mov_b32 v6, {WS_EPOCH}", f"v_mov_b32 v7, {s(S_TAG)}", "s_mov_b64 exec, 1",
          f"buffer_store_dword v7, v6, {sr(SRD_WS,4)}, 0 offen sc1", "s_mov_b64 exec, -1")
        e(f"s_branch {ldone}")
        self.label(lnd)
        lnr2 = self.new("nr2")
        e("s_cmp_eq_u32 s70, 1", f"s_cbranch_scc0 {lnr2}")
        self.c("---- reducer: sum 32 head partials, residual, publish x1")
        RGm = 184
        e("v_lshlrev_b32 v4, 4, v1", "s_lshl_b32 s62, s71, 13", f"s_add_u32 s62, s62, {ABUF}", "s_add_u32 s63, s62, 4096",
          "v_lshrrev_b32 v6, 4, v1", "v_mul_u32_u24 v6, 10240, v6", "v_and_b32 v7, 15, v1", "v_lshl_add_u32 v5, v7, 3, v6",
          "s_and_b32 s64, s71, 3", f"s_mul_i32 s64, s64, {320*8}", "s_lshr_b32 s65, s71, 2", "s_lshl_b32 s65, s65, 7",
          "s_add_u32 s64, s64, s65", f"s_add_u32 s64, s64, {X1BUF}", f"v_mov_b32 v21, {s(S_TAG)}")
        self.unpack(24, 25, RG)
        self.unpack(26, 27, RX)
        self.lds_wait(VFL, F_VE, 8, 1, sleep=2)
        self.stamp(8)
        if "rgate" in self.x:
            self.c("gate: one of four heads has published its projection for these columns")
            lg, lgd = self.new("rg"), self.new("rgd")
            e("v_lshlrev_b32 v6, 3, v1", f"v_add_u32 v6, {s(S_H)}, v6", "v_and_b32 v6, 31, v6", "v_lshlrev_b32 v6, 8, v6", "s_mov_b64 exec, 15")
            self.label(lg)
            e(f"buffer_load_dwordx2 v[14:15], v6, {sr(SRD_WS,4)}, s62 offen sc1", "s_waitcnt vmcnt(0)",
              f"v_cmp_eq_u32 vcc, {s(S_TAG)}, v15", "s_nop 1", f"s_cbranch_vccnz {lgd}", "s_sleep 2")
            self.spin_check()
            e(f"s_branch {lg}")
            self.label(lgd)
            e("s_mov_b64 exec, -1")
        def ld_a(k):
            def f():
                for i in (2*k, 2*k+1):
                    e(f"buffer_load_dwordx4 {vr(RGm+4*i,4)}, v4, {sr(SRD_WS,4)}, {'s63' if i>=4 else 's62'} offen offset:{1024*(i&3)} sc1")
            return f
        self.masked_gather([(sp, ld_a(k), [RGm+8*k+1, RGm+8*k+3, RGm+8*k+5, RGm+8*k+7]) for k, sp in enumerate((36, 38, 44, 46))], T)
        self.stamp(9)
        a0, a1 = 16, 17
        e(f"v_add_f32 {v(a0)}, {v(RGm)}, {v(RGm+4)}", f"v_add_f32 {v(a1)}, {v(RGm+2)}, {v(RGm+6)}",
          f"v_add_f32 v18, {v(RGm+8)}, {v(RGm+12)}", f"v_add_f32 v19, {v(RGm+10)}, {v(RGm+14)}")
        for i in (4, 5):
            e(f"v_add_f32 {v(a0)}, {v(a0)}, {v(RGm+4*i)}", f"v_add_f32 {v(a1)}, {v(a1)}, {v(RGm+4*i+2)}",
              f"v_add_f32 v18, v18, {v(RGm+4*(i+2))}", f"v_add_f32 v19, v19, {v(RGm+4*(i+2)+2)}")
        e(f"v_pk_add_f32 {vr(a0,2)}, {vr(a0,2)}, v[18:19]")
        for swp in ("v_permlane16_swap_b32", "v_permlane32_swap_b32"):
            e(f"v_mov_b32 v18, {v(a0)}", f"v_mov_b32 v19, {v(a1)}", "s_nop 1",
              f"{swp} v18, {v(a0)}", f"{swp} v19, {v(a1)}",
              f"v_pk_add_f32 {vr(a0,2)}, v[18:19], {vr(a0,2)}")
        self.round2(a0, a1, T)
        e(f"v_pk_mul_f32 {vr(a0,2)}, {vr(a0,2)}, v[24:25]")
        self.round2(a0, a1, T)
        e(f"v_pk_add_f32 {vr(a0,2)}, {vr(a0,2)}, v[26:27]",
          f"v_cvt_pk_bf16_f32 v20, {v(a0)}, {v(a1)}",
          f"buffer_store_dwordx2 v[20:21], v5, {sr(SRD_WS,4)}, s64 offen sc1")
        self.stamp(10)
        e(f"s_branch {ldone}")
        self.label(lnr2)
        e("s_cmp_eq_u32 s69, 1", f"s_cbranch_scc0 {ldone}")
        self.c("---- stage C: LN2, gate/up, hh")
        XGA, XGB = 184, 194
        TD = 204
        AC, DC = 184, 216
        e(f"s_mul_i32 s62, {s(S_W)}, {320*8}", "s_and_b32 s63, s68, 3", "s_mul_i32 s63, s63, 10240", "s_add_u32 s62, s62, s63",
          f"s_add_u32 s62, s62, {X1BUF}", "v_lshlrev_b32 v4, 3, v1",
          f"s_lshl_b32 s63, {s(S_W)}, 10", f"s_add_u32 s63, s63, {RED2}", "v_lshlrev_b32 v10, 4, v1", "v_add_u32 v11, s63, v10",
          "v_lshrrev_b32 v6, 4, v1", f"v_mul_u32_u24 v6, {768*8}, v6", "v_and_b32 v7, 15, v1", "v_lshl_add_u32 v12, v7, 3, v6",
          "s_lshl_b32 s64, s68, 7", f"s_add_u32 s64, s64, {HBUF}", f"v_mov_b32 v33, {s(S_TAG)}")
        self.lds_wait(VFL, F_VE, 8, 1, sleep=2)
        self.stamp(8)
        if "defer" in self.x:
            self.c("second half of the weight slice: while the attention tail runs elsewhere")
            e("s_mov_b32 s58, s62")
            load_heavy(1)
            e("s_mov_b32 s62, s58")
        self.c("gate: wave 0 watches the attention projection finish, then everybody polls x1")
        lg = self.new("gate")
        lng = self.new("ngate")
        if "nogate" in self.x:
            e(f"s_branch {lng}")
        e(f"s_cmp_eq_u32 {s(S_W)}, 0", f"s_cbranch_scc0 {lg}",
          "s_lshl_b32 s63, s68, 13", f"s_add_u32 s63, s63, {ABUF}", "v_lshlrev_b32 v6, 8, v1",
          "s_mov_b32 exec_lo, -1", "s_mov_b32 exec_hi, 0")
        def ld_gate():
            e(f"buffer_load_dwordx2 v[14:15], v6, {sr(SRD_WS,4)}, s63 offen sc1")
        self.poll(ld_gate, [15], T, T+1, sleep=2)
        e("s_mov_b64 exec, -1")
        self.lds_flag_set(9, F_GT, VONE)
        self.label(lg)
        self.lds_wait(9, F_GT, 8, 1, sleep=1)
        self.label(lng)
        def ld_x1(base):
            def f():
                for i in range(5):
                    e(f"buffer_load_dwordx2 {vr(base+2*i,2)}, v4, {sr(SRD_WS,4)}, s62 offen offset:{512*i} sc1")
            return f
        def use_x1(base):
            def f():
                for i in range(5):
                    self.unpack(XF+2*i, XF+2*i+1, base+2*i)
            return f
        if "e3g" in self.x:
            def ld_x0():
                e(f"buffer_load_dwordx2 {vr(XGA,2)}, v4, {sr(SRD_WS,4)}, s62 offen sc1")
            self.poll(ld_x0, [XGA+1], T, T+1)
            def ld_xr():
                for i in range(1, 5):
                    e(f"buffer_load_dwordx2 {vr(XGA+2*i,2)}, v4, {sr(SRD_WS,4)}, s62 offen offset:{512*i} sc1")
            self.poll(ld_xr, [XGA+2*i+1 for i in range(1, 5)], T, T+1)
            use_x1(XGA)()
        elif "e3s" in self.x:
            self.poll(ld_x1(XGA), [XGA+2*i+1 for i in range(5)], T, T+1)
            use_x1(XGA)()
        else:
            self.poll2(ld_x1(XGA), [XGA+2*i+1 for i in range(5)], use_x1(XGA), ld_x1(XGB), [XGB+2*i+1 for i in range(5)], use_x1(XGB), 5, T)
        self.stamp(11)
        self.ln_fast(None, XF, TD, T)
        self.modulate_fast(XF, CC1, CSH, TD, 26)
        e("s_waitcnt lgkmcnt(0)", "s_barrier")
        self.stamp(12)
        e("s_waitcnt vmcnt(0)")
        for ks in range(5):
            e(f"ds_read_b128 {vr(AC+4*ks,4)}, v5 offset:{64*ks}")
        for ks in range(5):
            e(f"s_waitcnt lgkmcnt({4-ks})")
            for mi, base in enumerate((WG, WU)):
                for hi in range(2):
                    d = DC+8*mi+4*hi
                    c = "0" if ks == 0 else vr(d, 4)
                    e(f"v_mfma_f32_16x16x32_bf16 {vr(d,4)}, {vr(AC+4*ks,4)}, {vr(base+8*ks+4*hi,4)}, {c}")
        e("s_nop 5")
        for k in range(4):
            e(f"v_mov_b32 {v(16+k)}, {v(DC+4*k)}")
        e("ds_write_b128 v11, v[16:19]", "s_waitcnt lgkmcnt(0)", "s_barrier")
        e(f"s_cmp_eq_u32 {s(S_W)}, 0", f"s_cbranch_scc0 {ldone}")
        for ww in range(4):
            e(f"ds_read_b128 {vr(AC+4*ww,4)}, v10 offset:{RED2+1024*ww}")
        e("s_waitcnt lgkmcnt(2)", f"v_pk_add_f32 {vr(AC,2)}, {vr(AC,2)}, {vr(AC+4,2)}", f"v_pk_add_f32 {vr(AC+2,2)}, {vr(AC+2,2)}, {vr(AC+6,2)}",
          "s_waitcnt lgkmcnt(0)", f"v_pk_add_f32 {vr(AC+8,2)}, {vr(AC+8,2)}, {vr(AC+12,2)}", f"v_pk_add_f32 {vr(AC+10,2)}, {vr(AC+10,2)}, {vr(AC+14,2)}",
          f"v_pk_add_f32 {vr(AC,2)}, {vr(AC,2)}, {vr(AC+8,2)}", f"v_pk_add_f32 {vr(AC+2,2)}, {vr(AC+2,2)}, {vr(AC+10,2)}",
          f"v_cvt_pk_bf16_f32 {v(T)}, {v(AC)}, {v(AC+1)}", f"v_cvt_pk_bf16_f32 {v(T+1)}, {v(AC+2)}, {v(AC+3)}")
        self.unpack(AC, AC+1, T)
        self.unpack(AC+2, AC+3, T+1)
        e(f"v_pk_mul_f32 {vr(AC,2)}, {vr(AC,2)}, {vr(AC+2,2)}", f"v_cvt_pk_bf16_f32 v32, {v(AC)}, {v(AC+1)}",
          f"buffer_store_dwordx2 v[32:33], v12, {sr(SRD_WS,4)}, s64 offen sc1")
        if self.RH > 1:
            e(f"s_add_u32 s64, s64, {HBUF2-HBUF}", f"buffer_store_dwordx2 v[32:33], v12, {sr(SRD_WS,4)}, s64 offen sc1")
        self.label(ldone)
        self.stamp(13)
        self.stamps_store()
        e("s_waitcnt vmcnt(0)", "s_endpgm")


def main():
    ap = argparse.ArgumentParser()
    ap.add_argument("-o", default="cdna_kernels/" + NAME + ".s")
    ap.add_argument("-D", type=int, default=3)
    ap.add_argument("--diag", action="store_true")
    ap.add_argument("--spin", type=int, default=400000)
    ap.add_argument("-x", default="")
    ap.add_argument("-N", type=int, default=None)
    ap.add_argument("--sv", type=int, default=16)
    ap.add_argument("--sk", type=int, default=16)
    ap.add_argument("--rot", type=int, default=0)
    ap.add_argument("--stag", default="0,32")
    ap.add_argument("--sl", type=int, default=4)
    ap.add_argument("--n2", type=int, default=None)
    ap.add_argument("--rm", type=int, default=1)
    ap.add_argument("--align", type=int, default=0)
    ap.add_argument("--nt", type=int, default=None)
    ap.add_argument("--i0", type=int, default=16)
    ap.add_argument("--e4sleep", type=int, default=0)
    ap.add_argument("-A", type=int, default=2)
    ap.add_argument("--qsleep", type=int, default=2)
    ap.add_argument("--rh", type=int, default=1)
    a = ap.parse_args()
    g = Gen(D=a.D, diag=a.diag, spin=a.spin, x=[t for t in a.x.split(',') if t], N=a.N, SV=a.sv, SK=a.sk, rot=a.rot, stag=tuple(int(t) for t in a.stag.split(',')), SL=a.sl, N2=a.n2, RM=a.rm, RH=a.rh, align=a.align, NT=a.nt, i0=a.i0, e4sleep=a.e4sleep, A=a.A, qsleep=a.qsleep)
    open(a.o, "w").write(g.build())
    print("wrote", a.o, len(g.L), "lines")


if __name__ == "__main__":
    main()
```

```python
import sys, argparse

NAME = "adaLN_cond__gqa_block_cached__glu_gated_bilinear__decode"
KERNEL = NAME + "_kernel"

WS_EPOCH = 0
MODBUF = 0x1000
QBUF   = 0x10000
X1BUF  = 0xF0000
HBUF   = 0x30000
HBUF2  = 0xFA000
MODR   = 0x300000
CNTBUF = 0x38000
ABUF   = 0x40000
MLBUF  = 0xE0000
OBUF   = 0x100000
SBUF   = 0x200000
STAMPS = 0x400000
WS_SIZE = 0x800000

RING_W = 36864
SC     = 147456
OSL    = SC + 4096
PSLOT  = SC + 7168
MISC   = 155648
AVEC   = MISC
QL     = MISC + 5120
MLH    = MISC + 6656
FLAGS  = MISC + 6784
IDQ    = MISC + 7040
CLQ    = MISC + 7104
LDS_TOTAL = 163840
F_SYNCA, F_SYNCR, F_JD, F_GT, F_QC, F_PA, F_OF, F_AL = 0, 4, 8, 12, 16, 20, 24, 28
F_KD, F_PB, F_OC, F_NV, F_NP, F_NC, F_VE = 32, 48, 64, 80, 96, 112, 128
RED2   = 0
HST    = 16384

S_X, S_K, S_V, S_WQ, S_WO, S_BX, S_G, S_U, S_DN, S_C, S_WM, S_OUT, S_DBG, S_WS = range(4, 32, 2)
S_TAG, S_W, S_H, S_J = 32, 33, 34, 35
SRD_A, SRD_WS, SRD_B, SRD_C = 36, 40, 44, 48
S_SPIN, S_SELLO, S_SELHI = 96, 97, 98
S_STAMP0 = 72

SCALE = 0x3d93cd3a
LOG2E = 0x3fb8aa3b
EPS = 0x3727c5ac
INV640 = 0x3acccccd
NINF = 0xff800000
TAGINC = 0x9E3779B9


def v(i): return f"v{i}"
def vr(i, n): return f"v[{i}:{i+n-1}]"
def s(i): return f"s{i}"
def sr(i, n): return f"s[{i}:{i+n-1}]"


class Gen:
    def __init__(self, D=3, diag=False, spin=400000, x=(), N=None, SV=16, SK=16, rot=0, stag=(0,0), SL=4, N2=None, RM=1, RH=1, align=0, NT=None, i0=16, e4sleep=0, A=2, qsleep=2, NP=None, DD=None):
        self._DD = DD
        self.NP = NP
        self.qsleep = qsleep
        self.A = A
        self.e4sleep = e4sleep
        self.i0 = i0
        self._NT = NT
        self.align = align
        self.RM = RM
        self.RH = RH
        self.SL = SL
        self.N2 = N2
        self.rot = rot
        self.stag = stag
        self.SV = SV
        self.SK = SK
        self.x = set(x)
        self.N = 3*(D-1) if N is None else N
        if N is not None:
            D = (N + 3 + 2)//3
        self.L = []
        self.nl = 0
        self.D = D if self._DD is None else self._DD
        if self._DD is not None:
            assert NP is not None and NP + 1 <= 3*self._DD and NT is not None and NT + 3 <= 3*self._DD
        self.NT = self.N if self._NT is None else self._NT
        self.diag = diag
        self.spin = spin
        self.nstamp = 0

    def e(self, *lines):
        for l in lines:
            self.L.append("    " + l)

    def c(self, text):
        self.L.append("    ; " + text)

    def label(self, name):
        self.L.append(name + ":")

    def new(self, base):
        self.nl += 1
        return f"L{base}_{self.nl}"

    def srd(self, dst, ptr, size):
        self.e(f"s_mov_b32 {s(dst)}, {s(ptr)}",
               f"s_and_b32 {s(dst+1)}, {s(ptr+1)}, 0xffff",
               f"s_mov_b32 {s(dst+2)}, {size}",
               f"s_mov_b32 {s(dst+3)}, 0x20000")

    def stamp(self, k):
        if not self.diag:
            return
        assert k < 16
        self.e("s_memrealtime s[88:89]", "s_waitcnt lgkmcnt(0)", f"s_mov_b32 {s(S_STAMP0+k)}, s88")

    def stamps_store(self):
        if not self.diag:
            return
        self.e("s_mov_b64 exec, -1")
        self.e("v_mov_b32 v250, 0")
        for k in range(16):
            self.e(f"v_writelane_b32 v250, {s(S_STAMP0+k)}, {k}")
        self.e("v_mbcnt_lo_u32_b32 v251, -1, 0", "v_mbcnt_hi_u32_b32 v251, -1, v251",
               "v_lshlrev_b32 v251, 2, v251",
               "s_lshl_b32 s88, s99, 6", f"s_add_u32 s88, s88, {STAMPS}",
               "s_mov_b64 exec, 0xffff",
               f"buffer_store_dword v250, v251, {sr(SRD_WS,4)}, s88 offen",
               "s_waitcnt vmcnt(0)")

    def tag_load(self):
        self.e(f"s_load_dword {s(S_TAG)}, {sr(S_WS,2)}, {WS_EPOCH}")
        if self.diag:
            self.e("s_memrealtime s[100:101]")

    def tag_ready(self):
        self.e("s_waitcnt lgkmcnt(0)", f"s_add_u32 {s(S_TAG)}, {s(S_TAG)}, {hex(TAGINC)}")
        if self.diag:
            self.e(f"s_mov_b32 {s(S_STAMP0)}, s100")

    def start_sync(self, streamer):
        self.e("s_barrier")

    def spin_check(self):
        self.e(f"s_sub_u32 {s(S_SPIN)}, {s(S_SPIN)}, 1", "s_cbranch_scc1 Labort")

    def allreduce(self, op, x, t):
        for r in (8, 4, 2, 1):
            self.e("s_nop 1", f"v_{op}_f32_dpp {v(x)}, {v(x)}, {v(x)} row_ror:{r} row_mask:0xf bank_mask:0xf")
        self.e(f"v_mov_b32 {v(t)}, {v(x)}", "s_nop 1", f"v_permlane16_swap_b32 {v(t)}, {v(x)}",
               f"v_{op}_f32 {v(x)}, {v(t)}, {v(x)}")
        self.e(f"v_mov_b32 {v(t)}, {v(x)}", "s_nop 1", f"v_permlane32_swap_b32 {v(t)}, {v(x)}",
               f"v_{op}_f32 {v(x)}, {v(t)}, {v(x)}")

    def unpack(self, lo, hi, src):
        self.e(f"v_lshlrev_b32 {v(lo)}, 16, {v(src)}", f"v_and_b32 {v(hi)}, 0xffff0000, {v(src)}")

    def round2(self, a, b, t):
        self.e(f"v_cvt_pk_bf16_f32 {v(t)}, {v(a)}, {v(b)}")
        self.unpack(a, b, t)

    def lds_flag_set(self, vfl, off, vone):
        self.e("s_mov_b64 exec, 1", f"ds_write_b32 {v(vfl)}, {v(vone)} offset:{off}", "s_mov_b64 exec, -1")

    def lds_wait(self, vfl, off, vt, target, sleep=1, body=None):
        l = self.new("w")
        d = self.new("wd")
        self.label(l)
        if body:
            body()
        self.e(f"ds_read_b32 {v(vt)}, {v(vfl)} offset:{off}", "s_waitcnt lgkmcnt(0)",
               f"v_readfirstlane_b32 s90, {v(vt)}", "s_nop 0",
               f"s_cmp_ge_u32 s90, {target}", f"s_cbranch_scc1 {d}")
        if sleep:
            self.e(f"s_sleep {sleep}")
        self.spin_check()
        self.e(f"s_branch {l}")
        self.label(d)

    def lds_wait_gt(self, vfl, off, vt, sreg, sleep=1, body=None):
        l, d = self.new("w"), self.new("wd")
        self.label(l)
        self.e(f"ds_read_b32 {v(vt)}, {v(vfl)} offset:{off}", "s_waitcnt lgkmcnt(0)",
               f"v_readfirstlane_b32 s90, {v(vt)}", "s_nop 0",
               f"s_cmp_gt_u32 s90, {s(sreg)}", f"s_cbranch_scc1 {d}")
        if body:
            body()
        if sleep:
            self.e(f"s_sleep {sleep}")
        self.spin_check()
        self.e(f"s_branch {l}")
        self.label(d)

    def sync4(self, vfl, off, vone, vt):
        self.e("s_mov_b64 exec, 1", f"ds_add_u32 {v(vfl)}, {v(vone)} offset:{off}", "s_mov_b64 exec, -1")
        self.lds_wait(vfl, off, vt, 4, sleep=0)

    def tagcheck(self, regs, acc, tmp, retry):
        first = True
        i = 0
        while i < len(regs):
            if first:
                self.e(f"v_xor_b32 {v(acc)}, {s(S_TAG)}, {v(regs[i])}")
                first = False
                i += 1
            elif i + 1 < len(regs):
                self.e(f"v_xor_b32 {v(tmp)}, {s(S_TAG)}, {v(regs[i])}",
                       f"v_xor_b32 {v(tmp+1)}, {s(S_TAG)}, {v(regs[i+1])}",
                       f"v_or3_b32 {v(acc)}, {v(acc)}, {v(tmp)}, {v(tmp+1)}")
                i += 2
            else:
                self.e(f"v_xor_b32 {v(tmp)}, {s(S_TAG)}, {v(regs[i])}",
                       f"v_or_b32 {v(acc)}, {v(acc)}, {v(tmp)}")
                i += 1
        self.e(f"v_cmp_ne_u32 vcc, 0, {v(acc)}", "s_nop 1", f"s_cbranch_vccnz {retry}")

    def poll(self, loads, tags, acc, tmp, sleep=0):
        l = self.new("poll")
        r = self.new("pollr")
        d = self.new("polld")
        self.e(f"s_branch {l}")
        self.label(r)
        if sleep:
            self.e(f"s_sleep {sleep}")
        self.spin_check()
        self.label(l)
        loads()
        self.e("s_waitcnt vmcnt(0)")
        self.tagcheck(tags, acc, tmp, r)
        self.label(d)

    def build(self):
        e = self.e
        hdr = open("cdna_kernels/" + NAME + ".s.ref").read().split("\n")
        for l in hdr:
            if l.startswith("; Override"):
                break
            self.L.append(l)
        for l in (
            "One persistent launch: 256 workgroups (one per CU) x 8 waves. Workgroup i works on head i>>3, slot j = i&7.",
            "Waves 0-3 stream the K and then the V cache of the head through an LDS ring (LDS-DMA, 32-key tiles, MFMA);",
            "all waves of a head walk one batch row at a time. Softmax is exact and two-pass: scores stay in LDS, the true",
            "max and sum of a row are exchanged between the 32 waves, then p = bf16(exp(s - max) / sum) multiplies V.",
            "Waves 4-7 hold weight slices in registers and run the small projections: silu(c) @ w_mod, LayerNorm,",
            "h @ wq before the attention; o @ wo, residual, LayerNorm, gate * up, down projection and residual after it.",
            "Workgroups hand vectors to each other through d_ws as granules {data, tag}; the tag is derived from the word",
            "at d_ws[0] found on entry and tells this launch's hand-offs from older contents. All spins are bounded."):
            self.L.append("; " + l)
        self.L.append(f"; @launch grid=(256,1,1) block=(512,1,1) lds={LDS_TOTAL}")
        self.L.append('.amdgcn_target "amdgcn-amd-amdhsa--gfx950"')
        self.L.append(".text")
        self.L.append(f".globl {KERNEL}")
        self.L.append(".p2align 8")
        self.L.append(f".type {KERNEL},@function")
        self.label(KERNEL)
        e("s_cmp_ge_u32 s2, 256", "s_cbranch_scc1 Lexit")
        e("s_load_dwordx16 s[4:19], s[0:1], 0", "s_load_dwordx8 s[20:27], s[0:1], 64", "s_load_dwordx4 s[28:31], s[0:1], 96")
        e("v_lshrrev_b32 v2, 6, v0", "v_and_b32 v1, 63, v0", "s_nop 0", f"v_readfirstlane_b32 {s(S_W)}, v2")
        e(f"s_lshr_b32 {s(S_H)}, s2, 3", f"s_and_b32 {s(S_J)}, s2, 7")
        if self.rot:
            self.c("the workgroups of one head sit at different dispatch slots of the eight dies")
            e(f"s_mul_i32 s3, {s(S_J)}, {self.rot}", f"s_add_u32 {s(S_H)}, {s(S_H)}, s3", f"s_and_b32 {s(S_H)}, {s(S_H)}, 31")
        e(f"s_mov_b32 {s(S_SPIN)}, {self.spin}", f"s_mov_b32 {s(S_SELLO)}, 0x05040100", f"s_mov_b32 {s(S_SELHI)}, 0x07060302")
        if self.diag:
            e("s_lshl_b32 s99, s2, 3", f"s_add_u32 s99, s99, {s(S_W)}")
            for k in range(16):
                e(f"s_mov_b32 {s(S_STAMP0+k)}, 0")
        e(f"s_cmp_ge_u32 {s(S_W)}, 4", "s_cbranch_scc1 Lhelper")
        self.streamer()
        self.label("Lhelper")
        self.helper()
        self.label("Labort")
        self.c("spin budget exhausted: leave a mark in d_debug and stop")
        e("s_mov_b64 exec, 1", "v_mov_b32 v2, 0", "v_mov_b32 v3, 0xdead",
          f"global_store_dword v2, v3, {sr(S_DBG,2)}", "s_waitcnt vmcnt(0)")
        self.label("Lexit")
        e("s_endpgm")
        self.L.append('.section .rodata,"a"')
        self.L.append(".p2align 6")
        self.L.append(f".amdhsa_kernel {KERNEL}")
        self.L += ["  .amdhsa_next_free_vgpr 256", "  .amdhsa_next_free_sgpr 102", "  .amdhsa_accum_offset 256",
                   "  .amdhsa_group_segment_fixed_size 0", "  .amdhsa_kernarg_size 112",
                   "  .amdhsa_user_sgpr_count 2", "  .amdhsa_user_sgpr_kernarg_segment_ptr 1",
                   "  .amdhsa_system_sgpr_workgroup_id_x 1", "  .amdhsa_float_denorm_mode_32 3",
                   ".end_amdhsa_kernel"]
        return "\n".join(self.L) + "\n"

    def take_claim(self, dst):
        e = self.e
        e("s_and_b32 s63, s64, 3", "s_lshl_b32 s63, s63, 2", "s_add_u32 s63, s63, s50", "v_mov_b32 v21, s63")
        self.lds_wait_gt(18, F_NC, 22, 64)
        e("ds_read_b32 v13, v21", "s_waitcnt lgkmcnt(0)", f"v_readfirstlane_b32 {s(dst)}, v13", "s_add_u32 s64, s64, 1")

    def issue_unit(self):
        e = self.e
        SL = self.SL
        sI, sSrc, sPos, sBase, sEnd, sStop, sHb = 52, 53, 54, 55, 56, 60, 61
        sNV, sCur = 65, 71
        lmid, lstop, ldone, ldyn, lhave, lnn = (self.new(x) for x in ("im", "is", "id", "iy", "ih", "nn"))
        e(f"s_and_b32 s62, {s(sI)}, 3", f"s_cbranch_scc1 {lmid}")
        e(f"s_lshr_b32 s62, {s(sI)}, 2", f"s_cmp_lt_u32 s62, {28+SL}", f"s_cbranch_scc0 {ldyn}")
        if self.align:
            self.c("the four waves of the workgroup start every align-th item together (adjacent tiles stay close in time)")
            lal = self.new("al")
            e(f"s_and_b32 s63, s62, {self.align-1}", f"s_cbranch_scc1 {lal}", "s_cmp_eq_u32 s62, 0", f"s_cbranch_scc1 {lal}",
              "s_add_u32 s51, s51, 4", "s_sub_u32 s66, s51, 1", "s_mov_b64 exec, 1", f"ds_add_u32 v178, v19 offset:{F_AL}", "s_mov_b64 exec, -1")
            self.lds_wait_gt(178, F_AL, 13, 66, sleep=0)
            e(f"s_lshr_b32 s62, {s(sI)}, 2")
            self.label(lal)
        self.c("static item: batch (m>>2)&3, tile 32*(m&3) + 4j + w")
        e("s_and_b32 s63, s62, 3", "s_lshl_b32 s63, s63, 5", f"s_add_u32 {s(sCur)}, s63, s48",
          "s_bfe_u32 s63, s62, 0x20002", "s_cmp_lt_u32 s62, 16",
          f"s_cselect_b32 {s(SRD_A)}, {s(S_K)}, {s(S_V)}", f"s_cselect_b32 {s(SRD_A+1)}, s92, s93", f"s_branch {lhave}")
        self.label(ldyn)
        if SL == 4:
            e(f"s_branch {lstop}")
        else:
            self.take_claim(sCur)
            e(f"s_cmp_ge_u32 {s(sCur)}, {32*(4-SL)}", f"s_cbranch_scc1 {lstop}", f"s_add_u32 {s(sCur)}, {s(sCur)}, {32*SL}",
              "s_mov_b32 s63, 3", f"s_lshr_b32 s62, {s(sI)}, 2")
        self.label(lhave)
        e("s_mul_i32 s63, s63, 50331648", f"s_add_u32 {s(sSrc)}, {s(sHb)}, s63",
          f"s_add_u32 s63, {s(sCur)}, s49", "s_and_b32 s63, s63, 127", "s_mul_i32 s63, s63, 12288", f"s_add_u32 {s(sSrc)}, {s(sSrc)}, s63")
        if SL < 4:
            self.c("from two items before the pool on, the helper follows the item starts")
            e(f"s_cmp_ge_u32 s62, {28-self.A+SL}", f"s_cbranch_scc0 {lmid}",
              f"s_and_b32 s62, {s(sNV)}, 3", "s_lshl_b32 s62, s62, 2", "s_add_u32 s62, s62, s94", "v_mov_b32 v13, s62",
              f"v_mov_b32 v21, {s(sCur)}", f"s_add_u32 {s(sNV)}, {s(sNV)}, 1", f"v_mov_b32 v22, {s(sNV)}",
              "s_mov_b64 exec, 1", "ds_write_b32 v13, v21", f"ds_write_b32 v18, v22 offset:{F_NV}", "s_mov_b64 exec, -1")
        self.label(lmid)
        if self.N2 is not None:
            lw1, lw2 = self.new("n1"), self.new("n2")
            e(f"s_cmp_lt_u32 {s(sI)}, {4*(28+SL)}", f"s_cbranch_scc1 {lw1}", f"s_waitcnt vmcnt({self.N2})", f"s_branch {lw2}")
            self.label(lw1)
            e(f"s_waitcnt vmcnt({self.N})")
            self.label(lw2)
        else:
            e(f"s_waitcnt vmcnt({self.N})")
        pw = (lambda: e(f"s_waitcnt vmcnt({self.NP})")) if self.NP is not None else (lambda: None)
        e(f"s_mov_b32 m0, {s(sPos)}",
          f"s_add_u32 {s(sPos)}, {s(sPos)}, 3072",
          f"buffer_load_dwordx4 v2, {sr(SRD_A,4)}, {s(sSrc)} offen nt lds")
        if self.NP is not None:
            self.piece_wait(sI, SL)
        e(f"buffer_load_dwordx4 v3, {sr(SRD_A,4)}, {s(sSrc)} offen offset:1024 nt lds")
        if self.NP is not None:
            self.piece_wait(sI, SL)
        e(f"buffer_load_dwordx4 v4, {sr(SRD_A,4)}, {s(sSrc)} offen offset:2048 nt lds",
          f"s_cmp_eq_u32 {s(sPos)}, {s(sEnd)}", f"s_cselect_b32 {s(sPos)}, {s(sBase)}, {s(sPos)}",
          f"s_add_u32 {s(sSrc)}, {s(sSrc)}, 3072",
          f"s_add_u32 {s(sI)}, {s(sI)}, 1", f"s_branch {ldone}")
        self.label(lstop)
        e(f"s_mov_b32 {s(sStop)}, 1")
        if SL < 4:
            e(f"s_and_b32 s62, {s(sNV)}, 3", "s_lshl_b32 s62, s62, 2", "s_add_u32 s62, s62, s94", "v_mov_b32 v13, s62",
              "v_mov_b32 v21, 0xffff", f"s_add_u32 {s(sNV)}, {s(sNV)}, 1", f"v_mov_b32 v22, {s(sNV)}",
              "s_mov_b64 exec, 1", "ds_write_b32 v13, v21", f"ds_write_b32 v18, v22 offset:{F_NV}", "s_mov_b64 exec, -1")
        self.label(ldone)

    def piece_wait(self, sI, SL):
        l = self.new("pw")
        self.e(f"s_cmp_lt_u32 {s(sI)}, {4*(28+SL)}", f"s_cbranch_scc0 {l}", f"s_waitcnt vmcnt({self.NP})")
        self.label(l)

    def try_issue(self, burst=False):
        if "try" not in self.x:
            return
        e = self.e
        NT, NW = (9, 9) if burst else (self.NT, self.N)
        sI, sSrc, sPos, sBase, sEnd = 52, 53, 54, 55, 56
        l = self.new("ti")
        e("s_getreg_b32 s63, hwreg(HW_REG_IB_STS, 0, 4)", f"s_cmp_le_u32 s63, {NT}", f"s_cbranch_scc0 {l}",
          f"s_and_b32 s63, {s(sI)}, 3", f"s_cbranch_scc0 {l}",
          f"s_waitcnt vmcnt({NW})", f"s_mov_b32 m0, {s(sPos)}", f"s_add_u32 {s(sPos)}, {s(sPos)}, 3072",
          f"buffer_load_dwordx4 v2, {sr(SRD_A,4)}, {s(sSrc)} offen nt lds",
          f"buffer_load_dwordx4 v3, {sr(SRD_A,4)}, {s(sSrc)} offen offset:1024 nt lds",
          f"buffer_load_dwordx4 v4, {sr(SRD_A,4)}, {s(sSrc)} offen offset:2048 nt lds",
          f"s_cmp_eq_u32 {s(sPos)}, {s(sEnd)}", f"s_cselect_b32 {s(sPos)}, {s(sBase)}, {s(sPos)}",
          f"s_add_u32 {s(sSrc)}, {s(sSrc)}, 3072", f"s_add_u32 {s(sI)}, {s(sI)}, 1")
        self.label(l)

    def try2(self):
        if "try2" in self.x:
            self.try_issue()

    def streamer(self):
        e = self.e
        D, SL = self.D, self.SL
        sI, sSrc, sPos, sBase, sEnd, sN, sTile, sTgt, sStop, sHb = 52, 53, 54, 55, 56, 57, 58, 59, 60, 61
        sNV, sPN, sCur = 65, 69, 71
        QF, KF, D0, ACC, PF = 24, 48, 96, 104, 152
        X, T = 156, 164
        vSo, vQa, vOw, vOr, vFl = 180, 181, 182, 183, 178
        Q = 184
        M, Lr, E = 192, 193, 196
        self.c("================= streamer wave =================")
        self.c("DMA source offsets (xor swizzle of 16-byte chunks inside each row)")
        for i in range(3):
            e(f"v_add_u32 v13, {64*i}, v1", "v_mul_u32_u24 v14, 2731, v13", "v_lshrrev_b32 v14, 16, v14",
              "v_mul_u32_u24 v15, 24, v14", "v_sub_u32 v15, v13, v15", "v_and_b32 v16, 7, v14",
              "v_xor_b32 v15, v15, v16", "v_mul_u32_u24 v14, 384, v14", f"v_lshl_add_u32 {v(2+i)}, v15, 4, v14")
            if i:
                e(f"v_subrev_u32 {v(2+i)}, {1024*i}, {v(2+i)}")
        self.c("K fragment addresses")
        e("v_and_b32 v13, 15, v1", "v_lshrrev_b32 v14, 4, v1", "v_and_b32 v15, 7, v13", "v_mul_u32_u24 v13, 384, v13")
        for x in range(2):
            e(f"v_add_u32 v16, {4*x}, v14", "v_xor_b32 v16, v16, v15", f"v_lshl_add_u32 {v(5+x)}, v16, 4, v13")
        self.c("V fragment addresses")
        e("v_lshrrev_b32 v13, 2, v1", "v_and_b32 v15, 7, v13", "v_mul_u32_u24 v13, 384, v13",
          "v_and_b32 v16, 1, v1", "v_lshl_add_u32 v13, v16, 3, v13", "v_bfe_u32 v16, v1, 1, 1")
        for u in range(4):
            e(f"v_add_u32 v17, {2*u}, v16", "v_xor_b32 v17, v17, v15", f"v_lshl_add_u32 {v(7+u)}, v17, 4, v13")
        self.c("score / probability / q / partial output addresses, flags")
        e("v_lshlrev_b32 v13, 4, v14",
          f"s_lshl_b32 s62, {s(S_W)}, 8", f"s_add_u32 s62, s62, {PSLOT}", "v_add_u32 v12, s62, v13",
          f"s_lshl_b32 s62, {s(S_W)}, 10", f"s_add_u32 s62, s62, {SC}", f"v_add_u32 {v(vSo)}, s62, v13",
          f"v_add_u32 {v(vQa)}, {QL}, v13",
          f"s_mul_i32 s62, {s(S_W)}, 768", f"s_add_u32 s62, s62, {OSL}",
          "v_and_b32 v15, 15, v1", "v_lshlrev_b32 v15, 2, v15", f"v_add_u32 {v(vOw)}, s62, v15",
          "v_mul_u32_u24 v15, 12, v1", f"v_add_u32 {v(vOr)}, {OSL}, v15",
          f"s_lshl_b32 s63, {s(S_W)}, 2", f"s_add_u32 s63, s63, {FLAGS}",
          "v_mov_b32 v18, s63", "v_mov_b32 v19, 1", f"v_mov_b32 {v(vFl)}, {FLAGS}")
        self.c("the kernel arguments have arrived by now")
        e(f"s_mul_i32 {s(sHb)}, {s(S_H)}, 1572864",
          f"s_lshl_b32 s94, {s(S_W)}, 4", f"s_add_u32 s50, s94, {CLQ}", f"s_add_u32 s94, s94, {IDQ}",
          f"s_lshl_b32 s48, {s(S_J)}, 2", f"s_add_u32 s48, s48, {s(S_W)}",
          f"s_mul_i32 s49, {s(S_H)}, {self.stag[1]}", "s_mov_b32 s64, 0", "s_mov_b32 s51, 0")
        e(f"s_mov_b32 {s(sSrc)}, 0", f"s_mov_b32 {s(sI)}, 0", f"s_mul_i32 {s(sBase)}, {s(S_W)}, {RING_W}",
          f"s_mov_b32 {s(sPos)}, {s(sBase)}", f"s_add_u32 {s(sEnd)}, {s(sBase)}, {RING_W}",
          f"s_mov_b32 {s(sTile)}, {s(sBase)}", f"s_mov_b32 {s(sStop)}, 0",
          f"s_mov_b32 {s(sNV)}, 0", f"s_mov_b32 {s(sPN)}, 0", f"s_mov_b32 {s(sN)}, 0", f"s_mov_b32 {s(sCur)}, 0")
        e("s_waitcnt lgkmcnt(0)")
        self.srd(SRD_WS, S_WS, WS_SIZE)
        self.tag_load()
        e(f"s_and_b32 s92, {s(S_K+1)}, 0xffff", f"s_and_b32 s93, {s(S_V+1)}, 0xffff")
        self.srd(SRD_A, S_K, 201326592)
        e("s_barrier")
        self.c("---- fill the ring while the helpers fetch q")
        l0, l0d = self.new("f0"), self.new("f0d")
        self.label(l0)
        e(f"s_cmp_lt_u32 {s(sI)}, {4+D}", f"s_cbranch_scc0 {l0d}")
        self.issue_unit()
        e(f"s_branch {l0}")
        self.label(l0d)
        if "preread" in self.x:
            self.c("tile 0 has landed: its fragments move to registers, which frees its ring slot for a fourth tile")
            e(f"v_add_u32 v14, {s(sTile)}, v5", f"v_add_u32 v15, {s(sTile)}, v6")
            for ks in range(6):
                for blk in range(2):
                    e(f"ds_read_b128 {vr(KF+8*ks+4*blk,4)}, {v(14+(ks&1))} offset:{blk*6144+(ks>>1)*128}")
        for i in range(48):
            e(f"v_mov_b32 {v(ACC+i)}, 0")
        lf, lfd, lfn = self.new("f"), self.new("fd"), self.new("fn")
        self.label(lf)
        e(f"ds_read_b64 v[14:15], {v(vFl)} offset:{F_QC}", f"ds_read_b32 v16, {v(vFl)} offset:{F_JD}", "s_waitcnt lgkmcnt(0)",
          "v_readfirstlane_b32 s90, v14", "v_readfirstlane_b32 s62, v15", "v_readfirstlane_b32 s63, v16", "s_nop 0",
          "s_lshl_b32 s63, s63, 2", "s_and_b32 s63, s63, s90")
        if "fullring" in self.x:
            e(f"s_cmp_eq_u32 {s(sI)}, 12", "s_cselect_b32 s63, s63, 0")
        e("s_cmp_eq_u32 s63, 4", f"s_cbranch_scc1 {lfd}",
          "s_cmp_eq_u32 s62, 0", f"s_cbranch_scc0 {lfn}",
          f"s_cmp_lt_u32 {s(sI)}, {16 if 'preread' in self.x else 12}", f"s_cbranch_scc0 {lfn}")
        self.issue_unit()
        e(f"s_branch {lf}")
        self.label(lfn)
        e("s_sleep 1")
        self.spin_check()
        e(f"s_branch {lf}")
        self.label(lfd)
        self.tag_ready()
        self.stamp(2)

        def runahead():
            l = self.new("ra")
            e(f"s_lshl_b32 s62, {s(sN)}, 2", "s_add_u32 s62, s62, 12", f"s_cmp_lt_u32 {s(sI)}, s62", f"s_cbranch_scc0 {l}",
              f"s_cmp_eq_u32 {s(sStop)}, 0", f"s_cbranch_scc0 {l}")
            self.issue_unit()
            self.label(l)

        def finalize():
            self.c("last K tile of this batch: hand (max, sum) to the helper")
            e(f"v_mov_b32 {v(T)}, {v(M)}")
            for swp in ("v_permlane16_swap_b32", "v_permlane32_swap_b32"):
                e(f"v_mov_b32 {v(T+1)}, {v(T)}", "s_nop 1", f"{swp} {v(T+1)}, {v(T)}", f"v_max_f32 {v(T)}, {v(T+1)}, {v(T)}")
            e(f"v_sub_f32 {v(T+1)}, {v(M)}, {v(T)}", f"v_mul_f32 {v(T+1)}, {hex(LOG2E)}, {v(T+1)}",
              f"v_exp_f32 {v(T+1)}, {v(T+1)}", "s_nop 0", f"v_mul_f32 {v(Lr)}, {v(Lr)}, {v(T+1)}")
            for swp in ("v_permlane16_swap_b32", "v_permlane32_swap_b32"):
                e(f"v_mov_b32 {v(T+1)}, {v(Lr)}", "s_nop 1", f"{swp} {v(T+1)}, {v(Lr)}", f"v_add_f32 {v(Lr)}, {v(T+1)}, {v(Lr)}")
            e(f"v_mov_b32 {v(E)}, {v(T)}", f"v_mov_b32 {v(E+1)}, {v(Lr)}",
              f"s_lshr_b32 s63, {s(sN)}, 2", f"s_lshl_b32 s62, {s(S_W)}, 2", "s_add_u32 s62, s62, s63", "s_lshl_b32 s62, s62, 3",
              f"s_add_u32 s62, s62, {MLH}", "v_mov_b32 v13, s62", "s_add_u32 s63, s63, 1", "v_mov_b32 v14, s63",
              "s_mov_b64 exec, 1", f"ds_write_b64 v13, {vr(E,2)}", f"ds_write_b32 v18, v14 offset:{F_KD}", "s_mov_b64 exec, -1")

        def flush_acc(last=False):
            self.c("partial output of this batch -> LDS; the last of the four waves sums and publishes")
            e("s_sub_u32 s66, s70, 1")
            lsk = self.new("fs")
            e("s_cmp_eq_u32 s70, 0", f"s_cbranch_scc1 {lsk}")
            self.lds_wait_gt(vFl, F_OF, 13, 66, sleep=1)
            self.label(lsk)
            e("s_lshl_b32 s62, s70, 2", f"s_add_u32 s62, s62, {FLAGS+F_OC}", "v_mov_b32 v14, s62", "s_nop 4", "s_mov_b64 exec, 0xffff")
            for t in range(12):
                e(f"ds_write_b32 {v(vOw)}, {v(ACC+4*t)} offset:{64*t}")
            if not last and "hcomb" in self.x:
                self.c("a helper wave sums the four deposits and publishes them")
                e("s_mov_b64 exec, 1", "ds_add_u32 v14, v19", "s_mov_b64 exec, -1")
                self.try_issue()
                for i in range(48):
                    e(f"v_mov_b32 {v(ACC+i)}, 0")
                return
            e("s_mov_b64 exec, 1", "ds_add_rtn_u32 v15, v14, v19", "s_mov_b64 exec, -1")
            if not last:
                self.try_issue()
                for i in range(48):
                    e(f"v_mov_b32 {v(ACC+i)}, 0")
                    if i in (15, 31, 47):
                        self.try2()
            lno = self.new("fn")
            e("s_waitcnt lgkmcnt(0)", "v_readfirstlane_b32 s62, v15", "s_nop 0", "s_cmp_eq_u32 s62, 3", f"s_cbranch_scc0 {lno}")
            self.try2()
            for ww in range(4):
                for k in range(3):
                    e(f"ds_read_b32 {v(KF+4*ww+k)}, {v(vOr)} offset:{768*ww+4*k}")
            e(f"s_lshl_b32 s63, {s(S_H)}, 2", "s_add_u32 s63, s63, s70", "s_lshl_b32 s63, s63, 3", f"s_add_u32 s63, s63, {s(S_J)}",
              "s_lshl_b32 s63, s63, 10", f"s_add_u32 s63, s63, {OBUF}", "v_lshlrev_b32 v15, 4, v1", f"v_mov_b32 {v(E+3)}, {s(S_TAG)}",
              "s_waitcnt lgkmcnt(6)")
            for k in range(3):
                e(f"v_add_f32 {v(E+k)}, {v(KF+k)}, {v(KF+4+k)}")
            e("s_waitcnt lgkmcnt(0)")
            for k in range(3):
                e(f"v_add_f32 {v(KF+8+k)}, {v(KF+8+k)}, {v(KF+12+k)}")
            for k in range(3):
                e(f"v_add_f32 {v(E+k)}, {v(E+k)}, {v(KF+8+k)}")
            e(f"buffer_store_dwordx4 {vr(E,4)}, v15, {sr(SRD_WS,4)}, s63 offen sc1",
              "s_mov_b64 exec, 1", f"ds_add_u32 {v(vFl)}, v19 offset:{F_OF}", "s_mov_b64 exec, -1")
            self.label(lno)

        self.c("---- item loop")
        lloop, liss, lgo, lhave, lv, lnext, lfin = (self.new(x) for x in ("loop", "iss", "go", "have", "vit", "next", "fin"))
        self.label(lloop)
        e(f"s_lshl_b32 {s(sTgt)}, {s(sN)}, 2", f"s_add_u32 {s(sTgt)}, {s(sTgt)}, {4+D}")
        if self.N2 is not None:
            D2 = (self.N2 + 5)//3
            assert D2 <= 8
            e(f"s_cmp_ge_u32 {s(sN)}, {27+SL}", f"s_cselect_b32 s62, {D2-D}, 0", f"s_add_u32 {s(sTgt)}, {s(sTgt)}, s62")
        if "topup" in self.x:
            self.c("free ring slots are refilled right away while few loads are in flight (static items only)")
            for rep in range(2):
                ltu = self.new("tu")
                e(f"s_lshl_b32 s62, {s(sN)}, 2", "s_add_u32 s62, s62, 12", f"s_min_u32 s62, s62, {4*(27+SL)}",
                  f"s_cmp_lt_u32 {s(sI)}, s62", f"s_cbranch_scc0 {ltu}",
                  "s_getreg_b32 s63, hwreg(HW_REG_IB_STS, 0, 4)", f"s_cmp_le_u32 s63, {self.N}", f"s_cbranch_scc0 {ltu}")
                self.issue_unit()
                self.label(ltu)
        self.label(liss)
        e(f"s_cmp_lt_u32 {s(sI)}, {s(sTgt)}", f"s_cbranch_scc0 {lhave}",
          f"s_cmp_eq_u32 {s(sStop)}, 0", f"s_cbranch_scc0 {lgo}")
        self.issue_unit()
        e(f"s_branch {liss}")
        self.label(lgo)
        e(f"s_lshl_b32 s62, {s(sN)}, 2", f"s_cmp_eq_u32 s62, {s(sI)}", f"s_cbranch_scc1 {lfin}", "s_waitcnt vmcnt(0)")
        self.label(lhave)
        if self.diag:
            for kk in range(8):
                ls = self.new("ps")
                itm = 4*kk if "vitems" not in self.x and "kitems" not in self.x else (self.i0 + kk)
                e(f"s_cmp_eq_u32 {s(sN)}, {itm}", f"s_cbranch_scc0 {ls}")
                self.stamp(8+kk)
                self.label(ls)
        e(f"s_cmp_lt_u32 {s(sN)}, 16", f"s_cbranch_scc0 {lv}")
        self.c("K tile: 32 scores")
        lq = self.new("kq")
        e(f"v_add_u32 v14, {s(sTile)}, v5", f"v_add_u32 v15, {s(sTile)}, v6",
          f"s_and_b32 s62, {s(sN)}, 3", f"s_cbranch_scc1 {lq}")
        e(f"s_lshr_b32 s62, {s(sN)}, 2", "s_mul_i32 s62, s62, 384", f"v_add_u32 v13, s62, {v(vQa)}")
        for ks in range(6):
            e(f"ds_read_b128 {vr(QF+4*ks,4)}, v13 offset:{64*ks}")
        e(f"v_mov_b32 {v(M)}, {hex(NINF)}", f"v_mov_b32 {v(Lr)}, 0", "s_waitcnt lgkmcnt(0)")
        self.label(lq)
        lpr = self.new("pr0")
        if "preread" in self.x:
            e(f"s_cmp_eq_u32 {s(sN)}, 0", f"s_cbranch_scc1 {lpr}")
        for ks in range(6):
            for blk in range(2):
                e(f"ds_read_b128 {vr(KF+8*ks+4*blk,4)}, {v(14+(ks&1))} offset:{blk*6144+(ks>>1)*128}")
        self.label(lpr)
        for ks in range(6):
            e(f"s_waitcnt lgkmcnt({10-2*ks})")
            for blk in range(2):
                c = "0" if ks == 0 else vr(D0+4*blk, 4)
                e(f"v_mfma_f32_16x16x32_bf16 {vr(D0+4*blk,4)}, {vr(KF+8*ks+4*blk,4)}, {vr(QF+4*ks,4)}, {c}")
            if ks == 2:
                self.try2()
        self.try_issue()
        e(f"s_lshl_b32 s62, {s(sN)}, 6", f"v_add_u32 v13, s62, {v(vSo)}", "s_nop 6")
        for i in range(0, 8, 2):
            e(f"v_cvt_pk_bf16_f32 {v(T)}, {v(D0+i)}, {v(D0+i+1)}")
            self.unpack(X+i, X+i+1, T)
            e(f"v_mul_f32 {v(X+i)}, {hex(SCALE)}, {v(X+i)}", f"v_mul_f32 {v(X+i+1)}, {hex(SCALE)}, {v(X+i+1)}",
              f"v_cvt_pk_bf16_f32 {v(Q+(i>>1))}, {v(X+i)}, {v(X+i+1)}")
            self.unpack(X+i, X+i+1, Q+(i>>1))
            if i == 2:
                self.try2()
        e("s_mov_b32 exec_lo, 0x00010001", "s_mov_b32 exec_hi, 0x00010001",
          f"ds_write_b128 v13, {vr(Q,4)}", "s_mov_b64 exec, -1")
        self.try_issue()
        e(f"v_max3_f32 {v(T)}, {v(X)}, {v(X+1)}, {v(X+2)}", f"v_max3_f32 {v(T)}, {v(T)}, {v(X+3)}, {v(X+4)}",
          f"v_max3_f32 {v(T)}, {v(T)}, {v(X+5)}, {v(X+6)}", f"v_max3_f32 {v(T)}, {v(T)}, {v(X+7)}, {v(M)}",
          f"v_sub_f32 {v(T+1)}, {v(M)}, {v(T)}", f"v_mul_f32 {v(T+1)}, {hex(LOG2E)}, {v(T+1)}", f"v_mov_b32 {v(M)}, {v(T)}")
        for i in range(8):
            e(f"v_sub_f32 {v(E+i)}, {v(X+i)}, {v(M)}", f"v_mul_f32 {v(E+i)}, {hex(LOG2E)}, {v(E+i)}")
        self.try2()
        e(f"v_exp_f32 {v(T+1)}, {v(T+1)}")
        for i in range(8):
            e(f"v_exp_f32 {v(E+i)}, {v(E+i)}")
        self.try_issue()
        e(f"v_mul_f32 {v(Lr)}, {v(Lr)}, {v(T+1)}")
        for i in range(0, 8, 2):
            e(f"v_add_f32 {v(E+i)}, {v(E+i)}, {v(E+i+1)}")
        e(f"v_add_f32 {v(E)}, {v(E)}, {v(E+2)}", f"v_add_f32 {v(E+4)}, {v(E+4)}, {v(E+6)}",
          f"v_add_f32 {v(E)}, {v(E)}, {v(E+4)}", f"v_add_f32 {v(Lr)}, {v(Lr)}, {v(E)}")
        e(f"s_and_b32 s62, {s(sN)}, 3", "s_cmp_eq_u32 s62, 3", f"s_cbranch_scc0 {lnext}")
        self.try2()
        finalize()
        self.try2()
        if self.diag:
            ls = self.new("st")
            e(f"s_cmp_eq_u32 {s(sN)}, 15", f"s_cbranch_scc0 {ls}")
            self.stamp(3)
            self.label(ls)
        e(f"s_branch {lnext}")
        self.label(lv)
        lpool, lp_ok, lst = self.new("vp"), self.new("vo"), self.new("vs")
        e(f"s_sub_u32 s66, {s(sN)}, 16", f"s_cmp_lt_u32 s66, {12+SL}", f"s_cbranch_scc0 {lpool}")
        e("s_and_b32 s62, s66, 3", f"s_cbranch_scc1 {lst}")
        e("s_lshr_b32 s67, s66, 2")
        self.c("first tile of a batch: its probabilities must be ready; keep the ring filling meanwhile")
        self.lds_wait_gt(18, F_PB, 13, 67, sleep=1, body=runahead)
        if self.diag:
            ls = self.new("st")
            e(f"s_cmp_eq_u32 {s(sN)}, 16", f"s_cbranch_scc0 {ls}")
            self.stamp(5)
            self.label(ls)
        self.label(lst)
        e(f"s_sub_u32 s62, {s(sN)}, 16", "s_lshl_b32 s62, s62, 6", f"v_add_u32 v13, s62, {v(vSo)}", f"s_branch {lp_ok}")
        self.label(lpool)
        self.lds_wait_gt(18, F_NP, 13, sPN, sleep=1, body=runahead)
        e(f"s_and_b32 s62, {s(sPN)}, 3", "s_lshl_b32 s62, s62, 6", "v_add_u32 v13, s62, v12", f"s_add_u32 {s(sPN)}, {s(sPN)}, 1")
        self.label(lp_ok)
        for u in range(4):
            e(f"v_add_u32 {v(14+u)}, {s(sTile)}, {v(7+u)}")
        e(f"ds_read_b128 {vr(PF,4)}, v13")
        def vread(t):
            a, u = t >> 2, t & 3
            e(f"ds_read_b64_tr_b16 {vr(KF+4*t,2)}, {v(14+u)} offset:{a*128}",
              f"ds_read_b64_tr_b16 {vr(KF+4*t+2,2)}, {v(14+u)} offset:{a*128+6144}")
        def vmf(t):
            e(f"v_mfma_f32_16x16x32_bf16 {vr(ACC+4*t,4)}, {vr(PF,4)}, {vr(KF+4*t,4)}, {vr(ACC+4*t,4)}")
        for t in range(6):
            vread(t)
        e("s_waitcnt lgkmcnt(6)")
        for t in range(3): vmf(t)
        self.try_issue()
        for t in range(6, 9): vread(t)
        e("s_waitcnt lgkmcnt(6)")
        for t in range(3, 6): vmf(t)
        self.try2()
        for t in range(9, 12): vread(t)
        e("s_waitcnt lgkmcnt(6)")
        for t in range(6, 9): vmf(t)
        self.try2()
        e("s_waitcnt lgkmcnt(0)")
        for t in range(9, 12): vmf(t)
        self.try_issue()
        self.c("end of batch 0..2: hand the partial output over")
        e(f"s_sub_u32 s62, {s(sN)}, 16", "s_cmp_lt_u32 s62, 12", f"s_cbranch_scc0 {lnext}",
          "s_and_b32 s63, s62, 3", "s_cmp_eq_u32 s63, 3", f"s_cbranch_scc0 {lnext}", "s_lshr_b32 s70, s62, 2")
        if "burst" in self.x:
            self.try_issue(burst=True)
            self.try_issue(burst=True)
        flush_acc()
        self.label(lnext)
        e(f"s_add_u32 {s(sTile)}, {s(sTile)}, 12288", f"s_cmp_eq_u32 {s(sTile)}, {s(sEnd)}",
          f"s_cselect_b32 {s(sTile)}, {s(sBase)}, {s(sTile)}",
          f"s_add_u32 {s(sN)}, {s(sN)}, 1", f"s_branch {lloop}")
        self.label(lfin)
        self.stamp(6)
        if self.diag:
            e(f"s_mov_b32 {s(S_STAMP0+4)}, {s(sN)}", f"s_add_u32 {s(S_STAMP0+4)}, {s(S_STAMP0+4)}, 1000")
        e("s_mov_b32 s70, 3")
        flush_acc(last=True)
        self.lds_flag_set(18, F_VE, 19)
        self.stamp(7)
        self.stamps_store()
        e("s_endpgm")

    def gemv64_loads(self, W):
        e = self.e
        e("s_mov_b32 s61, 0")
        for ks in range(5):
            for ee in range(8):
                r = W + 16*(ks+1) + 2*ee
                e(f"buffer_load_dwordx2 {vr(r,2)}, v4, {sr(SRD_A,4)}, s61 offen nt")
                if not (ks == 4 and ee == 7):
                    if ee < 7:
                        e("s_add_u32 s61, s61, s60")
                    else:
                        e("s_mul_i32 s62, s60, 25", "s_add_u32 s61, s61, s62")

    def gemv64_perm(self, W):
        e = self.e
        for ks in range(5):
            raw, fr = W + 16*(ks+1), W + 16*ks
            for f in range(4):
                d, hi = f >> 1, f & 1
                for q in range(4):
                    e(f"v_perm_b32 {v(fr+4*f+q)}, {v(raw+2*(2*q+1)+d)}, {v(raw+2*(2*q)+d)}, {s(S_SELHI if hi else S_SELLO)}")

    def gemv64_finish(self, W, AF, DD, vfl, vone, replicas=False):
        e = self.e
        for ks in range(5):
            e(f"ds_read_b128 {vr(AF+4*ks,4)}, v5 offset:{64*ks}")
        for ks in range(5):
            e(f"s_waitcnt lgkmcnt({4-ks})")
            for f in range(4):
                c = "0" if ks == 0 else vr(DD+4*f, 4)
                e(f"v_mfma_f32_16x16x32_bf16 {vr(DD+4*f,4)}, {vr(AF+4*ks,4)}, {vr(W+16*ks+4*f,4)}, {c}")
        e("s_nop 7", "s_nop 1")
        for f in range(4):
            e(f"v_mov_b32 {v(AF+f)}, {v(DD+4*f)}")
        e(f"s_lshl_b32 s62, {s(S_W)}, 10", f"s_add_u32 s62, s62, {SC}", "v_lshlrev_b32 v6, 4, v1",
          "v_add_u32 v7, s62, v6", f"ds_write_b128 v7, {vr(AF,4)}")
        self.sync4(vfl, F_SYNCR, vone, 8)
        l = self.new("gf")
        e(f"s_cmp_eq_u32 {s(S_W)}, 0", f"s_cbranch_scc0 {l}")
        e(f"v_add_u32 v7, {SC}, v6")
        for ww in range(4):
            e(f"ds_read_b128 {vr(AF+4*ww,4)}, v7 offset:{1024*ww}")
        e("s_waitcnt lgkmcnt(0)")
        for f in range(4):
            e(f"v_add_f32 {v(AF+f)}, {v(AF+f)}, {v(AF+4+f)}", f"v_add_f32 {v(AF+8+f)}, {v(AF+8+f)}, {v(AF+12+f)}")
        for f in range(4):
            e(f"v_add_f32 {v(AF+f)}, {v(AF+f)}, {v(AF+8+f)}")
        e(f"v_cvt_pk_bf16_f32 {v(AF+4)}, {v(AF)}, {v(AF+1)}", f"v_cvt_pk_bf16_f32 {v(AF+6)}, {v(AF+2)}, {v(AF+3)}",
          f"v_mov_b32 {v(AF+5)}, {s(S_TAG)}", f"v_mov_b32 {v(AF+7)}, {s(S_TAG)}",
          "v_lshrrev_b32 v6, 4, v1", "v_mul_lo_u32 v6, v6, s65", "v_and_b32 v7, 15, v1", "v_lshl_add_u32 v6, v7, 4, v6",
          )
        if replicas and self.RM > 1:
            self.c("shift / scale of the first layer norm go to eight copies: many workgroups poll them")
            lr_ = self.new("rp")
            e("s_cmp_lt_u32 s68, 20", f"s_cbranch_scc0 {lr_}",
              "v_lshrrev_b32 v8, 4, v1", "v_mul_u32_u24 v8, 5120, v8", "v_lshl_add_u32 v8, v7, 4, v8",
              "s_lshl_b32 s62, s68, 8", f"s_add_u32 s62, s62, {MODR}")
            for rp in range(self.RM):
                e(f"buffer_store_dwordx4 {vr(AF+4,4)}, v8, {sr(SRD_WS,4)}, s62 offen sc1")
                if rp < self.RM-1:
                    e("s_add_u32 s62, s62, 20480")
            self.label(lr_)
        e(f"buffer_store_dwordx4 {vr(AF+4,4)}, v6, {sr(SRD_WS,4)}, s64 offen sc1")
        self.label(l)

    def ln_stats(self, PX, XF, T):
        e = self.e
        for i in range(5):
            self.unpack(XF+2*i, XF+2*i+1, PX+i)
        e(f"v_add_f32 {v(T)}, {v(XF)}, {v(XF+1)}")
        for i in range(2, 10):
            e(f"v_add_f32 {v(T)}, {v(T)}, {v(XF+i)}")
        self.allreduce("add", T, T+1)
        e(f"v_mul_f32 {v(T)}, {hex(INV640)}, {v(T)}")
        e(f"v_sub_f32 {v(T+2)}, {v(XF)}, {v(T)}", f"v_mul_f32 {v(T+3)}, {v(T+2)}, {v(T+2)}")
        for i in range(1, 10):
            e(f"v_sub_f32 {v(T+2)}, {v(XF+i)}, {v(T)}", f"v_fmac_f32 {v(T+3)}, {v(T+2)}, {v(T+2)}")
        self.allreduce("add", T+3, T+1)
        e(f"v_mul_f32 {v(T+3)}, {hex(INV640)}, {v(T+3)}")
        self.round2(T, T+3, T+1)
        e(f"v_add_f32 {v(T+3)}, {hex(EPS)}, {v(T+3)}")
        e(f"v_cvt_pk_bf16_f32 {v(T+1)}, {v(T+3)}, {v(T+3)}", f"v_lshlrev_b32 {v(T+3)}, 16, {v(T+1)}",
          f"v_sqrt_f32 {v(T+3)}, {v(T+3)}", "s_nop 0",
          f"v_cvt_pk_bf16_f32 {v(T+1)}, {v(T+3)}, {v(T+3)}", f"v_lshlrev_b32 {v(T+3)}, 16, {v(T+1)}",
          f"v_rcp_f32 {v(T+3)}, {v(T+3)}", "s_nop 0")
        for i in range(0, 10, 2):
            e(f"v_sub_f32 {v(XF+i)}, {v(XF+i)}, {v(T)}", f"v_sub_f32 {v(XF+i+1)}, {v(XF+i+1)}, {v(T)}")
            self.round2(XF+i, XF+i+1, T+1)
            e(f"v_mul_f32 {v(XF+i)}, {v(XF+i)}, {v(T+3)}", f"v_mul_f32 {v(XF+i+1)}, {v(XF+i+1)}, {v(T+3)}")
            self.round2(XF+i, XF+i+1, T+1)

    def ln_fast(self, PX, XF, TD, T):
        e = self.e
        if PX is not None:
            for i in range(5):
                self.unpack(XF+2*i, XF+2*i+1, PX[i])
        e("s_nop 0", f"v_readfirstlane_b32 s90, {v(XF)}", "s_nop 0", "s_mov_b32 s91, s90")
        for i in range(5):
            e(f"v_pk_add_f32 {vr(TD+2*i,2)}, {vr(XF+2*i,2)}, s[90:91] neg_lo:[0,1] neg_hi:[0,1]")
        A, B = T, T+2
        e(f"v_pk_mul_f32 {vr(B,2)}, {vr(TD,2)}, {vr(TD,2)}", f"v_pk_add_f32 {vr(A,2)}, {vr(TD,2)}, {vr(TD+2,2)}",
          f"v_pk_fma_f32 {vr(B,2)}, {vr(TD+2,2)}, {vr(TD+2,2)}, {vr(B,2)}")
        for i in range(2, 5):
            e(f"v_pk_add_f32 {vr(A,2)}, {vr(A,2)}, {vr(TD+2*i,2)}",
              f"v_pk_fma_f32 {vr(B,2)}, {vr(TD+2*i,2)}, {vr(TD+2*i,2)}, {vr(B,2)}")
        e(f"v_add_f32 {v(A)}, {v(A)}, {v(A+1)}", f"v_add_f32 {v(B)}, {v(B)}, {v(B+1)}")
        for r in (8, 4, 2, 1):
            e("s_nop 0", f"v_add_f32_dpp {v(A)}, {v(A)}, {v(A)} row_ror:{r} row_mask:0xf bank_mask:0xf",
              f"v_add_f32_dpp {v(B)}, {v(B)}, {v(B)} row_ror:{r} row_mask:0xf bank_mask:0xf")
        for swp in ("v_permlane16_swap_b32", "v_permlane32_swap_b32"):
            e(f"v_mov_b32 {v(A+1)}, {v(A)}", f"v_mov_b32 {v(B+1)}, {v(B)}", "s_nop 1",
              f"{swp} {v(A+1)}, {v(A)}", f"{swp} {v(B+1)}, {v(B)}",
              f"v_add_f32 {v(A)}, {v(A+1)}, {v(A)}", f"v_add_f32 {v(B)}, {v(B+1)}, {v(B)}")
        e(f"v_mul_f32 {v(A)}, {hex(INV640)}, {v(A)}", f"v_mul_f32 {v(B)}, {hex(INV640)}, {v(B)}",
          f"v_fma_f32 {v(B)}, -{v(A)}, {v(A)}, {v(B)}", f"v_add_f32 {v(A)}, s90, {v(A)}", f"v_max_f32 {v(B)}, 0, {v(B)}",
          f"v_cvt_pk_bf16_f32 {v(A+1)}, {v(A)}, {v(B)}")
        self.unpack(A, B, A+1)
        e(f"v_add_f32 {v(B)}, {hex(EPS)}, {v(B)}",
          f"v_cvt_pk_bf16_f32 {v(B+1)}, {v(B)}, {v(B)}", f"v_lshlrev_b32 {v(B)}, 16, {v(B+1)}",
          f"v_sqrt_f32 {v(B)}, {v(B)}")
        for i in range(5):
            e(f"v_pk_add_f32 {vr(XF+2*i,2)}, {vr(XF+2*i,2)}, {vr(A,2)} op_sel_hi:[1,0] neg_lo:[0,1] neg_hi:[0,1]")
        e(f"v_cvt_pk_bf16_f32 {v(B+1)}, {v(B)}, {v(B)}", f"v_lshlrev_b32 {v(B)}, 16, {v(B+1)}", f"v_rcp_f32 {v(B)}, {v(B)}")
        for i in range(5):
            e(f"v_cvt_pk_bf16_f32 {v(TD+i)}, {v(XF+2*i)}, {v(XF+2*i+1)}")
        for i in range(5):
            self.unpack(XF+2*i, XF+2*i+1, TD+i)
        for i in range(5):
            e(f"v_pk_mul_f32 {vr(XF+2*i,2)}, {vr(XF+2*i,2)}, {vr(B,2)} op_sel_hi:[1,0]")
        for i in range(5):
            e(f"v_cvt_pk_bf16_f32 {v(TD+i)}, {v(XF+2*i)}, {v(XF+2*i+1)}")
        for i in range(5):
            self.unpack(XF+2*i, XF+2*i+1, TD+i)

    def modulate_fast(self, XF, C1, SH, TD, vaddr):
        e = self.e
        for i in range(5):
            e(f"v_pk_mul_f32 {vr(XF+2*i,2)}, {vr(XF+2*i,2)}, {vr(C1+2*i,2)}")
        for i in range(5):
            e(f"v_cvt_pk_bf16_f32 {v(TD+i)}, {v(XF+2*i)}, {v(XF+2*i+1)}")
        for i in range(5):
            self.unpack(XF+2*i, XF+2*i+1, TD+i)
        for i in range(5):
            e(f"v_pk_add_f32 {vr(XF+2*i,2)}, {vr(XF+2*i,2)}, {vr(SH+2*i,2)}")
        for i in range(5):
            e(f"v_cvt_pk_bf16_f32 {v(TD+i)}, {v(XF+2*i)}, {v(XF+2*i+1)}", f"ds_write_b32 {v(vaddr)}, {v(TD+i)} offset:{256*i}")

    def bad_lanes(self, tags, sdst, t):
        e = self.e
        assert len(tags) in (2, 4)
        for k, r in enumerate(tags):
            e(f"v_xor_b32 {v(t+k)}, {s(S_TAG)}, {v(r)}")
        if len(tags) == 4:
            e(f"v_or3_b32 {v(t)}, {v(t)}, {v(t+1)}, {v(t+2)}", f"v_or_b32 {v(t)}, {v(t)}, {v(t+3)}")
        else:
            e(f"v_or_b32 {v(t)}, {v(t)}, {v(t+1)}")
        e(f"v_cmp_ne_u32 {sr(sdst,2)}, 0, {v(t)}")

    def masked_gather(self, groups, t, init=None, care=None, sleep=0):
        e = self.e
        l, d = self.new("mg"), self.new("mgd")
        for (sp, _, _) in groups:
            if init is None:
                e(f"s_mov_b64 {sr(sp,2)}, -1")
            else:
                e(f"s_mov_b32 {s(sp)}, {hex(init[0])}", f"s_mov_b32 {s(sp+1)}, {hex(init[1])}")
        self.label(l)
        for (sp, loads, _) in groups:
            k = self.new("mk")
            e(f"s_mov_b64 exec, {sr(sp,2)}", f"s_cbranch_execz {k}")
            loads()
            self.label(k)
        e("s_mov_b64 exec, -1", "s_waitcnt vmcnt(0)")
        for (sp, _, tags) in groups:
            self.bad_lanes(tags, sp, t)
            if care is not None:
                e(f"s_and_b32 {s(sp)}, {s(sp)}, {hex(care[0])}", f"s_and_b32 {s(sp+1)}, {s(sp+1)}, {hex(care[1])}")
        e(f"s_mov_b64 s[90:91], {sr(groups[0][0],2)}")
        for (sp, _, _) in groups[1:]:
            e(f"s_or_b64 s[90:91], s[90:91], {sr(sp,2)}")
        e("s_cmp_eq_u64 s[90:91], 0", f"s_cbranch_scc1 {d}")
        if sleep:
            e(f"s_sleep {sleep}")
        self.spin_check()
        e(f"s_branch {l}")
        self.label(d)

    def poll2(self, loadsA, tagsA, useA, loadsB, tagsB, useB, nloads, t):
        e = self.e
        l, dA, dB, d = self.new("p2"), self.new("p2a"), self.new("p2b"), self.new("p2d")
        loadsA()
        loadsB()
        self.label(l)
        e(f"s_waitcnt vmcnt({nloads})")
        ra, rb = self.new("p2ra"), self.new("p2rb")
        self.tagcheck(tagsA, t, t+1, ra)
        e(f"s_branch {dA}")
        self.label(ra)
        loadsA()
        e(f"s_waitcnt vmcnt({nloads})")
        self.tagcheck(tagsB, t, t+1, rb)
        e(f"s_branch {dB}")
        self.label(rb)
        loadsB()
        self.spin_check()
        e(f"s_branch {l}")
        self.label(dA)
        useA()
        e(f"s_branch {d}")
        self.label(dB)
        useB()
        self.label(d)

    def modulate(self, XF, C1, SH, T, vaddr):
        e = self.e
        for i in range(5):
            a, b = XF+2*i, XF+2*i+1
            e(f"v_mul_f32 {v(a)}, {v(a)}, {v(C1+2*i)}", f"v_mul_f32 {v(b)}, {v(b)}, {v(C1+2*i+1)}")
            self.round2(a, b, T)
            e(f"v_add_f32 {v(a)}, {v(a)}, {v(SH+2*i)}", f"v_add_f32 {v(b)}, {v(b)}, {v(SH+2*i+1)}",
              f"v_cvt_pk_bf16_f32 {v(T)}, {v(a)}, {v(b)}", f"ds_write_b32 {v(vaddr)}, {v(T)} offset:{256*i}")

    def prep_mod_pair(self, G, C1, SH, T):
        e = self.e
        for i in range(5):
            self.unpack(SH+2*i, SH+2*i+1, G+2*i)
        for i in range(5):
            self.unpack(C1+2*i, C1+2*i+1, G+10+2*i)
            e(f"v_add_f32 {v(C1+2*i)}, 1.0, {v(C1+2*i)}", f"v_add_f32 {v(C1+2*i+1)}, 1.0, {v(C1+2*i+1)}")
            self.round2(C1+2*i, C1+2*i+1, T)

    def helper(self):
        e = self.e
        self.c("================= helper wave =================")
        e(f"s_sub_u32 {s(S_W)}, {s(S_W)}, 4")
        VFL, VONE = 2, 3
        W = 100
        PX, XF, T = 10, 16, 28
        G, C1, SH = 32, 56, 68
        AF, DD = 200, 220
        e(f"s_lshl_b32 s62, {s(S_W)}, 2", f"s_add_u32 s62, s62, {FLAGS}", f"v_mov_b32 {v(VFL)}, s62", f"v_mov_b32 {v(VONE)}, 1",
          f"v_mov_b32 v9, {FLAGS}")
        self.c("zero the LDS flags (helper 0)")
        l = self.new("zf")
        e(f"s_cmp_eq_u32 {s(S_W)}, 0", f"s_cbranch_scc0 {l}",
          "v_lshlrev_b32 v6, 2, v1", f"v_add_u32 v6, {FLAGS}, v6", "v_mov_b32 v7, 0",
          "ds_write_b32 v6, v7")
        self.label(l)
        e("s_waitcnt lgkmcnt(0)")
        self.srd(SRD_WS, S_WS, WS_SIZE)
        self.tag_load()
        self.c("work counters of this head: cleared by helper 0 of workgroup j == 0 (drained before q is published)")
        l = self.new("zc")
        e(f"s_cmp_eq_u32 {s(S_W)}, 0", f"s_cbranch_scc0 {l}", f"s_cmp_eq_u32 {s(S_J)}, 0", f"s_cbranch_scc0 {l}",
          f"s_lshl_b32 s62, {s(S_H)}, 7", f"s_add_u32 s62, s62, {CNTBUF}", "v_mov_b32 v6, 0", "v_mov_b32 v7, 0",
          "s_mov_b64 exec, 1", f"buffer_store_dword v7, v6, {sr(SRD_WS,4)}, s62 offen sc1", "s_mov_b64 exec, -1")
        self.label(l)
        self.c("prologue role: s67 = 0 none, 1 Q block, 2 MOD block")
        lq, lm, lr, lm7 = self.new("rq"), self.new("rm"), self.new("rr"), self.new("m7")
        e("s_mov_b32 s67, 0", f"s_cmp_lt_u32 {s(S_J)}, 3", f"s_cbranch_scc1 {lq}",
          f"s_cmp_lt_u32 {s(S_J)}, 5", f"s_cbranch_scc0 {lm7}",
          f"s_lshl_b32 s68, {s(S_H)}, 1", f"s_add_u32 s68, s68, {s(S_J)}", "s_sub_u32 s68, s68, 3",
          f"s_cmp_lt_u32 {s(S_H)}, 28", f"s_cbranch_scc1 {lm}", f"s_branch {lr}")
        self.label(lm7)
        e(f"s_add_u32 s68, {s(S_H)}, 56", f"s_cmp_eq_u32 {s(S_J)}, 7", f"s_cbranch_scc0 {lr}",
          f"s_cmp_lt_u32 {s(S_H)}, 4", f"s_cbranch_scc1 {lm}", f"s_branch {lr}")
        self.label(lq)
        e("s_mov_b32 s67, 1")
        if "qfirst" not in self.x:
            e("s_barrier")
        self.srd(SRD_A, S_WQ, 7864320)
        self.srd(SRD_B, S_X, 5120)
        e("s_mov_b32 s60, 12288", f"s_mul_i32 s68, {s(S_H)}, 3", f"s_add_u32 s68, s68, {s(S_J)}",
          "s_lshl_b32 s64, s68, 8", f"s_add_u32 s64, s64, {QBUF}", f"s_mov_b32 s65, {3072*8}")
        lcommon = self.new("rc")
        e(f"s_branch {lcommon}")
        self.label(lm)
        e("s_mov_b32 s67, 2")
        self.srd(SRD_A, S_WM, 4915200)
        self.srd(SRD_B, S_C, 5120)
        e("s_mov_b32 s60, 7680", "s_lshl_b32 s64, s68, 8", f"s_add_u32 s64, s64, {MODBUF}", f"s_mov_b32 s65, {1920*8}")
        self.label(lcommon)
        self.c("issue vector + weight loads")
        e(f"s_mul_i32 s62, {s(S_W)}, 1280", "v_lshlrev_b32 v6, 2, v1")
        for i in range(5):
            e(f"buffer_load_dword {v(PX+i)}, v6, {sr(SRD_B,4)}, s62 offen offset:{256*i}")
        e(f"s_mul_i32 s62, {s(S_W)}, 160", "v_lshrrev_b32 v4, 4, v1", "v_lshlrev_b32 v4, 3, v4", "v_add_u32 v4, s62, v4",
          "v_mul_lo_u32 v4, v4, s60", "v_and_b32 v7, 15, v1", "v_lshl_add_u32 v4, v7, 3, v4",
          "s_lshl_b32 s62, s68, 7", "v_add_u32 v4, s62, v4")
        self.gemv64_loads(W)
        lnb = self.new("nb")
        if "qfirst" not in self.x:
            e("s_cmp_eq_u32 s67, 1", f"s_cbranch_scc1 {lnb}")
        self.label(lr)
        e("s_barrier")
        self.label(lnb)
        self.tag_ready()
        self.stamp(1)
        self.c("A fragment address for the [4][640] vector: AVEC + b*1280 + w*320 + g*16")
        e("v_and_b32 v6, 15, v1", "v_lshrrev_b32 v6, 2, v6", "v_mul_u32_u24 v6, 1280, v6",
          "v_lshrrev_b32 v7, 4, v1", "v_lshl_add_u32 v6, v7, 4, v6",
          f"s_mul_i32 s62, {s(S_W)}, 320", f"s_add_u32 s62, s62, {AVEC}", "v_add_u32 v5, s62, v6")
        e(f"s_mul_i32 s62, {s(S_W)}, 1280", f"s_add_u32 s62, s62, {AVEC}", "v_lshlrev_b32 v6, 2, v1", "v_add_u32 v8, s62, v6",
          "v_mov_b32 v26, v8")
        lq2, lm2, lpq = self.new("q2"), self.new("m2"), self.new("pq")
        e("s_cmp_eq_u32 s67, 1", f"s_cbranch_scc1 {lq2}", "s_cmp_eq_u32 s67, 2", f"s_cbranch_scc1 {lm2}", f"s_branch {lpq}")
        self.label(lm2)
        e("s_waitcnt vmcnt(40)", "s_mov_b32 s91, 0x207")
        for i in range(5):
            a, b = XF, XF+1
            self.unpack(a, b, PX+i)
            for x in (a, b):
                e(f"v_mul_f32 {v(T)}, {hex(LOG2E ^ 0x80000000)}, {v(x)}", f"v_exp_f32 {v(T)}, {v(T)}", "s_nop 0",
                  f"v_add_f32 {v(T)}, 1.0, {v(T)}", f"v_rcp_f32 {v(T+1)}, {v(T)}", "s_nop 0",
                  f"v_mul_f32 {v(T+2)}, {v(x)}, {v(T+1)}",
                  f"v_fma_f32 {v(T+3)}, -{v(T+2)}, {v(T)}, {v(x)}",
                  f"v_cmp_class_f32 vcc, {v(T+3)}, s91",
                  f"v_fma_f32 {v(x)}, {v(T+3)}, {v(T+1)}, {v(T+2)}", "s_nop 0",
                  f"v_cndmask_b32 {v(x)}, {v(x)}, {v(T+2)}, vcc")
                if "probe_nofix" in self.x:
                    e(f"v_mov_b32 {v(x)}, {v(T+2)}")
            e(f"v_cvt_pk_bf16_f32 {v(T)}, {v(a)}, {v(b)}", f"ds_write_b32 v26, {v(T)} offset:{256*i}")
        self.sync4(9, F_SYNCA, VONE, 8)
        e("s_waitcnt vmcnt(0)")
        self.stamp(2)
        self.gemv64_perm(W)
        self.gemv64_finish(W, AF, DD, 9, VONE, replicas=True)
        self.stamp(3)
        e(f"s_branch {lpq}")
        self.label(lq2)
        e("s_waitcnt vmcnt(40)")
        self.ln_fast([PX+i for i in range(5)], XF, 80, T)
        e("s_waitcnt vmcnt(0)")
        self.gemv64_perm(W)
        self.stamp(2)
        if self.RM > 1:
            e(f"s_and_b32 s62, s68, {self.RM-1}", "s_mul_i32 s62, s62, 20480", f"s_mul_i32 s63, {s(S_W)}, 5120", "s_add_u32 s62, s62, s63",
              f"s_add_u32 s62, s62, {MODR}", f"s_add_u32 s63, s62, {320*8}", "v_lshlrev_b32 v6, 3, v1")
        else:
            e(f"s_mul_i32 s62, {s(S_W)}, {1920*8}", f"s_add_u32 s62, s62, {MODBUF}", f"s_add_u32 s63, s62, {320*8}",
              "v_lshlrev_b32 v6, 3, v1")
        def ld_mod():
            for i in range(5):
                e(f"buffer_load_dwordx2 {vr(G+2*i,2)}, v6, {sr(SRD_WS,4)}, s62 offen offset:{512*i} sc1")
            for i in range(5):
                e(f"buffer_load_dwordx2 {vr(G+10+2*i,2)}, v6, {sr(SRD_WS,4)}, s63 offen offset:{512*i} sc1")
        if "pause" in self.x:
            self.lds_flag_set(9, F_PA, VONE)
        if "modm" in self.x:
            def ld_m(i):
                def f():
                    e(f"buffer_load_dwordx2 {vr(G+2*i,2)}, v6, {sr(SRD_WS,4)}, s62 offen offset:{512*i} sc1",
                      f"buffer_load_dwordx2 {vr(G+10+2*i,2)}, v6, {sr(SRD_WS,4)}, s63 offen offset:{512*i} sc1")
                return f
            self.masked_gather([(sp, ld_m(i), [G+2*i+1, G+10+2*i+1]) for i, sp in enumerate((36, 38, 44, 46, 48))], T)
        else:
            self.poll(ld_mod, [G+2*i+1 for i in range(10)], T, T+1)
        self.stamp(3)
        self.prep_mod_pair(G, C1, SH, T)
        self.modulate_fast(XF, C1, SH, 80, 26)
        self.sync4(9, F_SYNCA, VONE, 8)
        if "pause" in self.x:
            e("v_mov_b32 v8, 0")
            self.lds_flag_set(9, F_PA, 8)
        self.gemv64_finish(W, AF, DD, 9, VONE)
        self.stamp(4)
        self.label(lpq)
        l = self.new("jd")
        e(f"s_cmp_eq_u32 {s(S_W)}, 0", f"s_cbranch_scc0 {l}", "s_waitcnt lgkmcnt(0)")
        self.lds_flag_set(9, F_JD, VONE)
        self.label(l)
        WB = 36
        WBF, WBS = 132, 8
        def wb_issue():
            self.c("stage B weights: wo rows 192h+48w+.., columns 128j..")
            self.srd(SRD_A, S_WO, 7864320)
            e(f"s_mul_i32 s62, {s(S_H)}, 192", f"s_mul_i32 s63, {s(S_W)}, 48", "s_add_u32 s62, s62, s63",
              "v_lshrrev_b32 v6, 4, v1", "v_mul_u32_u24 v6, 3, v6", "v_add_u32 v6, s62, v6", "v_mul_u32_u24 v6, 1280, v6",
              "v_and_b32 v7, 15, v1", "v_lshl_add_u32 v6, v7, 4, v6", f"s_lshl_b32 s62, {s(S_J)}, 8", "v_add_u32 v6, s62, v6")
            for vv in range(12):
                sg, ee = vv >> 2, vv & 3
                e(f"s_mov_b32 s62, {(12*(vv//3)+vv%3)*1280}",
                  f"buffer_load_dwordx4 {vr(WB+16*(sg+1)+4*ee,4)}, v6, {sr(SRD_A,4)}, s62 offen nt")
        def wb_perm():
            tmp = []
            for cc in range(8):
                for q in range(6):
                    sg, qq = q >> 1, q & 1
                    raw = WB+16*(sg+1)
                    tmp.append((WBF+WBS*cc+q, raw+4*(2*qq+1)+(cc>>1), raw+4*(2*qq)+(cc>>1), S_SELHI if cc & 1 else S_SELLO))
            for d_, a_, b_, sel in tmp:
                e(f"v_perm_b32 {v(d_)}, {v(a_)}, {v(b_)}, {s(sel)}")
        def load_wb():
            wb_issue()
            e("s_waitcnt vmcnt(0)")
            wb_perm()
        WD, GBR = 100, 240
        WG, WU = 36, 84
        CC1, CSH = 140, 150
        RX, RG = 180, 182
        lc, ld, lnc, l6, l7, lrd = (self.new(x) for x in ("c", "d", "nc", "j6", "j7", "rd"))
        e("s_mov_b32 s69, 0", "s_mov_b32 s70, 0", f"s_cmp_lt_u32 {s(S_J)}, 5", f"s_cbranch_scc1 {lrd}")
        e(f"s_cmp_eq_u32 {s(S_J)}, 5", f"s_cbranch_scc0 {l6}", f"s_mov_b32 s68, {s(S_H)}", f"s_branch {lc}")
        self.label(l6)
        e(f"s_cmp_eq_u32 {s(S_J)}, 6", f"s_cbranch_scc0 {l7}",
          f"s_add_u32 s68, {s(S_H)}, 32", f"s_cmp_lt_u32 {s(S_H)}, 16", f"s_cbranch_scc1 {lc}",
          f"s_sub_u32 s68, {s(S_H)}, 16", f"s_branch {ld}")
        self.label(l7)
        e(f"s_sub_u32 s68, {s(S_H)}, 12", f"s_cmp_ge_u32 {s(S_H)}, 28", f"s_cbranch_scc1 {ld}", f"s_branch {lnc}")
        self.label(lc)
        e("s_mov_b32 s69, 1", f"s_branch {lrd}")
        self.label(ld)
        e("s_mov_b32 s69, 2", f"s_branch {lrd}")
        self.label(lnc)
        e(f"s_mul_i32 s71, {s(S_H)}, 3", f"s_add_u32 s71, s71, {s(S_W)}",
          "s_cmp_lt_u32 s71, 80", f"s_cbranch_scc0 {lrd}", f"s_cmp_lt_u32 {s(S_W)}, 3", f"s_cbranch_scc0 {lrd}",
          "s_mov_b32 s70, 1")
        self.label(lrd)

        def load_heavy(part):
            lnc2, lnd2 = self.new("hc"), self.new("hd")
            e("s_cmp_eq_u32 s69, 1", f"s_cbranch_scc0 {lnc2}")
            self.c("gate / up weights: rows 160w.., columns 32c..")
            base = (WG, WU)[part]
            self.srd(SRD_A, (S_G, S_U)[part], 1966080)
            e(f"s_mul_i32 s62, {s(S_W)}, 160", "v_lshrrev_b32 v6, 4, v1", "v_lshlrev_b32 v6, 3, v6", "v_add_u32 v6, s62, v6",
              "v_mul_u32_u24 v6, 3072, v6", "v_and_b32 v7, 15, v1", "v_lshl_add_u32 v6, v7, 2, v6",
              "s_lshl_b32 s62, s68, 6", "v_add_u32 v6, s62, v6")
            for ks in range(5):
                for ee in range(8):
                    e(f"s_mov_b32 s62, {(32*ks+ee)*3072}",
                      f"buffer_load_dword {v(base+8*(ks+1)+ee)}, v6, {sr(SRD_A,4)}, s62 offen nt")
            e("s_waitcnt vmcnt(0)")
            for ks in range(5):
                raw, fr = base+8*(ks+1), base+8*ks
                for hi in range(2):
                    for q in range(4):
                        e(f"v_perm_b32 {v(fr+4*hi+q)}, {v(raw+2*q+1)}, {v(raw+2*q)}, {s(S_SELHI if hi else S_SELLO)}")
            self.label(lnc2)
            e("s_cmp_eq_u32 s69, 2", f"s_cbranch_scc0 {lnd2}")
            self.c("down weights: rows 384w.., columns 32d..")
            self.srd(SRD_A, S_DN, 1966080)
            e(f"s_mul_i32 s62, {s(S_W)}, 384", "v_lshrrev_b32 v6, 4, v1", "v_lshlrev_b32 v6, 3, v6", "v_add_u32 v6, s62, v6",
              "v_mul_u32_u24 v6, 1280, v6", "v_and_b32 v7, 15, v1", "v_lshl_add_u32 v6, v7, 2, v6",
              "s_lshl_b32 s62, s68, 6", "v_add_u32 v6, s62, v6")
            half = part
            for ks in range(6*half, 6*half+6):
                for ee in range(8):
                    e(f"s_mov_b32 s62, {(32*ks+ee)*1280}",
                      f"buffer_load_dword {v(WD+8*(ks+1)+ee)}, v6, {sr(SRD_A,4)}, s62 offen nt")
            e("s_waitcnt vmcnt(0)")
            for ks in range(6*half, 6*half+6):
                raw, fr = WD+8*(ks+1), WD+8*ks
                for hi in range(2):
                    for q in range(4):
                        e(f"v_perm_b32 {v(fr+4*hi+q)}, {v(raw+2*q+1)}, {v(raw+2*q)}, {s(S_SELHI if hi else S_SELLO)}")
            self.label(lnd2)

        self.c("slices that are not needed before the tail: loaded while q is still on its way where the helper is free")
        lnb2 = self.new("nb2")
        e(f"s_cmp_ge_u32 {s(S_J)}, 3", f"s_cbranch_scc0 {lnb2}", f"s_cmp_lt_u32 {s(S_J)}, 5", f"s_cbranch_scc0 {lnb2}")
        wbdef = "wbs" in self.x or "wbve" in self.x
        if not wbdef:
            load_wb()
        self.label(lnb2)
        if "heavylate" not in self.x and "defer0" not in self.x:
            load_heavy(0)
            if "heavyall" in self.x:
                load_heavy(1)
        if "wbride" in self.x and not wbdef:
            self.c("q workgroups: the stage B slice travels while q of the other two workgroups is awaited")
            lwr = self.new("wr")
            e(f"s_cmp_lt_u32 {s(S_J)}, 3", f"s_cbranch_scc0 {lwr}")
            wb_issue()
            self.label(lwr)
        self.c("q of batch w of this head -> LDS")
        e(f"s_mul_i32 s62, {s(S_W)}, {3072*8}", f"s_mul_i32 s63, {s(S_H)}, {96*8}", "s_add_u32 s62, s62, s63",
          f"s_add_u32 s62, s62, {QBUF}", "v_lshlrev_b32 v6, 4, v1",
          "s_mov_b32 exec_lo, -1", "s_mov_b32 exec_hi, 0xffff")
        def ld_q():
            e(f"buffer_load_dwordx4 {vr(G,4)}, v6, {sr(SRD_WS,4)}, s62 offen sc1")
        self.poll(ld_q, [G+1, G+3], T, T+1, sleep=self.qsleep)
        e(f"v_mov_b32 {v(G+1)}, {v(G+2)}", f"s_mul_i32 s62, {s(S_W)}, 384", f"s_add_u32 s62, s62, {QL}",
          "v_lshlrev_b32 v6, 3, v1", "v_add_u32 v6, s62, v6", f"ds_write_b64 v6, {vr(G,2)}",
          "s_mov_b64 exec, 1", f"ds_add_u32 v9, {v(VONE)} offset:{F_QC}", "s_mov_b64 exec, -1")
        self.stamp(5)
        lbd = self.new("bd")
        e(f"s_cmp_lt_u32 {s(S_J)}, 3", f"s_cbranch_scc0 {lbd}")
        if not wbdef:
            if "wbride" in self.x:
                wb_perm()
            else:
                load_wb()
        self.label(lbd)
        if "heavylate" in self.x:
            load_heavy(0)
        if ("heavyall" not in self.x or "heavylate" in self.x) and "defer" not in self.x:
            load_heavy(1)
        lmid, lpc, lpd = self.new("mid"), self.new("pc"), self.new("pd")
        e("s_cmp_eq_u32 s69, 1", f"s_cbranch_scc0 {lpc}")
        self.c("sb (segment 3), cb (segment 4) for batch w")
        G2 = 160
        e(f"s_mul_i32 s62, {s(S_W)}, {1920*8}", f"s_add_u32 s62, s62, {MODBUF+3*320*8}", f"s_add_u32 s63, s62, {320*8}",
          "v_lshlrev_b32 v6, 3, v1")
        def ld_mod2():
            for i in range(5):
                e(f"buffer_load_dwordx2 {vr(G2+2*i,2)}, v6, {sr(SRD_WS,4)}, s62 offen offset:{512*i} sc1")
            for i in range(5):
                e(f"buffer_load_dwordx2 {vr(G2+10+2*i,2)}, v6, {sr(SRD_WS,4)}, s63 offen offset:{512*i} sc1")
        self.poll(ld_mod2, [G2+2*i+1 for i in range(10)], T, T+1, sleep=8)
        self.prep_mod_pair(G2, CC1, CSH, T)
        e(f"s_branch {lmid}")
        self.label(lpc)
        e("s_cmp_eq_u32 s69, 2", f"s_cbranch_scc0 {lpd}")
        self.c("gb pairs for (b = lane>>4, pair 16d + (lane&15))")
        e("v_lshrrev_b32 v6, 4, v1", f"v_mul_u32_u24 v6, {1920*8}, v6", "v_and_b32 v7, 15, v1", "v_lshl_add_u32 v6, v7, 3, v6",
          "s_lshl_b32 s62, s68, 7", f"s_add_u32 s62, s62, {MODBUF+5*320*8}")
        def ld_gb():
            e(f"buffer_load_dwordx2 {vr(GBR,2)}, v6, {sr(SRD_WS,4)}, s62 offen sc1")
        self.poll(ld_gb, [GBR+1], T, T+1, sleep=8)
        e(f"s_branch {lmid}")
        self.label(lpd)
        e("s_cmp_eq_u32 s70, 1", f"s_cbranch_scc0 {lmid}")
        self.srd(SRD_B, S_X, 5120)
        e("v_and_b32 v7, 15, v1", "s_and_b32 s63, s71, 3", "s_lshr_b32 s64, s71, 2",
          "s_mul_i32 s62, s63, 1280", "s_lshl_b32 s65, s64, 6", "s_add_u32 s62, s62, s65", "v_lshlrev_b32 v8, 2, v7",
          f"buffer_load_dword {v(RX)}, v8, {sr(SRD_B,4)}, s62 offen",
          "v_lshlrev_b32 v8, 3, v7", f"s_mul_i32 s62, s63, {1920*8}", "s_lshl_b32 s65, s64, 7", "s_add_u32 s62, s62, s65",
          f"s_add_u32 s62, s62, {MODBUF+2*320*8}")
        def ld_ga():
            e(f"buffer_load_dwordx2 {vr(RG,2)}, v8, {sr(SRD_WS,4)}, s62 offen sc1")
        self.poll(ld_ga, [RG+1], T, T+1, sleep=8)
        self.label(lmid)
        self.stamp(6)
        SL = self.SL
        MLR = 12
        e(f"s_lshl_b32 s61, {s(S_J)}, 2", f"s_add_u32 s61, s61, {s(S_W)}",
          f"s_lshl_b32 s95, {s(S_W)}, 10", f"s_add_u32 s95, s95, {SC}")

        def publish_ml(bi):
            e(f"s_mov_b32 s60, {bi}")
            self.lds_wait_gt(VFL, F_KD, 8, 60, sleep=4)
            e(f"s_lshl_b32 s62, {s(S_W)}, 5", f"s_add_u32 s62, s62, {MLH+8*bi}",
              "v_mov_b32 v6, s62", f"ds_read_b64 {vr(MLR,2)}, v6",
              f"s_lshl_b32 s63, {s(S_H)}, 2", f"s_add_u32 s63, s63, {bi}", "s_lshl_b32 s63, s63, 9", f"s_add_u32 s63, s63, {MLBUF}",
              "s_lshl_b32 s62, s61, 4", "s_add_u32 s62, s62, s63",
              "s_waitcnt lgkmcnt(0)",
              f"v_mov_b32 {v(MLR+2)}, {v(MLR+1)}", f"v_mov_b32 {v(MLR+1)}, {s(S_TAG)}", f"v_mov_b32 {v(MLR+3)}, {s(S_TAG)}",
              "v_mov_b32 v6, 0", "s_mov_b64 exec, 1",
              f"buffer_store_dwordx4 {vr(MLR,4)}, v6, {sr(SRD_WS,4)}, s62 offen sc1", "s_mov_b64 exec, -1")
            if bi == 3 and SL < 4:
                self.c("last batch: publish the scores of this wave's pool tiles")
                e(f"s_add_u32 s62, s95, {(12+SL)*64}", "v_lshlrev_b32 v6, 2, v1", "v_add_u32 v6, s62, v6",
                  "ds_read_b32 v16, v6", f"v_mov_b32 v17, {s(S_TAG)}",
                  "v_lshrrev_b32 v7, 4, v1", "v_lshlrev_b32 v7, 12, v7", "v_and_b32 v8, 15, v1", "v_lshl_add_u32 v7, v8, 3, v7",
                  f"s_lshl_b32 s62, {s(S_H)}, 7", f"s_add_u32 s62, s62, {32*SL}", "s_add_u32 s62, s62, s61", "s_lshl_b32 s62, s62, 7",
                  f"s_add_u32 s62, s62, {SBUF}", "s_waitcnt lgkmcnt(0)")
                n = 16*(4-SL)
                if n < 64:
                    lo = (1 << min(n, 32)) - 1
                    hi = (1 << max(n-32, 0)) - 1
                    e(f"s_mov_b32 exec_lo, {hex(lo)}", f"s_mov_b32 exec_hi, {hex(hi)}")
                e(f"buffer_store_dwordx2 v[16:17], v7, {sr(SRD_WS,4)}, s62 offen sc1", "s_mov_b64 exec, -1")

        def make_p(bi):
            e(f"s_lshl_b32 s63, {s(S_H)}, 2", f"s_add_u32 s63, s63, {bi}", "s_lshl_b32 s63, s63, 9", f"s_add_u32 s63, s63, {MLBUF}",
              "v_lshlrev_b32 v6, 4, v1", "s_mov_b32 exec_lo, -1", "s_mov_b32 exec_hi, 0")
            def ld_ml():
                e(f"buffer_load_dwordx4 {vr(MLR,4)}, v6, {sr(SRD_WS,4)}, s63 offen sc1")
            self.poll(ld_ml, [MLR+1, MLR+3], T, T+1, sleep=8)
            e("s_mov_b64 exec, -1", f"v_cmp_gt_u32 vcc, 32, v1", f"v_mov_b32 v6, {hex(NINF)}", "v_mov_b32 v7, 0", "s_nop 0",
              f"v_cndmask_b32 {v(MLR)}, v6, {v(MLR)}, vcc", f"v_cndmask_b32 {v(MLR+2)}, v7, {v(MLR+2)}, vcc",
              f"v_mov_b32 v6, {v(MLR)}")
            self.allreduce("max", 6, 8)
            e(f"v_sub_f32 v7, {v(MLR)}, v6", f"v_mul_f32 v7, {hex(LOG2E)}, v7", "v_exp_f32 v7, v7", "s_nop 0",
              f"v_mul_f32 v7, v7, {v(MLR+2)}")
            self.allreduce("add", 7, 8)
            e("v_rcp_f32 v7, v7", "s_nop 1", "v_readfirstlane_b32 s92, v6", "v_readfirstlane_b32 s93, v7")
            self.c("probabilities of the four static tiles of this batch, in place of their scores")
            e(f"s_add_u32 s62, s95, {256*bi}", "v_lshlrev_b32 v6, 2, v1", "v_add_u32 v6, s62, v6",
              "ds_read_b32 v12, v6", "s_waitcnt lgkmcnt(0)")
            self.unpack(14, 15, 12)
            e("v_subrev_f32 v14, s92, v14", "v_subrev_f32 v15, s92, v15",
              f"v_mul_f32 v14, {hex(LOG2E)}, v14", f"v_mul_f32 v15, {hex(LOG2E)}, v15", "v_exp_f32 v14, v14", "v_exp_f32 v15, v15", "s_nop 0",
              "v_mul_f32 v14, s93, v14", "v_mul_f32 v15, s93, v15", "v_cvt_pk_bf16_f32 v12, v14, v15",
              f"v_mov_b32 v7, {bi+1}", "ds_write_b32 v6, v12",
              "s_mov_b64 exec, 1", f"ds_write_b32 {v(VFL)}, v7 offset:{F_PB}", "s_mov_b64 exec, -1")

        def combine(bi):
            CB = 204
            e("v_mul_u32_u24 v6, 12, v1", f"v_add_u32 v6, {OSL}, v6")
            for ww in range(4):
                for k in range(3):
                    e(f"ds_read_b32 {v(CB+4*ww+k)}, v6 offset:{768*ww+4*k}")
            e(f"s_lshl_b32 s63, {s(S_H)}, 2", f"s_add_u32 s63, s63, {bi}", "s_lshl_b32 s63, s63, 3", f"s_add_u32 s63, s63, {s(S_J)}",
              "s_lshl_b32 s63, s63, 10", f"s_add_u32 s63, s63, {OBUF}", "v_lshlrev_b32 v7, 4, v1", f"v_mov_b32 {v(CB+19)}, {s(S_TAG)}",
              "s_waitcnt lgkmcnt(0)")
            for k in range(3):
                e(f"v_add_f32 {v(CB+16+k)}, {v(CB+k)}, {v(CB+4+k)}", f"v_add_f32 {v(CB+8+k)}, {v(CB+8+k)}, {v(CB+12+k)}")
            for k in range(3):
                e(f"v_add_f32 {v(CB+16+k)}, {v(CB+16+k)}, {v(CB+8+k)}")
            e(f"buffer_store_dwordx4 {vr(CB+16,4)}, v7, {sr(SRD_WS,4)}, s63 offen sc1",
              "s_mov_b64 exec, 1", f"ds_add_u32 v9, {v(VONE)} offset:{F_OF}", "s_mov_b64 exec, -1")
        hcomb = "hcomb" in self.x
        assert not hcomb or SL < 4
        for bi in range(4):
            publish_ml(bi)
            if bi >= 1:
                make_p(bi-1)
        if hcomb:
            l = self.new("hc0")
            e(f"s_cmp_eq_u32 {s(S_W)}, 0", f"s_cbranch_scc0 {l}")
            self.lds_wait(9, F_OC, 8, 4, sleep=4)
            combine(0)
            self.label(l)
        self.c("the last batch's statistics: once this workgroup has finished the first V batch")
        self.lds_wait(9, F_OF, 8, 1, sleep=4)
        make_p(3)
        if hcomb:
            l = self.new("hc1")
            e(f"s_cmp_eq_u32 {s(S_W)}, 1", f"s_cbranch_scc0 {l}")
            self.lds_wait(9, F_OC+4, 8, 4, sleep=4)
            combine(1)
            self.label(l)
            self.c("s51 = 1 while helper 2 still owes the sum of batch 2")
            e(f"s_cmp_eq_u32 {s(S_W)}, 2", "s_cselect_b32 s51, 1, 0")
        def owe2(blocking):
            if not hcomb:
                return
            l = self.new("o2")
            e("s_cmp_eq_u32 s51, 1", f"s_cbranch_scc0 {l}")
            if blocking:
                self.lds_wait(9, F_OC+8, 8, 4, sleep=1)
            else:
                e(f"ds_read_b32 v8, v9 offset:{F_OC+8}", "s_waitcnt lgkmcnt(0)", "v_readfirstlane_b32 s90, v8", "s_nop 0",
                  "s_cmp_ge_u32 s90, 4", f"s_cbranch_scc0 {l}")
            combine(2)
            e("s_mov_b32 s51, 0")
            self.label(l)
        self.stamp(7)
        if SL < 4:
            self.c("---- pool: claim tiles for the paired streamer and prepare their probabilities")
            e("s_mov_b32 s60, 0", "s_mov_b32 s59, 0", f"s_lshl_b32 s57, {s(S_W)}, 4", f"s_add_u32 s94, s57, {IDQ}", f"s_add_u32 s57, s57, {CLQ}",
              f"s_lshl_b32 s56, {s(S_H)}, 7", f"s_add_u32 s56, s56, {CNTBUF}",
              f"s_lshl_b32 s61, {s(S_H)}, 14", f"s_add_u32 s61, s61, {SBUF}",
              f"s_lshl_b32 s95, {s(S_W)}, 8", f"s_add_u32 s95, s95, {PSLOT}",
              "s_mov_b32 s58, 0", "s_mov_b32 s55, 0", "s_mov_b32 s52, 0", "v_mov_b32 v20, 0")
            lp, lpe = self.new("pp"), self.new("pe")
            self.label(lp)
            e("s_and_b32 s62, s60, 3", "s_lshl_b32 s62, s62, 2", "s_add_u32 s62, s62, s94", "v_mov_b32 v6, s62")
            self.lds_wait_gt(VFL, F_NV, 8, 60, sleep=1, body=(lambda: owe2(False)))
            if hcomb:
                e("s_and_b32 s62, s60, 3", "s_lshl_b32 s62, s62, 2", "s_add_u32 s62, s62, s94", "v_mov_b32 v6, s62")
            if self.A == 1:
                lnat, lnsc, lretry, lchk, lnp = (self.new(x) for x in ("nat", "nsc", "pr", "pc", "np"))
                e("ds_read_b32 v7, v6", "s_waitcnt lgkmcnt(0)", "v_readfirstlane_b32 s63, v7", "s_nop 0",
                  "s_cmp_ge_u32 s63, 128", f"s_cbranch_scc1 {lpe}",
                  "s_lshl_b32 s63, s63, 7", "s_add_u32 s63, s63, s61", "v_lshlrev_b32 v6, 3, v1")
                def ld_sc():
                    e(f"buffer_load_dwordx2 v[12:13], v6, {sr(SRD_WS,4)}, s63 offen sc1")
                self.c("claim the tile of the next item first, then fetch the scores of the item that has just started")
                e("s_mov_b32 s54, 0", "s_cmp_eq_u32 s55, 0", f"s_cbranch_scc0 {lnat}", "s_mov_b64 exec, 1", "v_mov_b32 v22, 1",
                  f"buffer_atomic_add v22, v20, {sr(SRD_WS,4)}, s56 offen sc0 sc1", "s_mov_b32 s54, 1")
                self.label(lnat)
                lns2, lw1 = self.new("ns2"), self.new("w1")
                e("s_cmp_ge_u32 s60, 1", f"s_cbranch_scc0 {lns2}", "s_mov_b64 exec, 0xffff")
                ld_sc()
                e("s_waitcnt vmcnt(1)", f"s_branch {lw1}")
                self.label(lns2)
                e("s_waitcnt vmcnt(0)")
                self.label(lw1)
                e("s_mov_b64 exec, 1", "s_cmp_eq_u32 s54, 1", f"s_cbranch_scc0 {lnsc}",
                  "v_readfirstlane_b32 s53, v22",
                  "s_and_b32 s62, s59, 3", "s_lshl_b32 s62, s62, 2", "s_add_u32 s62, s62, s57", "v_mov_b32 v7, s62", "v_mov_b32 v8, s53",
                  "s_add_u32 s59, s59, 1", "v_mov_b32 v14, s59", "ds_write_b32 v7, v8",
                  f"ds_write_b32 {v(VFL)}, v14 offset:{F_NC}",
                  f"s_cmp_ge_u32 s53, {32*(4-SL)}", "s_cselect_b32 s55, 1, s55")
                self.label(lnsc)
                e("s_cmp_ge_u32 s60, 1", f"s_cbranch_scc0 {lnp}", "s_mov_b64 exec, 0xffff", "s_waitcnt vmcnt(0)")
                self.tagcheck([13], T, T+1, lretry)
                e(f"s_branch {lchk}")
                self.label(lretry)
                self.poll(ld_sc, [13], T, T+1)
                self.label(lchk)
                self.unpack(14, 15, 12)
                e("v_subrev_f32 v14, s92, v14", "v_subrev_f32 v15, s92, v15",
                  f"v_mul_f32 v14, {hex(LOG2E)}, v14", f"v_mul_f32 v15, {hex(LOG2E)}, v15", "v_exp_f32 v14, v14", "v_exp_f32 v15, v15", "s_nop 0",
                  "v_mul_f32 v14, s93, v14", "v_mul_f32 v15, s93, v15", "v_cvt_pk_bf16_f32 v12, v14, v15",
                  "s_and_b32 s62, s52, 3", "s_lshl_b32 s62, s62, 6", "s_add_u32 s62, s62, s95",
                  "v_lshlrev_b32 v6, 2, v1", "v_add_u32 v6, s62, v6", "s_add_u32 s52, s52, 1", "v_mov_b32 v7, s52",
                  "ds_write_b32 v6, v12", "s_mov_b64 exec, 1", f"ds_write_b32 {v(VFL)}, v7 offset:{F_NP}")
                self.label(lnp)
                e("s_mov_b64 exec, -1", "s_add_u32 s60, s60, 1", f"s_branch {lp}")
            else:
                lna, lnd_, lw0, lwx, lnl = (self.new(x) for x in ("na", "ndl", "w0", "wx", "nl"))
                e("ds_read_b32 v7, v6", "s_waitcnt lgkmcnt(0)", "v_readfirstlane_b32 s63, v7", "s_nop 0",
                  "s_cmp_ge_u32 s63, 128", f"s_cbranch_scc1 {lpe}",
                  "s_lshl_b32 s63, s63, 7", "s_add_u32 s63, s63, s61", "v_lshlrev_b32 v6, 3, v1")
                def ld_sc():
                    e(f"buffer_load_dwordx2 v[12:13], v6, {sr(SRD_WS,4)}, s63 offen sc1")
                e("s_cmp_ge_u32 s60, 2", f"s_cbranch_scc0 {lnl}", "s_mov_b64 exec, 0xffff")
                ld_sc()
                self.label(lnl)
                e("s_mov_b32 s54, s58", "s_mov_b32 s58, 0", "s_cmp_eq_u32 s55, 0", f"s_cbranch_scc0 {lw0}",
                  "s_mov_b64 exec, 1", "s_and_b32 s62, s60, 1", f"s_cbranch_scc1 {lna}",
                  "v_mov_b32 v22, 1", f"buffer_atomic_add v22, v20, {sr(SRD_WS,4)}, s56 offen sc0 sc1", f"s_branch {lnd_}")
                self.label(lna)
                e("v_mov_b32 v23, 1", f"buffer_atomic_add v23, v20, {sr(SRD_WS,4)}, s56 offen sc0 sc1")
                self.label(lnd_)
                e("s_mov_b32 s58, 1", "s_waitcnt vmcnt(1)", f"s_branch {lwx}")
                self.label(lw0)
                e("s_waitcnt vmcnt(0)")
                self.label(lwx)
                self.c("deliver the claim issued one item earlier")
                lnc_, lod, lodx, lretry, lchk, lnp = (self.new(x) for x in ("ncl", "od", "odx", "pr", "pc", "np"))
                e("s_mov_b64 exec, 1", "s_cmp_eq_u32 s54, 1", f"s_cbranch_scc0 {lnc_}",
                  "s_and_b32 s62, s60, 1", f"s_cbranch_scc1 {lod}",
                  "v_readfirstlane_b32 s53, v23", f"s_branch {lodx}")
                self.label(lod)
                e("v_readfirstlane_b32 s53, v22")
                self.label(lodx)
                e("s_and_b32 s62, s59, 3", "s_lshl_b32 s62, s62, 2", "s_add_u32 s62, s62, s57", "v_mov_b32 v7, s62", "v_mov_b32 v8, s53",
                  "s_add_u32 s59, s59, 1", "v_mov_b32 v14, s59", "ds_write_b32 v7, v8",
                  f"ds_write_b32 {v(VFL)}, v14 offset:{F_NC}",
                  f"s_cmp_ge_u32 s53, {32*(4-SL)}", "s_cselect_b32 s55, 1, s55")
                self.label(lnc_)
                e("s_cmp_ge_u32 s60, 2", f"s_cbranch_scc0 {lnp}", "s_mov_b64 exec, 0xffff")
                self.tagcheck([13], T, T+1, lretry)
                e(f"s_branch {lchk}")
                self.label(lretry)
                self.poll(ld_sc, [13], T, T+1)
                self.label(lchk)
                self.unpack(14, 15, 12)
                e("v_subrev_f32 v14, s92, v14", "v_subrev_f32 v15, s92, v15",
                  f"v_mul_f32 v14, {hex(LOG2E)}, v14", f"v_mul_f32 v15, {hex(LOG2E)}, v15", "v_exp_f32 v14, v14", "v_exp_f32 v15, v15", "s_nop 0",
                  "v_mul_f32 v14, s93, v14", "v_mul_f32 v15, s93, v15", "v_cvt_pk_bf16_f32 v12, v14, v15",
                  "s_and_b32 s62, s52, 3", "s_lshl_b32 s62, s62, 6", "s_add_u32 s62, s62, s95",
                  "v_lshlrev_b32 v6, 2, v1", "v_add_u32 v6, s62, v6", "s_add_u32 s52, s52, 1", "v_mov_b32 v7, s52",
                  "ds_write_b32 v6, v12", "s_mov_b64 exec, 1", f"ds_write_b32 {v(VFL)}, v7 offset:{F_NP}")
                self.label(lnp)
                e("s_mov_b64 exec, -1", "s_add_u32 s60, s60, 1", f"s_branch {lp}")
            self.label(lpe)
            e("s_mov_b64 exec, -1")
            owe2(True)
        lhi2, ldone = self.new("hi2"), self.new("done")
        e(f"s_cmp_lt_u32 {s(S_J)}, 5", f"s_cbranch_scc0 {lhi2}")
        self.c("---- stage B: sum the 8 partials per batch, o @ wo")
        GB_ = 204
        FQ = 236
        OV, AB = 16, 28
        e("v_and_b32 v6, 15, v1", "v_lshrrev_b32 v7, 2, v6", "v_and_b32 v6, 3, v6",
          "v_lshl_add_u32 v6, v7, 3, v6", "v_lshlrev_b32 v6, 10, v6",
          "v_lshrrev_b32 v7, 4, v1", "v_lshl_add_u32 v4, v7, 4, v6",
          f"s_lshl_b32 s62, {s(S_H)}, 15", f"s_lshl_b32 s63, {s(S_W)}, 8", "s_add_u32 s62, s62, s63",
          f"s_add_u32 s62, s62, {OBUF}", "s_add_u32 s63, s62, 4096")
        e(f"s_lshl_b32 s64, {s(S_W)}, 11", f"s_add_u32 s64, s64, {RED2}", "v_lshlrev_b32 v5, 5, v1", "v_add_u32 v5, s64, v5")
        e("v_lshrrev_b32 v6, 4, v1", f"s_lshl_b32 s64, {s(S_W)}, 2", "v_add_u32 v6, s64, v6",
          "v_bfe_u32 v7, v1, 2, 2", "v_and_b32 v8, 3, v1",
          "v_lshl_add_u32 v9, v7, 4, v6", "v_lshlrev_b32 v9, 5, v9", "v_lshl_add_u32 v9, v8, 3, v9",
          "v_lshlrev_b32 v6, 13, v7", "v_lshrrev_b32 v7, 4, v1", "v_lshl_add_u32 v7, v7, 2, v8",
          "v_lshl_add_u32 v10, v7, 4, v6",
          f"s_lshl_b32 s64, {s(S_J)}, 2", f"s_add_u32 s64, s64, {s(S_W)}", "s_lshl_b32 s64, s64, 15",
          f"s_lshl_b32 s65, {s(S_H)}, 8", "s_add_u32 s64, s64, s65", f"s_add_u32 s64, s64, {ABUF}",
          f"v_mov_b32 {v(FQ+1)}, {s(S_TAG)}", f"v_mov_b32 {v(FQ+3)}, {s(S_TAG)}")
        def ld_o(js):
            def f():
                for ss in range(4):
                    e(f"buffer_load_dwordx4 {vr(GB_+16*js+4*ss,4)}, v4, {sr(SRD_WS,4)}, {'s63' if js else 's62'} offen offset:{64*ss} sc1")
            return f
        grp = [(36, ld_o(0), [GB_+4*k+3 for k in range(4)]), (38, ld_o(1), [GB_+16+4*k+3 for k in range(4)])]
        if "wbs" in self.x:
            e("s_mov_b32 s58, s62", "s_mov_b32 s59, s63")
            load_wb()
            e("s_mov_b32 s62, s58", "s_mov_b32 s63, s59")
        if "e1pre" in self.x:
            self.c("the partial outputs of batches 0..2 were published long ago")
            self.masked_gather(grp, T, init=(0x0fff0fff, 0x0fff0fff), care=(0x0fff0fff, 0x0fff0fff), sleep=8)
        self.lds_wait(VFL, F_VE, 8, 1, sleep=2)
        self.stamp(8)
        if "wbve" in self.x:
            e("s_mov_b32 s58, s62", "s_mov_b32 s59, s63")
            wb_issue()
            e("s_mov_b32 s62, s58", "s_mov_b32 s63, s59")
            self.c("(the descriptor registers become the lane masks of the gather: the loads above have been issued)")
        if "e1pre" in self.x:
            self.masked_gather(grp, T, init=(0xf000f000, 0xf000f000), care=(0xf000f000, 0xf000f000))
            if "wbve" in self.x:
                wb_perm()
        else:
            self.masked_gather(grp, T)
        self.stamp(9)
        for ss in range(4):
            for p in range(3):
                e(f"v_add_f32 {v(OV+3*ss+p)}, {v(GB_+4*ss+p)}, {v(GB_+16+4*ss+p)}")
        for perm in ("[1,0,3,2]", "[2,3,0,1]"):
            for k in range(12):
                e(f"v_add_f32_dpp {v(OV+k)}, {v(OV+k)}, {v(OV+k)} quad_perm:{perm} row_mask:0xf bank_mask:0xf")
        for k in range(6):
            e(f"v_cvt_pk_bf16_f32 {v(AB+k)}, {v(OV+2*k)}, {v(OV+2*k+1)}")
        e("s_nop 0")
        DB = GB_
        for cc in range(8):
            e(f"v_mfma_f32_16x16x32_bf16 {vr(DB+4*cc,4)}, {vr(AB,4)}, {vr(WBF+WBS*cc,4)}, 0")
        for cc in range(8):
            e(f"v_mfma_f32_16x16x16_bf16 {vr(DB+4*cc,4)}, {vr(AB+4,2)}, {vr(WBF+WBS*cc+4,2)}, {vr(DB+4*cc,4)}")
        e("s_nop 1")
        for cc in range(8):
            e(f"v_mov_b32 {v(OV+cc)}, {v(DB+4*cc)}")
            if cc < 7:
                pass
        e(f"ds_write_b128 v5, {vr(OV,4)}", f"ds_write_b128 v5, {vr(OV+4,4)} offset:16", "s_waitcnt lgkmcnt(0)", "s_barrier")
        for ww in range(4):
            e(f"ds_read_b64 {vr(OV+2*ww,2)}, v9 offset:{RED2+2048*ww}")
        e("s_waitcnt lgkmcnt(2)", f"v_pk_add_f32 {vr(OV,2)}, {vr(OV,2)}, {vr(OV+2,2)}",
          "s_waitcnt lgkmcnt(0)", f"v_pk_add_f32 {vr(OV+4,2)}, {vr(OV+4,2)}, {vr(OV+6,2)}",
          f"v_add_f32 {v(FQ)}, {v(OV)}, {v(OV+4)}", f"v_add_f32 {v(FQ+2)}, {v(OV+1)}, {v(OV+5)}",
          f"buffer_store_dwordx4 {vr(FQ,4)}, v10, {sr(SRD_WS,4)}, s64 offen sc1")
        self.stamp(10)
        e(f"s_branch {ldone}")
        self.label(lhi2)
        lnd = self.new("nd")
        e("s_cmp_eq_u32 s69, 2", f"s_cbranch_scc0 {lnd}")
        self.c("---- stage D: hh @ w_down, residual, output")
        if "defer0" in self.x:
            load_heavy(0)
        X1R = 34
        HGA, HGB = 204, 228
        e(f"v_mov_b32 v32, {v(GBR)}")
        e("v_lshrrev_b32 v6, 4, v1", f"v_mul_u32_u24 v6, {320*8}, v6", "v_and_b32 v7, 15, v1", "v_lshl_add_u32 v4, v7, 3, v6",
          "s_lshl_b32 s64, s68, 7", "s_and_b32 s65, s68, 3", "s_mul_i32 s65, s65, 10240", "s_add_u32 s64, s64, s65",
          f"s_add_u32 s64, s64, {X1BUF}")
        for i in range(6):
            e(f"v_add_u32 v6, {64*i}, v1", "v_mul_u32_u24 v7, 683, v6", "v_lshrrev_b32 v7, 16, v7",
              "v_mul_u32_u24 v8, 96, v7", "v_sub_u32 v8, v6, v8", f"v_mul_u32_u24 v7, {768*8}, v7",
              f"v_lshl_add_u32 {v(16+i)}, v8, 4, v7")
        e(f"s_mul_i32 s62, {s(S_W)}, {192*8}", f"s_add_u32 s62, s62, {HBUF}")
        if self.RH > 1:
            e("s_and_b32 s63, s68, 1", f"s_mul_i32 s63, s63, {HBUF2-HBUF}", "s_add_u32 s62, s62, s63")
        e(f"s_mul_i32 s63, {s(S_W)}, 3072", f"s_add_u32 s63, s63, {HST}", "v_lshlrev_b32 v6, 3, v1", "v_add_u32 v5, s63, v6",
          "v_and_b32 v7, 15, v1", "v_lshrrev_b32 v7, 2, v7", "v_mul_u32_u24 v7, 768, v7", "v_lshrrev_b32 v8, 4, v1",
          "v_lshl_add_u32 v7, v8, 4, v7", "v_add_u32 v9, s63, v7",
          f"s_lshl_b32 s63, {s(S_W)}, 9", f"s_add_u32 s63, s63, {RED2+8192}", "v_add_u32 v10, s63, v6",
          "v_mov_b32 v11, v6",
          "v_lshrrev_b32 v6, 4, v1", "v_mul_u32_u24 v6, 1280, v6", "v_and_b32 v7, 15, v1", "v_lshl_add_u32 v12, v7, 2, v6",
          "s_lshl_b32 s65, s68, 6")
        self.srd(SRD_B, S_OUT, 5120)
        self.lds_wait(VFL, F_VE, 8, 1, sleep=2)
        self.stamp(8)
        if "defer" in self.x:
            self.c("second half of the weight slice: while the attention tail runs elsewhere")
            e("s_mov_b32 s58, s62")
            load_heavy(1)
            e("s_mov_b32 s62, s58")
        def ld_x1d():
            e(f"buffer_load_dwordx2 {vr(X1R,2)}, v4, {sr(SRD_WS,4)}, s64 offen sc1")
        self.poll(ld_x1d, [X1R+1], T, T+1, sleep=3)
        self.stamp(11)
        self.c("x1 depends on work of every wave of the grid, so all of them have read the word at d_ws[0]:")
        self.c("wave 0 of the workgroup with d == 0 leaves this launch's tag there for the next launch")
        lep = self.new("ep")
        e("s_cmp_eq_u32 s68, 0", f"s_cbranch_scc0 {lep}", f"s_cmp_eq_u32 {s(S_W)}, 0", f"s_cbranch_scc0 {lep}",
          f"v_mov_b32 v6, {WS_EPOCH}", f"v_mov_b32 v7, {s(S_TAG)}", "s_mov_b64 exec, 1",
          f"buffer_store_dword v7, v6, {sr(SRD_WS,4)}, 0 offen sc1", "s_mov_b64 exec, -1")
        self.label(lep)
        def ld_h(base):
            def f():
                for i in range(6):
                    e(f"buffer_load_dwordx4 {vr(base+4*i,4)}, {v(16+i)}, {sr(SRD_WS,4)}, s62 offen sc1")
            return f
        def use_h(base):
            def f():
                for i in range(6):
                    e(f"v_mov_b32 {v(base+4*i+1)}, {v(base+4*i+2)}", f"ds_write_b64 v5, {vr(base+4*i,2)} offset:{512*i}")
            return f
        if "e4g" in self.x:
            self.c("gate on the first sixth of this wave's slice, then fetch the rest")
            def ld_h0():
                e(f"buffer_load_dwordx4 {vr(HGA,4)}, {v(16)}, {sr(SRD_WS,4)}, s62 offen sc1")
            self.poll(ld_h0, [HGA+1, HGA+3], T, T+1)
            def ld_hr():
                for i in range(1, 6):
                    e(f"buffer_load_dwordx4 {vr(HGA+4*i,4)}, {v(16+i)}, {sr(SRD_WS,4)}, s62 offen sc1")
            self.poll(ld_hr, [HGA+4*i+k for i in range(1, 6) for k in (1, 3)], T, T+1)
            use_h(HGA)()
        elif "e4s" in self.x:
            self.poll(ld_h(HGA), [HGA+4*i+k for i in range(6) for k in (1, 3)], T, T+1, sleep=self.e4sleep)
            use_h(HGA)()
        elif "e4m" in self.x:
            def ld_h2(k):
                def f():
                    for i in (2*k, 2*k+1):
                        e(f"buffer_load_dwordx4 {vr(HGA+4*i,4)}, {v(16+i)}, {sr(SRD_WS,4)}, s62 offen sc1")
                return f
            self.masked_gather([(sp, ld_h2(k), [HGA+8*k+1, HGA+8*k+3, HGA+8*k+5, HGA+8*k+7]) for k, sp in enumerate((36, 38, 48))], T)
            use_h(HGA)()
        else:
            self.poll2(ld_h(HGA), [HGA+4*i+k for i in range(6) for k in (1, 3)], use_h(HGA),
                       ld_h(HGB), [HGB+4*i+k for i in range(6) for k in (1, 3)], use_h(HGB), 6, T)
        self.stamp(12)
        AD = 36
        for ks in range(9):
            e(f"ds_read_b128 {vr(AD+4*ks,4)}, v9 offset:{64*ks}")
        DD2 = 24
        for ks in range(12):
            e(f"s_waitcnt lgkmcnt({min(8, 11-ks)})")
            for hi in range(2):
                c = "0" if ks == 0 else vr(DD2+4*hi, 4)
                e(f"v_mfma_f32_16x16x32_bf16 {vr(DD2+4*hi,4)}, {vr(AD+4*ks,4)}, {vr(WD+8*ks+4*hi,4)}, {c}")
            if ks + 9 < 12:
                e(f"ds_read_b128 {vr(AD+4*(ks+9),4)}, v9 offset:{64*(ks+9)}")
        e("s_nop 7", f"v_mov_b32 {v(DD2+1)}, {v(DD2+4)}", f"ds_write_b64 v10, {vr(DD2,2)}", "s_waitcnt lgkmcnt(0)", "s_barrier")
        e(f"s_cmp_eq_u32 {s(S_W)}, 0", f"s_cbranch_scc0 {ldone}")
        R = 12+4
        for ww in range(4):
            e(f"ds_read_b64 {vr(R+2*ww,2)}, v11 offset:{RED2+8192+512*ww}")
        self.unpack(24, 25, 32)
        self.unpack(26, 27, X1R)
        e("s_waitcnt lgkmcnt(2)", f"v_pk_add_f32 {vr(R,2)}, {vr(R,2)}, {vr(R+2,2)}",
          "s_waitcnt lgkmcnt(0)", f"v_pk_add_f32 {vr(R+4,2)}, {vr(R+4,2)}, {vr(R+6,2)}",
          f"v_pk_add_f32 {vr(R,2)}, {vr(R,2)}, {vr(R+4,2)}")
        self.round2(R, R+1, T)
        e(f"v_pk_mul_f32 {vr(R,2)}, {vr(R,2)}, v[24:25]")
        self.round2(R, R+1, T)
        e(f"v_pk_add_f32 {vr(R,2)}, {vr(R,2)}, v[26:27]", f"v_cvt_pk_bf16_f32 {v(R)}, {v(R)}, {v(R+1)}",
          f"buffer_store_dword {v(R)}, v12, {sr(SRD_B,4)}, s65 offen" + (" sc1" if "outsc1" in self.x else ""))
        e(f"s_branch {ldone}")
        self.label(lnd)
        lnr2 = self.new("nr2")
        e("s_cmp_eq_u32 s70, 1", f"s_cbranch_scc0 {lnr2}")
        self.c("---- reducer: sum 32 head partials, residual, publish x1")
        RGm = 184
        e("v_lshlrev_b32 v4, 4, v1", "s_lshl_b32 s62, s71, 13", f"s_add_u32 s62, s62, {ABUF}", "s_add_u32 s63, s62, 4096",
          "v_lshrrev_b32 v6, 4, v1", "v_mul_u32_u24 v6, 10240, v6", "v_and_b32 v7, 15, v1", "v_lshl_add_u32 v5, v7, 3, v6",
          "s_and_b32 s64, s71, 3", f"s_mul_i32 s64, s64, {320*8}", "s_lshr_b32 s65, s71, 2", "s_lshl_b32 s65, s65, 7",
          "s_add_u32 s64, s64, s65", f"s_add_u32 s64, s64, {X1BUF}", f"v_mov_b32 v21, {s(S_TAG)}")
        self.unpack(24, 25, RG)
        self.unpack(26, 27, RX)
        self.lds_wait(VFL, F_VE, 8, 1, sleep=2)
        self.stamp(8)
        if "rgate" in self.x:
            self.c("gate: one of four heads has published its projection for these columns")
            lg, lgd = self.new("rg"), self.new("rgd")
            e("v_lshlrev_b32 v6, 3, v1", f"v_add_u32 v6, {s(S_H)}, v6", "v_and_b32 v6, 31, v6", "v_lshlrev_b32 v6, 8, v6", "s_mov_b64 exec, 15")
            self.label(lg)
            e(f"buffer_load_dwordx2 v[14:15], v6, {sr(SRD_WS,4)}, s62 offen sc1", "s_waitcnt vmcnt(0)",
              f"v_cmp_eq_u32 vcc, {s(S_TAG)}, v15", "s_nop 1", f"s_cbranch_vccnz {lgd}", "s_sleep 2")
            self.spin_check()
            e(f"s_branch {lg}")
            self.label(lgd)
            e("s_mov_b64 exec, -1")
        def ld_a(k):
            def f():
                for i in (2*k, 2*k+1):
                    e(f"buffer_load_dwordx4 {vr(RGm+4*i,4)}, v4, {sr(SRD_WS,4)}, {'s63' if i>=4 else 's62'} offen offset:{1024*(i&3)} sc1")
            return f
        self.masked_gather([(sp, ld_a(k), [RGm+8*k+1, RGm+8*k+3, RGm+8*k+5, RGm+8*k+7]) for k, sp in enumerate((36, 38, 44, 46))], T)
        self.stamp(9)
        a0, a1 = 16, 17
        e(f"v_add_f32 {v(a0)}, {v(RGm)}, {v(RGm+4)}", f"v_add_f32 {v(a1)}, {v(RGm+2)}, {v(RGm+6)}",
          f"v_add_f32 v18, {v(RGm+8)}, {v(RGm+12)}", f"v_add_f32 v19, {v(RGm+10)}, {v(RGm+14)}")
        for i in (4, 5):
            e(f"v_add_f32 {v(a0)}, {v(a0)}, {v(RGm+4*i)}", f"v_add_f32 {v(a1)}, {v(a1)}, {v(RGm+4*i+2)}",
              f"v_add_f32 v18, v18, {v(RGm+4*(i+2))}", f"v_add_f32 v19, v19, {v(RGm+4*(i+2)+2)}")
        e(f"v_pk_add_f32 {vr(a0,2)}, {vr(a0,2)}, v[18:19]")
        for swp in ("v_permlane16_swap_b32", "v_permlane32_swap_b32"):
            e(f"v_mov_b32 v18, {v(a0)}", f"v_mov_b32 v19, {v(a1)}", "s_nop 1",
              f"{swp} v18, {v(a0)}", f"{swp} v19, {v(a1)}",
              f"v_pk_add_f32 {vr(a0,2)}, v[18:19], {vr(a0,2)}")
        self.round2(a0, a1, T)
        e(f"v_pk_mul_f32 {vr(a0,2)}, {vr(a0,2)}, v[24:25]")
        self.round2(a0, a1, T)
        e(f"v_pk_add_f32 {vr(a0,2)}, {vr(a0,2)}, v[26:27]",
          f"v_cvt_pk_bf16_f32 v20, {v(a0)}, {v(a1)}",
          f"buffer_store_dwordx2 v[20:21], v5, {sr(SRD_WS,4)}, s64 offen sc1")
        self.stamp(10)
        e(f"s_branch {ldone}")
        self.label(lnr2)
        e("s_cmp_eq_u32 s69, 1", f"s_cbranch_scc0 {ldone}")
        self.c("---- stage C: LN2, gate/up, hh")
        if "defer0" in self.x:
            load_heavy(0)
        XGA, XGB = 184, 194
        TD = 204
        AC, DC = 184, 216
        e(f"s_mul_i32 s62, {s(S_W)}, {320*8}", "s_and_b32 s63, s68, 3", "s_mul_i32 s63, s63, 10240", "s_add_u32 s62, s62, s63",
          f"s_add_u32 s62, s62, {X1BUF}", "v_lshlrev_b32 v4, 3, v1",
          f"s_lshl_b32 s63, {s(S_W)}, 10", f"s_add_u32 s63, s63, {RED2}", "v_lshlrev_b32 v10, 4, v1", "v_add_u32 v11, s63, v10",
          "v_lshrrev_b32 v6, 4, v1", f"v_mul_u32_u24 v6, {768*8}, v6", "v_and_b32 v7, 15, v1", "v_lshl_add_u32 v12, v7, 3, v6",
          "s_lshl_b32 s64, s68, 7", f"s_add_u32 s64, s64, {HBUF}", f"v_mov_b32 v33, {s(S_TAG)}")
        self.lds_wait(VFL, F_VE, 8, 1, sleep=2)
        self.stamp(8)
        if "defer" in self.x:
            self.c("second half of the weight slice: while the attention tail runs elsewhere")
            e("s_mov_b32 s58, s62")
            load_heavy(1)
            e("s_mov_b32 s62, s58")
        self.c("gate: wave 0 watches the attention projection finish, then everybody polls x1")
        lg = self.new("gate")
        lng = self.new("ngate")
        if "nogate" in self.x:
            e(f"s_branch {lng}")
        e(f"s_cmp_eq_u32 {s(S_W)}, 0", f"s_cbranch_scc0 {lg}",
          "s_lshl_b32 s63, s68, 13", f"s_add_u32 s63, s63, {ABUF}", "v_lshlrev_b32 v6, 8, v1",
          "s_mov_b32 exec_lo, -1", "s_mov_b32 exec_hi, 0")
        def ld_gate():
            e(f"buffer_load_dwordx2 v[14:15], v6, {sr(SRD_WS,4)}, s63 offen sc1")
        self.poll(ld_gate, [15], T, T+1, sleep=2)
        e("s_mov_b64 exec, -1")
        self.lds_flag_set(9, F_GT, VONE)
        self.label(lg)
        self.lds_wait(9, F_GT, 8, 1, sleep=1)
        self.label(lng)
        def ld_x1(base):
            def f():
                for i in range(5):
                    e(f"buffer_load_dwordx2 {vr(base+2*i,2)}, v4, {sr(SRD_WS,4)}, s62 offen offset:{512*i} sc1")
            return f
        def use_x1(base):
            def f():
                for i in range(5):
                    self.unpack(XF+2*i, XF+2*i+1, base+2*i)
            return f
        if "e3g" in self.x:
            def ld_x0():
                e(f"buffer_load_dwordx2 {vr(XGA,2)}, v4, {sr(SRD_WS,4)}, s62 offen sc1")
            self.poll(ld_x0, [XGA+1], T, T+1)
            def ld_xr():
                for i in range(1, 5):
                    e(f"buffer_load_dwordx2 {vr(XGA+2*i,2)}, v4, {sr(SRD_WS,4)}, s62 offen offset:{512*i} sc1")
            self.poll(ld_xr, [XGA+2*i+1 for i in range(1, 5)], T, T+1)
            use_x1(XGA)()
        elif "e3s" in self.x:
            self.poll(ld_x1(XGA), [XGA+2*i+1 for i in range(5)], T, T+1)
            use_x1(XGA)()
        else:
            self.poll2(ld_x1(XGA), [XGA+2*i+1 for i in range(5)], use_x1(XGA), ld_x1(XGB), [XGB+2*i+1 for i in range(5)], use_x1(XGB), 5, T)
        self.stamp(11)
        self.ln_fast(None, XF, TD, T)
        self.modulate_fast(XF, CC1, CSH, TD, 26)
        e("s_waitcnt lgkmcnt(0)", "s_barrier")
        self.stamp(12)
        e("s_waitcnt vmcnt(0)")
        for ks in range(5):
            e(f"ds_read_b128 {vr(AC+4*ks,4)}, v5 offset:{64*ks}")
        for ks in range(5):
            e(f"s_waitcnt lgkmcnt({4-ks})")
            for mi, base in enumerate((WG, WU)):
                for hi in range(2):
                    d = DC+8*mi+4*hi
                    c = "0" if ks == 0 else vr(d, 4)
                    e(f"v_mfma_f32_16x16x32_bf16 {vr(d,4)}, {vr(AC+4*ks,4)}, {vr(base+8*ks+4*hi,4)}, {c}")
        e("s_nop 5")
        for k in range(4):
            e(f"v_mov_b32 {v(16+k)}, {v(DC+4*k)}")
        e("ds_write_b128 v11, v[16:19]", "s_waitcnt lgkmcnt(0)", "s_barrier")
        e(f"s_cmp_eq_u32 {s(S_W)}, 0", f"s_cbranch_scc0 {ldone}")
        for ww in range(4):
            e(f"ds_read_b128 {vr(AC+4*ww,4)}, v10 offset:{RED2+1024*ww}")
        e("s_waitcnt lgkmcnt(2)", f"v_pk_add_f32 {vr(AC,2)}, {vr(AC,2)}, {vr(AC+4,2)}", f"v_pk_add_f32 {vr(AC+2,2)}, {vr(AC+2,2)}, {vr(AC+6,2)}",
          "s_waitcnt lgkmcnt(0)", f"v_pk_add_f32 {vr(AC+8,2)}, {vr(AC+8,2)}, {vr(AC+12,2)}", f"v_pk_add_f32 {vr(AC+10,2)}, {vr(AC+10,2)}, {vr(AC+14,2)}",
          f"v_pk_add_f32 {vr(AC,2)}, {vr(AC,2)}, {vr(AC+8,2)}", f"v_pk_add_f32 {vr(AC+2,2)}, {vr(AC+2,2)}, {vr(AC+10,2)}",
          f"v_cvt_pk_bf16_f32 {v(T)}, {v(AC)}, {v(AC+1)}", f"v_cvt_pk_bf16_f32 {v(T+1)}, {v(AC+2)}, {v(AC+3)}")
        self.unpack(AC, AC+1, T)
        self.unpack(AC+2, AC+3, T+1)
        e(f"v_pk_mul_f32 {vr(AC,2)}, {vr(AC,2)}, {vr(AC+2,2)}", f"v_cvt_pk_bf16_f32 v32, {v(AC)}, {v(AC+1)}",
          f"buffer_store_dwordx2 v[32:33], v12, {sr(SRD_WS,4)}, s64 offen sc1")
        if self.RH > 1:
            e(f"s_add_u32 s64, s64, {HBUF2-HBUF}", f"buffer_store_dwordx2 v[32:33], v12, {sr(SRD_WS,4)}, s64 offen sc1")
        self.label(ldone)
        self.stamp(13)
        self.stamps_store()
        if "noendwait" not in self.x:
            e("s_waitcnt vmcnt(0)")
        e("s_endpgm")


def main():
    ap = argparse.ArgumentParser()
    ap.add_argument("-o", default="cdna_kernels/" + NAME + ".s")
    ap.add_argument("-D", type=int, default=3)
    ap.add_argument("--diag", action="store_true")
    ap.add_argument("--spin", type=int, default=400000)
    ap.add_argument("-x", default="")
    ap.add_argument("-N", type=int, default=None)
    ap.add_argument("--sv", type=int, default=16)
    ap.add_argument("--sk", type=int, default=16)
    ap.add_argument("--rot", type=int, default=0)
    ap.add_argument("--stag", default="0,32")
    ap.add_argument("--sl", type=int, default=4)
    ap.add_argument("--n2", type=int, default=None)
    ap.add_argument("--rm", type=int, default=1)
    ap.add_argument("--align", type=int, default=0)
    ap.add_argument("--nt", type=int, default=None)
    ap.add_argument("--i0", type=int, default=16)
    ap.add_argument("--e4sleep", type=int, default=0)
    ap.add_argument("-A", type=int, default=2)
    ap.add_argument("--qsleep", type=int, default=2)
    ap.add_argument("--np", type=int, default=None)
    ap.add_argument("--dd", type=int, default=None)
    ap.add_argument("--rh", type=int, default=1)
    a = ap.parse_args()
    g = Gen(D=a.D, diag=a.diag, spin=a.spin, x=[t for t in a.x.split(',') if t], N=a.N, SV=a.sv, SK=a.sk, rot=a.rot, stag=tuple(int(t) for t in a.stag.split(',')), SL=a.sl, N2=a.n2, RM=a.rm, RH=a.rh, align=a.align, NT=a.nt, i0=a.i0, e4sleep=a.e4sleep, A=a.A, qsleep=a.qsleep, NP=a.np, DD=a.dd)
    open(a.o, "w").write(g.build())
    print("wrote", a.o, len(g.L), "lines")


if __name__ == "__main__":
    main()
```
